```python
import torch

def _softmax(x, axis=-1):
    return torch.softmax(x, dim=axis)

def _gelu(x):
    return torch.nn.functional.gelu(x, approximate='tanh')

def _silu(x):
    return torch.nn.functional.silu(x)

def _sigmoid(x):
    return torch.sigmoid(x)

def _layernorm(x, axis=-1, eps=1e-05):
    m = x.mean(dim=axis, keepdim=True)
    v = x.var(dim=axis, keepdim=True, unbiased=False)
    return (x - m) / torch.sqrt(v + eps)

def _scatter_add(tgt, idx, src, axis=0):
    return tgt.clone().index_add_(axis, idx, src)

def _segment_sum(src, seg, n):
    out = torch.zeros((n,) + src.shape[1:], dtype=src.dtype)
    return out.index_add_(0, seg, src)

def _pad(x, pw):
    flat = tuple((v for pair in reversed(pw) for v in pair))
    return torch.nn.functional.pad(x, flat)
kernel_name = 'adaLN_cond__mha_block_cached__glu_gated_geglu__decode'

def setup_inputs():

    _w = lambda a: (lambda t: t.to(torch.bfloat16) if t.is_floating_point() else t)(torch.as_tensor(a))

    def _A_setup():
        B, Sq, D = (1, 1, 512)
        H, Sk, Dh = (32, 65536, 128)
        return {'x': _w((lambda *s: torch.randn(*s, dtype=torch.bfloat16) * 0.05)(B, Sq, D)), 'k_cache': _w((lambda *s: torch.randn(*s, dtype=torch.bfloat16) * 0.8)(B, H, Sk, Dh)), 'v_cache': _w((lambda *s: torch.randn(*s, dtype=torch.bfloat16) * 3.2)(B, H, Sk, Dh)), 'wq': _w((lambda *s: torch.randn(*s, dtype=torch.bfloat16) * 0.8)(D, H * Dh) * D ** (-0.5)), 'wo': _w((lambda *s: torch.randn(*s, dtype=torch.bfloat16) * 3.2)(H * Dh, D) * (H * Dh) ** (-0.5))}
    _A_in = _A_setup()

    def _B_setup():
        B, S, Dm, Df = (1, 1, 512, 1792)
        return {'x': _w((lambda *s: torch.randn(*s, dtype=torch.bfloat16) * 0.05)(B, S, Dm)), 'w_gate': _w((lambda *s: torch.randn(*s, dtype=torch.bfloat16) * 3.2)(Dm, Df) * Dm ** (-0.5)), 'w_up': _w((lambda *s: torch.randn(*s, dtype=torch.bfloat16) * 3.2)(Dm, Df) * Dm ** (-0.5)), 'w_down': _w((lambda *s: torch.randn(*s, dtype=torch.bfloat16) * 3.2)(Df, Dm) * Df ** (-0.5))}
    _B_in = _B_setup()
    return {'A_x': _A_in['x'], 'A_k_cache': _A_in['k_cache'], 'A_v_cache': _A_in['v_cache'], 'A_wq': _A_in['wq'], 'A_wo': _A_in['wo'], 'B_x': _B_in['x'], 'B_w_gate': _B_in['w_gate'], 'B_w_up': _B_in['w_up'], 'B_w_down': _B_in['w_down'], 'c': _w((lambda *s: torch.randn(*s, dtype=torch.bfloat16) * 0.4)(1, 512) * 8.0), 'w_mod': _w((lambda *s: torch.randn(*s, dtype=torch.bfloat16) * 0.4)(512, 6 * 512) * 512 ** (-0.5) * 8.0)}

def reference(A_x, A_k_cache, A_v_cache, A_wq, A_wo, B_x, B_w_gate, B_w_up, B_w_down, c, w_mod):

    def _A_ref(x, k_cache, v_cache, wq, wo):
        B, Sq, D = x.shape
        H, Dh = (32, 128)
        q = (lambda x, *d: x.permute(*d))((x @ wq).reshape(B, Sq, H, Dh), 0, 2, 1, 3)
        scores = torch.einsum('bhqd,bhkd->bhqk', q, k_cache) * Dh ** (-0.5)
        p = _softmax(scores, axis=-1)
        o = torch.einsum('bhqk,bhkd->bhqd', p, v_cache)
        return (lambda x, *d: x.permute(*d))(o, 0, 2, 1, 3).reshape(B, Sq, H * Dh) @ wo

    def _B_ref(x, w_gate, w_up, w_down):
        g = torch.einsum('bsd,df->bsf', x, w_gate)
        u = torch.einsum('bsd,df->bsf', x, w_up)
        h = _gelu(g) * u
        return torch.einsum('bsf,fd->bsd', h, w_down)
    x = A_x
    mod = (_silu(c) @ w_mod).reshape(c.shape[0], 6, 1, -1)
    sa, ca, ga, sb, cb, gb = (mod[:, 0].clone(), mod[:, 1].clone(), mod[:, 2].clone(), mod[:, 3].clone(), mod[:, 4].clone(), mod[:, 5].clone())
    h = _layernorm(x, axis=-1) * (1 + ca) + sa
    x = x + ga * _A_ref(h, A_k_cache, A_v_cache, A_wq, A_wo)
    h = _layernorm(x, axis=-1) * (1 + cb) + sb
    x = x + gb * _B_ref(h, B_w_gate, B_w_up, B_w_down)
    return x
```

```python
import sys, struct
NAME = 'adaLN_cond__mha_block_cached__glu_gated_geglu__decode'

def f2u(x): return struct.unpack('<I', struct.pack('<f', x))[0]

WS_EPOCH = 0
WS_MOD   = 0x1000
WS_ML    = 0x4000
WS_QX    = 0x60000
WS_OP    = 0x10000
WS_AP    = 0x30000
WS_DP    = 0x40000
WS_TS    = 0xC0000
WS_DBG   = 0x100000
L_SC   = 0x0000
L_CNT  = 0x8000
L_MODP = 0x8100
L_HV   = 0x8400
L_QP   = 0x8C00
L_OB   = 0x9400
L_OV   = 0x9C00
L_AW   = 0x9E00
L_GU   = 0xA200
L_AS   = 0x0000
L_DW   = 0x2000
L_X1   = 0x4000
L_XF   = 0x6000
LDS_BYTES = 0xA800
NMLP = 56
NFIN = 16
SPIN_MAX = 1 << 17

class G:
    def __init__(self, ts=False, dbg=False, depth=8, nslots=48):
        self.L = []; self.ts = ts; self.dbg = dbg; self.lbl = 0
        self.depth = depth; self.nslots = nslots
    def A(self, s): self.L.append('  ' + s)
    def label(self, s): self.L.append(s + ':')
    def newlabel(self, p='L'):
        self.lbl += 1; return f'{p}_{self.lbl}'
    def nop(self, n): self.A(f's_nop {n-1}')
    def stamp(self, slot):
        if not self.ts: return
        A = self.A
        A('s_memrealtime s[96:97]'); A('s_waitcnt lgkmcnt(0)')
        A('v_mov_b32 v60, s96'); A('v_mov_b32 v61, s97')
        A(f'v_mov_b32 v62, s95')
        A('s_mov_b64 s[98:99], exec'); A('s_mov_b64 exec, 1')
        A(f'global_store_dwordx2 v62, v[60:61], s[42:43] offset:{slot*8}')
        A('s_mov_b64 exec, s[98:99]')

def rnd(g, d, s): g.A(f'v_cvt_pk_bf16_f32 v{d}, 0, v{s}')

def swap_reduce8(g, r):
    A = g.A
    g.nop(2)
    for i in range(4): A(f'v_permlane32_swap_b32 v{r[i]}, v{r[i+4]}')
    for i in range(4): A(f'v_add_f32 v{r[i]}, v{r[i]}, v{r[i+4]}')
    g.nop(2)
    for i in range(2): A(f'v_permlane16_swap_b32 v{r[i]}, v{r[i+2]}')
    for i in range(2): A(f'v_add_f32 v{r[i]}, v{r[i]}, v{r[i+2]}')

def row_allreduce(g, regs, op='add', rors=(8, 4, 2, 1)):
    for ro in rors:
        g.nop(2)
        for r in regs: g.A(f'v_{op}_f32_dpp v{r}, v{r}, v{r} row_ror:{ro} row_mask:0xf bank_mask:0xf')

def wave_allreduce(g, r, t, op='add'):
    A = g.A
    row_allreduce(g, [r], op)
    A(f'v_mov_b32 v{t}, v{r}'); g.nop(2)
    A(f'v_permlane16_swap_b32 v{r}, v{t}')
    A(f'v_{op}_f32 v{r}, v{r}, v{t}')
    A(f'v_mov_b32 v{t}, v{r}'); g.nop(2)
    A(f'v_permlane32_swap_b32 v{r}, v{t}')
    A(f'v_{op}_f32 v{r}, v{r}, v{t}')

def tile_mac(g, acc, data, pP, pL):
    for i in range(4):
        g.A(f'v_dot2c_f32_bf16 v{acc[2*i]}, {pL}, v{data+i}')
        g.A(f'v_dot2c_f32_bf16 v{acc[2*i+1]}, {pP}, v{data+i}')

def divide(g, q, a, b, t0, t1):
    A = g.A
    A(f'v_rcp_f32 v{t0}, v{b}'); g.nop(1)
    A(f'v_mul_f32 v{q}, v{a}, v{t0}')
    A(f'v_fma_f32 v{t1}, -v{q}, v{b}, v{a}')
    A(f'v_fma_f32 v{q}, v{t1}, v{t0}, v{q}')

def sigmoid_mul(g, d, x, arg, t0, t1, t2):
    A = g.A
    A(f'v_min_f32 v{t2}, 0x42fc0000, v{arg}')
    A(f'v_exp_f32 v{t2}, v{t2}'); g.nop(1)
    A(f'v_add_f32 v{t2}, 1.0, v{t2}')
    divide(g, d, x, t2, t0, t1)

LOG2E = f2u(1.4426950408889634)

def ln_stats(g, xs, mean_bf, rsd, t):
    A = g.A
    A(f'v_add_f32 v{t[0]}, v{xs[0]}, v{xs[1]}'); A(f'v_add_f32 v{t[1]}, v{xs[2]}, v{xs[3]}')
    A(f'v_add_f32 v{t[2]}, v{xs[4]}, v{xs[5]}'); A(f'v_add_f32 v{t[3]}, v{xs[6]}, v{xs[7]}')
    A(f'v_add_f32 v{t[0]}, v{t[0]}, v{t[1]}'); A(f'v_add_f32 v{t[2]}, v{t[2]}, v{t[3]}')
    A(f'v_add_f32 v{t[0]}, v{t[0]}, v{t[2]}')
    wave_allreduce(g, t[0], t[1])
    A(f'v_mul_f32 v{t[0]}, 0x3b000000, v{t[0]}')
    rnd(g, mean_bf, t[0])
    A(f'v_sub_f32 v{t[1]}, v{xs[0]}, v{t[0]}'); A(f'v_mul_f32 v{t[2]}, v{t[1]}, v{t[1]}')
    for i in range(1, 8):
        A(f'v_sub_f32 v{t[1]}, v{xs[i]}, v{t[0]}'); A(f'v_fmac_f32 v{t[2]}, v{t[1]}, v{t[1]}')
    wave_allreduce(g, t[2], t[1])
    A(f'v_mul_f32 v{t[2]}, 0x3b000000, v{t[2]}')
    rnd(g, t[2], t[2])
    A(f'v_add_f32 v{t[2]}, {hex(f2u(1e-5))}, v{t[2]}')
    rnd(g, t[2], t[2])
    A(f'v_sqrt_f32 v{t[0]}, v{t[2]}'); g.nop(1)
    A(f'v_rcp_f32 v{t[1]}, v{t[0]}')
    A(f'v_fma_f32 v{t[3]}, -v{t[0]}, v{t[0]}, v{t[2]}')
    A(f'v_mul_f32 v{t[1]}, 0.5, v{t[1]}')
    A(f'v_fma_f32 v{t[0]}, v{t[3]}, v{t[1]}, v{t[0]}')
    rnd(g, rsd, t[0])

def modulate(g, d, x, mean_bf, sd, rcp_sd, cplus, shift, t0, t1):
    A = g.A
    A(f'v_sub_f32 v{t0}, v{x}, v{mean_bf}'); rnd(g, t0, t0)
    A(f'v_mul_f32 v{d}, v{t0}, v{rcp_sd}')
    A(f'v_fma_f32 v{t1}, -v{d}, v{sd}, v{t0}')
    A(f'v_fma_f32 v{d}, v{t1}, v{rcp_sd}, v{d}')
    rnd(g, d, d)
    A(f'v_mul_f32 v{d}, v{d}, v{cplus}'); rnd(g, d, d)
    A(f'v_add_f32 v{d}, v{d}, v{shift}'); rnd(g, d, d)

def unpack8(g, dst, src):
    for i in range(4):
        g.A(f'v_lshlrev_b32 v{dst[2*i]}, 16, v{src+i}')
        g.A(f'v_and_b32 v{dst[2*i+1]}, 0xffff0000, v{src+i}')

def srd(g, d, base, nbytes):
    g.A(f's_mov_b32 s{d}, s{base}'); g.A(f's_mov_b32 s{d+1}, s{base+1}')
    g.A(f's_mov_b32 s{d+2}, {hex(nbytes)}'); g.A(f's_mov_b32 s{d+3}, 0x20000')

def spin_begin(g):
    l = g.newlabel('L_spin'); g.A(f's_mov_b32 s70, {SPIN_MAX}'); g.label(l); return l
def spin_end(g, l, sleep=1):
    done = g.newlabel('L_spin_done')
    g.A(f's_cbranch_vccz {done}')
    g.A('s_sub_u32 s70, s70, 1'); g.A('s_cmp_eq_u32 s70, 0'); g.A(f's_cbranch_scc1 {done}')
    if sleep: g.A(f's_sleep {sleep}')
    g.A(f's_branch {l}')
    g.label(done)

def build(ts=False, dbg=False, depth=8, nslots=48):
    g = G(ts, dbg, depth, nslots); A = g.A
    D = depth; NS = nslots; NX = NS - 8
    assert NX % 8 == 0 and D <= 8 or True
    g.L.append(f'; @launch grid=(256,1,1) block=(512,1,1) lds={LDS_BYTES}')
    g.L.append('.amdgcn_target "amdgcn-amd-amdhsa--gfx950"')
    g.L.append('.text'); g.L.append(f'.globl {NAME}_kernel'); g.L.append('.p2align 8')
    g.L.append(f'.type {NAME}_kernel,@function'); g.label(f'{NAME}_kernel')
    A('s_cmp_ge_u32 s2, 256'); A('s_cbranch_scc1 L_end')
    A('s_load_dwordx16 s[16:31], s[0:1], 0')
    A('s_load_dwordx8 s[32:39], s[0:1], 64')
    A('s_load_dwordx4 s[40:43], s[0:1], 96')
    A('v_lshrrev_b32 v1, 6, v0'); A('v_and_b32 v0, 63, v0')
    A('v_readfirstlane_b32 s3, v1')
    A('s_lshr_b32 s4, s2, 3'); A('s_and_b32 s5, s2, 7')
    A('s_and_b32 s6, s3, 3')
    if ts:
        A('s_lshl_b32 s95, s2, 3'); A('s_add_u32 s95, s95, s3'); A('s_lshl_b32 s95, s95, 7'); A(f's_add_u32 s95, s95, {WS_TS}')
    A('s_cmp_ge_u32 s3, 4'); A('s_cbranch_scc1 L_helper')

    VOFF = 1; Q = 4; AA = list(range(8, 16)); BB = list(range(16, 24)); T = list(range(24, 32)); PA = list(range(32, 40)); PB = list(range(40, 48))
    VL = 2; VL2 = 3; PL = 48; PL2 = 49
    def slot(i): return 64 + 4*i
    A('s_lshl_b32 s44, s4, 3'); A('s_add_u32 s44, s44, s5'); A('s_lshl_b32 s44, s44, 21')
    A('s_lshl_b32 s45, s6, 10'); A('s_add_u32 s44, s44, s45'); A('s_mov_b32 s45, s44')
    A(f'v_lshlrev_b32 v{VOFF}, 4, v0')
    A('s_waitcnt lgkmcnt(0)')
    srd(g, 8, 18, 1 << 29); srd(g, 12, 20, 1 << 29)
    g.stamp(0)
    def ld(sl, sr):
        A(f'buffer_load_dwordx4 v[{slot(sl)}:{slot(sl)+3}], v{VOFF}, s[{sr}:{sr+3}], s44 offen nt')
        A('s_add_u32 s44, s44, 4096')
    def prefetch(sr, first):
        for t in range(first, NS):
            A(f's_waitcnt vmcnt({D-1})')
            ld(8 + t if t < NX else t - NX, sr)
    for t in range(D): ld(8 + t, 8)
    A('s_barrier')
    A(f'v_lshrrev_b32 v{VL2}, 4, v0'); A(f'v_lshlrev_b32 v{VL2}, 5, v{VL2}')
    A('s_lshl_b32 s46, s6, 13'); A(f'v_add_u32 v{VL2}, s46, v{VL2}')
    A(f'v_bfe_u32 v{VL}, v0, 1, 3'); A(f'v_lshl_add_u32 v{VL}, v{VL}, 2, v{VL2}')
    A('s_mov_b32 s48, 0xcccccccc'); A('s_mov_b32 s49, 0xcccccccc')
    A(f's_mov_b32 s47, {hex(f2u(128 ** -0.5))}')
    prefetch(8, D)
    g.stamp(1)
    A('s_barrier')
    g.stamp(2)
    A(f'v_and_b32 v50, 15, v0'); A(f'v_lshlrev_b32 v50, 5, v50')
    A(f'ds_read_b128 v[8:11], v50 offset:{L_HV}'); A(f'ds_read_b128 v[12:15], v50 offset:{L_HV + 16}')
    A('s_waitcnt lgkmcnt(0)')
    for i in range(4): A(f'v_cvt_pk_bf16_f32 v{Q+i}, v{8+2*i}, v{9+2*i}')
    if dbg:
        A('s_cmp_lg_u32 s3, 0'); A('s_cbranch_scc1 L_dq')
        A(f's_lshl_b32 s50, s2, 10'); A(f's_add_u32 s50, s50, {WS_DBG}')
        A(f'v_add_u32 v51, s50, v{VOFF}')
        A(f'global_store_dwordx4 v51, v[{Q}:{Q+3}], s[42:43]')
        A('s_waitcnt vmcnt(0)')
        g.label('L_dq')
    def kdot(a, sl):
        A(f'v_mov_b32 v{a}, 0')
        for i in range(4): A(f'v_dot2c_f32_bf16 v{a}, v{slot(sl)+i}, v{Q+i}')
    def kreduce(a, off=None):
        g.nop(3)
        for j in range(4):
            A(f'v_add_f32_dpp v{T[j]}, v{a[j]}, v{a[j]} row_ror:8 row_mask:0xf bank_mask:0x3')
            A(f'v_add_f32_dpp v{T[j]}, v{a[j+4]}, v{a[j+4]} row_ror:8 row_mask:0xf bank_mask:0xc')
        for j in range(2):
            A(f'v_add_f32_dpp v{T[4+j]}, v{T[j]}, v{T[j]} row_half_mirror row_mask:0xf bank_mask:0x5')
            A(f'v_add_f32_dpp v{T[4+j]}, v{T[j+2]}, v{T[j+2]} row_half_mirror row_mask:0xf bank_mask:0xa')
        g.nop(1)
        A(f'v_add_f32_dpp v{T[6]}, v{T[4]}, v{T[4]} quad_perm:[2,3,0,1] row_mask:0xf bank_mask:0xf')
        A(f'v_add_f32_dpp v{T[7]}, v{T[5]}, v{T[5]} quad_perm:[2,3,0,1] row_mask:0xf bank_mask:0xf')
        A(f'v_cndmask_b32 v{T[6]}, v{T[6]}, v{T[7]}, s[48:49]')
        g.nop(2)
        A(f'v_add_f32_dpp v{T[6]}, v{T[6]}, v{T[6]} quad_perm:[1,0,3,2] row_mask:0xf bank_mask:0xf')
        rnd(g, T[6], T[6]); A(f'v_mul_f32 v{T[6]}, s47, v{T[6]}'); rnd(g, T[6], T[6])
        if off is None:
            A(f'ds_write_b32 v{VL}, v{T[6]}'); A(f'v_add_u32 v{VL}, 128, v{VL}')
        else:
            A(f'ds_write_b32 v{VL}, v{T[6]} offset:{off}')
    XPS = NX // 8
    NB = NX // 8
    for j in range(8):
        A(f's_waitcnt vmcnt({D-1})') if D == 8 else A(f's_waitcnt vmcnt({7})')
        kdot(AA[j], j); ld(j, 8)
        for e in range(XPS*j, XPS*(j+1)):
            kdot(BB[e % 8], 8 + e)
            if e % 8 == 7: kreduce(BB, off=(e // 8)*128)
    A(f'v_add_u32 v{VL}, {NB*128}, v{VL}')
    kreduce(AA)
    nloop = (512 - NS)//8 - 1
    A(f's_mov_b32 s50, {nloop}')
    g.label('L_kloop')
    for j in range(8):
        A('s_waitcnt vmcnt(7)')
        kdot(AA[j], j); ld(j, 8)
    kreduce(AA)
    A('s_sub_u32 s50, s50, 1'); A('s_cmp_lg_u32 s50, 0'); A('s_cbranch_scc1 L_kloop')
    A('s_mov_b32 s44, s45')
    for j in range(8):
        A('s_waitcnt vmcnt(7)')
        kdot(AA[j], j); ld(8 + j, 12)
    kreduce(AA)
    A('s_waitcnt lgkmcnt(0)')
    g.stamp(3)
    A('s_barrier')
    prefetch(12, 8)
    g.stamp(4)
    A('s_barrier')
    g.stamp(5)
    ACC = AA
    for i in range(8): A(f'v_mov_b32 v{ACC[i]}, 0')
    def pread(P, off):
        A(f'ds_read_b128 v[{P[0]}:{P[3]}], v{VL2} offset:{off}'); A(f'ds_read_b128 v[{P[4]}:{P[7]}], v{VL2} offset:{off+16}')
    def vmac(sl, p):
        A(f'v_lshrrev_b32 v{PL}, 16, v{p}')
        tile_mac(g, ACC, slot(sl), f'v{p}', f'v{PL}')
    pread(PA, NB*128); pread(PB, 0)
    PC = BB
    for j in range(8):
        A('s_waitcnt vmcnt(7) lgkmcnt(0)')
        vmac(j, PA[j]); ld(j, 12)
        for e in range(XPS*j, XPS*(j+1)):
            cur = PB if (e // 8) % 2 == 0 else PC
            nxt = PC if (e // 8) % 2 == 0 else PB
            if e % 8 == 0:
                A('s_waitcnt lgkmcnt(0)')
                if e // 8 + 1 < NB: pread(nxt, (e // 8 + 1)*128)
            vmac(8 + e, cur[e % 8])
    A(f'v_add_u32 v{VL2}, {(NB+1)*128}, v{VL2}')
    pread(PA, 0)
    A(f's_mov_b32 s50, {nloop}')
    g.label('L_vloop')
    for j in range(8):
        A('s_waitcnt vmcnt(7) lgkmcnt(0)' if j == 0 else 's_waitcnt vmcnt(7)')
        vmac(j, PA[j]); ld(j, 12)
    A(f'v_add_u32 v{VL2}, 128, v{VL2}')
    pread(PA, 0)
    A('s_sub_u32 s50, s50, 1'); A('s_cmp_lg_u32 s50, 0'); A('s_cbranch_scc1 L_vloop')
    for j in range(8):
        A(f's_waitcnt vmcnt({7-j}) lgkmcnt(0)')
        vmac(j, PA[j])
    g.stamp(6)
    g.nop(3)
    swap_reduce8(g, ACC)
    A('v_and_b32 v50, 15, v0'); A('v_lshlrev_b32 v50, 5, v50')
    A('v_lshrrev_b32 v51, 4, v0')
    A('v_lshl_add_u32 v50, v51, 3, v50')
    A('s_lshl_b32 s46, s6, 9'); A('v_add_u32 v50, s46, v50')
    A(f'ds_write_b64 v50, v[{ACC[0]}:{ACC[1]}] offset:{L_OB}')
    A('s_waitcnt lgkmcnt(0)')
    A('s_barrier')
    A('s_cmp_lg_u32 s3, 0'); A('s_cbranch_scc1 L_s_after_pub')
    A('v_lshlrev_b32 v50, 3, v0')
    for w in range(4): A(f'ds_read_b64 v[{8+2*w}:{9+2*w}], v50 offset:{L_OB + 512*w}')
    A('s_lshl_b32 s46, s4, 3'); A('s_add_u32 s46, s46, s5'); A('s_lshl_b32 s46, s46, 9'); A(f's_add_u32 s46, s46, {WS_OP}')
    A('v_add_u32 v51, s46, v50')
    A('s_waitcnt lgkmcnt(0)')
    A('v_add_f32 v8, v8, v10'); A('v_add_f32 v12, v12, v14'); A('v_add_f32 v9, v9, v11'); A('v_add_f32 v13, v13, v15')
    A('v_add_f32 v8, v8, v12'); A('v_add_f32 v9, v9, v13')
    A('v_min_u32 v8, -2, v8'); A('v_min_u32 v9, -2, v9')
    A('global_store_dwordx2 v51, v[8:9], s[42:43] sc1')
    g.stamp(7)
    g.label('L_s_after_pub')
    A('s_cmp_lg_u32 s3, 1'); A('s_cbranch_scc1 L_s_nocount')
    A('v_mov_b32 v11, 1'); A('v_mov_b32 v12, 0')
    A('s_mov_b64 exec, 1')
    A('global_atomic_add v12, v11, s[40:41] sc1')
    A('s_mov_b64 exec, -1')
    g.label('L_s_nocount')
    A(f's_cmp_ge_u32 s2, {NMLP}'); A('s_cbranch_scc1 L_end')
    A('s_cmp_lg_u32 s3, 2'); A('s_cbranch_scc1 L_gather_ap')
    A('v_mov_b32 v12, 0')
    A(f's_mov_b32 s70, {SPIN_MAX}')
    g.label('L_done_spin')
    A('global_load_dword v13, v12, s[40:41] sc1')
    A('s_waitcnt vmcnt(0)')
    A('v_readfirstlane_b32 s50, v13')
    A('s_sub_u32 s70, s70, 1'); A('s_cmp_eq_u32 s70, 0'); A('s_cbranch_scc1 L_gather_ap')
    A('s_cmp_ge_u32 s50, 256'); A('s_cbranch_scc1 L_gather_ap')
    A('s_sleep 4')
    A('s_cmp_ge_u32 s50, 232'); A('s_cbranch_scc1 L_done_spin')
    A('s_sleep 48')
    A('s_branch L_done_spin')

    g.label('L_helper')
    WQ = 64; WM = 192; CC = 52; X8 = 56; X4 = 46; TAG = 49
    A('v_lshrrev_b32 v1, 2, v0')
    A('v_and_b32 v2, 3, v0')
    A('s_lshl_b32 s7, s6, 7')
    A('v_lshl_add_u32 v3, v1, 3, s7')
    A('v_lshlrev_b32 v4, 1, v3')
    A('s_movk_i32 s50, 6144')
    A('v_mul_lo_u32 v5, v3, s50')
    A('v_lshl_add_u32 v5, v2, 4, v5')
    A('v_lshlrev_b32 v6, 4, v0')
    A('s_lshl_b32 s50, s5, 6'); A('s_lshl_b32 s51, s6, 4'); A('s_add_u32 s50, s50, s51')
    A('v_lshrrev_b32 v7, 4, v0'); A('v_lshl_add_u32 v7, v7, 2, s50')
    A('v_lshlrev_b32 v10, 1, v7')
    A('v_lshlrev_b32 v9, 13, v7'); A('v_and_b32 v11, 15, v0'); A('v_lshl_add_u32 v9, v11, 4, v9')
    A('v_mov_b32 v8, 0')
    A('s_waitcnt lgkmcnt(0)')
    g.stamp(0)
    A('s_cmp_ge_u32 s2, 96'); A('s_cbranch_scc1 L_h_noprod1')
    srd(g, 52, 36, 512*3072*2)
    A(f'global_load_dwordx4 v[{CC}:{CC+3}], v4, s[34:35]')
    A('s_lshl_b32 s50, s2, 6')
    for j in range(8):
        A(f'buffer_load_dwordx4 v[{WM+4*j}:{WM+4*j+3}], v5, s[52:55], s50 offen nt')
        if j < 7: A('s_add_u32 s50, s50, 6144')
    g.label('L_h_noprod1')
    A(f'global_load_dword v{TAG}, v8, s[42:43] sc1')
    A(f'global_load_dwordx4 v[{X8}:{X8+3}], v6, s[16:17]')
    A(f'global_load_dwordx2 v[{X4}:{X4+1}], v10, s[16:17]')
    srd(g, 56, 22, 512*4096*2)
    A('s_lshl_b32 s50, s4, 8')
    for j in range(4):
        A(f'buffer_load_dwordx4 v[{WQ+4*j}:{WQ+4*j+3}], v9, s[56:59], s50 offen nt')
        if j < 3: A('s_add_u32 s50, s50, 8192')
    A('s_cmp_lg_u32 s3, 4'); A('s_cbranch_scc1 L_h_nozero')
    A('v_lshlrev_b32 v10, 2, v0')
    A(f'ds_write_b32 v10, v8 offset:{L_CNT}')
    A('s_waitcnt lgkmcnt(0)')
    g.label('L_h_nozero')
    A('s_barrier')
    A('s_waitcnt vmcnt(4)')
    A('s_mov_b32 s50, 0x9e3779b1')
    A(f'v_mul_lo_u32 v{TAG}, v{TAG}, s50'); A(f'v_add_u32 v{TAG}, 0x7f4a7c15, v{TAG}')
    g.stamp(1)
    A('s_cmp_ge_u32 s2, 96'); A('s_cbranch_scc1 L_h_noprod2')
    CV = list(range(16, 24)); ACC = list(range(24, 32))
    unpack8(g, CV, CC)
    for i in range(8):
        A(f'v_mul_f32 v32, {hex(f2u(-1.4426950408889634))}, v{CV[i]}')
        sigmoid_mul(g, 33, CV[i], 32, 34, 35, 36)
        rnd(g, CV[i], 33)
        A(f'v_mov_b32 v{ACC[i]}, 0')
    for j in range(8):
        A(f'v_lshrrev_b32 v32, 16, v{CV[j]}')
        tile_mac(g, ACC, WM + 4*j, f'v{CV[j]}', 'v32')
    g.nop(3)
    swap_reduce8(g, ACC)
    row_allreduce(g, ACC[:2], rors=(8, 4))
    A('v_lshrrev_b32 v10, 4, v0'); A('v_lshlrev_b32 v10, 3, v10'); A('v_lshl_add_u32 v10, v2, 5, v10')
    A('s_lshl_b32 s50, s6, 7'); A('v_add_u32 v10, s50, v10')
    A(f'ds_write_b64 v10, v[{ACC[0]}:{ACC[1]}] offset:{L_MODP}')
    A('v_mov_b32 v11, 1'); A('v_mov_b32 v12, 0')
    A('s_waitcnt lgkmcnt(0)')
    A('s_mov_b64 s[60:61], exec'); A('s_mov_b64 exec, 1')
    A(f'ds_add_rtn_u32 v13, v12, v11 offset:{L_CNT}')
    A('s_mov_b64 exec, s[60:61]')
    A('s_waitcnt lgkmcnt(0)')
    A('v_readfirstlane_b32 s50, v13')
    g.nop(2)
    A('s_cmp_lg_u32 s50, 3'); A('s_cbranch_scc1 L_h_noprod2')
    A('v_and_b32 v10, 15, v0'); A('v_lshlrev_b32 v10, 3, v10')
    for w in range(4): A(f'ds_read_b64 v[{16+2*w}:{17+2*w}], v10 offset:{L_MODP + 128*w}')
    A('s_lshl_b32 s50, s2, 7'); A(f's_add_u32 s50, s50, {WS_MOD}'); A('v_add_u32 v10, s50, v10')
    A('s_waitcnt lgkmcnt(0)')
    A('v_add_f32 v16, v16, v18'); A('v_add_f32 v20, v20, v22'); A('v_add_f32 v17, v17, v19'); A('v_add_f32 v21, v21, v23')
    A('v_add_f32 v16, v16, v20'); A('v_add_f32 v17, v17, v21')
    A('v_cvt_pk_bf16_f32 v16, v16, v17'); A(f'v_mov_b32 v17, v{TAG}')
    A('s_mov_b64 s[60:61], exec'); A('s_mov_b64 exec, 0xffff')
    A('global_store_dwordx2 v10, v[16:17], s[42:43] sc1')
    A('s_mov_b64 exec, s[60:61]')
    g.stamp(2)
    g.label('L_h_noprod2')
    XS = list(range(16, 24)); MEAN = 40; SD = 41; RSD = 42
    unpack8(g, XS, X8)
    ln_stats(g, XS, MEAN, SD, [32, 33, 34, 35])
    A(f'v_rcp_f32 v{RSD}, v{SD}')
    A('v_lshlrev_b32 v10, 2, v7'); A(f'v_add_u32 v10, {WS_MOD}, v10')
    sp = spin_begin(g)
    A('global_load_dwordx4 v[24:27], v10, s[42:43] sc1')
    A('global_load_dwordx4 v[28:31], v10, s[42:43] offset:2048 sc1')
    A('s_waitcnt vmcnt(0)')
    A(f'v_cmp_ne_u32 vcc, v25, v{TAG}')
    for r in (27, 29, 31):
        A(f'v_cmp_ne_u32 s[60:61], v{r}, v{TAG}'); A('s_or_b64 vcc, vcc, s[60:61]')
    spin_end(g, sp, sleep=2)
    g.stamp(3)
    HR = [36, 37, 38, 39]
    for j in range(4):
        xs, sa, ca = X4 + j//2, 24 + 2*(j//2), 28 + 2*(j//2)
        if j % 2 == 0:
            A(f'v_lshlrev_b32 v16, 16, v{xs}'); A(f'v_lshlrev_b32 v17, 16, v{sa}'); A(f'v_lshlrev_b32 v18, 16, v{ca}')
        else:
            A(f'v_and_b32 v16, 0xffff0000, v{xs}'); A(f'v_and_b32 v17, 0xffff0000, v{sa}'); A(f'v_and_b32 v18, 0xffff0000, v{ca}')
        A('v_add_f32 v18, 1.0, v18'); rnd(g, 18, 18)
        modulate(g, HR[j], 16, MEAN, SD, RSD, 18, 17, 32, 33)
    ACC = list(range(24, 32))
    for i in range(8): A(f'v_mov_b32 v{ACC[i]}, 0')
    for j in range(4):
        A(f'v_lshrrev_b32 v{32 + j%2}, 16, v{HR[j]}')
        tile_mac(g, ACC, WQ + 4*j, f'v{HR[j]}', f'v{32 + j%2}')
    A('v_and_b32 v10, 15, v0'); A('v_lshlrev_b32 v10, 5, v10'); A('v_lshrrev_b32 v11, 4, v0'); A('v_lshl_add_u32 v10, v11, 3, v10')
    A('s_lshl_b32 s50, s6, 9'); A('v_add_u32 v10, s50, v10')
    swap_reduce8(g, ACC)
    A(f'ds_write_b64 v10, v[{ACC[0]}:{ACC[1]}] offset:{L_QP}')
    A('v_mov_b32 v11, 1'); A('v_mov_b32 v12, 0')
    A('s_waitcnt lgkmcnt(0)')
    A('s_mov_b64 s[60:61], exec'); A('s_mov_b64 exec, 1')
    A(f'ds_add_rtn_u32 v13, v12, v11 offset:{L_CNT + 8}')
    A('s_mov_b64 exec, s[60:61]')
    A('v_lshlrev_b32 v10, 3, v0')
    A('s_waitcnt lgkmcnt(0)')
    A('v_readfirstlane_b32 s50, v13')
    g.nop(2)
    A('s_cmp_lg_u32 s50, 3'); A('s_cbranch_scc1 L_h_noqpub')
    for w in range(4): A(f'ds_read_b64 v[{16+2*w}:{17+2*w}], v10 offset:{L_QP + 512*w}')
    A('s_lshl_b32 s50, s2, 10'); A(f's_add_u32 s50, s50, {WS_QX}'); A('v_add_u32 v10, s50, v6')
    A('s_waitcnt lgkmcnt(0)')
    A('v_add_f32 v16, v16, v18'); A('v_add_f32 v20, v20, v22'); A('v_add_f32 v17, v17, v19'); A('v_add_f32 v21, v21, v23')
    A('v_add_f32 v16, v16, v20'); A('v_add_f32 v18, v17, v21')
    A(f'v_mov_b32 v17, v{TAG}'); A(f'v_mov_b32 v19, v{TAG}')
    A('global_store_dwordx4 v10, v[16:19], s[42:43] sc1')
    g.label('L_h_noqpub')
    A('s_lshl_b32 s50, s4, 13'); A('s_lshl_b32 s51, s6, 8'); A('s_add_u32 s50, s50, s51'); A(f's_add_u32 s50, s50, {WS_QX}')
    A('v_lshrrev_b32 v10, 3, v0'); A('v_lshlrev_b32 v10, 10, v10'); A('v_and_b32 v11, 7, v0'); A('v_lshl_add_u32 v10, v11, 5, v10')
    A('v_add_u32 v10, s50, v10')
    A('v_lshlrev_b32 v12, 4, v11'); A('v_bfe_u32 v13, v0, 5, 1'); A('v_lshl_add_u32 v12, v13, 3, v12')
    A('v_bfe_u32 v13, v0, 4, 1'); A('v_lshl_add_u32 v12, v13, 2, v12'); A('s_lshl_b32 s51, s6, 7'); A('v_add_u32 v12, s51, v12')
    sp = spin_begin(g)
    A('global_load_dwordx4 v[24:27], v10, s[42:43] sc1')
    A('global_load_dwordx4 v[28:31], v10, s[42:43] offset:16 sc1')
    A('s_waitcnt vmcnt(0)')
    A(f'v_cmp_ne_u32 vcc, v25, v{TAG}')
    for r in (27, 29, 31):
        A(f'v_cmp_ne_u32 s[60:61], v{r}, v{TAG}'); A('s_or_b64 vcc, vcc, s[60:61]')
    spin_end(g, sp, sleep=2)
    A('v_permlane32_swap_b32 v24, v28'); A('v_permlane32_swap_b32 v26, v30')
    A('v_add_f32 v24, v24, v28'); A('v_add_f32 v26, v26, v30'); g.nop(2)
    A('v_permlane16_swap_b32 v24, v26'); A('v_add_f32 v24, v24, v26'); g.nop(2)
    A('v_add_f32_dpp v24, v24, v24 row_ror:8 row_mask:0xf bank_mask:0xf')
    A(f'ds_write_b32 v12, v24 offset:{L_HV}')
    A('s_waitcnt lgkmcnt(0)')
    g.stamp(4)
    A('s_barrier')
    A('s_cmp_lg_u32 s3, 7'); A('s_cbranch_scc1 L_h_noclear')
    for i in range(4): A(f'v_mov_b32 v{16+i}, -1')
    A('s_lshl_b32 s50, s4, 3'); A('s_add_u32 s50, s50, s5')
    A('s_lshl_b32 s51, s50, 9'); A(f's_add_u32 s51, s51, {WS_OP}')
    A('v_lshlrev_b32 v10, 3, v0'); A('v_add_u32 v10, s51, v10')
    A('global_store_dwordx2 v10, v[16:17], s[42:43] sc1')
    A('s_lshl_b32 s51, s50, 8'); A(f's_add_u32 s51, s51, {WS_AP}')
    A('v_lshlrev_b32 v10, 2, v0'); A('v_add_u32 v10, s51, v10')
    A('global_store_dword v10, v16, s[42:43] sc1')
    A(f's_cmp_ge_u32 s2, {NMLP}'); A('s_cbranch_scc1 L_h_noclear2')
    A('s_lshl_b32 s51, s2, 11'); A(f's_add_u32 s51, s51, {WS_DP}')
    A('v_add_u32 v10, s51, v6')
    A('global_store_dwordx4 v10, v[16:19], s[42:43] sc1')
    A('global_store_dwordx4 v10, v[16:19], s[42:43] offset:1024 sc1')
    g.label('L_h_noclear2')
    g.label('L_h_noclear')
    WO = 64; WG = 80; WU = 112; WD = 144
    GA = list(range(176, 184)); SB = list(range(184, 192)); CB = list(range(224, 232)); XF = list(range(232, 240)); GBR = 240
    srd(g, 52, 24, 4096*512*2)
    A('v_lshrrev_b32 v10, 3, v0'); A('v_lshlrev_b32 v10, 2, v10')
    A('s_lshl_b32 s50, s4, 7'); A('s_lshl_b32 s51, s6, 5'); A('s_add_u32 s50, s50, s51')
    A('v_add_u32 v10, s50, v10'); A('v_lshlrev_b32 v10, 10, v10')
    A('v_and_b32 v11, 7, v0'); A('v_lshl_add_u32 v10, v11, 4, v10')
    A('s_lshl_b32 s50, s5, 7')
    for j in range(4):
        A(f'buffer_load_dwordx4 v[{WO+4*j}:{WO+4*j+3}], v10, s[52:55], s50 offen offset:{1024*j} nt')
    A(f's_cmp_ge_u32 s2, {NMLP}'); A('s_cbranch_scc1 L_h_nomlpw')
    srd(g, 52, 28, 512*1792*2); srd(g, 56, 30, 512*1792*2)
    A('s_movk_i32 s50, 3584'); A('v_mul_lo_u32 v10, v3, s50'); A('v_lshl_add_u32 v10, v2, 4, v10')
    A('s_lshl_b32 s50, s2, 6')
    for j in range(8):
        A(f'buffer_load_dwordx4 v[{WG+4*j}:{WG+4*j+3}], v10, s[52:55], s50 offen nt')
        A(f'buffer_load_dwordx4 v[{WU+4*j}:{WU+4*j+3}], v10, s[56:59], s50 offen nt')
        if j < 7: A('s_add_u32 s50, s50, 3584')
    srd(g, 52, 32, 1792*512*2)
    A('s_lshl_b32 s50, s2, 5'); A('s_lshl_b32 s51, s6, 3'); A('s_add_u32 s50, s50, s51'); A('s_lshl_b32 s50, s50, 10')
    for j in range(8):
        if j == 4: A('s_add_u32 s50, s50, 4096')
        A(f'buffer_load_dwordx4 v[{WD+4*j}:{WD+4*j+3}], v6, s[52:55], s50 offen offset:{1024*(j%4)} nt')
    A('v_lshlrev_b32 v10, 5, v0'); A(f'v_add_u32 v10, {WS_MOD + 4096}, v10')
    A(f'v_add_u32 v11, 4096, v10')
    A('v_bfe_u32 v12, v0, 1, 4'); A('v_lshlrev_b32 v12, 3, v12'); A('s_and_b32 s50, s2, 15'); A('s_lshl_b32 s50, s50, 7')
    A(f's_add_u32 s50, s50, {WS_MOD + 1280*8}'); A('v_add_u32 v12, s50, v12')
    sp = spin_begin(g)
    A('global_load_dwordx4 v[16:19], v10, s[42:43] sc1'); A('global_load_dwordx4 v[20:23], v10, s[42:43] offset:16 sc1')
    A('global_load_dwordx4 v[24:27], v10, s[42:43] offset:2048 sc1'); A('global_load_dwordx4 v[28:31], v10, s[42:43] offset:2064 sc1')
    A('global_load_dwordx4 v[32:35], v11, s[42:43] sc1'); A('global_load_dwordx4 v[36:39], v11, s[42:43] offset:16 sc1')
    A('global_load_dwordx2 v[44:45], v12, s[42:43] sc1')
    A('s_waitcnt vmcnt(0)')
    A(f'v_cmp_ne_u32 vcc, v45, v{TAG}')
    for i in range(12):
        A(f'v_cmp_ne_u32 s[60:61], v{17+2*i}, v{TAG}'); A('s_or_b64 vcc, vcc, s[60:61]')
    spin_end(g, sp, sleep=8)
    for dst, src in ((GA, 16), (SB, 24), (CB, 32)):
        for i in range(4):
            A(f'v_lshlrev_b32 v{dst[2*i]}, 16, v{src+2*i}'); A(f'v_and_b32 v{dst[2*i+1]}, 0xffff0000, v{src+2*i}')
    for i in range(8):
        A(f'v_add_f32 v{CB[i]}, 1.0, v{CB[i]}'); rnd(g, CB[i], CB[i])
    unpack8(g, XF, X8)
    A('v_and_b32 v12, 1, v0'); A('v_cmp_eq_u32 vcc, 1, v12')
    A('v_lshlrev_b32 v13, 16, v44'); A('v_and_b32 v14, 0xffff0000, v44')
    A(f'v_cndmask_b32 v{GBR}, v13, v14, vcc')
    g.label('L_h_nomlpw')
    A('s_waitcnt vmcnt(0)')
    g.stamp(5)
    A('s_barrier')
    g.stamp(6)
    E = 192
    A('s_lshl_b32 s50, s6, 13'); A('v_add_u32 v10, s50, v6')
    for i in range(8): A(f'ds_read_b128 v[{E+4*i}:{E+4*i+3}], v10 offset:{1024*i}')
    A('s_waitcnt lgkmcnt(0)')
    A(f'v_max3_f32 v16, v{E}, v{E+1}, v{E+2}')
    for i in range(3, 31, 2): A(f'v_max3_f32 v16, v16, v{E+i}, v{E+i+1}')
    A(f'v_max_f32 v16, v16, v{E+31}')
    wave_allreduce(g, 16, 17, 'max')
    A(f's_mov_b32 s51, {hex(LOG2E)}')
    A('v_mov_b32 v17, 0'); A('v_mov_b32 v18, 0')
    for i in range(32):
        A(f'v_sub_f32 v{E+i}, v{E+i}, v16'); A(f'v_mul_f32 v{E+i}, s51, v{E+i}'); A(f'v_exp_f32 v{E+i}, v{E+i}')
        if i: A(f'v_add_f32 v{17 + (i-1)%2}, v{17 + (i-1)%2}, v{E+i-1}')
    g.nop(1)
    A(f'v_add_f32 v18, v18, v{E+31}'); A('v_add_f32 v17, v17, v18')
    wave_allreduce(g, 17, 18)
    A('s_lshl_b32 s50, s4, 9'); A(f's_add_u32 s50, s50, {WS_ML}')
    A('s_lshl_b32 s52, s5, 6'); A('s_lshl_b32 s53, s6, 4'); A('s_add_u32 s52, s52, s53'); A('s_add_u32 s52, s52, s50')
    A('v_mov_b32 v11, s52')
    A('v_mov_b32 v24, v16'); A(f'v_mov_b32 v25, v{TAG}'); A('v_mov_b32 v26, v17'); A(f'v_mov_b32 v27, v{TAG}')
    A('s_mov_b64 s[60:61], exec'); A('s_mov_b64 exec, 1')
    A('global_store_dwordx4 v11, v[24:27], s[42:43] sc1')
    A('s_mov_b64 exec, s[60:61]')
    A('v_and_b32 v11, 31, v0'); A('v_lshlrev_b32 v11, 4, v11'); A('v_add_u32 v11, s50, v11')
    g.stamp(7)
    sp = spin_begin(g)
    A('global_load_dwordx4 v[28:31], v11, s[42:43] sc1')
    A('s_waitcnt vmcnt(0)')
    A(f'v_cmp_ne_u32 vcc, v29, v{TAG}'); A(f'v_cmp_ne_u32 s[60:61], v31, v{TAG}'); A('s_or_b64 vcc, vcc, s[60:61]')
    spin_end(g, sp, sleep=8)
    A('v_mov_b32 v20, v28'); A('v_mov_b32 v21, v30')
    g.stamp(8)
    A('v_mov_b32 v22, v20')
    row_allreduce(g, [22], 'max')
    A('v_mov_b32 v23, v22'); g.nop(2); A('v_permlane16_swap_b32 v22, v23'); A('v_max_f32 v22, v22, v23')
    A('v_sub_f32 v20, v20, v22'); A('v_mul_f32 v20, s51, v20'); A('v_exp_f32 v20, v20'); g.nop(1)
    A('v_mul_f32 v20, v20, v21')
    row_allreduce(g, [20])
    A('v_mov_b32 v23, v20'); g.nop(2); A('v_permlane16_swap_b32 v20, v23'); A('v_add_f32 v20, v20, v23')
    A('v_sub_f32 v16, v16, v22'); A('v_mul_f32 v16, s51, v16'); A('v_exp_f32 v16, v16'); g.nop(1)
    divide(g, 21, 16, 20, 23, 24)
    for i in range(32):
        A(f'v_mul_f32 v{E+i}, v{E+i}, v21'); rnd(g, E+i, E+i)
        if i % 4 == 3: A(f'ds_write_b128 v10, v[{E+i-3}:{E+i}] offset:{1024*(i//4)}')
    A('s_waitcnt lgkmcnt(0)')
    g.stamp(9)
    A('s_barrier')
    A('s_lshl_b32 s50, s4, 12'); A('s_lshl_b32 s51, s6, 7'); A('s_add_u32 s50, s50, s51'); A(f's_add_u32 s50, s50, {WS_OP}')
    A('v_lshrrev_b32 v10, 3, v0'); A('v_lshlrev_b32 v10, 9, v10'); A('v_and_b32 v11, 7, v0'); A('v_lshl_add_u32 v10, v11, 4, v10')
    A('v_add_u32 v10, s50, v10')
    A('v_lshlrev_b32 v12, 4, v11'); A('v_bfe_u32 v13, v0, 5, 1'); A('v_lshl_add_u32 v12, v13, 3, v12')
    A('v_bfe_u32 v13, v0, 4, 1'); A('v_lshl_add_u32 v12, v13, 2, v12'); A('v_add_u32 v12, s51, v12')
    A('v_lshrrev_b32 v13, 3, v0'); A('v_lshlrev_b32 v13, 4, v13'); A('v_add_u32 v13, s51, v13')
    A('v_lshrrev_b32 v14, 4, v0'); A('v_lshlrev_b32 v14, 3, v14'); A('v_lshl_add_u32 v14, v11, 5, v14')
    A('s_lshl_b32 s52, s6, 8'); A('v_add_u32 v14, s52, v14')
    ACC = list(range(24, 32))
    for i in range(8): A(f'v_mov_b32 v{ACC[i]}, 0')
    A('s_barrier')
    g.stamp(10)
    sp = spin_begin(g)
    A('global_load_dwordx4 v[16:19], v10, s[42:43] sc1')
    A('s_waitcnt vmcnt(0)')
    A('v_max3_u32 v20, v16, v17, v18'); A('v_max_u32 v20, v20, v19'); A('v_cmp_eq_u32 vcc, -1, v20')
    spin_end(g, sp, sleep=4)
    g.stamp(11)
    A('v_permlane32_swap_b32 v16, v18'); A('v_permlane32_swap_b32 v17, v19')
    A('v_add_f32 v16, v16, v18'); A('v_add_f32 v17, v17, v19'); g.nop(2)
    A('v_permlane16_swap_b32 v16, v17'); A('v_add_f32 v16, v16, v17'); g.nop(2)
    A('v_add_f32_dpp v16, v16, v16 row_ror:8 row_mask:0xf bank_mask:0xf')
    rnd(g, 16, 16)
    A(f'ds_write_b32 v12, v16 offset:{L_OV}')
    A('s_waitcnt lgkmcnt(0)')
    A(f'ds_read_b128 v[16:19], v13 offset:{L_OV}')
    A('s_waitcnt lgkmcnt(0)')
    if dbg:
        A(f's_lshl_b32 s50, s2, 10'); A(f's_add_u32 s50, s50, {WS_DBG + 512}')
        A(f'v_add_u32 v21, s50, v13')
        A(f'global_store_dwordx4 v21, v[16:19], s[42:43]')
    for j in range(4):
        A(f'v_lshrrev_b32 v{20 + j%2}, 16, v{16+j}')
        tile_mac(g, ACC, WO + 4*j, f'v{16+j}', f'v{20 + j%2}')
    g.nop(3)
    swap_reduce8(g, ACC)
    row_allreduce(g, ACC[:2], rors=(8,))
    A(f'ds_write_b64 v14, v[{ACC[0]}:{ACC[1]}] offset:{L_AW}')
    A('v_mov_b32 v11, 1'); A('v_mov_b32 v12, 0')
    A('s_waitcnt lgkmcnt(0)')
    A('s_mov_b64 s[60:61], exec'); A('s_mov_b64 exec, 1')
    A(f'ds_add_rtn_u32 v13, v12, v11 offset:{L_CNT + 4}')
    A('s_mov_b64 exec, s[60:61]')
    A('v_lshlrev_b32 v10, 2, v0')
    A('s_waitcnt lgkmcnt(0)')
    A('v_readfirstlane_b32 s50, v13')
    g.nop(2)
    A('s_cmp_lg_u32 s50, 3'); A('s_cbranch_scc1 L_h_noap')
    for w in range(4): A(f'ds_read_b32 v{16+w}, v10 offset:{L_AW + 256*w}')
    A('s_lshl_b32 s50, s4, 3'); A('s_add_u32 s50, s50, s5'); A('s_lshl_b32 s50, s50, 8'); A(f's_add_u32 s50, s50, {WS_AP}')
    A('v_add_u32 v10, s50, v10')
    A('s_waitcnt lgkmcnt(0)')
    A('v_add_f32 v16, v16, v17'); A('v_add_f32 v18, v18, v19'); A('v_add_f32 v16, v16, v18')
    A('v_min_u32 v16, -2, v16')
    A('global_store_dword v10, v16, s[42:43] sc1')
    g.stamp(12)
    g.label('L_h_noap')
    A(f's_cmp_ge_u32 s2, {NMLP}'); A('s_cbranch_scc1 L_end')
    g.label('L_gather_ap')
    A('s_and_b32 s50, s3, 1'); A('s_lshl_b32 s50, s50, 10'); A('s_lshr_b32 s51, s3, 1'); A('s_lshl_b32 s52, s51, 14')
    A('s_add_u32 s52, s52, s50'); A(f's_add_u32 s52, s52, {WS_AP + 4096}')
    A('v_lshlrev_b32 v10, 4, v0'); A('v_add_u32 v11, s52, v10'); A('v_add_u32 v12, 8192, v11')
    A('s_lshl_b32 s51, s51, 11'); A('s_add_u32 s51, s51, s50'); A('v_add_u32 v13, s51, v10')
    A('s_barrier')
    sp = spin_begin(g)
    for i in range(8):
        A(f'global_load_dwordx4 v[{16+4*i}:{19+4*i}], v{11 + i//4}, s[42:43] offset:{(i%4)*2048 - 4096} sc1')
    A('s_waitcnt vmcnt(0)')
    A('v_max3_u32 v14, v16, v17, v18')
    for i in range(19, 47, 2): A(f'v_max3_u32 v14, v14, v{i}, v{i+1}')
    A('v_max_u32 v14, v14, v47'); A('v_cmp_eq_u32 vcc, -1, v14')
    spin_end(g, sp)
    g.stamp(13)
    for st in (16, 8, 4):
        for i in range(st): A(f'v_add_f32 v{16+i}, v{16+i}, v{16+i+st}')
    A(f'ds_write_b128 v13, v[16:19] offset:{L_AS}')
    A('s_waitcnt lgkmcnt(0)')
    A('s_barrier')
    A('s_cmp_lt_u32 s3, 4'); A('s_cbranch_scc1 L_end')
    A('v_lshlrev_b32 v10, 5, v0')
    for p in range(4):
        A(f'ds_read_b128 v[{16+8*p}:{19+8*p}], v10 offset:{L_AS + 2048*p}'); A(f'ds_read_b128 v[{20+8*p}:{23+8*p}], v10 offset:{L_AS + 2048*p + 16}')
    A('s_waitcnt lgkmcnt(0)')
    X1 = list(range(16, 24))
    for i in range(8):
        A(f'v_add_f32 v{16+i}, v{16+i}, v{24+i}'); A(f'v_add_f32 v{32+i}, v{32+i}, v{40+i}'); A(f'v_add_f32 v{16+i}, v{16+i}, v{32+i}')
        rnd(g, 16+i, 16+i); A(f'v_mul_f32 v{16+i}, v{GA[i]}, v{16+i}'); rnd(g, 16+i, 16+i)
        A(f'v_add_f32 v{16+i}, v{XF[i]}, v{16+i}'); rnd(g, 16+i, 16+i)
    A(f'ds_write_b128 v10, v[16:19] offset:{L_XF}'); A(f'ds_write_b128 v10, v[20:23] offset:{L_XF + 16}')
    ln_stats(g, X1, MEAN, SD, [32, 33, 34, 35])
    A(f'v_rcp_f32 v{RSD}, v{SD}'); g.nop(1)
    for i in range(8): modulate(g, 24 + i, X1[i], MEAN, SD, RSD, CB[i], SB[i], 32 + 2*(i%2), 33 + 2*(i%2))
    A('s_lshl_b32 s50, s6, 11'); A('v_add_u32 v11, s50, v10')
    A(f'ds_write_b128 v11, v[24:27] offset:{L_X1}'); A(f'ds_write_b128 v11, v[28:31] offset:{L_X1 + 16}')
    A('v_lshlrev_b32 v12, 2, v3'); A('v_add_u32 v12, s50, v12')
    A('s_waitcnt lgkmcnt(0)')
    A(f'ds_read_b128 v[16:19], v12 offset:{L_X1}'); A(f'ds_read_b128 v[20:23], v12 offset:{L_X1 + 16}')
    AG = list(range(24, 32)); AU = list(range(32, 40))
    for i in range(8): A(f'v_mov_b32 v{AG[i]}, 0'); A(f'v_mov_b32 v{AU[i]}, 0')
    A('s_waitcnt lgkmcnt(0)')
    if dbg:
        A('s_cmp_lg_u32 s2, 0'); A('s_cbranch_scc1 L_dh2')
        A(f'v_lshlrev_b32 v44, 2, v3'); A(f'v_add_u32 v44, {WS_DBG + 0x80000}, v44')
        A(f'global_store_dwordx4 v44, v[16:19], s[42:43]'); A(f'global_store_dwordx4 v44, v[20:23], s[42:43] offset:16')
        g.label('L_dh2')
    for j in range(8):
        A(f'v_lshrrev_b32 v{44 + j%2}, 16, v{16+j}')
        tile_mac(g, AG, WG + 4*j, f'v{16+j}', f'v{44 + j%2}')
        tile_mac(g, AU, WU + 4*j, f'v{16+j}', f'v{44 + j%2}')
    g.nop(3)
    swap_reduce8(g, AG); swap_reduce8(g, AU)
    row_allreduce(g, AG[:2] + AU[:2], rors=(8, 4))
    A('v_lshrrev_b32 v10, 4, v0'); A('v_lshlrev_b32 v10, 3, v10'); A('v_lshl_add_u32 v10, v2, 5, v10')
    A('s_lshl_b32 s50, s6, 8'); A('v_add_u32 v10, s50, v10')
    A(f'ds_write_b64 v10, v[{AG[0]}:{AG[1]}] offset:{L_GU}'); A(f'ds_write_b64 v10, v[{AU[0]}:{AU[1]}] offset:{L_GU + 128}')
    A('v_and_b32 v11, 7, v0'); A('v_lshlrev_b32 v11, 2, v11'); A('s_lshl_b32 s50, s6, 5'); A('v_add_u32 v11, s50, v11')
    A('s_waitcnt lgkmcnt(0)')
    A('s_barrier')
    for w in range(4):
        A(f'ds_read_b32 v{16+w}, v11 offset:{L_GU + 256*w}'); A(f'ds_read_b32 v{20+w}, v11 offset:{L_GU + 256*w + 128}')
    for i in range(8): A(f'v_mov_b32 v{AG[i]}, 0')
    A('s_waitcnt lgkmcnt(0)')
    A('v_add_f32 v16, v16, v17'); A('v_add_f32 v18, v18, v19'); A('v_add_f32 v20, v20, v21'); A('v_add_f32 v22, v22, v23')
    A('v_add_f32 v16, v16, v18'); A('v_add_f32 v20, v20, v22')
    rnd(g, 16, 16); rnd(g, 20, 20)
    A('v_mul_f32 v17, v16, v16'); A('v_mul_f32 v17, v17, v16')
    A(f'v_mov_b32 v18, {hex(f2u(0.044715))}'); A('v_fma_f32 v17, v17, v18, v16')
    A(f'v_mul_f32 v17, {hex(f2u(-2*0.7978845608028654*1.4426950408889634))}, v17')
    sigmoid_mul(g, 18, 16, 17, 19, 21, 22)
    rnd(g, 18, 18); A('v_mul_f32 v18, v18, v20'); rnd(g, 18, 18)
    g.nop(1)
    for j in range(8): A(f'v_readlane_b32 s{72+j}, v18, {j}')
    g.nop(1)
    for j in range(8): A(f's_lshr_b32 s{80+j}, s{72+j}, 16')
    for j in range(8): tile_mac(g, AG, WD + 4*j, f's{72+j}', f's{80+j}')
    A('v_lshlrev_b32 v10, 5, v0'); A('s_lshl_b32 s50, s6, 11'); A('v_add_u32 v10, s50, v10')
    g.nop(1)
    A(f'ds_write_b128 v10, v[{AG[0]}:{AG[3]}] offset:{L_DW}'); A(f'ds_write_b128 v10, v[{AG[4]}:{AG[7]}] offset:{L_DW + 16}')
    A('v_lshlrev_b32 v11, 3, v0'); A('s_lshl_b32 s50, s6, 9'); A('v_add_u32 v11, s50, v11')
    A('s_lshl_b32 s51, s2, 11'); A(f's_add_u32 s51, s51, {WS_DP}'); A('v_add_u32 v12, s51, v11')
    A('s_waitcnt lgkmcnt(0)')
    A('s_barrier')
    for w in range(4): A(f'ds_read_b64 v[{16+2*w}:{17+2*w}], v11 offset:{L_DW + 2048*w}')
    A('s_waitcnt lgkmcnt(0)')
    A('v_add_f32 v16, v16, v18'); A('v_add_f32 v20, v20, v22'); A('v_add_f32 v17, v17, v19'); A('v_add_f32 v21, v21, v23')
    A('v_add_f32 v16, v16, v20'); A('v_add_f32 v17, v17, v21')
    A('v_min_u32 v16, -2, v16'); A('v_min_u32 v17, -2, v17')
    A('global_store_dwordx2 v12, v[16:17], s[42:43] sc1')
    g.stamp(14)
    A(f's_cmp_ge_u32 s2, {NFIN}'); A('s_cbranch_scc1 L_end')
    A('s_cmp_lg_u32 s3, 4'); A('s_cbranch_scc1 L_end')
    A('v_lshrrev_b32 v10, 3, v0'); A('v_lshlrev_b32 v10, 11, v10'); A('v_and_b32 v11, 7, v0'); A('v_lshl_add_u32 v10, v11, 4, v10')
    A('s_lshl_b32 s50, s2, 7'); A(f's_add_u32 s50, s50, {WS_DP}'); A('v_add_u32 v10, s50, v10')
    for i in range(1, 7): A(f'v_add_u32 v{52+i}, {16384*i}, v10')
    A('v_mov_b32 v52, v10')
    A('v_lshlrev_b32 v12, 2, v11'); A('v_bfe_u32 v13, v0, 5, 1'); A('v_lshl_add_u32 v12, v13, 1, v12')
    A('v_bfe_u32 v13, v0, 4, 1'); A('v_add_u32 v12, v13, v12')
    A('v_lshlrev_b32 v13, 2, v12')
    A(f'ds_bpermute_b32 v14, v13, v{GBR}')
    A('s_lshl_b32 s50, s2, 7'); A('v_add_u32 v13, s50, v13')
    A(f'ds_read_b32 v15, v13 offset:{L_XF}')
    A('v_lshlrev_b32 v12, 1, v12'); A('s_lshl_b32 s50, s2, 6'); A('v_add_u32 v12, s50, v12')
    sp = spin_begin(g)
    for i in range(7): A(f'global_load_dwordx4 v[{16+4*i}:{19+4*i}], v{52+i}, s[42:43] sc1')
    A('s_waitcnt vmcnt(0)')
    A('v_max3_u32 v51, v16, v17, v18')
    for i in range(19, 43, 2): A(f'v_max3_u32 v51, v51, v{i}, v{i+1}')
    A('v_max_u32 v51, v51, v43'); A('v_cmp_eq_u32 vcc, -1, v51')
    spin_end(g, sp)
    for i in range(4):
        A(f'v_add_f32 v{16+i}, v{16+i}, v{20+i}'); A(f'v_add_f32 v{24+i}, v{24+i}, v{28+i}'); A(f'v_add_f32 v{32+i}, v{32+i}, v{36+i}')
        A(f'v_add_f32 v{16+i}, v{16+i}, v{24+i}'); A(f'v_add_f32 v{32+i}, v{32+i}, v{40+i}'); A(f'v_add_f32 v{16+i}, v{16+i}, v{32+i}')
    g.nop(2)
    A('v_permlane32_swap_b32 v16, v18'); A('v_permlane32_swap_b32 v17, v19')
    A('v_add_f32 v16, v16, v18'); A('v_add_f32 v17, v17, v19'); g.nop(2)
    A('v_permlane16_swap_b32 v16, v17'); A('v_add_f32 v16, v16, v17'); g.nop(2)
    A('v_add_f32_dpp v16, v16, v16 row_ror:8 row_mask:0xf bank_mask:0xf')
    A('s_waitcnt lgkmcnt(0)')
    rnd(g, 16, 16); A('v_mul_f32 v16, v14, v16'); rnd(g, 16, 16); A('v_add_f32 v16, v15, v16')
    A('v_cvt_pk_bf16_f32 v16, v16, v16')
    A('s_mov_b32 exec_lo, 0x00ff00ff'); A('s_mov_b32 exec_hi, 0x00ff00ff')
    A('global_store_short v12, v16, s[38:39]')
    A('s_cmp_lg_u32 s2, 0'); A('s_cbranch_scc1 L_fin_noepoch')
    A('s_mov_b64 exec, 1'); A('v_mov_b32 v13, 0')
    A(f'global_store_dword v13, v{TAG}, s[42:43] sc1')
    g.label('L_fin_noepoch')
    A('s_mov_b64 exec, -1')
    g.stamp(15)
    g.label('L_end'); A('s_endpgm')
    for s in ['.section .rodata,"a"', '.p2align 6', f'.amdhsa_kernel {NAME}_kernel', '  .amdhsa_next_free_vgpr 256',
              '  .amdhsa_next_free_sgpr 102', '  .amdhsa_accum_offset 256', '  .amdhsa_group_segment_fixed_size 0',
              '  .amdhsa_kernarg_size 112', '  .amdhsa_user_sgpr_count 2', '  .amdhsa_user_sgpr_kernarg_segment_ptr 1',
              '  .amdhsa_system_sgpr_workgroup_id_x 1', '.end_amdhsa_kernel']: g.L.append(s)
    return '\n'.join(g.L) + '\n'

if __name__ == '__main__':
    import argparse
    ap = argparse.ArgumentParser()
    ap.add_argument('out'); ap.add_argument('--ts', action='store_true'); ap.add_argument('--dbg', action='store_true')
    ap.add_argument('--nslots', type=int, default=48)
    a = ap.parse_args()
    open(a.out, 'w').write(build(ts=a.ts, dbg=a.dbg, nslots=a.nslots))
```

```python
import sys, struct
NAME = 'adaLN_cond__mha_block_cached__glu_gated_geglu__decode'
def f2u(x): return struct.unpack('<I', struct.pack('<f', x))[0]

WS_MOD   = 0x1000
WS_ML    = 0x4000
WS_CNT   = 0x8000
WS_XF    = 0xA000
WS_OP    = 0x10000
WS_AP    = 0x30000
WS_DP    = 0x40000
WS_QX    = 0x60000
WS_TS    = 0xC0000
WS_SCG   = 0x200000
L_CNT  = 0x0000
L_KD   = 0x0040
L_PROG = 0x0060
L_PROGV = 0x0070
L_TAG  = 0x0100
L_MODP = 0x0200
L_HV   = 0x0400
L_QP   = 0x0C00
L_OB   = 0x1400
L_OV   = 0x1C00
L_AW   = 0x1E00
L_MV   = 0x2200
L_Q    = 0x2F00
L_QV   = 0x3100
L_SC   = 0x3400
L_AS   = L_SC + 0x0000
L_DW   = L_SC + 0x2000
L_XF   = L_SC + 0x4000
L_ST   = L_SC + 0x10000
LDS_BYTES = L_ST + 0x10000
MAXROWS = 96
Q_DONE = 0xfffffffe
NMLP = 56
NFIN = 16
SPIN_MAX = 1 << 17
LOG2E = f2u(1.4426950408889634)
NS = 48

class G:
    def __init__(self, ts=False, tsmask=None):
        self.L = []; self.ts = ts; self.lbl = 0; self.tsmask = tsmask; self.role = 'S'
    def A(self, s): self.L.append('  ' + s)
    def label(self, s): self.L.append(s + ':')
    def newlabel(self, p='L'):
        self.lbl += 1; return f'{p}_{self.lbl}'
    def nop(self, n): self.A(f's_nop {n-1}')
    def stamp(self, slot, sreg=None):
        if not self.ts: return
        if self.tsmask is not None and (self.role, slot) not in self.tsmask: return
        A = self.A
        if sreg is None:
            A('s_memrealtime s[96:97]'); A('s_waitcnt lgkmcnt(0)')
            A('v_mov_b32 v60, s96'); A('v_mov_b32 v61, s97')
        else:
            A(f'v_mov_b32 v60, {sreg}'); A('v_mov_b32 v61, 0')
        A('v_mov_b32 v62, s95')
        A('s_mov_b64 s[98:99], exec'); A('s_mov_b64 exec, 1')
        A(f'global_store_dwordx2 v62, v[60:61], s[42:43] offset:{slot*8}')
        A('s_mov_b64 exec, s[98:99]')

def rnd(g, d, s): g.A(f'v_cvt_pk_bf16_f32 v{d}, 0, v{s}')

def swap_reduce8(g, *sets):
    A = g.A
    g.nop(2)
    for r in sets:
        for i in range(4): A(f'v_permlane32_swap_b32 v{r[i]}, v{r[i+4]}')
    for r in sets:
        for i in range(4): A(f'v_add_f32 v{r[i]}, v{r[i]}, v{r[i+4]}')
    if len(sets) == 1: g.nop(1)
    for r in sets:
        for i in range(2): A(f'v_permlane16_swap_b32 v{r[i]}, v{r[i+2]}')
    for r in sets:
        for i in range(2): A(f'v_add_f32 v{r[i]}, v{r[i]}, v{r[i+2]}')

def row_allreduce(g, regs, op='add', rors=(8, 4, 2, 1)):
    for ro in rors:
        if len(regs) < 3: g.nop(3 - len(regs))
        for r in regs: g.A(f'v_{op}_f32_dpp v{r}, v{r}, v{r} row_ror:{ro} row_mask:0xf bank_mask:0xf')

def wave_allreduce(g, r, t, op='add'):
    A = g.A
    row_allreduce(g, [r], op)
    A(f'v_mov_b32 v{t}, v{r}'); g.nop(2)
    A(f'v_permlane16_swap_b32 v{r}, v{t}'); A(f'v_{op}_f32 v{r}, v{r}, v{t}')
    A(f'v_mov_b32 v{t}, v{r}'); g.nop(2)
    A(f'v_permlane32_swap_b32 v{r}, v{t}'); A(f'v_{op}_f32 v{r}, v{r}, v{t}')

def reduce4_hi(g, r):
    A = g.A
    A(f'v_permlane32_swap_b32 v{r[0]}, v{r[2]}'); A(f'v_permlane32_swap_b32 v{r[1]}, v{r[3]}')
    A(f'v_add_f32 v{r[0]}, v{r[0]}, v{r[2]}'); A(f'v_add_f32 v{r[1]}, v{r[1]}, v{r[3]}'); g.nop(2)
    A(f'v_permlane16_swap_b32 v{r[0]}, v{r[1]}'); A(f'v_add_f32 v{r[0]}, v{r[0]}, v{r[1]}'); g.nop(2)
    A(f'v_add_f32_dpp v{r[0]}, v{r[0]}, v{r[0]} row_ror:8 row_mask:0xf bank_mask:0xf')

def tile_mac(g, acc, data, pP, pL):
    for i in range(4):
        g.A(f'v_dot2c_f32_bf16 v{acc[2*i]}, {pL}, v{data+i}')
        g.A(f'v_dot2c_f32_bf16 v{acc[2*i+1]}, {pP}, v{data+i}')

def divide(g, q, a, b, t0, t1):
    A = g.A
    A(f'v_rcp_f32 v{t0}, v{b}'); g.nop(1)
    A(f'v_mul_f32 v{q}, v{a}, v{t0}')
    A(f'v_fma_f32 v{t1}, -v{q}, v{b}, v{a}')
    A(f'v_fma_f32 v{q}, v{t1}, v{t0}, v{q}')

def sigmoid_mul_n(g, items):
    A = g.A
    for d, x, arg, t0, t1, t2 in items: A(f'v_min_f32 v{t2}, 0x42fc0000, v{arg}')
    for d, x, arg, t0, t1, t2 in items: A(f'v_exp_f32 v{t2}, v{t2}')
    if len(items) == 1: g.nop(1)
    for d, x, arg, t0, t1, t2 in items: A(f'v_add_f32 v{t2}, 1.0, v{t2}')
    for d, x, arg, t0, t1, t2 in items: A(f'v_rcp_f32 v{t0}, v{t2}')
    if len(items) == 1: g.nop(1)
    for d, x, arg, t0, t1, t2 in items: A(f'v_mul_f32 v{d}, v{x}, v{t0}')
    for d, x, arg, t0, t1, t2 in items: A(f'v_fma_f32 v{t1}, -v{d}, v{t2}, v{x}')
    for d, x, arg, t0, t1, t2 in items: A(f'v_fma_f32 v{d}, v{t1}, v{t0}, v{d}')

def ln_stats(g, xs, mean_bf, sd, t):
    A = g.A
    A(f'v_pk_add_f32 v[{t[0]}:{t[1]}], v[{xs[0]}:{xs[1]}], v[{xs[2]}:{xs[3]}]')
    A(f'v_pk_add_f32 v[{t[2]}:{t[3]}], v[{xs[4]}:{xs[5]}], v[{xs[6]}:{xs[7]}]')
    A(f'v_pk_add_f32 v[{t[0]}:{t[1]}], v[{t[0]}:{t[1]}], v[{t[2]}:{t[3]}]')
    A(f'v_add_f32 v{t[0]}, v{t[0]}, v{t[1]}')
    wave_allreduce(g, t[0], t[1])
    A(f'v_mul_f32 v{t[0]}, 0x3b000000, v{t[0]}')
    rnd(g, mean_bf, t[0])
    for i in range(4): A(f'v_sub_f32 v{t[2+i]}, v{xs[i]}, v{t[0]}')
    A(f'v_mul_f32 v{t[6]}, v{t[2]}, v{t[2]}'); A(f'v_mul_f32 v{t[7]}, v{t[3]}, v{t[3]}')
    A(f'v_fmac_f32 v{t[6]}, v{t[4]}, v{t[4]}'); A(f'v_fmac_f32 v{t[7]}, v{t[5]}, v{t[5]}')
    for i in range(4): A(f'v_sub_f32 v{t[2+i]}, v{xs[4+i]}, v{t[0]}')
    A(f'v_fmac_f32 v{t[6]}, v{t[2]}, v{t[2]}'); A(f'v_fmac_f32 v{t[7]}, v{t[3]}, v{t[3]}')
    A(f'v_fmac_f32 v{t[6]}, v{t[4]}, v{t[4]}'); A(f'v_fmac_f32 v{t[7]}, v{t[5]}, v{t[5]}')
    A(f'v_add_f32 v{t[2]}, v{t[6]}, v{t[7]}')
    wave_allreduce(g, t[2], t[1])
    A(f'v_mul_f32 v{t[2]}, 0x3b000000, v{t[2]}')
    rnd(g, t[2], t[2])
    A(f'v_add_f32 v{t[2]}, {hex(f2u(1e-5))}, v{t[2]}')
    rnd(g, t[2], t[2])
    A(f'v_sqrt_f32 v{t[0]}, v{t[2]}'); g.nop(1)
    A(f'v_rcp_f32 v{t[1]}, v{t[0]}')
    A(f'v_fma_f32 v{t[3]}, -v{t[0]}, v{t[0]}, v{t[2]}')
    A(f'v_mul_f32 v{t[1]}, 0.5, v{t[1]}')
    A(f'v_fma_f32 v{t[0]}, v{t[3]}, v{t[1]}, v{t[0]}')
    rnd(g, sd, t[0])

def modulate_n(g, items, mean_bf, sd, rcp_sd):
    A = g.A
    for d, x, c, s, t0, t1 in items: A(f'v_sub_f32 v{t0}, v{x}, v{mean_bf}')
    for d, x, c, s, t0, t1 in items: rnd(g, t0, t0)
    for d, x, c, s, t0, t1 in items: A(f'v_mul_f32 v{d}, v{t0}, v{rcp_sd}')
    for d, x, c, s, t0, t1 in items: A(f'v_fma_f32 v{t1}, -v{d}, v{sd}, v{t0}')
    for d, x, c, s, t0, t1 in items: A(f'v_fma_f32 v{d}, v{t1}, v{rcp_sd}, v{d}')
    for d, x, c, s, t0, t1 in items: rnd(g, d, d)
    for d, x, c, s, t0, t1 in items: A(f'v_mul_f32 v{d}, v{d}, v{c}')
    for d, x, c, s, t0, t1 in items: rnd(g, d, d)
    for d, x, c, s, t0, t1 in items: A(f'v_add_f32 v{d}, v{d}, v{s}')
    for d, x, c, s, t0, t1 in items: rnd(g, d, d)

def unpack(g, dst, src, n=4):
    for i in range(n):
        g.A(f'v_lshlrev_b32 v{dst[2*i]}, 16, v{src+i}')
        g.A(f'v_and_b32 v{dst[2*i+1]}, 0xffff0000, v{src+i}')

def to_p(g, regs, M, IL, slog):
    A = g.A
    for r in regs: A(f'v_sub_f32 v{r}, v{r}, v{M}')
    for r in regs: A(f'v_mul_f32 v{r}, {slog}, v{r}')
    for r in regs: A(f'v_exp_f32 v{r}, v{r}')
    for r in regs: A(f'v_mul_f32 v{r}, v{r}, v{IL}')
    for r in regs: rnd(g, r, r)

def srd(g, d, base, nbytes):
    g.A(f's_mov_b32 s{d}, s{base}'); g.A(f's_mov_b32 s{d+1}, s{base+1}')
    g.A(f's_mov_b32 s{d+2}, {hex(nbytes)}'); g.A(f's_mov_b32 s{d+3}, 0x20000')

def poll(g, loads, check, sleep=1):
    A = g.A
    l = g.newlabel('L_poll'); done = g.newlabel('L_poll_done')
    A('s_mov_b64 s[68:69], exec'); A(f's_mov_b32 s70, {SPIN_MAX}')
    g.label(l)
    loads()
    A('s_waitcnt vmcnt(0)')
    check()
    A(f's_cbranch_vccz {done}')
    A('s_mov_b64 exec, vcc')
    A('s_sub_u32 s70, s70, 1'); A('s_cmp_eq_u32 s70, 0'); A(f's_cbranch_scc1 {done}')
    if sleep: A(f's_sleep {sleep}')
    A(f's_branch {l}')
    g.label(done)
    A('s_mov_b64 exec, s[68:69]')

def chk_tags(g, regs, tag):
    def f():
        g.A(f'v_cmp_ne_u32 vcc, v{regs[0]}, v{tag}')
        for r in regs[1:]:
            g.A(f'v_cmp_ne_u32 s[60:61], v{r}, v{tag}'); g.A('s_or_b64 vcc, vcc, s[60:61]')
    return f
def chk_sent(g, regs, t):
    def f():
        g.A(f'v_max3_u32 v{t}, v{regs[0]}, v{regs[1]}, v{regs[2]}')
        rest = regs[3:]
        while len(rest) >= 2:
            g.A(f'v_max3_u32 v{t}, v{t}, v{rest[0]}, v{rest[1]}'); rest = rest[2:]
        if rest: g.A(f'v_max_u32 v{t}, v{t}, v{rest[0]}')
        g.A(f'v_cmp_eq_u32 vcc, -1, v{t}')
    return f

def last_arriver(g, idx, skip):
    A = g.A
    A('v_mov_b32 v11, 1'); A('v_mov_b32 v12, 0')
    A('s_waitcnt lgkmcnt(0)')
    A('s_mov_b64 exec, 1')
    A(f'ds_add_rtn_u32 v13, v12, v11 offset:{L_CNT + 4*idx}')
    A('s_mov_b64 exec, -1')
    A('s_waitcnt lgkmcnt(0)')
    A('v_readfirstlane_b32 s50, v13')
    g.nop(1)
    A('s_cmp_lg_u32 s50, 3'); A(f's_cbranch_scc1 {skip}')

def sum4x4(g, r, sanitize=True):
    A = g.A
    for i in (0, 2):
        A(f'v_pk_add_f32 v[{r+i}:{r+i+1}], v[{r+i}:{r+i+1}], v[{r+4+i}:{r+5+i}]')
        A(f'v_pk_add_f32 v[{r+8+i}:{r+9+i}], v[{r+8+i}:{r+9+i}], v[{r+12+i}:{r+13+i}]')
    for i in (0, 2): A(f'v_pk_add_f32 v[{r+i}:{r+i+1}], v[{r+i}:{r+i+1}], v[{r+8+i}:{r+9+i}]')
    if sanitize:
        for i in range(4): A(f'v_min_u32 v{r+i}, -2, v{r+i}')

def build(ts=False, nsb=48, exp='', depth=8, lead=3, leadv=5, header='', opsl=1, apth=4, apsl=40):
    tsmask = None
    if 'tailts' in exp: tsmask = {('S', 0), ('S', 6), ('S', 7)} | {('H', i) for i in (10, 11, 12, 13, 14, 15)}
    g = G(ts, tsmask); A = g.A
    NSB = nsb; NPOOL = (64 - NSB)*8; D = depth
    g.L.append(header + f'; @launch grid=(256,1,1) block=(512,1,1) lds={LDS_BYTES}')
    g.L.append('.amdgcn_target "amdgcn-amd-amdhsa--gfx950"')
    g.L.append('.text'); g.L.append(f'.globl {NAME}_kernel'); g.L.append('.p2align 8')
    g.L.append(f'.type {NAME}_kernel,@function'); g.label(f'{NAME}_kernel')
    A('s_cmp_ge_u32 s2, 256'); A('s_cbranch_scc1 L_end')
    A('s_load_dwordx16 s[16:31], s[0:1], 0')
    A('s_load_dwordx8 s[32:39], s[0:1], 64')
    A('s_load_dwordx4 s[40:43], s[0:1], 96')
    A('v_lshrrev_b32 v1, 6, v0'); A('v_and_b32 v0, 63, v0')
    A('v_readfirstlane_b32 s3, v1')
    A('s_lshr_b32 s4, s2, 3'); A('s_and_b32 s5, s2, 7')
    A('s_mul_i32 s58, s4, 3'); A('s_add_u32 s58, s58, s5'); A('s_cmp_lt_u32 s5, 3'); A('s_cselect_b32 s58, s58, 255')
    A('s_add_u32 s57, s4, 32'); A('s_cmp_eq_u32 s5, 4'); A('s_cselect_b32 s57, s57, 255'); A('s_cmp_eq_u32 s5, 3'); A('s_cselect_b32 s57, s4, s57')
    A('s_and_b32 s6, s3, 3')
    if ts:
        A('s_lshl_b32 s95, s2, 3'); A('s_add_u32 s95, s95, s3'); A('s_lshl_b32 s95, s95, 7'); A(f's_add_u32 s95, s95, {WS_TS}')
    A('s_cmp_ge_u32 s3, 4'); A('s_cbranch_scc1 L_helper')

    VOFF = 1; VL = 2; VL2 = 3; Q = 4
    AA = list(range(8, 16)); BB = list(range(16, 24)); T = list(range(24, 32)); PA = list(range(32, 40)); PB = list(range(40, 48))
    PL = 48; OM = 54; OL = 55; VQA = 56; VQ = 57; VPA = 58; VN = 59
    NB = NS // 8 - 1; NX = 8*NB
    def slot(i): return 64 + 4*i
    def pslot(t): return 8 + t if t < NX else t - NX
    A('s_lshl_b32 s51, s4, 24')
    A(f's_mul_i32 s44, s5, {NSB*32768}'); A('s_add_u32 s44, s44, s51')
    A('s_lshl_b32 s53, s6, 10'); A('s_add_u32 s44, s44, s53'); A('s_mov_b32 s45, s44')
    A(f'v_lshlrev_b32 v{VOFF}, 4, v0')
    A('s_waitcnt lgkmcnt(0)')
    srd(g, 8, 18, 1 << 29); srd(g, 12, 20, 1 << 29)
    g.stamp(0)
    def ld(sl, sr):
        A(f'buffer_load_dwordx4 v[{slot(sl)}:{slot(sl)+3}], v{VOFF}, s[{sr}:{sr+3}], s44 offen nt')
        A('s_add_u32 s44, s44, 4096')
    def prefetch(sr, first, D):
        for t in range(first, NS):
            A(f's_waitcnt vmcnt({D-1})'); ld(pslot(t), sr)
    for t in range(D): ld(pslot(t), 8)
    A('s_barrier')
    A(f'v_lshrrev_b32 v{VL2}, 4, v0'); A(f'v_lshlrev_b32 v{VL2}, 5, v{VL2}')
    A('s_lshl_b32 s46, s6, 14'); A(f's_add_u32 s46, s46, {L_SC}'); A(f'v_add_u32 v{VL2}, s46, v{VL2}')
    A(f'v_bfe_u32 v{VL}, v0, 1, 3'); A(f'v_lshl_add_u32 v{VL}, v{VL}, 2, v{VL2}')
    A('s_mov_b32 s48, 0xcccccccc'); A('s_mov_b32 s49, 0xcccccccc')
    A(f's_mov_b32 s47, {hex(f2u(128 ** -0.5))}'); A(f's_mov_b32 s52, {hex(LOG2E)}')
    A(f'v_mov_b32 v{OM}, 0xff7fffff'); A(f'v_mov_b32 v{OL}, 0')
    A(f'v_mov_b32 v{VPA}, s6'); A(f'v_lshlrev_b32 v{VPA}, 2, v{VPA}')
    A(f'v_and_b32 v50, 15, v0'); A(f'v_lshlrev_b32 v50, 5, v50')
    A(f'v_mov_b32 v{VQA}, {L_Q + 4*(NB+2)}'); A(f'v_mov_b32 v{VN}, {NB+2}')
    A(f's_mov_b32 s70, {SPIN_MAX*64}')
    prefetch(8, D, D)
    g.stamp(1)
    A('s_barrier')
    g.stamp(2)
    A(f'ds_read_b128 v[8:11], v50 offset:{L_HV}'); A(f'ds_read_b128 v[12:15], v50 offset:{L_HV + 16}')
    A('s_waitcnt lgkmcnt(0)')
    for i in range(4): A(f'v_cvt_pk_bf16_f32 v{Q+i}, v{8+2*i}, v{9+2*i}')
    def kdot(a, sl):
        A(f'v_mov_b32 v{a}, 0')
        for i in range(4): A(f'v_dot2c_f32_bf16 v{a}, v{slot(sl)+i}, v{Q+i}')
    def kreduce(a, off=None):
        g.nop(3)
        for j in range(4):
            A(f'v_add_f32_dpp v{T[j]}, v{a[j]}, v{a[j]} row_ror:8 row_mask:0xf bank_mask:0x3')
            A(f'v_add_f32_dpp v{T[j]}, v{a[j+4]}, v{a[j+4]} row_ror:8 row_mask:0xf bank_mask:0xc')
        for j in range(2):
            A(f'v_add_f32_dpp v{T[4+j]}, v{T[j]}, v{T[j]} row_half_mirror row_mask:0xf bank_mask:0x5')
            A(f'v_add_f32_dpp v{T[4+j]}, v{T[j+2]}, v{T[j+2]} row_half_mirror row_mask:0xf bank_mask:0xa')
        g.nop(1)
        A(f'v_add_f32_dpp v{T[6]}, v{T[4]}, v{T[4]} quad_perm:[2,3,0,1] row_mask:0xf bank_mask:0xf')
        A(f'v_add_f32_dpp v{T[7]}, v{T[5]}, v{T[5]} quad_perm:[2,3,0,1] row_mask:0xf bank_mask:0xf')
        A(f'v_cndmask_b32 v{T[6]}, v{T[6]}, v{T[7]}, s[48:49]')
        g.nop(2)
        A(f'v_add_f32_dpp v{T[6]}, v{T[6]}, v{T[6]} quad_perm:[1,0,3,2] row_mask:0xf bank_mask:0xf')
        rnd(g, T[6], T[6]); A(f'v_mul_f32 v{T[6]}, s47, v{T[6]}'); rnd(g, T[6], T[6])
        A(f'ds_write_b32 v{VL}, v{T[6]}' + ('' if off is None else f' offset:{off}'))
        A(f'v_max_f32 v{T[0]}, v{OM}, v{T[6]}')
        A(f'v_sub_f32 v{T[1]}, v{OM}, v{T[0]}'); A(f'v_sub_f32 v{T[2]}, v{T[6]}, v{T[0]}')
        A(f'v_mul_f32 v{T[1]}, s52, v{T[1]}'); A(f'v_mul_f32 v{T[2]}, s52, v{T[2]}')
        A(f'v_exp_f32 v{T[1]}, v{T[1]}'); A(f'v_exp_f32 v{T[2]}, v{T[2]}')
        A(f'v_mov_b32 v{OM}, v{T[0]}')
        if off is None: A(f'v_add_u32 v{VL}, 128, v{VL}')
        else: g.nop(1)
        A(f'v_fma_f32 v{OL}, v{OL}, v{T[1]}, v{T[2]}')
    def qread(): A(f'ds_read_b32 v{VQ}, v{VQA}')
    def qtop(pref, prog):
        g.label(f'{pref}_top')
        A('s_waitcnt lgkmcnt(0)')
        A(f'v_readfirstlane_b32 s50, v{VQ}')
        g.nop(1)
        A(f's_cmp_ge_u32 s50, {hex(Q_DONE)}'); A(f's_cbranch_scc1 {pref}_slow')
        A('s_add_u32 s44, s50, s53')
        A(f'v_add_u32 v{VQA}, 4, v{VQA}')
        A(f'ds_write_b32 v{VPA}, v{VN} offset:{prog}'); A(f'v_add_u32 v{VN}, 1, v{VN}')
    def qslow(pref):
        g.label(f'{pref}_slow')
        A(f's_cmp_eq_u32 s50, {hex(Q_DONE)}'); A(f's_cbranch_scc1 {pref}_last')
        A('s_sub_u32 s70, s70, 1'); A('s_cmp_eq_u32 s70, 0'); A(f's_cbranch_scc1 {pref}_last')
        A('s_sleep 1'); qread(); A(f's_branch {pref}_top')
        g.label(f'{pref}_last')
    for j in range(8):
        A('s_waitcnt vmcnt(7)')
        kdot(AA[j], j); ld(j, 8)
        for e in range(NB*j, NB*(j+1)):
            kdot(BB[e % 8], 8 + e)
            if e % 8 == 7: kreduce(BB, off=(e // 8)*128)
    qread(); A(f'v_add_u32 v{VL}, {NB*128}, v{VL}'); kreduce(AA)
    g.stamp(8)
    qtop('L_k', L_PROG)
    for j in range(8):
        A('s_waitcnt vmcnt(7)')
        kdot(AA[j], j); ld(j, 8)
        if j == 6: qread()
    kreduce(AA)
    A('s_branch L_k_top')
    qslow('L_k')
    A('s_mov_b32 s44, s45')
    for j in range(8):
        A('s_waitcnt vmcnt(7)')
        kdot(AA[j], j); ld(pslot(j), 12)
    kreduce(AA)
    A(f'v_mov_b32 v{T[0]}, v{OM}')
    wave_allreduce(g, T[0], T[1], 'max')
    A(f'v_sub_f32 v{T[2]}, v{OM}, v{T[0]}'); A(f'v_mul_f32 v{T[2]}, s52, v{T[2]}'); A(f'v_exp_f32 v{T[2]}, v{T[2]}')
    A(f'ds_read_b32 v{T[3]}, v{VPA} offset:{L_TAG}')
    A('s_lshl_b32 s50, s2, 6'); A('s_lshl_b32 s56, s6, 4'); A('s_add_u32 s50, s50, s56')
    A(f'v_mul_f32 v{T[2]}, v{T[2]}, v{OL}')
    wave_allreduce(g, T[2], T[1])
    A(f'v_mul_f32 v{T[2]}, 0.5, v{T[2]}')
    A(f's_add_u32 s50, s50, {WS_ML}'); A(f'v_mov_b32 v{T[4]}, s50')
    A('s_waitcnt lgkmcnt(0)')
    A(f'v_mov_b32 v{T[1]}, v{T[3]}')
    A(f'ds_write_b32 v{VPA}, v{VN} offset:{L_KD}')
    A('s_mov_b64 exec, 1')
    A(f'global_store_dwordx4 v{T[4]}, v[{T[0]}:{T[3]}], s[42:43] sc1')
    A('s_mov_b64 exec, -1')
    g.stamp(3)
    prefetch(12, 8, 8)
    ACC = AA
    for i in range(8): A(f'v_mov_b32 v{ACC[i]}, 0')
    A(f'v_mov_b32 v{VQA}, {L_QV + 4*(NB+2)}'); A(f'v_mov_b32 v{VN}, {NB+2}')
    g.stamp(4)
    A('s_barrier')
    g.stamp(5)
    def pread(P, off):
        A(f'ds_read_b128 v[{P[0]}:{P[3]}], v{VL2} offset:{off}'); A(f'ds_read_b128 v[{P[4]}:{P[7]}], v{VL2} offset:{off+16}')
    def vmac(sl, p):
        A(f'v_lshrrev_b32 v{PL}, 16, v{p}')
        tile_mac(g, ACC, slot(sl), f'v{p}', f'v{PL}')
    pread(PA, NB*128); pread(PB, 0)
    PC = BB
    for j in range(8):
        A('s_waitcnt vmcnt(7) lgkmcnt(0)' if j == 0 else 's_waitcnt vmcnt(7)')
        vmac(j, PA[j]); ld(j, 12)
        for e in range(NB*j, NB*(j+1)):
            cur, nxt = (PB, PC) if (e // 8) % 2 == 0 else (PC, PB)
            if e % 8 == 0:
                A('s_waitcnt lgkmcnt(0)')
                if e // 8 + 1 < NB: pread(nxt, (e // 8 + 1)*128)
            vmac(8 + e, cur[e % 8])
    A(f'v_add_u32 v{VL2}, {(NB+1)*128}, v{VL2}')
    qread(); pread(PA, 0)
    g.stamp(10)
    qtop('L_v', L_PROGV)
    for j in range(8):
        A('s_waitcnt vmcnt(7)')
        vmac(j, PA[j]); ld(j, 12)
        if j == 6: qread()
    A(f'v_add_u32 v{VL2}, 128, v{VL2}')
    pread(PA, 0)
    A('s_branch L_v_top')
    qslow('L_v')
    A('v_lshrrev_b32 v51, 4, v0'); A('v_lshl_add_u32 v50, v51, 3, v50')
    A('s_lshl_b32 s46, s6, 9'); A('v_add_u32 v50, s46, v50')
    A('s_lshl_b32 s46, s2, 9'); A(f's_add_u32 s46, s46, {WS_OP}'); A(f'v_add_u32 v51, s46, v{VOFF}')
    for j in range(8):
        A(f's_waitcnt vmcnt({7-j})')
        vmac(j, PA[j])
    g.stamp(6)
    g.nop(1)
    swap_reduce8(g, ACC)
    A(f'ds_write_b64 v50, v[{ACC[0]}:{ACC[1]}] offset:{L_OB}')
    A('s_waitcnt lgkmcnt(0)')
    A('s_barrier')
    if 'notail' in exp: A('s_branch L_end')
    A('s_cmp_lg_u32 s3, 0'); A('s_cbranch_scc1 L_s_after_pub')
    A('s_mov_b64 exec, 0xffffffff')
    for w in range(4): A(f'ds_read_b128 v[{8+4*w}:{11+4*w}], v{VOFF} offset:{L_OB + 512*w}')
    A('s_waitcnt lgkmcnt(0)')
    sum4x4(g, 8)
    A('global_store_dwordx4 v51, v[8:11], s[42:43] sc1')
    A('s_mov_b64 exec, -1')
    g.stamp(7)
    g.label('L_s_after_pub')
    if 'xstage' in exp: A('s_branch L_end')
    A(f's_cmp_ge_u32 s57, {NMLP}'); A('s_cbranch_scc1 L_end')
    A('s_branch L_gather_ap')

    g.label('L_helper'); g.role = 'H'
    WQ = 64; WM = 192; CC = 52; X8 = 56; X4 = 46; TAG = 49; MEAN = 40; SD = 41; RSD = 42
    A('v_lshrrev_b32 v1, 2, v0'); A('v_and_b32 v2, 3, v0')
    A('s_lshl_b32 s7, s6, 7')
    A('v_lshl_add_u32 v3, v1, 3, s7')
    A('v_lshlrev_b32 v4, 1, v3')
    A('s_movk_i32 s50, 6144'); A('v_mul_lo_u32 v5, v3, s50'); A('v_lshl_add_u32 v5, v2, 4, v5')
    A('v_lshlrev_b32 v6, 4, v0')
    A('s_lshl_b32 s50, s5, 6'); A('s_lshl_b32 s51, s6, 4'); A('s_add_u32 s50, s50, s51')
    A('v_lshrrev_b32 v7, 4, v0'); A('v_lshl_add_u32 v7, v7, 2, s50')
    A('v_lshlrev_b32 v10, 1, v7')
    A('v_lshlrev_b32 v9, 13, v7'); A('v_and_b32 v11, 15, v0'); A('v_lshl_add_u32 v9, v11, 4, v9')
    A('v_mov_b32 v8, 0')
    A('s_waitcnt lgkmcnt(0)')
    g.stamp(0)
    A('s_cmp_ge_u32 s58, 96'); A('s_cbranch_scc1 L_h_noprod1')
    srd(g, 8, 36, 512*3072*2)
    A(f'global_load_dwordx4 v[{CC}:{CC+3}], v4, s[34:35]')
    A('s_lshl_b32 s50, s58, 6')
    for j in range(8):
        A(f'buffer_load_dwordx4 v[{WM+4*j}:{WM+4*j+3}], v5, s[8:11], s50 offen nt')
        if j < 7: A('s_add_u32 s50, s50, 6144')
    g.label('L_h_noprod1')
    A(f'global_load_dword v{TAG}, v8, s[42:43] sc1')
    A('s_lshl_b32 s50, s5, 3'); A('s_add_u32 s50, s50, s3'); A('s_cmp_lg_u32 s50, 4'); A('s_cbranch_scc1 L_h_nocinit')
    A('v_and_b32 v11, 1, v0'); A('v_lshlrev_b32 v11, 7, v11'); A(f's_lshl_b32 s50, s4, 8'); A(f's_add_u32 s50, s50, {WS_CNT}'); A('v_add_u32 v11, s50, v11')
    A('s_mov_b64 exec, 3')
    A('global_store_dword v11, v8, s[42:43] sc1')
    A('s_mov_b64 exec, -1')
    g.label('L_h_nocinit')
    A(f'global_load_dwordx4 v[{X8}:{X8+3}], v6, s[16:17]')
    A(f'global_load_dwordx2 v[{X4}:{X4+1}], v10, s[16:17]')
    srd(g, 12, 22, 512*4096*2)
    A('s_lshl_b32 s50, s4, 8')
    for j in range(4):
        A(f'buffer_load_dwordx4 v[{WQ+4*j}:{WQ+4*j+3}], v9, s[12:15], s50 offen nt')
        if j < 3: A('s_add_u32 s50, s50, 8192')
    A('s_cmp_lg_u32 s3, 4'); A('s_cbranch_scc1 L_h_nozero')
    A('v_lshlrev_b32 v10, 2, v0')
    A(f'ds_write_b32 v10, v8 offset:{L_CNT}')
    A('s_lshl_b32 s51, s4, 24'); A(f's_mul_i32 s50, s5, {NSB*32768}'); A('s_add_u32 s50, s50, s51')
    A('v_lshlrev_b32 v11, 15, v0'); A('v_add_u32 v11, s50, v11'); A('v_mov_b32 v12, -1')
    A(f'v_cmp_gt_u32 vcc, {NSB}, v0'); g.nop(2); A('v_cndmask_b32 v11, v12, v11, vcc')
    for q in (L_Q, L_QV):
        A(f'ds_write_b32 v10, v11 offset:{q}'); A(f'ds_write_b32 v10, v12 offset:{q + 256}')
    A('s_waitcnt lgkmcnt(0)')
    g.label('L_h_nozero')
    A('s_barrier')
    A('s_waitcnt vmcnt(4)')
    A('s_mov_b32 s50, 0x9e3779b1')
    A(f'v_mul_lo_u32 v{TAG}, v{TAG}, s50'); A(f'v_add_u32 v{TAG}, 0x7f4a7c15, v{TAG}')
    A('v_mov_b32 v10, s6'); A('v_lshlrev_b32 v10, 2, v10'); A(f'ds_write_b32 v10, v{TAG} offset:{L_TAG}')
    g.stamp(1)
    A('s_cmp_ge_u32 s58, 96'); A('s_cbranch_scc1 L_h_noprod2')
    CV = list(range(16, 24)); ACC = list(range(24, 32))
    unpack(g, CV, CC)
    for i in range(8): A(f'v_mul_f32 v{64+16+i}, {hex(f2u(-1.4426950408889634))}, v{CV[i]}')
    sigmoid_mul_n(g, [(88+i, CV[i], 80+i, 96+i, 104+i, 112+i) for i in range(8)])
    for i in range(8): rnd(g, CV[i], 88+i)
    for i in range(8): A(f'v_mov_b32 v{ACC[i]}, 0'); A(f'v_lshrrev_b32 v{80+i}, 16, v{CV[i]}')
    for j in range(8): tile_mac(g, ACC, WM + 4*j, f'v{CV[j]}', f'v{80+j}')
    A('v_lshrrev_b32 v10, 4, v0'); A('v_lshlrev_b32 v10, 3, v10'); A('v_lshl_add_u32 v10, v2, 5, v10')
    A('v_add_u32 v10, s7, v10')
    swap_reduce8(g, ACC)
    row_allreduce(g, ACC[:2], rors=(8, 4))
    A(f'ds_write_b64 v10, v[{ACC[0]}:{ACC[1]}] offset:{L_MODP}')
    last_arriver(g, 0, 'L_h_noprod2')
    A('s_mov_b64 exec, 0xff')
    for w in range(4): A(f'ds_read_b128 v[{16+4*w}:{19+4*w}], v6 offset:{L_MODP + 128*w}')
    A('s_lshl_b32 s50, s58, 7'); A(f's_add_u32 s50, s50, {WS_MOD}'); A('v_add_u32 v10, s50, v6')
    A('s_waitcnt lgkmcnt(0)')
    sum4x4(g, 16, False)
    A('v_cvt_pk_bf16_f32 v16, v16, v17'); A('v_cvt_pk_bf16_f32 v18, v18, v19'); A(f'v_mov_b32 v17, v{TAG}'); A(f'v_mov_b32 v19, v{TAG}')
    A('global_store_dwordx4 v10, v[16:19], s[42:43] sc1')
    A('s_mov_b64 exec, -1')
    g.stamp(2)
    g.label('L_h_noprod2')
    XS = list(range(16, 24))
    unpack(g, XS, X8)
    ln_stats(g, XS, MEAN, SD, list(range(32, 40)))
    A(f'v_rcp_f32 v{RSD}, v{SD}')
    A('v_lshlrev_b32 v10, 2, v7'); A(f'v_add_u32 v10, {WS_MOD}, v10')
    unpack(g, [16, 17, 18, 19], X4, 2)
    def lds_():
        A('global_load_dwordx4 v[24:27], v10, s[42:43] sc1'); A('global_load_dwordx4 v[28:31], v10, s[42:43] offset:2048 sc1')
    poll(g, lds_, chk_tags(g, [25, 27, 29, 31], TAG), sleep=2)
    g.stamp(3)
    for k, src in enumerate((24, 26)):
        A(f'v_lshlrev_b32 v{20+2*k}, 16, v{src}'); A(f'v_and_b32 v{21+2*k}, 0xffff0000, v{src}')
    for k, src in enumerate((28, 30)):
        A(f'v_lshlrev_b32 v{32+2*k}, 16, v{src}'); A(f'v_and_b32 v{33+2*k}, 0xffff0000, v{src}')
    for i in range(4): A(f'v_add_f32 v{32+i}, 1.0, v{32+i}')
    for i in range(4): rnd(g, 32+i, 32+i)
    modulate_n(g, [(36+i, 16+i, 32+i, 20+i, 80+i, 84+i) for i in range(4)], MEAN, SD, RSD)
    ACC = list(range(24, 32))
    for i in range(8): A(f'v_mov_b32 v{ACC[i]}, 0')
    for j in range(4): A(f'v_lshrrev_b32 v{80+j}, 16, v{36+j}')
    for j in range(4): tile_mac(g, ACC, WQ + 4*j, f'v{36+j}', f'v{80+j}')
    A('v_and_b32 v10, 15, v0'); A('v_lshlrev_b32 v10, 5, v10'); A('v_lshrrev_b32 v11, 4, v0'); A('v_lshl_add_u32 v10, v11, 3, v10')
    A('s_lshl_b32 s50, s6, 9'); A('v_add_u32 v10, s50, v10')
    swap_reduce8(g, ACC)
    A(f'ds_write_b64 v10, v[{ACC[0]}:{ACC[1]}] offset:{L_QP}')
    A('v_lshlrev_b32 v10, 3, v0')
    last_arriver(g, 1, 'L_h_noqpub')
    for w in range(4): A(f'ds_read_b64 v[{16+2*w}:{17+2*w}], v10 offset:{L_QP + 512*w}')
    A('s_lshl_b32 s50, s2, 10'); A(f's_add_u32 s50, s50, {WS_QX}'); A('v_add_u32 v10, s50, v6')
    A('s_waitcnt lgkmcnt(0)')
    A('v_pk_add_f32 v[16:17], v[16:17], v[18:19]'); A('v_pk_add_f32 v[20:21], v[20:21], v[22:23]'); A('v_pk_add_f32 v[16:17], v[16:17], v[20:21]')
    A(f'v_mov_b32 v19, v{TAG}'); A('v_mov_b32 v18, v17'); A(f'v_mov_b32 v17, v{TAG}')
    A('global_store_dwordx4 v10, v[16:19], s[42:43] sc1')
    g.label('L_h_noqpub')
    A('s_lshl_b32 s50, s4, 13'); A('s_lshl_b32 s51, s6, 8'); A('s_add_u32 s50, s50, s51'); A(f's_add_u32 s50, s50, {WS_QX}')
    A('v_lshrrev_b32 v10, 3, v0'); A('v_lshlrev_b32 v10, 10, v10'); A('v_and_b32 v11, 7, v0'); A('v_lshl_add_u32 v10, v11, 5, v10')
    A('v_add_u32 v10, s50, v10')
    A('v_lshlrev_b32 v48, 4, v11'); A('v_bfe_u32 v13, v0, 5, 1'); A('v_lshl_add_u32 v48, v13, 3, v48')
    A('v_bfe_u32 v13, v0, 4, 1'); A('v_lshl_add_u32 v48, v13, 2, v48'); A('v_add_u32 v12, s7, v48')
    def lds_():
        A('global_load_dwordx4 v[24:27], v10, s[42:43] sc1'); A('global_load_dwordx4 v[28:31], v10, s[42:43] offset:16 sc1')
    poll(g, lds_, chk_tags(g, [25, 27, 29, 31], TAG), sleep=2)
    reduce4_hi(g, [24, 26, 28, 30])
    A(f'ds_write_b32 v12, v24 offset:{L_HV}')
    A('s_waitcnt lgkmcnt(0)')
    g.stamp(4)
    A('s_barrier')
    A('s_cmp_lg_u32 s3, 7'); A('s_cbranch_scc1 L_h_noclear')
    for i in range(4): A(f'v_mov_b32 v{16+i}, -1')
    A('s_lshl_b32 s51, s2, 9'); A(f's_add_u32 s51, s51, {WS_OP}'); A('v_add_u32 v10, s51, v6')
    A('s_lshl_b32 s51, s2, 8'); A(f's_add_u32 s51, s51, {WS_AP}'); A('v_add_u32 v11, s51, v6')
    A('s_mov_b64 exec, 0xffffffff')
    A('global_store_dwordx4 v10, v[16:19], s[42:43] sc1')
    A('s_mov_b64 exec, 0xffff')
    A('global_store_dwordx4 v11, v[16:19], s[42:43] sc1')
    A('s_mov_b64 exec, -1')
    A(f's_cmp_ge_u32 s57, {NMLP}'); A('s_cbranch_scc1 L_h_noclear')
    A('s_lshl_b32 s51, s57, 11'); A(f's_add_u32 s51, s51, {WS_DP}'); A('v_add_u32 v10, s51, v6')
    A('global_store_dwordx4 v10, v[16:19], s[42:43] sc1')
    A('global_store_dwordx4 v10, v[16:19], s[42:43] offset:1024 sc1')
    g.label('L_h_noclear')
    WO = 64; WG = 80; WU = 112; WD = 144; E = 192
    srd(g, 8, 24, 4096*512*2)
    A('v_lshrrev_b32 v10, 3, v0'); A('v_lshlrev_b32 v10, 2, v10')
    A('s_lshl_b32 s50, s4, 7'); A('s_lshl_b32 s51, s6, 5'); A('s_add_u32 s50, s50, s51')
    A('v_add_u32 v10, s50, v10'); A('v_lshlrev_b32 v10, 10, v10')
    A('v_and_b32 v11, 7, v0'); A('v_lshl_add_u32 v10, v11, 4, v10')
    A('s_lshl_b32 s50, s5, 7')
    for j in range(4):
        A(f'buffer_load_dwordx4 v[{WO+4*j}:{WO+4*j+3}], v10, s[8:11], s50 offen offset:{1024*j} nt')
    A(f's_cmp_ge_u32 s57, {NMLP}'); A('s_cbranch_scc1 L_h_nomlpw')
    srd(g, 8, 28, 512*1792*2); srd(g, 12, 30, 512*1792*2)
    A('s_movk_i32 s50, 3584'); A('v_mul_lo_u32 v10, v3, s50'); A('v_lshl_add_u32 v10, v2, 4, v10')
    A('s_lshl_b32 s50, s57, 6')
    for j in range(0 if 'xgu' in exp else 8):
        A(f'buffer_load_dwordx4 v[{WG+4*j}:{WG+4*j+3}], v10, s[8:11], s50 offen nt')
        A(f'buffer_load_dwordx4 v[{WU+4*j}:{WU+4*j+3}], v10, s[12:15], s50 offen nt')
        if j < 7: A('s_add_u32 s50, s50, 3584')
    srd(g, 8, 32, 1792*512*2)
    A('s_lshl_b32 s50, s57, 5'); A('s_lshl_b32 s51, s6, 3'); A('s_add_u32 s50, s50, s51'); A('s_lshl_b32 s50, s50, 10')
    for j in range(8):
        if j == 4: A('s_add_u32 s50, s50, 4096')
        A(f'buffer_load_dwordx4 v[{WD+4*j}:{WD+4*j+3}], v6, s[8:11], s50 offen offset:{1024*(j%4)} nt')
    A('v_lshlrev_b32 v10, 6, v3'); A('v_lshl_add_u32 v10, v2, 4, v10'); A(f'v_add_u32 v10, {L_ST}, v10')
    A('s_waitcnt vmcnt(8)')
    for j in range(8):
        A(f'ds_write_b128 v10, v[{WG+4*j}:{WG+4*j+3}] offset:{64*j}'); A(f'ds_write_b128 v10, v[{WU+4*j}:{WU+4*j+3}] offset:{32768 + 64*j}')
    A('v_mov_b32 v11, 1'); A('v_mov_b32 v12, 0')
    A('v_lshlrev_b32 v10, 9, v0'); A('s_lshl_b32 s50, s6, 4'); A(f's_add_u32 s50, s50, {L_ST}'); A('v_add_u32 v10, s50, v10')
    A('s_waitcnt lgkmcnt(0)')
    A('s_mov_b64 exec, 1')
    A(f'ds_add_u32 v12, v11 offset:{L_CNT + 16}')
    A('s_mov_b64 exec, -1')
    A(f's_mov_b32 s70, {SPIN_MAX*16}')
    g.label('L_st_spin')
    A(f'ds_read_b32 v13, v12 offset:{L_CNT + 16}')
    A('s_waitcnt lgkmcnt(0)')
    A('v_readfirstlane_b32 s50, v13')
    A('s_sub_u32 s70, s70, 1'); A('s_cmp_eq_u32 s70, 0'); A('s_cbranch_scc1 L_st_done')
    A('s_cmp_ge_u32 s50, 4'); A('s_cbranch_scc1 L_st_done')
    A('s_sleep 8'); A('s_branch L_st_spin')
    g.label('L_st_done')
    for j in range(8):
        A(f'ds_read_b128 v[{WG+4*j}:{WG+4*j+3}], v10 offset:{64*j}'); A(f'ds_read_b128 v[{WU+4*j}:{WU+4*j+3}], v10 offset:{32768 + 64*j}')
        if j % 4 == 3: A('s_waitcnt lgkmcnt(0)')
    A('s_cmp_lg_u32 s3, 6'); A('s_cbranch_scc1 L_h_nomlpw')
    A('v_lshlrev_b32 v10, 5, v0'); A(f'v_add_u32 v10, {WS_MOD + 4096}, v10'); A('v_add_u32 v11, 4096, v10')
    A('v_and_b32 v12, 15, v0'); A('v_lshlrev_b32 v12, 3, v12'); A('s_and_b32 s50, s57, 15'); A('s_lshl_b32 s50, s50, 7')
    A(f's_add_u32 s50, s50, {WS_MOD + 1280*8}'); A('v_add_u32 v12, s50, v12')
    def lds_():
        A('global_load_dwordx4 v[16:19], v10, s[42:43] sc1'); A('global_load_dwordx4 v[20:23], v10, s[42:43] offset:16 sc1')
        A('global_load_dwordx4 v[24:27], v10, s[42:43] offset:2048 sc1'); A('global_load_dwordx4 v[28:31], v10, s[42:43] offset:2064 sc1')
        A('global_load_dwordx4 v[32:35], v11, s[42:43] sc1'); A('global_load_dwordx4 v[36:39], v11, s[42:43] offset:16 sc1')
        A('global_load_dwordx2 v[44:45], v12, s[42:43] sc1')
    poll(g, lds_, chk_tags(g, [45] + list(range(17, 40, 2)), TAG), sleep=32)
    for k in range(3):
        b = 16 + 8*k
        A(f'v_mov_b32 v{b+1}, v{b+2}'); A(f'v_mov_b32 v{b+2}, v{b+4}'); A(f'v_mov_b32 v{b+3}, v{b+6}')
        A(f'ds_write_b128 v6, v[{b}:{b+3}] offset:{L_MV + 1024*k}')
    A('v_and_b32 v12, 15, v0'); A('v_lshlrev_b32 v12, 2, v12')
    A(f'ds_write_b32 v12, v44 offset:{L_MV + 3072}')
    g.label('L_h_nomlpw')
    A('s_waitcnt vmcnt(0) lgkmcnt(0)')
    g.stamp(5)
    A('v_mov_b32 v12, s6'); A('v_lshlrev_b32 v12, 2, v12')
    A('s_lshl_b32 s59, s4, 24'); A(f's_add_u32 s59, s59, {NSB*8*32768}')
    A('v_mov_b32 v17, 0')
    def read_prog(off, dst):
        A(f'ds_read_b128 v[20:23], v17 offset:{off}')
        A('s_waitcnt lgkmcnt(0)')
        A('v_max3_u32 v20, v20, v21, v22'); A('v_max_u32 v20, v20, v23'); g.nop(1)
        A(f'v_readfirstlane_b32 {dst}, v20')
    A('s_cmp_lg_u32 s3, 4'); A('s_cbranch_scc1 L_nosched')
    A(f's_lshl_b32 s50, s4, 8'); A(f's_add_u32 s50, s50, {WS_CNT}'); A('v_mov_b32 v16, s50')
    A(f's_mov_b32 s52, {NSB}'); A('s_mov_b32 s53, 0')
    A(f's_mov_b32 s70, {SPIN_MAX*16}')
    g.label('L_sch_wait')
    read_prog(L_PROG, 's50')
    A('s_sub_u32 s70, s70, 1'); A('s_cmp_eq_u32 s70, 0'); A('s_cbranch_scc1 L_sch_done')
    A(f's_add_u32 s50, s50, {lead}'); A('s_cmp_ge_u32 s50, s52'); A('s_cbranch_scc1 L_sch_claim')
    A('s_sub_u32 s50, s52, s50'); A('s_cmp_gt_u32 s50, 4'); A('s_cbranch_scc1 L_sch_long')
    A('s_sleep 2'); A('s_branch L_sch_wait')
    g.label('L_sch_long')
    A('s_sleep 32'); A('s_branch L_sch_wait')
    g.label('L_sch_claim')
    A(f's_cmp_ge_u32 s52, {MAXROWS - 2}'); A('s_cbranch_scc1 L_sch_done')
    A(f's_cmp_lt_u32 s53, {NPOOL - 40}'); A('s_cselect_b32 s54, 2, 1')
    A('v_mov_b32 v18, s54')
    A('s_mov_b64 exec, 1')
    A('global_atomic_add v19, v16, v18, s[42:43] sc0 sc1')
    A('s_mov_b64 exec, -1')
    A('s_lshl_b32 s55, s52, 2'); A('v_mov_b32 v21, s55')
    A('s_waitcnt vmcnt(0)')
    A('v_readfirstlane_b32 s53, v19')
    g.label('L_sch_put')
    A(f's_cmp_ge_u32 s53, {NPOOL}'); A('s_cbranch_scc1 L_sch_done')
    A('s_lshl_b32 s55, s53, 15'); A('s_add_u32 s55, s55, s59'); A('v_mov_b32 v20, s55')
    A(f'ds_write_b32 v21, v20 offset:{L_Q}')
    A('v_add_u32 v21, 4, v21')
    A('s_add_u32 s52, s52, 1'); A('s_add_u32 s53, s53, 1')
    A('s_sub_u32 s54, s54, 1'); A('s_cmp_lg_u32 s54, 0'); A('s_cbranch_scc1 L_sch_put')
    A('s_branch L_sch_wait')
    g.label('L_sch_done')
    A('s_lshl_b32 s55, s52, 2'); A('v_mov_b32 v21, s55'); A('v_mov_b32 v20, -2')
    A(f'ds_write_b32 v21, v20 offset:{L_Q}')
    g.label('L_nosched')
    A('s_lshl_b32 s50, s4, 9'); A(f's_add_u32 s50, s50, {WS_ML}')
    A('v_and_b32 v11, 31, v0'); A('v_lshlrev_b32 v11, 4, v11'); A('v_add_u32 v11, s50, v11')
    A('s_lshl_b32 s50, s6, 14'); A(f's_add_u32 s50, s50, {L_SC}'); A('v_add_u32 v10, s50, v6')
    A(f's_mov_b32 s51, {hex(LOG2E)}')
    A(f's_mov_b32 s70, {SPIN_MAX*16}')
    g.label('L_kd_spin')
    A(f'ds_read_b32 v13, v12 offset:{L_KD}')
    A('s_waitcnt lgkmcnt(0)')
    A('v_readfirstlane_b32 s52, v13')
    A('s_sub_u32 s70, s70, 1'); A('s_cmp_eq_u32 s70, 0'); A('s_cbranch_scc1 L_kd_done')
    A('s_cmp_lg_u32 s52, 0'); A('s_cbranch_scc1 L_kd_done')
    A('s_sleep 8'); A('s_branch L_kd_spin')
    g.label('L_kd_done')
    g.stamp(6)
    NP = MAXROWS // 8
    for i in range(NP): A(f'ds_read_b128 v[{E+4*i}:{E+4*i+3}], v10 offset:{1024*i}')
    poll(g, lambda: A('global_load_dwordx4 v[28:31], v11, s[42:43] sc1'), chk_tags(g, [29, 31], TAG), sleep=8)
    g.stamp(8)
    M = 22; IL = 23
    A('v_mov_b32 v22, v28')
    row_allreduce(g, [22], 'max')
    A('v_mov_b32 v23, v22'); g.nop(2); A('v_permlane16_swap_b32 v22, v23'); A('v_max_f32 v22, v22, v23')
    A('v_sub_f32 v20, v28, v22'); A('v_mul_f32 v20, s51, v20'); A('v_exp_f32 v20, v20'); g.nop(1)
    A('v_mul_f32 v20, v20, v30')
    row_allreduce(g, [20])
    A('v_mov_b32 v23, v20'); g.nop(2); A('v_permlane16_swap_b32 v20, v23'); A('v_add_f32 v20, v20, v23')
    A('v_mov_b32 v16, 1.0')
    divide(g, 23, 16, 20, 21, 24)
    A('s_waitcnt lgkmcnt(0)')
    for pc in range(NSB // 8):
        to_p(g, list(range(E + 4*pc, E + 4*pc + 4)), M, IL, 's51')
        A(f'ds_write_b128 v10, v[{E+4*pc}:{E+4*pc+3}] offset:{1024*pc}')
    A('s_waitcnt lgkmcnt(0)')
    g.stamp(9)
    A('s_barrier')
    A('v_lshrrev_b32 v11, 3, v0'); A('v_lshlrev_b32 v11, 2, v11')
    for pc in range(NSB // 8, NP): A(f'ds_read_b32 v{24 + pc - NSB//8}, v11 offset:{L_Q + 32*pc}')
    A('s_lshl_b32 s53, s4, 16'); A(f's_add_u32 s53, s53, {WS_SCG}')
    A('s_lshl_b32 s54, s6, 6'); A('s_add_u32 s54, s54, s53')
    A('v_and_b32 v12, 6, v0'); A('v_lshlrev_b32 v12, 3, v12'); A('v_add_u32 v12, s54, v12')
    A('s_mov_b32 s62, 0x55555555'); A('s_mov_b32 s63, 0x55555555')
    A('s_waitcnt lgkmcnt(0)')
    for pc in range(NSB // 8, NP):
        i0 = E + 4*pc; qv = 24 + pc - NSB//8
        A(f's_cmp_le_u32 s52, {8*pc}'); A('s_cbranch_scc1 L_exp_done')
        A(f'v_lshrrev_b32 v16, 16, v{i0}'); A(f'v_or_b32 v16, v16, v{i0+1}')
        A(f'v_lshrrev_b32 v17, 16, v{i0+2}'); A(f'v_or_b32 v17, v17, v{i0+3}')
        A(f'v_subrev_u32 v13, s59, v{qv}'); A('v_lshrrev_b32 v13, 7, v13'); A('v_add_u32 v13, v13, v12')
        A('v_mov_b32_dpp v18, v16 quad_perm:[1,1,3,3] row_mask:0xf bank_mask:0xf')
        A('v_mov_b32_dpp v19, v17 quad_perm:[1,1,3,3] row_mask:0xf bank_mask:0xf')
        A(f'v_cmp_gt_u32 vcc, -2, v{qv}')
        A('s_and_b64 exec, vcc, s[62:63]')
        A('global_store_dwordx4 v13, v[16:19], s[42:43] sc1')
        A('s_mov_b64 exec, -1')
        g.nop(1)
    g.label('L_exp_done')
    A('s_waitcnt vmcnt(0)')
    last_arriver(g, 2, 'L_noxf')
    A('s_lshl_b32 s50, s2, 4'); A(f's_add_u32 s50, s50, {WS_XF}'); A('v_mov_b32 v13, s50')
    for i in range(4): A(f'v_mov_b32 v{16+i}, v{TAG}')
    A('s_mov_b64 exec, 1')
    A('global_store_dwordx4 v13, v[16:19], s[42:43] sc1')
    A('s_mov_b64 exec, -1')
    g.label('L_noxf')
    A('s_cmp_lg_u32 s3, 6'); A('s_cbranch_scc1 L_noxfall')
    A(f's_cmp_ge_u32 s57, {NMLP}'); A('s_cbranch_scc1 L_noxfall')
    A(f'v_add_u32 v13, {WS_XF}, v6')
    A('s_sleep 127'); A('s_sleep 127')
    def lds_():
        for i in range(4): A(f'global_load_dword v{16+i}, v13, s[42:43] offset:{1024*i} sc1')
    poll(g, lds_, chk_tags(g, [16, 17, 18, 19], TAG), sleep=127)
    g.label('L_noxfall')
    A('s_cmp_lg_u32 s3, 4'); A('s_cbranch_scc1 L_noschedv')
    A('s_lshl_b32 s50, s4, 7'); A(f's_add_u32 s50, s50, {WS_XF}'); A('v_and_b32 v13, 7, v0'); A('v_lshlrev_b32 v13, 4, v13'); A('v_add_u32 v13, s50, v13')
    A('s_sleep 100')
    poll(g, lambda: A('global_load_dword v16, v13, s[42:43] sc1'), chk_tags(g, [16], TAG), sleep=64)
    A(f's_lshl_b32 s50, s4, 8'); A(f's_add_u32 s50, s50, {WS_CNT + 128}'); A('v_mov_b32 v16, s50')
    A(f's_mov_b32 s52, {NSB}'); A('s_mov_b32 s56, -1'); A('s_mov_b32 s62, 0'); A('s_mov_b32 s63, 0')
    A('v_mov_b32 v17, 0')
    A('v_add_u32 v24, s53, v6')
    A('v_bfe_u32 v25, v0, 2, 2'); A('v_lshlrev_b32 v25, 14, v25'); A('v_lshrrev_b32 v26, 4, v0'); A('v_lshl_add_u32 v25, v26, 7, v25')
    A('v_lshl_add_u32 v25, v2, 5, v25'); A(f'v_add_u32 v25, {L_SC}, v25')
    A(f's_mov_b32 s70, {SPIN_MAX*16}')
    def read_progv():
        A(f'ds_read_b128 v[32:35], v17 offset:{L_PROGV}')
        A('s_waitcnt lgkmcnt(0)')
        A('v_max3_u32 v32, v32, v33, v34'); A('v_max_u32 v32, v32, v35'); g.nop(1)
        A('v_readfirstlane_b32 s64, v32')
    g.label('L_sv_top')
    read_progv()
    A('s_sub_u32 s70, s70, 1'); A('s_cmp_eq_u32 s70, 0'); A('s_cbranch_scc1 L_sv_done')
    A(f's_add_u32 s64, s64, {leadv}')
    A('s_mov_b32 s65, 0')
    A('s_cmp_lg_u32 s62, 0'); A('s_cbranch_scc1 L_sv_noclaim')
    A('s_cmp_lt_u32 s64, s52'); A('s_cbranch_scc1 L_sv_noclaim')
    A(f's_cmp_ge_u32 s52, {MAXROWS - 2}'); A('s_cbranch_scc1 L_sv_full')
    A(f's_cmp_lt_u32 s63, {NPOOL - 40}'); A('s_cselect_b32 s65, 2, 1')
    A('v_mov_b32 v18, s65')
    A('s_mov_b64 exec, 1')
    A('global_atomic_add v19, v16, v18, s[42:43] sc0 sc1')
    A('s_mov_b64 exec, -1')
    A('s_branch L_sv_pend')
    g.label('L_sv_full')
    A('s_mov_b32 s62, 1')
    g.label('L_sv_noclaim')
    A(f's_cmp_lt_u32 s56, {NPOOL}'); A('s_cbranch_scc1 L_sv_pend')
    A('s_cmp_lg_u32 s62, 0'); A('s_cbranch_scc1 L_sv_done')
    A('s_sub_u32 s64, s52, s64'); A('s_cmp_gt_u32 s64, 4'); A('s_cbranch_scc1 L_sv_long')
    A('s_sleep 2'); A('s_branch L_sv_top')
    g.label('L_sv_long')
    A('s_sleep 32'); A('s_branch L_sv_top')
    g.label('L_sv_pend')
    A(f's_cmp_ge_u32 s56, {NPOOL}'); A('s_cbranch_scc1 L_sv_nofetch')
    A('s_lshl_b32 s66, s56, 8'); A('v_add_u32 v26, s66, v24')
    A('s_cmp_eq_u32 s54, 2'); A('s_cselect_b32 s66, -1, 0xffff'); A('s_mov_b32 s67, 0')
    A('s_mov_b64 exec, s[66:67]')
    A('global_load_dwordx4 v[28:31], v26, s[42:43] sc1')
    A('s_lshl_b32 s66, s55, 7'); A('v_add_u32 v26, s66, v25')
    A('s_waitcnt vmcnt(0)')
    unpack(g, list(range(32, 40)), 28)
    to_p(g, list(range(32, 40)), M, IL, 's51')
    A('ds_write_b128 v26, v[32:35]'); A('ds_write_b128 v26, v[36:39] offset:16')
    A('v_lshrrev_b32 v26, 4, v0'); A('v_add_u32 v27, s56, v26'); A('v_lshlrev_b32 v27, 15, v27'); A('v_add_u32 v27, s59, v27')
    A('v_add_u32 v26, s55, v26'); A('v_lshlrev_b32 v26, 2, v26')
    A('s_waitcnt lgkmcnt(0)')
    A(f'ds_write_b32 v26, v27 offset:{L_QV}')
    A('s_mov_b64 exec, -1')
    A('s_mov_b32 s56, -1')
    g.label('L_sv_nofetch')
    A('s_cmp_eq_u32 s65, 0'); A('s_cbranch_scc1 L_sv_top')
    A('s_waitcnt vmcnt(0)')
    A('v_readfirstlane_b32 s56, v19')
    A('s_mov_b32 s55, s52')
    A(f's_cmp_ge_u32 s56, {NPOOL}'); A('s_cbranch_scc1 L_sv_done')
    A(f's_sub_u32 s54, {NPOOL}, s56'); A('s_min_u32 s54, s54, s65')
    A('s_add_u32 s52, s52, s54'); A('s_add_u32 s63, s56, s54')
    A('s_branch L_sv_top')
    g.label('L_sv_done')
    A('s_lshl_b32 s55, s52, 2'); A('v_mov_b32 v26, s55'); A('v_mov_b32 v27, -2')
    A(f'ds_write_b32 v26, v27 offset:{L_QV}')
    g.label('L_noschedv')
    GA = list(range(192, 200)); SB = list(range(200, 208)); CB = list(range(208, 216)); XF = list(range(216, 224)); GBR = 224
    for k in range(3): A(f'ds_read_b128 v[{16+4*k}:{19+4*k}], v6 offset:{L_MV + 1024*k}')
    A('v_lshrrev_b32 v13, 3, v48'); A('v_lshlrev_b32 v13, 2, v13')
    A(f'ds_read_b32 v28, v13 offset:{L_MV + 3072}')
    unpack(g, XF, X8)
    A('s_waitcnt lgkmcnt(0)')
    unpack(g, GA, 16); unpack(g, SB, 20); unpack(g, CB, 24)
    for i in range(8): A(f'v_add_f32 v{CB[i]}, 1.0, v{CB[i]}')
    for i in range(8): rnd(g, CB[i], CB[i])
    A('v_and_b32 v13, 16, v0'); A('v_cmp_eq_u32 vcc, 0, v13')
    A('v_lshlrev_b32 v13, 16, v28'); A('v_and_b32 v14, 0xffff0000, v28')
    A(f'v_cndmask_b32 v{GBR}, v14, v13, vcc')
    A('s_lshl_b32 s50, s4, 12'); A('s_add_u32 s50, s50, s7'); A(f's_add_u32 s50, s50, {WS_OP}')
    A('v_lshrrev_b32 v10, 3, v0'); A('v_lshlrev_b32 v13, 4, v10'); A('v_lshlrev_b32 v10, 9, v10'); A('v_and_b32 v11, 7, v0'); A('v_lshl_add_u32 v10, v11, 4, v10')
    A('v_add_u32 v10, s50, v10')
    A('v_add_u32 v15, s7, v48')
    A('v_add_u32 v9, s7, v13')
    A('v_lshrrev_b32 v14, 4, v0'); A('v_lshlrev_b32 v14, 3, v14'); A('v_lshl_add_u32 v14, v11, 5, v14')
    A('s_lshl_b32 s52, s6, 8'); A('v_add_u32 v14, s52, v14')
    A('s_lshl_b32 s50, s2, 8'); A(f's_add_u32 s50, s50, {WS_AP}'); A('v_add_u32 v8, s50, v6')
    ACC = list(range(24, 32))
    for i in range(8): A(f'v_mov_b32 v{ACC[i]}, 0')
    A('s_barrier')
    if 'notail' in exp: A('s_branch L_end')
    g.stamp(10)
    poll(g, lambda: A('global_load_dwordx4 v[16:19], v10, s[42:43] sc1'), chk_sent(g, [16, 17, 18, 19], 20), sleep=opsl)
    g.stamp(11)
    reduce4_hi(g, [16, 17, 18, 19])
    rnd(g, 16, 16)
    A(f'ds_write_b32 v15, v16 offset:{L_OV}')
    A(f'ds_read_b128 v[16:19], v9 offset:{L_OV}')
    A('s_waitcnt lgkmcnt(0)')
    for j in range(4): A(f'v_lshrrev_b32 v{20+j}, 16, v{16+j}')
    for j in range(4): tile_mac(g, ACC, WO + 4*j, f'v{16+j}', f'v{20+j}')
    g.nop(1)
    swap_reduce8(g, ACC)
    row_allreduce(g, ACC[:2], rors=(8,))
    A(f'ds_write_b64 v14, v[{ACC[0]}:{ACC[1]}] offset:{L_AW}')
    last_arriver(g, 3, 'L_h_noap')
    A('s_mov_b64 exec, 0xffff')
    for w in range(4): A(f'ds_read_b128 v[{16+4*w}:{19+4*w}], v6 offset:{L_AW + 256*w}')
    A('s_waitcnt lgkmcnt(0)')
    sum4x4(g, 16)
    A('global_store_dwordx4 v8, v[16:19], s[42:43] sc1')
    A('s_mov_b64 exec, -1')
    g.stamp(12)
    g.label('L_h_noap')
    if 'xstage' in exp: A('s_branch L_end')
    A(f's_cmp_ge_u32 s57, {NMLP}'); A('s_cbranch_scc1 L_end')
    g.label('L_gather_ap')
    A('s_and_b32 s50, s3, 1'); A('s_lshl_b32 s50, s50, 10'); A('s_lshr_b32 s51, s3, 1'); A('s_lshl_b32 s52, s51, 14')
    A('s_add_u32 s52, s52, s50'); A(f's_add_u32 s52, s52, {WS_AP + 4096}')
    A('v_lshlrev_b32 v10, 4, v0'); A('v_add_u32 v11, s52, v10'); A('v_add_u32 v12, 8192, v11')
    A('s_lshl_b32 s51, s51, 11'); A('s_add_u32 s51, s51, s50'); A('v_add_u32 v13, s51, v10')
    for i in range(8): A(f's_mov_b64 s[{72+2*i}:{73+2*i}], -1')
    A(f's_mov_b32 s70, {SPIN_MAX}')
    g.label('L_ap_poll')
    for i in range(8):
        lb = g.newlabel('L_ap_skip')
        A(f's_mov_b64 exec, s[{72+2*i}:{73+2*i}]'); A(f's_cbranch_execz {lb}')
        A(f'global_load_dwordx4 v[{16+4*i}:{19+4*i}], v{11 + i//4}, s[42:43] offset:{(i%4)*2048 - 4096} sc1')
        g.label(lb)
    A('s_mov_b64 exec, -1')
    A('s_mov_b32 s71, 0')
    for i in range(8):
        if i % 2 == 0: A(f's_waitcnt vmcnt(0)') if i == 0 else None
        A(f'v_max3_u32 v{14 + i%2}, v{16+4*i}, v{17+4*i}, v{18+4*i}'); A(f'v_max_u32 v{14 + i%2}, v{14 + i%2}, v{19+4*i}')
        A(f'v_cmp_eq_u32 s[{72+2*i}:{73+2*i}], -1, v{14 + i%2}')
    for i in range(8):
        A(f's_bcnt1_i32_b64 s50, s[{72+2*i}:{73+2*i}]'); A('s_add_u32 s71, s71, s50')
    A('s_cmp_eq_u32 s71, 0'); A('s_cbranch_scc1 L_ap_done')
    A('s_sub_u32 s70, s70, 1'); A('s_cmp_eq_u32 s70, 0'); A('s_cbranch_scc1 L_ap_done')
    A(f's_cmp_le_u32 s71, {16*apth}'); A('s_cbranch_scc1 L_ap_poll')
    A(f's_sleep {apsl}'); A('s_branch L_ap_poll')
    g.label('L_ap_done')
    g.stamp(13)
    for st in (16, 8, 4):
        for i in range(0, st, 2): A(f'v_pk_add_f32 v[{16+i}:{17+i}], v[{16+i}:{17+i}], v[{16+i+st}:{17+i+st}]')
    A(f'ds_write_b128 v13, v[16:19] offset:{L_AS}')
    A('v_lshlrev_b32 v10, 5, v0')
    A('s_waitcnt lgkmcnt(0)')
    A('s_barrier')
    A('s_cmp_lt_u32 s3, 4'); A('s_cbranch_scc1 L_end')
    for p in range(4):
        A(f'ds_read_b128 v[{16+8*p}:{19+8*p}], v10 offset:{L_AS + 2048*p}'); A(f'ds_read_b128 v[{20+8*p}:{23+8*p}], v10 offset:{L_AS + 2048*p + 16}')
    AG = list(range(232, 240)); AU = list(range(240, 248))
    for i in range(8): A(f'v_mov_b32 v{AG[i]}, 0'); A(f'v_mov_b32 v{AU[i]}, 0')
    A('s_waitcnt lgkmcnt(4)')
    for i in range(0, 8, 2): A(f'v_pk_add_f32 v[{16+i}:{17+i}], v[{16+i}:{17+i}], v[{24+i}:{25+i}]')
    A('s_waitcnt lgkmcnt(0)')
    for i in range(0, 8, 2): A(f'v_pk_add_f32 v[{32+i}:{33+i}], v[{32+i}:{33+i}], v[{40+i}:{41+i}]')
    for i in range(0, 8, 2): A(f'v_pk_add_f32 v[{16+i}:{17+i}], v[{16+i}:{17+i}], v[{32+i}:{33+i}]')
    X1 = list(range(16, 24))
    for i in range(8): rnd(g, X1[i], X1[i])
    for i in range(0, 8, 2): A(f'v_pk_mul_f32 v[{16+i}:{17+i}], v[{16+i}:{17+i}], v[{GA[i]}:{GA[i+1]}]')
    for i in range(8): rnd(g, X1[i], X1[i])
    for i in range(0, 8, 2): A(f'v_pk_add_f32 v[{16+i}:{17+i}], v[{16+i}:{17+i}], v[{XF[i]}:{XF[i+1]}]')
    for i in range(8): rnd(g, X1[i], X1[i])
    A(f'ds_write_b128 v10, v[16:19] offset:{L_XF}'); A(f'ds_write_b128 v10, v[20:23] offset:{L_XF + 16}')
    ln_stats(g, X1, MEAN, SD, list(range(32, 40)))
    A(f'v_rcp_f32 v{RSD}, v{SD}'); g.nop(1)
    modulate_n(g, [(24+i, X1[i], CB[i], SB[i], 32+i, 248+i) for i in range(8)], MEAN, SD, RSD)
    for j in range(8): A(f'v_lshrrev_b32 v{32+j}, 16, v{24+j}')
    for j in range(8):
        tile_mac(g, AG, WG + 4*j, f'v{24+j}', f'v{32+j}')
        tile_mac(g, AU, WU + 4*j, f'v{24+j}', f'v{32+j}')
    AD = list(range(24, 32))
    A('v_lshlrev_b32 v10, 5, v0'); A('s_lshl_b32 s50, s6, 11'); A('v_add_u32 v10, s50, v10')
    swap_reduce8(g, AG, AU)
    row_allreduce(g, AG[:2] + AU[:2])
    for r in AG[:2] + AU[:2]: rnd(g, r, r)
    A(f'v_mov_b32 v16, {hex(f2u(0.044715))}')
    for i in range(2): A(f'v_mul_f32 v{18+i}, v{AG[i]}, v{AG[i]}')
    for i in range(2): A(f'v_mul_f32 v{18+i}, v{18+i}, v{AG[i]}')
    for i in range(2): A(f'v_fma_f32 v{18+i}, v{18+i}, v16, v{AG[i]}')
    for i in range(2): A(f'v_mul_f32 v{18+i}, {hex(f2u(-2*0.7978845608028654*1.4426950408889634))}, v{18+i}')
    sigmoid_mul_n(g, [(20+i, AG[i], 18+i, 32+i, 34+i, 36+i) for i in range(2)])
    for i in range(2): rnd(g, 20+i, 20+i)
    for i in range(2): A(f'v_mul_f32 v{20+i}, v{20+i}, v{AU[i]}')
    for i in range(2): rnd(g, 20+i, 20+i)
    for i in range(8): A(f'v_mov_b32 v{AD[i]}, 0')
    for j in range(8): A(f'v_readlane_b32 s{72+j}, v{20 + j%2}, {16*(j//2 % 2) + 32*(j//4)}')
    A('s_lshl_b32 s50, s6, 9'); A('v_add_u32 v11, s50, v6')
    for j in range(8): A(f's_lshr_b32 s{80+j}, s{72+j}, 16')
    for j in range(8): tile_mac(g, AD, WD + 4*j, f's{72+j}', f's{80+j}')
    A('s_lshl_b32 s51, s57, 11'); A(f's_add_u32 s51, s51, {WS_DP}'); A('v_add_u32 v12, s51, v11')
    g.nop(1)
    A(f'ds_write_b128 v10, v[{AD[0]}:{AD[3]}] offset:{L_DW}'); A(f'ds_write_b128 v10, v[{AD[4]}:{AD[7]}] offset:{L_DW + 16}')
    A('s_waitcnt lgkmcnt(0)')
    A('s_barrier')
    A('s_mov_b64 exec, 0xffffffff')
    for w in range(4): A(f'ds_read_b128 v[{16+4*w}:{19+4*w}], v11 offset:{L_DW + 2048*w}')
    A('s_waitcnt lgkmcnt(0)')
    sum4x4(g, 16)
    A('global_store_dwordx4 v12, v[16:19], s[42:43] sc1')
    A('s_mov_b64 exec, -1')
    g.stamp(14)
    A(f's_cmp_ge_u32 s57, {NFIN}'); A('s_cbranch_scc1 L_end')
    A('s_cmp_lg_u32 s3, 4'); A('s_cbranch_scc1 L_end')
    A('v_lshrrev_b32 v10, 3, v0'); A('v_lshlrev_b32 v10, 11, v10'); A('v_and_b32 v11, 7, v0'); A('v_lshl_add_u32 v10, v11, 4, v10')
    A('s_lshl_b32 s50, s57, 7'); A(f's_add_u32 s51, s50, {WS_DP}'); A('v_add_u32 v52, s51, v10')
    for i in range(1, 7): A(f'v_add_u32 v{52+i}, {16384*i}, v52')
    A('v_add_u32 v13, s50, v48')
    A(f'ds_read_b32 v15, v13 offset:{L_XF}')
    A('v_lshrrev_b32 v12, 1, v13')
    def lds_():
        for i in range(7): A(f'global_load_dwordx4 v[{16+4*i}:{19+4*i}], v{52+i}, s[42:43] sc1')
    poll(g, lds_, chk_sent(g, list(range(16, 44)), 51), sleep=0)
    for i in (0, 2):
        A(f'v_pk_add_f32 v[{16+i}:{17+i}], v[{16+i}:{17+i}], v[{20+i}:{21+i}]'); A(f'v_pk_add_f32 v[{24+i}:{25+i}], v[{24+i}:{25+i}], v[{28+i}:{29+i}]')
        A(f'v_pk_add_f32 v[{32+i}:{33+i}], v[{32+i}:{33+i}], v[{36+i}:{37+i}]')
    for i in (0, 2):
        A(f'v_pk_add_f32 v[{16+i}:{17+i}], v[{16+i}:{17+i}], v[{24+i}:{25+i}]'); A(f'v_pk_add_f32 v[{32+i}:{33+i}], v[{32+i}:{33+i}], v[{40+i}:{41+i}]')
    for i in (0, 2): A(f'v_pk_add_f32 v[{16+i}:{17+i}], v[{16+i}:{17+i}], v[{32+i}:{33+i}]')
    g.nop(2)
    reduce4_hi(g, [16, 17, 18, 19])
    A('s_waitcnt lgkmcnt(0)')
    rnd(g, 16, 16); A(f'v_mul_f32 v16, v{GBR}, v16'); rnd(g, 16, 16); A('v_add_f32 v16, v15, v16')
    A('v_cvt_pk_bf16_f32 v16, v16, v16')
    A('s_mov_b32 exec_lo, 0x00ff00ff'); A('s_mov_b32 exec_hi, 0x00ff00ff')
    A('global_store_short v12, v16, s[38:39]')
    A('s_cmp_lg_u32 s57, 0'); A('s_cbranch_scc1 L_fin_noepoch')
    A('s_mov_b64 exec, 1'); A('v_mov_b32 v13, 0')
    A(f'global_store_dword v13, v{TAG}, s[42:43] sc1')
    g.label('L_fin_noepoch')
    A('s_mov_b64 exec, -1')
    g.stamp(15)
    g.label('L_end'); A('s_endpgm')
    for s in ['.section .rodata,"a"', '.p2align 6', f'.amdhsa_kernel {NAME}_kernel', '  .amdhsa_next_free_vgpr 256',
              '  .amdhsa_next_free_sgpr 102', '  .amdhsa_accum_offset 256', '  .amdhsa_group_segment_fixed_size 0',
              '  .amdhsa_kernarg_size 112', '  .amdhsa_user_sgpr_count 2', '  .amdhsa_user_sgpr_kernarg_segment_ptr 1',
              '  .amdhsa_system_sgpr_workgroup_id_x 1', '.end_amdhsa_kernel']: g.L.append(s)
    return '\n'.join(g.L) + '\n'

if __name__ == '__main__':
    import argparse
    ap = argparse.ArgumentParser()
    ap.add_argument('out'); ap.add_argument('--ts', action='store_true')
    ap.add_argument('--nsb', type=int, default=48); ap.add_argument('--exp', default='')
    ap.add_argument('--depth', type=int, default=8); ap.add_argument('--lead', type=int, default=3); ap.add_argument('--leadv', type=int, default=5)
    ap.add_argument('--header', default='')
    for k, d in (('opsl', 1), ('apth', 4), ('apsl', 40)): ap.add_argument('--' + k, type=int, default=d)
    a = ap.parse_args()
    hdr = ''
    if a.header:
        hdr = ''.join(l for l in open(a.header) if l.startswith(';') and '@launch' not in l)
    open(a.out, 'w').write(build(ts=a.ts, nsb=a.nsb, exp=a.exp, depth=a.depth, lead=a.lead, leadv=a.leadv, header=hdr, opsl=a.opsl, apth=a.apth, apsl=a.apsl))
```

```python
import sys, struct
NAME = 'adaLN_cond__mha_block_cached__glu_gated_geglu__decode'
def f2u(x): return struct.unpack('<I', struct.pack('<f', x))[0]

WS_MOD   = 0x100000
WS_ML    = 0x4000
WS_CNT   = 0x8000
WS_XF    = 0xA000
WS_OP    = 0x10000
WS_AP    = 0x140000
WS_DP    = 0x40000
WS_QX    = 0x60000
WS_TS    = 0xC0000
WS_SCG   = 0x200000
L_CNT  = 0x0000
L_KD   = 0x0040
L_PROG = 0x0060
L_PROGV = 0x0070
L_TAG  = 0x0100
L_MODP = 0x0200
L_HV   = 0x0400
L_QP   = 0x0C00
L_OB   = 0x1400
L_OV   = 0x1C00
L_AW   = 0x1E00
L_MV   = 0x2200
L_Q    = 0x2F00
L_QV   = 0x3100
L_SC   = 0x3400
L_AS   = L_SC + 0x0000
L_DW   = L_SC + 0x2000
L_XF   = L_SC + 0x4000
L_ST   = L_SC + 0x10000
LDS_BYTES = L_ST + 0x10000
MAXROWS = 96
Q_DONE = 0xfffffffe
NMLP = 56
NFIN = 16
SPIN_MAX = 1 << 17
LOG2E = f2u(1.4426950408889634)
NS = 48

class G:
    def __init__(self, ts=False, tsmask=None):
        self.L = []; self.ts = ts; self.lbl = 0; self.tsmask = tsmask; self.role = 'S'; self.ldf = ' sc1'; self.stf = ' sc1'; self.w0only = False
    def A(self, s):
        if s.endswith(' sc1') and 'atomic' not in s:
            if 'load' in s: s = s[:-4] + self.ldf
            else: s = s[:-4] + self.stf
        self.L.append('  ' + s)
        if '_store_dwordx4' in s or '_store_dwordx3' in s: self.L.append('  s_nop 1')
    def label(self, s): self.L.append(s + ':')
    def newlabel(self, p='L'):
        self.lbl += 1; return f'{p}_{self.lbl}'
    def nop(self, n): self.A(f's_nop {n-1}')
    def stamp(self, slot, sreg=None):
        if not self.ts: return
        if self.tsmask is not None and (self.role, slot) not in self.tsmask: return
        if self.tsmask is None and self.role == 'M': return
        A = self.A
        if self.w0only:
            A('s_cmp_lg_u32 s3, 0'); lb = self.newlabel('L_ns'); A(f's_cbranch_scc1 {lb}')
        if sreg is None:
            A('s_memrealtime s[96:97]'); A('s_waitcnt lgkmcnt(0)')
            A('v_mov_b32 v60, s96'); A('v_mov_b32 v61, s97')
        else:
            A(f'v_mov_b32 v60, {sreg}'); A('v_mov_b32 v61, 0')
        A('v_mov_b32 v62, s95')
        A('s_mov_b64 s[98:99], exec'); A('s_mov_b64 exec, 1')
        A(f'global_store_dwordx2 v62, v[60:61], s[42:43] offset:{slot*8}')
        A('s_mov_b64 exec, s[98:99]')
        if self.w0only: self.label(lb)

def rnd(g, d, s): g.A(f'v_cvt_pk_bf16_f32 v{d}, 0, v{s}')

def swap_reduce8(g, *sets):
    A = g.A
    g.nop(2)
    for r in sets:
        for i in range(4): A(f'v_permlane32_swap_b32 v{r[i]}, v{r[i+4]}')
    for r in sets:
        for i in range(4): A(f'v_add_f32 v{r[i]}, v{r[i]}, v{r[i+4]}')
    if len(sets) == 1: g.nop(1)
    for r in sets:
        for i in range(2): A(f'v_permlane16_swap_b32 v{r[i]}, v{r[i+2]}')
    for r in sets:
        for i in range(2): A(f'v_add_f32 v{r[i]}, v{r[i]}, v{r[i+2]}')

def row_allreduce(g, regs, op='add', rors=(8, 4, 2, 1)):
    for ro in rors:
        if len(regs) < 3: g.nop(3 - len(regs))
        for r in regs: g.A(f'v_{op}_f32_dpp v{r}, v{r}, v{r} row_ror:{ro} row_mask:0xf bank_mask:0xf')

def wave_allreduce(g, r, t, op='add'):
    A = g.A
    row_allreduce(g, [r], op)
    A(f'v_mov_b32 v{t}, v{r}'); g.nop(2)
    A(f'v_permlane16_swap_b32 v{r}, v{t}'); A(f'v_{op}_f32 v{r}, v{r}, v{t}')
    A(f'v_mov_b32 v{t}, v{r}'); g.nop(2)
    A(f'v_permlane32_swap_b32 v{r}, v{t}'); A(f'v_{op}_f32 v{r}, v{r}, v{t}')

def reduce4_hi(g, r):
    A = g.A
    A(f'v_permlane32_swap_b32 v{r[0]}, v{r[2]}'); A(f'v_permlane32_swap_b32 v{r[1]}, v{r[3]}')
    A(f'v_add_f32 v{r[0]}, v{r[0]}, v{r[2]}'); A(f'v_add_f32 v{r[1]}, v{r[1]}, v{r[3]}'); g.nop(2)
    A(f'v_permlane16_swap_b32 v{r[0]}, v{r[1]}'); A(f'v_add_f32 v{r[0]}, v{r[0]}, v{r[1]}'); g.nop(2)
    A(f'v_add_f32_dpp v{r[0]}, v{r[0]}, v{r[0]} row_ror:8 row_mask:0xf bank_mask:0xf')

def tile_mac(g, acc, data, pP, pL):
    for i in range(4):
        g.A(f'v_dot2c_f32_bf16 v{acc[2*i]}, {pL}, v{data+i}')
        g.A(f'v_dot2c_f32_bf16 v{acc[2*i+1]}, {pP}, v{data+i}')

def divide(g, q, a, b, t0, t1):
    A = g.A
    A(f'v_rcp_f32 v{t0}, v{b}'); g.nop(1)
    A(f'v_mul_f32 v{q}, v{a}, v{t0}')
    A(f'v_fma_f32 v{t1}, -v{q}, v{b}, v{a}')
    A(f'v_fma_f32 v{q}, v{t1}, v{t0}, v{q}')

def sigmoid_mul_n(g, items):
    A = g.A
    for d, x, arg, t0, t1, t2 in items: A(f'v_min_f32 v{t2}, 0x42fc0000, v{arg}')
    for d, x, arg, t0, t1, t2 in items: A(f'v_exp_f32 v{t2}, v{t2}')
    if len(items) == 1: g.nop(1)
    for d, x, arg, t0, t1, t2 in items: A(f'v_add_f32 v{t2}, 1.0, v{t2}')
    for d, x, arg, t0, t1, t2 in items: A(f'v_rcp_f32 v{t0}, v{t2}')
    if len(items) == 1: g.nop(1)
    for d, x, arg, t0, t1, t2 in items: A(f'v_mul_f32 v{d}, v{x}, v{t0}')
    for d, x, arg, t0, t1, t2 in items: A(f'v_fma_f32 v{t1}, -v{d}, v{t2}, v{x}')
    for d, x, arg, t0, t1, t2 in items: A(f'v_fma_f32 v{d}, v{t1}, v{t0}, v{d}')

def ln_stats(g, xs, mean_bf, sd, t):
    A = g.A
    A(f'v_pk_add_f32 v[{t[0]}:{t[1]}], v[{xs[0]}:{xs[1]}], v[{xs[2]}:{xs[3]}]')
    A(f'v_pk_add_f32 v[{t[2]}:{t[3]}], v[{xs[4]}:{xs[5]}], v[{xs[6]}:{xs[7]}]')
    A(f'v_pk_add_f32 v[{t[0]}:{t[1]}], v[{t[0]}:{t[1]}], v[{t[2]}:{t[3]}]')
    A(f'v_add_f32 v{t[0]}, v{t[0]}, v{t[1]}')
    wave_allreduce(g, t[0], t[1])
    A(f'v_mul_f32 v{t[0]}, 0x3b000000, v{t[0]}')
    rnd(g, mean_bf, t[0])
    for i in range(4): A(f'v_sub_f32 v{t[2+i]}, v{xs[i]}, v{t[0]}')
    A(f'v_mul_f32 v{t[6]}, v{t[2]}, v{t[2]}'); A(f'v_mul_f32 v{t[7]}, v{t[3]}, v{t[3]}')
    A(f'v_fmac_f32 v{t[6]}, v{t[4]}, v{t[4]}'); A(f'v_fmac_f32 v{t[7]}, v{t[5]}, v{t[5]}')
    for i in range(4): A(f'v_sub_f32 v{t[2+i]}, v{xs[4+i]}, v{t[0]}')
    A(f'v_fmac_f32 v{t[6]}, v{t[2]}, v{t[2]}'); A(f'v_fmac_f32 v{t[7]}, v{t[3]}, v{t[3]}')
    A(f'v_fmac_f32 v{t[6]}, v{t[4]}, v{t[4]}'); A(f'v_fmac_f32 v{t[7]}, v{t[5]}, v{t[5]}')
    A(f'v_add_f32 v{t[2]}, v{t[6]}, v{t[7]}')
    wave_allreduce(g, t[2], t[1])
    A(f'v_mul_f32 v{t[2]}, 0x3b000000, v{t[2]}')
    rnd(g, t[2], t[2])
    A(f'v_add_f32 v{t[2]}, {hex(f2u(1e-5))}, v{t[2]}')
    rnd(g, t[2], t[2])
    A(f'v_sqrt_f32 v{t[0]}, v{t[2]}'); g.nop(1)
    A(f'v_rcp_f32 v{t[1]}, v{t[0]}')
    A(f'v_fma_f32 v{t[3]}, -v{t[0]}, v{t[0]}, v{t[2]}')
    A(f'v_mul_f32 v{t[1]}, 0.5, v{t[1]}')
    A(f'v_fma_f32 v{t[0]}, v{t[3]}, v{t[1]}, v{t[0]}')
    rnd(g, sd, t[0])

def modulate_n(g, items, mean_bf, sd, rcp_sd):
    A = g.A
    for d, x, c, s, t0, t1 in items: A(f'v_sub_f32 v{t0}, v{x}, v{mean_bf}')
    for d, x, c, s, t0, t1 in items: rnd(g, t0, t0)
    for d, x, c, s, t0, t1 in items: A(f'v_mul_f32 v{d}, v{t0}, v{rcp_sd}')
    for d, x, c, s, t0, t1 in items: A(f'v_fma_f32 v{t1}, -v{d}, v{sd}, v{t0}')
    for d, x, c, s, t0, t1 in items: A(f'v_fma_f32 v{d}, v{t1}, v{rcp_sd}, v{d}')
    for d, x, c, s, t0, t1 in items: rnd(g, d, d)
    for d, x, c, s, t0, t1 in items: A(f'v_mul_f32 v{d}, v{d}, v{c}')
    for d, x, c, s, t0, t1 in items: rnd(g, d, d)
    for d, x, c, s, t0, t1 in items: A(f'v_add_f32 v{d}, v{d}, v{s}')
    for d, x, c, s, t0, t1 in items: rnd(g, d, d)

def unpack(g, dst, src, n=4):
    for i in range(n):
        g.A(f'v_lshlrev_b32 v{dst[2*i]}, 16, v{src+i}')
        g.A(f'v_and_b32 v{dst[2*i+1]}, 0xffff0000, v{src+i}')

def to_p(g, regs, M, IL, slog):
    A = g.A
    for r in regs: A(f'v_sub_f32 v{r}, v{r}, v{M}')
    for r in regs: A(f'v_mul_f32 v{r}, {slog}, v{r}')
    for r in regs: A(f'v_exp_f32 v{r}, v{r}')
    for r in regs: A(f'v_mul_f32 v{r}, v{r}, v{IL}')
    for r in regs: rnd(g, r, r)

def srd(g, d, base, nbytes):
    g.A(f's_mov_b32 s{d}, s{base}'); g.A(f's_mov_b32 s{d+1}, s{base+1}')
    g.A(f's_mov_b32 s{d+2}, {hex(nbytes)}'); g.A(f's_mov_b32 s{d+3}, 0x20000')

def poll(g, loads, check, sleep=1):
    A = g.A
    l = g.newlabel('L_poll'); done = g.newlabel('L_poll_done')
    A('s_mov_b64 s[68:69], exec'); A(f's_mov_b32 s70, {SPIN_MAX}')
    g.label(l)
    loads()
    A('s_waitcnt vmcnt(0)')
    check()
    A(f's_cbranch_vccz {done}')
    A('s_mov_b64 exec, vcc')
    A('s_sub_u32 s70, s70, 1'); A('s_cmp_eq_u32 s70, 0'); A(f's_cbranch_scc1 {done}')
    if sleep: A(f's_sleep {sleep}')
    A(f's_branch {l}')
    g.label(done)
    A('s_mov_b64 exec, s[68:69]')

def multi_poll(g, pref, n, load, base, t, ladder):
    A = g.A
    for i in range(n): A(f's_mov_b64 s[{72+2*i}:{73+2*i}], -1')
    A(f's_mov_b32 s70, {SPIN_MAX}')
    g.label(f'{pref}_poll')
    for i in range(n):
        lb = g.newlabel(f'{pref}_skip')
        A(f's_mov_b64 exec, s[{72+2*i}:{73+2*i}]'); A(f's_cbranch_execz {lb}')
        A(load(i))
        g.label(lb)
    A('s_mov_b32 s71, 0')
    A('s_waitcnt vmcnt(0)')
    for i in range(n):
        lb = g.newlabel(f'{pref}_skip')
        r = base + 4*i
        A(f's_mov_b64 exec, s[{72+2*i}:{73+2*i}]'); A(f's_cbranch_execz {lb}')
        A(f'v_max3_u32 v{t}, v{r}, v{r+1}, v{r+2}'); A(f'v_max_u32 v{t}, v{t}, v{r+3}')
        A(f'v_cmp_eq_u32 vcc, -1, v{t}')
        A(f's_mov_b64 s[{72+2*i}:{73+2*i}], vcc'); A('s_bcnt1_i32_b64 s50, vcc'); A('s_add_u32 s71, s71, s50')
        g.label(lb)
    A('s_cmp_eq_u32 s71, 0'); A(f's_cbranch_scc1 {pref}_done')
    A('s_sub_u32 s70, s70, 1'); A('s_cmp_eq_u32 s70, 0'); A(f's_cbranch_scc1 {pref}_done')
    for th, sl in reversed(ladder):
        A(f's_cmp_le_u32 s71, {th}'); A(f's_cbranch_scc1 {pref}_poll')
        if sl: A(f's_sleep {sl}')
    A(f's_branch {pref}_poll')
    g.label(f'{pref}_done')
    A('s_mov_b64 exec, -1')

def chk_tags(g, regs, tag):
    def f():
        g.A(f'v_cmp_ne_u32 vcc, v{regs[0]}, v{tag}')
        for r in regs[1:]:
            g.A(f'v_cmp_ne_u32 s[60:61], v{r}, v{tag}'); g.A('s_or_b64 vcc, vcc, s[60:61]')
    return f
def chk_sent(g, regs, t):
    def f():
        g.A(f'v_max3_u32 v{t}, v{regs[0]}, v{regs[1]}, v{regs[2]}')
        rest = regs[3:]
        while len(rest) >= 2:
            g.A(f'v_max3_u32 v{t}, v{t}, v{rest[0]}, v{rest[1]}'); rest = rest[2:]
        if rest: g.A(f'v_max_u32 v{t}, v{t}, v{rest[0]}')
        g.A(f'v_cmp_eq_u32 vcc, -1, v{t}')
    return f

def last_arriver(g, idx, skip):
    A = g.A
    A('v_mov_b32 v11, 1'); A('v_mov_b32 v12, 0')
    A('s_waitcnt lgkmcnt(0)')
    A('s_mov_b64 exec, 1')
    A(f'ds_add_rtn_u32 v13, v12, v11 offset:{L_CNT + 4*idx}')
    A('s_mov_b64 exec, -1')
    A('s_waitcnt lgkmcnt(0)')
    A('v_readfirstlane_b32 s50, v13')
    g.nop(1)
    A('s_cmp_lg_u32 s50, 3'); A(f's_cbranch_scc1 {skip}')

def sum4x4(g, r, sanitize=True):
    A = g.A
    for i in (0, 2):
        A(f'v_pk_add_f32 v[{r+i}:{r+i+1}], v[{r+i}:{r+i+1}], v[{r+4+i}:{r+5+i}]')
        A(f'v_pk_add_f32 v[{r+8+i}:{r+9+i}], v[{r+8+i}:{r+9+i}], v[{r+12+i}:{r+13+i}]')
    for i in (0, 2): A(f'v_pk_add_f32 v[{r+i}:{r+i+1}], v[{r+i}:{r+i+1}], v[{r+8+i}:{r+9+i}]')
    if sanitize:
        for i in range(4): A(f'v_min_u32 v{r+i}, -2, v{r+i}')

def build(ts=False, nsb=48, exp='', depth=8, lead=3, leadv=5, header='', opsl=1, apth=4, apsl=8, big=2):
    tsmask = None
    if 'tailts' in exp: tsmask = {('S', 0), ('S', 6), ('S', 7)} | {('H', i) for i in (10, 11, 12, 13, 14, 15)}
    if 'prog' in exp: tsmask = {('S', 0), ('S', 3), ('S', 5), ('S', 6)}
    if 'mlpts' in exp: tsmask = {('S', 0), ('S', 6)} | {('H', i) for i in (13, 14, 15)} | {('M', i) for i in range(1, 10)}
    g = G(ts, tsmask); A = g.A
    g.w0only = 'prog' in exp
    if 'ld01' in exp: g.ldf = ' sc0 sc1'
    if 'st01' in exp: g.stf = ' sc0 sc1'
    if 'ldnt' in exp: g.ldf = ' sc1 nt'
    if 'stnt' in exp: g.stf = ' sc1 nt'
    NSB = nsb; NPOOL = (64 - NSB)*8; D = depth
    g.L.append(header + f'; @launch grid=(256,1,1) block=(512,1,1) lds={LDS_BYTES}')
    g.L.append('.amdgcn_target "amdgcn-amd-amdhsa--gfx950"')
    g.L.append('.text'); g.L.append(f'.globl {NAME}_kernel'); g.L.append('.p2align 8')
    g.L.append(f'.type {NAME}_kernel,@function'); g.label(f'{NAME}_kernel')
    A('s_cmp_ge_u32 s2, 256'); A('s_cbranch_scc1 L_end')
    A('s_load_dwordx16 s[16:31], s[0:1], 0')
    A('s_load_dwordx8 s[32:39], s[0:1], 64')
    A('s_load_dwordx4 s[40:43], s[0:1], 96')
    A('v_lshrrev_b32 v1, 6, v0'); A('v_and_b32 v0, 63, v0')
    A('v_readfirstlane_b32 s3, v1')
    A('s_lshr_b32 s4, s2, 3'); A('s_and_b32 s5, s2, 7')
    A('s_mul_i32 s58, s4, 3'); A('s_add_u32 s58, s58, s5'); A('s_cmp_lt_u32 s5, 3'); A('s_cselect_b32 s58, s58, 255')
    A('s_add_u32 s57, s4, 32'); A('s_cmp_eq_u32 s5, 4'); A('s_cselect_b32 s57, s57, 255'); A('s_cmp_eq_u32 s5, 3'); A('s_cselect_b32 s57, s4, s57')
    A('s_and_b32 s6, s3, 3')
    if ts:
        A('s_lshl_b32 s95, s2, 3'); A('s_add_u32 s95, s95, s3'); A('s_lshl_b32 s95, s95, 7'); A(f's_add_u32 s95, s95, {WS_TS}')
    A('s_cmp_ge_u32 s3, 4'); A('s_cbranch_scc1 L_helper')

    VOFF = 1; VL = 2; VL2 = 3; Q = 4
    AA = list(range(8, 16)); BB = list(range(16, 24)); T = list(range(24, 32)); PA = list(range(32, 40)); PB = list(range(40, 48))
    PL = 48; OM = 54; OL = 55; VQA = 56; VQ = 57; VPA = 58; VN = 59
    NB = NS // 8 - 1; NX = 8*NB
    def slot(i): return 64 + 4*i
    def pslot(t): return 8 + t if t < NX else t - NX
    A('s_lshl_b32 s51, s4, 24')
    A(f's_mul_i32 s44, s5, {NSB*32768}'); A('s_add_u32 s44, s44, s51')
    A('s_lshl_b32 s53, s6, 10'); A('s_add_u32 s44, s44, s53'); A('s_mov_b32 s45, s44')
    A(f'v_lshlrev_b32 v{VOFF}, 4, v0')
    A('s_waitcnt lgkmcnt(0)')
    srd(g, 8, 18, 1 << 29); srd(g, 12, 20, 1 << 29)
    g.stamp(0)
    def ld(sl, sr):
        A(f'buffer_load_dwordx4 v[{slot(sl)}:{slot(sl)+3}], v{VOFF}, s[{sr}:{sr+3}], s44 offen nt')
        A('s_add_u32 s44, s44, 4096')
    def prefetch(sr, first, D):
        for t in range(first, NS):
            A(f's_waitcnt vmcnt({D-1})'); ld(pslot(t), sr)
    for t in range(D): ld(pslot(t), 8)
    A('s_barrier')
    A(f'v_lshrrev_b32 v{VL2}, 4, v0'); A(f'v_lshlrev_b32 v{VL2}, 5, v{VL2}')
    A('s_lshl_b32 s46, s6, 14'); A(f's_add_u32 s46, s46, {L_SC}'); A(f'v_add_u32 v{VL2}, s46, v{VL2}')
    A(f'v_bfe_u32 v{VL}, v0, 1, 3'); A(f'v_lshl_add_u32 v{VL}, v{VL}, 2, v{VL2}')
    A('s_mov_b32 s48, 0xcccccccc'); A('s_mov_b32 s49, 0xcccccccc')
    A(f's_mov_b32 s47, {hex(f2u(128 ** -0.5))}'); A(f's_mov_b32 s52, {hex(LOG2E)}')
    A(f'v_mov_b32 v{OM}, 0xff7fffff'); A(f'v_mov_b32 v{OL}, 0')
    A(f'v_mov_b32 v{VPA}, s6'); A(f'v_lshlrev_b32 v{VPA}, 2, v{VPA}')
    A(f'v_and_b32 v50, 15, v0'); A(f'v_lshlrev_b32 v50, 5, v50')
    A(f'v_mov_b32 v{VQA}, {L_Q + 4*(NB+2)}'); A(f'v_mov_b32 v{VN}, {NB+2}')
    A(f's_mov_b32 s70, {SPIN_MAX*64}')
    prefetch(8, D, D)
    g.stamp(1)
    if 'xb1' not in exp: A('s_barrier')
    g.stamp(2)
    A(f'ds_read_b128 v[8:11], v50 offset:{L_HV}'); A(f'ds_read_b128 v[12:15], v50 offset:{L_HV + 16}')
    A('s_waitcnt lgkmcnt(0)')
    for i in range(4): A(f'v_cvt_pk_bf16_f32 v{Q+i}, v{8+2*i}, v{9+2*i}')
    def kdot(a, sl):
        A(f'v_mov_b32 v{a}, 0')
        for i in range(4): A(f'v_dot2c_f32_bf16 v{a}, v{slot(sl)+i}, v{Q+i}')
    def kreduce(a, off=None):
        g.nop(3)
        for j in range(4):
            A(f'v_add_f32_dpp v{T[j]}, v{a[j]}, v{a[j]} row_ror:8 row_mask:0xf bank_mask:0x3')
            A(f'v_add_f32_dpp v{T[j]}, v{a[j+4]}, v{a[j+4]} row_ror:8 row_mask:0xf bank_mask:0xc')
        for j in range(2):
            A(f'v_add_f32_dpp v{T[4+j]}, v{T[j]}, v{T[j]} row_half_mirror row_mask:0xf bank_mask:0x5')
            A(f'v_add_f32_dpp v{T[4+j]}, v{T[j+2]}, v{T[j+2]} row_half_mirror row_mask:0xf bank_mask:0xa')
        g.nop(1)
        A(f'v_add_f32_dpp v{T[6]}, v{T[4]}, v{T[4]} quad_perm:[2,3,0,1] row_mask:0xf bank_mask:0xf')
        A(f'v_add_f32_dpp v{T[7]}, v{T[5]}, v{T[5]} quad_perm:[2,3,0,1] row_mask:0xf bank_mask:0xf')
        A(f'v_cndmask_b32 v{T[6]}, v{T[6]}, v{T[7]}, s[48:49]')
        g.nop(2)
        A(f'v_add_f32_dpp v{T[6]}, v{T[6]}, v{T[6]} quad_perm:[1,0,3,2] row_mask:0xf bank_mask:0xf')
        rnd(g, T[6], T[6]); A(f'v_mul_f32 v{T[6]}, s47, v{T[6]}'); rnd(g, T[6], T[6])
        A(f'ds_write_b32 v{VL}, v{T[6]}' + ('' if off is None else f' offset:{off}'))
        A(f'v_max_f32 v{T[0]}, v{OM}, v{T[6]}')
        A(f'v_sub_f32 v{T[1]}, v{OM}, v{T[0]}'); A(f'v_sub_f32 v{T[2]}, v{T[6]}, v{T[0]}')
        A(f'v_mul_f32 v{T[1]}, s52, v{T[1]}'); A(f'v_mul_f32 v{T[2]}, s52, v{T[2]}')
        A(f'v_exp_f32 v{T[1]}, v{T[1]}'); A(f'v_exp_f32 v{T[2]}, v{T[2]}')
        A(f'v_mov_b32 v{OM}, v{T[0]}')
        if off is None: A(f'v_add_u32 v{VL}, 128, v{VL}')
        else: g.nop(1)
        A(f'v_fma_f32 v{OL}, v{OL}, v{T[1]}, v{T[2]}')
    def qread(): A(f'ds_read_b32 v{VQ}, v{VQA}')
    def qtop(pref, prog):
        g.label(f'{pref}_top')
        A('s_waitcnt lgkmcnt(0)')
        A(f'v_readfirstlane_b32 s50, v{VQ}')
        g.nop(1)
        A(f's_cmp_ge_u32 s50, {hex(Q_DONE)}'); A(f's_cbranch_scc1 {pref}_slow')
        A('s_add_u32 s44, s50, s53')
        if ts and ('kprog' in exp and prog == L_PROG or 'vprog' in exp and prog == L_PROGV):
            A(f'v_readfirstlane_b32 s71, v{VN}'); g.nop(2)
            lb = g.newlabel('L_st')
            A('s_and_b32 s72, s71, 7'); A('s_cmp_lg_u32 s72, 0'); A(f's_cbranch_scc1 {lb}')
            A('s_cmp_lg_u32 s3, 0'); A(f's_cbranch_scc1 {lb}')
            A('s_memrealtime s[96:97]'); A('s_waitcnt lgkmcnt(0)')
            A('v_mov_b32 v60, s96'); A('v_mov_b32 v61, s97'); A('s_add_u32 s72, s95, s71'); A('s_add_u32 s72, s72, 128'); A('v_mov_b32 v62, s72')
            A('s_mov_b64 exec, 1'); A('global_store_dwordx2 v62, v[60:61], s[42:43]'); A('s_mov_b64 exec, -1')
            g.label(lb)
        A(f'v_add_u32 v{VQA}, 4, v{VQA}')
        A(f'ds_write_b32 v{VPA}, v{VN} offset:{prog}'); A(f'v_add_u32 v{VN}, 1, v{VN}')
    def qslow(pref):
        g.label(f'{pref}_slow')
        A(f's_cmp_eq_u32 s50, {hex(Q_DONE)}'); A(f's_cbranch_scc1 {pref}_last')
        A('s_sub_u32 s70, s70, 1'); A('s_cmp_eq_u32 s70, 0'); A(f's_cbranch_scc1 {pref}_last')
        A('s_sleep 1'); qread(); A(f's_branch {pref}_top')
        g.label(f'{pref}_last')
    for j in range(8):
        A('s_waitcnt vmcnt(7)')
        kdot(AA[j], j); ld(j, 8)
        for e in range(NB*j, NB*(j+1)):
            kdot(BB[e % 8], 8 + e)
            if e % 8 == 7: kreduce(BB, off=(e // 8)*128)
    qread(); A(f'v_add_u32 v{VL}, {NB*128}, v{VL}'); kreduce(AA)
    g.stamp(8)
    qtop('L_k', L_PROG)
    for j in range(8):
        A('s_waitcnt vmcnt(7)')
        kdot(AA[j], j); ld(j, 8)
        if j == 6: qread()
    kreduce(AA)
    A('s_branch L_k_top')
    qslow('L_k')
    A('s_mov_b32 s44, s45')
    for j in range(8):
        A('s_waitcnt vmcnt(7)')
        kdot(AA[j], j); ld(pslot(j), 12)
    kreduce(AA)
    A(f'v_mov_b32 v{T[0]}, v{OM}')
    wave_allreduce(g, T[0], T[1], 'max')
    A(f'v_sub_f32 v{T[2]}, v{OM}, v{T[0]}'); A(f'v_mul_f32 v{T[2]}, s52, v{T[2]}'); A(f'v_exp_f32 v{T[2]}, v{T[2]}')
    A(f'ds_read_b32 v{T[3]}, v{VPA} offset:{L_TAG}')
    A('s_lshl_b32 s50, s2, 6'); A('s_lshl_b32 s56, s6, 4'); A('s_add_u32 s50, s50, s56')
    A(f'v_mul_f32 v{T[2]}, v{T[2]}, v{OL}')
    wave_allreduce(g, T[2], T[1])
    A(f'v_mul_f32 v{T[2]}, 0.5, v{T[2]}')
    A(f's_add_u32 s50, s50, {WS_ML}'); A(f'v_mov_b32 v{T[4]}, s50')
    A('s_waitcnt lgkmcnt(0)')
    A(f'v_mov_b32 v{T[1]}, v{T[3]}')
    A(f'ds_write_b32 v{VPA}, v{VN} offset:{L_KD}')
    A('s_mov_b64 exec, 1')
    A(f'global_store_dwordx4 v{T[4]}, v[{T[0]}:{T[3]}], s[42:43] sc1')
    A('s_mov_b64 exec, -1')
    g.stamp(3)
    prefetch(12, 8, 8)
    ACC = AA
    for i in range(8): A(f'v_mov_b32 v{ACC[i]}, 0')
    A(f'v_mov_b32 v{VQA}, {L_QV + 4*(NB+2)}'); A(f'v_mov_b32 v{VN}, {NB+2}')
    g.stamp(4)
    if 'xb2' not in exp: A('s_barrier')
    g.stamp(5)
    def pread(P, off):
        A(f'ds_read_b128 v[{P[0]}:{P[3]}], v{VL2} offset:{off}'); A(f'ds_read_b128 v[{P[4]}:{P[7]}], v{VL2} offset:{off+16}')
    def vmac(sl, p):
        A(f'v_lshrrev_b32 v{PL}, 16, v{p}')
        tile_mac(g, ACC, slot(sl), f'v{p}', f'v{PL}')
    pread(PA, NB*128); pread(PB, 0)
    PC = BB
    for j in range(8):
        A('s_waitcnt vmcnt(7) lgkmcnt(0)' if j == 0 else 's_waitcnt vmcnt(7)')
        vmac(j, PA[j]); ld(j, 12)
        for e in range(NB*j, NB*(j+1)):
            cur, nxt = (PB, PC) if (e // 8) % 2 == 0 else (PC, PB)
            if e % 8 == 0:
                A('s_waitcnt lgkmcnt(0)')
                if e // 8 + 1 < NB: pread(nxt, (e // 8 + 1)*128)
            vmac(8 + e, cur[e % 8])
    A(f'v_add_u32 v{VL2}, {(NB+1)*128}, v{VL2}')
    qread(); pread(PA, 0)
    g.stamp(10)
    qtop('L_v', L_PROGV)
    for j in range(8):
        A('s_waitcnt vmcnt(7)')
        vmac(j, PA[j]); ld(j, 12)
        if j == 6: qread()
    A(f'v_add_u32 v{VL2}, 128, v{VL2}')
    pread(PA, 0)
    A('s_branch L_v_top')
    qslow('L_v')
    A('v_lshrrev_b32 v51, 4, v0'); A('v_lshl_add_u32 v50, v51, 3, v50')
    A('s_lshl_b32 s46, s6, 9'); A('v_add_u32 v50, s46, v50')
    A('s_lshl_b32 s46, s2, 9'); A(f's_add_u32 s46, s46, {WS_OP}'); A(f'v_add_u32 v51, s46, v{VOFF}')
    for j in range(8):
        A(f's_waitcnt vmcnt({7-j})')
        vmac(j, PA[j])
    g.stamp(6)
    g.nop(1)
    swap_reduce8(g, ACC)
    A(f'ds_write_b64 v50, v[{ACC[0]}:{ACC[1]}] offset:{L_OB}')
    A('s_waitcnt lgkmcnt(0)')
    A('s_barrier')
    if 'notail' in exp: A('s_branch L_end')
    A('s_cmp_lg_u32 s3, 0'); A('s_cbranch_scc1 L_s_after_pub')
    A('s_mov_b64 exec, 0xffffffff')
    for w in range(4): A(f'ds_read_b128 v[{8+4*w}:{11+4*w}], v{VOFF} offset:{L_OB + 512*w}')
    A('s_waitcnt lgkmcnt(0)')
    sum4x4(g, 8)
    A('global_store_dwordx4 v51, v[8:11], s[42:43] sc1')
    A('s_mov_b64 exec, -1')
    g.stamp(7)
    g.label('L_s_after_pub')
    if 'xstage' in exp: A('s_branch L_end')
    A(f's_cmp_ge_u32 s57, {NMLP}'); A('s_cbranch_scc1 L_end')
    A('s_branch L_gather_ap')

    g.label('L_helper'); g.role = 'H'
    WQ = 64; WM = 192; CC = 52; X8 = 56; X4 = 46; TAG = 49; MEAN = 40; SD = 41; RSD = 42
    A('v_lshrrev_b32 v1, 2, v0'); A('v_and_b32 v2, 3, v0')
    A('s_lshl_b32 s7, s6, 7')
    A('v_add_u32 v3, s7, v1')
    A('v_lshlrev_b32 v4, 2, v0'); A('s_lshl_b32 s50, s6, 8'); A('v_add_u32 v4, s50, v4')
    A('s_movk_i32 s50, 6144'); A('v_mul_lo_u32 v5, v3, s50'); A('v_lshl_add_u32 v5, v2, 4, v5')
    A('v_lshlrev_b32 v6, 4, v0')
    A('s_lshl_b32 s50, s5, 6'); A('s_lshl_b32 s51, s6, 4'); A('s_add_u32 s50, s50, s51')
    A('v_lshrrev_b32 v7, 4, v0'); A('v_lshl_add_u32 v7, v7, 2, s50')
    A('v_lshlrev_b32 v10, 1, v7')
    A('v_lshlrev_b32 v9, 13, v7'); A('v_and_b32 v11, 15, v0'); A('v_lshl_add_u32 v9, v11, 4, v9')
    A('v_mov_b32 v8, 0')
    A('s_waitcnt lgkmcnt(0)')
    g.stamp(0)
    A(f'global_load_dword v{TAG}, v8, s[42:43]')
    A('s_cmp_ge_u32 s58, 96'); A('s_cbranch_scc1 L_h_noprod1')
    srd(g, 8, 36, 512*3072*2)
    A(f'global_load_dword v{CC}, v4, s[34:35]')
    A('s_lshl_b32 s50, s58, 6')
    for j in range(0 if 'xwm' in exp else 8):
        A(f'buffer_load_dwordx4 v[{WM+4*j}:{WM+4*j+3}], v5, s[8:11], s50 offen nt')
        if j < 7: A(f's_add_u32 s50, s50, {6144*16}')
    g.label('L_h_noprod1')
    A('s_lshl_b32 s50, s5, 3'); A('s_add_u32 s50, s50, s3'); A('s_cmp_lg_u32 s50, 4'); A('s_cbranch_scc1 L_h_nocinit')
    A('v_and_b32 v11, 1, v0'); A('v_lshlrev_b32 v11, 7, v11'); A(f's_lshl_b32 s50, s4, 8'); A(f's_add_u32 s50, s50, {WS_CNT}'); A('v_add_u32 v11, s50, v11')
    A('s_mov_b64 exec, 3')
    A('global_store_dword v11, v8, s[42:43] sc1')
    A('s_mov_b64 exec, -1')
    g.label('L_h_nocinit')
    A(f'global_load_dwordx4 v[{X8}:{X8+3}], v6, s[16:17]')
    A(f'global_load_dwordx2 v[{X4}:{X4+1}], v10, s[16:17]')
    srd(g, 12, 22, 512*4096*2)
    A('s_lshl_b32 s50, s4, 8')
    for j in range(0 if 'xwq' in exp else 4):
        A(f'buffer_load_dwordx4 v[{WQ+4*j}:{WQ+4*j+3}], v9, s[12:15], s50 offen nt')
        if j < 3: A('s_add_u32 s50, s50, 8192')
    A('s_cmp_lg_u32 s3, 4'); A('s_cbranch_scc1 L_h_nozero')
    A('v_lshlrev_b32 v10, 2, v0')
    A(f'ds_write_b32 v10, v8 offset:{L_CNT}')
    A('s_lshl_b32 s51, s4, 24'); A(f's_mul_i32 s50, s5, {NSB*32768}'); A('s_add_u32 s50, s50, s51')
    A('v_lshlrev_b32 v11, 15, v0'); A('v_add_u32 v11, s50, v11'); A('v_mov_b32 v12, -1')
    A(f'v_cmp_gt_u32 vcc, {NSB}, v0'); g.nop(2); A('v_cndmask_b32 v11, v12, v11, vcc')
    for q in (L_Q, L_QV):
        A(f'ds_write_b32 v10, v11 offset:{q}'); A(f'ds_write_b32 v10, v12 offset:{q + 256}')
    A('s_waitcnt lgkmcnt(0)')
    g.label('L_h_nozero')
    A('s_barrier')
    A('s_cmp_ge_u32 s58, 96'); A('s_cbranch_scc1 L_h_w1')
    A('s_waitcnt vmcnt(14)'); A('s_branch L_h_w2')
    g.label('L_h_w1')
    A('s_waitcnt vmcnt(4)')
    g.label('L_h_w2')
    A('s_mov_b32 s50, 0x9e3779b1')
    A(f'v_mul_lo_u32 v{TAG}, v{TAG}, s50'); A(f'v_add_u32 v{TAG}, 0x7f4a7c15, v{TAG}')
    A('v_mov_b32 v10, s6'); A('v_lshlrev_b32 v10, 2, v10'); A(f'ds_write_b32 v10, v{TAG} offset:{L_TAG}')
    g.stamp(1)
    A('s_cmp_ge_u32 s58, 96'); A('s_cbranch_scc1 L_h_noprod2')
    CV = list(range(16, 24)); ACC = list(range(24, 32))
    unpack(g, [32, 33], CC, 1)
    for i in range(2): A(f'v_mul_f32 v{80+i}, {hex(f2u(-1.4426950408889634))}, v{32+i}')
    sigmoid_mul_n(g, [(88+i, 32+i, 80+i, 96+i, 104+i, 112+i) for i in range(2)])
    for i in range(2): rnd(g, 88+i, 88+i)
    A('v_and_b32 v10, 7, v0'); A('v_lshlrev_b32 v10, 6, v10'); A('v_lshrrev_b32 v11, 3, v0'); A('v_lshl_add_u32 v10, v11, 2, v10')
    A('s_lshl_b32 s50, s6, 9'); A('v_add_u32 v10, s50, v10')
    A(f'ds_write_b32 v10, v88 offset:{L_QP}'); A(f'ds_write_b32 v10, v89 offset:{L_QP + 32}')
    A('v_lshl_add_u32 v10, v1, 5, s50')
    A(f'ds_read_b128 v[16:19], v10 offset:{L_QP}'); A(f'ds_read_b128 v[20:23], v10 offset:{L_QP + 16}')
    A('s_waitcnt vmcnt(0) lgkmcnt(0)' if 'xwq' in exp else 's_waitcnt vmcnt(6) lgkmcnt(0)')
    for i in range(8): A(f'v_mov_b32 v{ACC[i]}, 0'); A(f'v_lshrrev_b32 v{80+i}, 16, v{CV[i]}')
    for j in range(8): tile_mac(g, ACC, WM + 4*j, f'v{CV[j]}', f'v{80+j}')
    A('v_lshrrev_b32 v10, 4, v0'); A('v_lshlrev_b32 v10, 3, v10'); A('v_lshl_add_u32 v10, v2, 5, v10')
    A('v_add_u32 v10, s7, v10')
    swap_reduce8(g, ACC)
    row_allreduce(g, ACC[:2], rors=(8, 4))
    A(f'ds_write_b64 v10, v[{ACC[0]}:{ACC[1]}] offset:{L_MODP}')
    last_arriver(g, 0, 'L_h_noprod2')
    A('v_and_b32 v11, 7, v0'); A('v_lshlrev_b32 v11, 4, v11')
    for w in range(4): A(f'ds_read_b128 v[{16+4*w}:{19+4*w}], v11 offset:{L_MODP + 128*w}')
    A('s_lshl_b32 s50, s58, 7'); A(f's_add_u32 s50, s50, {WS_MOD}'); A('v_add_u32 v10, s50, v11')
    A('v_lshrrev_b32 v11, 3, v0'); A('v_lshl_add_u32 v10, v11, 14, v10')
    A('s_waitcnt lgkmcnt(0)')
    sum4x4(g, 16, False)
    A('v_cvt_pk_bf16_f32 v16, v16, v17'); A('v_cvt_pk_bf16_f32 v18, v18, v19'); A(f'v_mov_b32 v17, v{TAG}'); A(f'v_mov_b32 v19, v{TAG}')
    A('global_store_dwordx4 v10, v[16:19], s[42:43] sc1')
    g.stamp(2)
    g.label('L_h_noprod2')
    A('s_waitcnt vmcnt(4)')
    XS = list(range(16, 24))
    unpack(g, XS, X8)
    ln_stats(g, XS, MEAN, SD, list(range(32, 40)))
    A(f'v_rcp_f32 v{RSD}, v{SD}')
    A('s_and_b32 s50, s4, 7'); A('s_lshl_b32 s50, s50, 14'); A(f's_add_u32 s50, s50, {WS_MOD}')
    A('v_lshlrev_b32 v10, 2, v7'); A('v_add_u32 v10, s50, v10')
    unpack(g, [16, 17, 18, 19], X4, 2)
    def lds_():
        A('global_load_dwordx4 v[24:27], v10, s[42:43] sc1'); A('global_load_dwordx4 v[28:31], v10, s[42:43] offset:2048 sc1')
    poll(g, lds_, chk_tags(g, [25, 27, 29, 31], TAG), sleep=2)
    g.stamp(3)
    for k, src in enumerate((24, 26)):
        A(f'v_lshlrev_b32 v{20+2*k}, 16, v{src}'); A(f'v_and_b32 v{21+2*k}, 0xffff0000, v{src}')
    for k, src in enumerate((28, 30)):
        A(f'v_lshlrev_b32 v{32+2*k}, 16, v{src}'); A(f'v_and_b32 v{33+2*k}, 0xffff0000, v{src}')
    for i in range(4): A(f'v_add_f32 v{32+i}, 1.0, v{32+i}')
    for i in range(4): rnd(g, 32+i, 32+i)
    modulate_n(g, [(36+i, 16+i, 32+i, 20+i, 80+i, 84+i) for i in range(4)], MEAN, SD, RSD)
    ACC = list(range(24, 32))
    for i in range(8): A(f'v_mov_b32 v{ACC[i]}, 0')
    for j in range(4): A(f'v_lshrrev_b32 v{80+j}, 16, v{36+j}')
    for j in range(4): tile_mac(g, ACC, WQ + 4*j, f'v{36+j}', f'v{80+j}')
    A('v_and_b32 v10, 15, v0'); A('v_lshlrev_b32 v10, 5, v10'); A('v_lshrrev_b32 v11, 4, v0'); A('v_lshl_add_u32 v10, v11, 3, v10')
    A('s_lshl_b32 s50, s6, 9'); A('v_add_u32 v10, s50, v10')
    swap_reduce8(g, ACC)
    A(f'ds_write_b64 v10, v[{ACC[0]}:{ACC[1]}] offset:{L_QP}')
    A('v_lshlrev_b32 v10, 3, v0')
    last_arriver(g, 1, 'L_h_noqpub')
    for w in range(4): A(f'ds_read_b64 v[{16+2*w}:{17+2*w}], v10 offset:{L_QP + 512*w}')
    A('s_lshl_b32 s50, s2, 10'); A(f's_add_u32 s50, s50, {WS_QX}'); A('v_add_u32 v10, s50, v6')
    A('s_waitcnt lgkmcnt(0)')
    A('v_pk_add_f32 v[16:17], v[16:17], v[18:19]'); A('v_pk_add_f32 v[20:21], v[20:21], v[22:23]'); A('v_pk_add_f32 v[16:17], v[16:17], v[20:21]')
    A(f'v_mov_b32 v19, v{TAG}'); A('v_mov_b32 v18, v17'); A(f'v_mov_b32 v17, v{TAG}')
    A('global_store_dwordx4 v10, v[16:19], s[42:43] sc1')
    g.label('L_h_noqpub')
    A('s_lshl_b32 s50, s4, 13'); A('s_lshl_b32 s51, s6, 8'); A('s_add_u32 s50, s50, s51'); A(f's_add_u32 s50, s50, {WS_QX}')
    A('v_lshrrev_b32 v10, 3, v0'); A('v_lshlrev_b32 v10, 10, v10'); A('v_and_b32 v11, 7, v0'); A('v_lshl_add_u32 v10, v11, 5, v10')
    A('v_add_u32 v10, s50, v10')
    A('v_lshlrev_b32 v48, 4, v11'); A('v_bfe_u32 v13, v0, 5, 1'); A('v_lshl_add_u32 v48, v13, 3, v48')
    A('v_bfe_u32 v13, v0, 4, 1'); A('v_lshl_add_u32 v48, v13, 2, v48'); A('v_add_u32 v12, s7, v48')
    def lds_():
        A('global_load_dwordx4 v[24:27], v10, s[42:43] sc1'); A('global_load_dwordx4 v[28:31], v10, s[42:43] offset:16 sc1')
    poll(g, lds_, chk_tags(g, [25, 27, 29, 31], TAG), sleep=2)
    reduce4_hi(g, [24, 26, 28, 30])
    A(f'ds_write_b32 v12, v24 offset:{L_HV}')
    A('s_waitcnt lgkmcnt(0)')
    g.stamp(4)
    if 'xb1' not in exp: A('s_barrier')
    if 'xclr' in exp: A('s_branch L_h_noclear')
    A('s_cmp_lg_u32 s3, 7'); A('s_cbranch_scc1 L_h_noclear')
    for i in range(4): A(f'v_mov_b32 v{16+i}, -1')
    A('s_lshl_b32 s51, s2, 9'); A(f's_add_u32 s51, s51, {WS_OP}'); A('v_add_u32 v10, s51, v6')
    A('v_and_b32 v11, 15, v0'); A('v_lshlrev_b32 v11, 4, v11'); A('v_lshrrev_b32 v12, 4, v0'); A('v_lshl_add_u32 v11, v12, 16, v11')
    A('s_lshl_b32 s51, s2, 8'); A(f's_add_u32 s51, s51, {WS_AP}'); A('v_add_u32 v11, s51, v11'); A('v_add_u32 v12, 0x40000, v11')
    A('s_mov_b64 exec, 0xffffffff')
    A('global_store_dwordx4 v10, v[16:19], s[42:43] sc1')
    A('s_mov_b64 exec, -1')
    A('global_store_dwordx4 v11, v[16:19], s[42:43] sc1')
    A('global_store_dwordx4 v12, v[16:19], s[42:43] sc1')
    A(f's_cmp_ge_u32 s57, {NMLP}'); A('s_cbranch_scc1 L_h_noclear')
    A('s_lshl_b32 s51, s57, 11'); A(f's_add_u32 s51, s51, {WS_DP}'); A('v_add_u32 v10, s51, v6')
    A('global_store_dwordx4 v10, v[16:19], s[42:43] sc1')
    A('global_store_dwordx4 v10, v[16:19], s[42:43] offset:1024 sc1')
    g.label('L_h_noclear')
    WO = 64; WG = 80; WU = 112; WD = 144; E = 192
    srd(g, 8, 24, 4096*512*2)
    A('v_lshrrev_b32 v10, 3, v0'); A('v_lshlrev_b32 v10, 2, v10')
    A('s_lshl_b32 s50, s4, 7'); A('s_lshl_b32 s51, s6, 5'); A('s_add_u32 s50, s50, s51')
    A('v_add_u32 v10, s50, v10'); A('v_lshlrev_b32 v10, 10, v10')
    A('v_and_b32 v11, 7, v0'); A('v_lshl_add_u32 v10, v11, 4, v10')
    A('s_lshl_b32 s50, s5, 7')
    for j in range(0 if 'xwo' in exp else 4):
        A(f'buffer_load_dwordx4 v[{WO+4*j}:{WO+4*j+3}], v10, s[8:11], s50 offen offset:{1024*j} nt')
    A(f's_cmp_ge_u32 s57, {NMLP}'); A('s_cbranch_scc1 L_h_nomlpw')
    srd(g, 8, 28, 512*1792*2); srd(g, 12, 30, 512*1792*2)
    A('s_movk_i32 s50, 3584'); A('v_mul_lo_u32 v10, v3, s50'); A('v_lshl_add_u32 v10, v2, 4, v10')
    A('s_lshl_b32 s50, s57, 6')
    for j in range(0 if 'xgu' in exp else 8):
        A(f'buffer_load_dwordx4 v[{WG+4*j}:{WG+4*j+3}], v10, s[8:11], s50 offen nt')
        A(f'buffer_load_dwordx4 v[{WU+4*j}:{WU+4*j+3}], v10, s[12:15], s50 offen nt')
        if j < 7: A(f's_add_u32 s50, s50, {3584*16}')
    srd(g, 8, 32, 1792*512*2)
    A('s_lshl_b32 s50, s57, 5'); A('s_lshl_b32 s51, s6, 3'); A('s_add_u32 s50, s50, s51'); A('s_lshl_b32 s50, s50, 10')
    for j in range(0 if 'xwd' in exp else 8):
        if j == 4: A('s_add_u32 s50, s50, 4096')
        A(f'buffer_load_dwordx4 v[{WD+4*j}:{WD+4*j+3}], v6, s[8:11], s50 offen offset:{1024*(j%4)} nt')
    A('v_lshlrev_b32 v10, 6, v3'); A('v_lshl_add_u32 v10, v2, 4, v10'); A(f'v_add_u32 v10, {L_ST}, v10')
    A('s_waitcnt vmcnt(0)' if 'xwd' in exp else 's_waitcnt vmcnt(8)')
    for j in range(8):
        A(f'ds_write_b128 v10, v[{WG+4*j}:{WG+4*j+3}] offset:{1024*j}'); A(f'ds_write_b128 v10, v[{WU+4*j}:{WU+4*j+3}] offset:{32768 + 1024*j}')
    A('v_mov_b32 v11, 1'); A('v_mov_b32 v12, 0')
    A('v_lshlrev_b32 v10, 9, v0'); A('s_lshl_b32 s50, s6, 4'); A(f's_add_u32 s50, s50, {L_ST}'); A('v_add_u32 v10, s50, v10')
    A('s_waitcnt lgkmcnt(0)')
    A('s_mov_b64 exec, 1')
    A(f'ds_add_u32 v12, v11 offset:{L_CNT + 16}')
    A('s_mov_b64 exec, -1')
    A(f's_mov_b32 s70, {SPIN_MAX*16}')
    g.label('L_st_spin')
    A(f'ds_read_b32 v13, v12 offset:{L_CNT + 16}')
    A('s_waitcnt lgkmcnt(0)')
    A('v_readfirstlane_b32 s50, v13')
    A('s_sub_u32 s70, s70, 1'); A('s_cmp_eq_u32 s70, 0'); A('s_cbranch_scc1 L_st_done')
    A('s_cmp_ge_u32 s50, 4'); A('s_cbranch_scc1 L_st_done')
    A('s_sleep 8'); A('s_branch L_st_spin')
    g.label('L_st_done')
    for j in range(8):
        A(f'ds_read_b128 v[{WG+4*j}:{WG+4*j+3}], v10 offset:{64*j}'); A(f'ds_read_b128 v[{WU+4*j}:{WU+4*j+3}], v10 offset:{32768 + 64*j}')
        if j % 4 == 3: A('s_waitcnt lgkmcnt(0)')
    A('s_cmp_lg_u32 s3, 6'); A('s_cbranch_scc1 L_h_nomlpw')
    A('s_and_b32 s51, s57, 7'); A('s_lshl_b32 s51, s51, 14'); A(f's_add_u32 s51, s51, {WS_MOD + 4096}')
    A('v_lshlrev_b32 v10, 5, v0'); A('v_add_u32 v10, s51, v10'); A('v_add_u32 v11, 4096, v10')
    A('v_and_b32 v12, 15, v0'); A('v_lshlrev_b32 v12, 3, v12'); A('s_and_b32 s50, s57, 15'); A('s_lshl_b32 s50, s50, 7')
    A('s_add_u32 s50, s50, s51'); A(f's_add_u32 s50, s50, {1280*8 - 4096}'); A('v_add_u32 v12, s50, v12')
    def lds_():
        A('global_load_dwordx4 v[16:19], v10, s[42:43] sc1'); A('global_load_dwordx4 v[20:23], v10, s[42:43] offset:16 sc1')
        A('global_load_dwordx4 v[24:27], v10, s[42:43] offset:2048 sc1'); A('global_load_dwordx4 v[28:31], v10, s[42:43] offset:2064 sc1')
        A('global_load_dwordx4 v[32:35], v11, s[42:43] sc1'); A('global_load_dwordx4 v[36:39], v11, s[42:43] offset:16 sc1')
        A('global_load_dwordx2 v[44:45], v12, s[42:43] sc1')
    poll(g, lds_, chk_tags(g, [45] + list(range(17, 40, 2)), TAG), sleep=32)
    for k in range(3):
        b = 16 + 8*k
        A(f'v_mov_b32 v{b+1}, v{b+2}'); A(f'v_mov_b32 v{b+2}, v{b+4}'); A(f'v_mov_b32 v{b+3}, v{b+6}')
        A(f'ds_write_b128 v6, v[{b}:{b+3}] offset:{L_MV + 1024*k}')
    A('v_and_b32 v12, 15, v0'); A('v_lshlrev_b32 v12, 2, v12')
    A(f'ds_write_b32 v12, v44 offset:{L_MV + 3072}')
    g.label('L_h_nomlpw')
    A('s_waitcnt vmcnt(0) lgkmcnt(0)')
    g.stamp(5)
    A('v_mov_b32 v12, s6'); A('v_lshlrev_b32 v12, 2, v12')
    A('s_lshl_b32 s59, s4, 24'); A(f's_add_u32 s59, s59, {NSB*8*32768}')
    A('v_mov_b32 v17, 0')
    def read_prog(off, dst):
        A(f'ds_read_b128 v[20:23], v17 offset:{off}')
        A('s_waitcnt lgkmcnt(0)')
        A('v_max3_u32 v20, v20, v21, v22'); A('v_max_u32 v20, v20, v23'); g.nop(1)
        A(f'v_readfirstlane_b32 {dst}, v20')
    A('s_cmp_lg_u32 s3, 4'); A('s_cbranch_scc1 L_nosched')
    A(f's_lshl_b32 s50, s4, 8'); A(f's_add_u32 s50, s50, {WS_CNT}'); A('v_mov_b32 v16, s50')
    A(f's_mov_b32 s52, {NSB}'); A('s_mov_b32 s53, 0')
    A(f's_mov_b32 s70, {SPIN_MAX*16}')
    g.label('L_sch_wait')
    read_prog(L_PROG, 's50')
    A('s_sub_u32 s70, s70, 1'); A('s_cmp_eq_u32 s70, 0'); A('s_cbranch_scc1 L_sch_done')
    A(f's_add_u32 s50, s50, {lead}'); A('s_cmp_ge_u32 s50, s52'); A('s_cbranch_scc1 L_sch_claim')
    A('s_sub_u32 s50, s52, s50'); A('s_cmp_gt_u32 s50, 4'); A('s_cbranch_scc1 L_sch_long')
    A('s_sleep 2'); A('s_branch L_sch_wait')
    g.label('L_sch_long')
    A('s_sleep 32'); A('s_branch L_sch_wait')
    g.label('L_sch_claim')
    A(f's_cmp_ge_u32 s52, {MAXROWS - 2}'); A('s_cbranch_scc1 L_sch_done')
    A(f's_cmp_lt_u32 s53, {NPOOL - 40}'); A('s_cselect_b32 s54, 2, 1')
    A('v_mov_b32 v18, s54')
    A('s_mov_b64 exec, 1')
    A('global_atomic_add v19, v16, v18, s[42:43] sc0 sc1')
    A('s_mov_b64 exec, -1')
    A('s_lshl_b32 s55, s52, 2'); A('v_mov_b32 v21, s55')
    A('s_waitcnt vmcnt(0)')
    A('v_readfirstlane_b32 s53, v19')
    g.label('L_sch_put')
    A(f's_cmp_ge_u32 s53, {NPOOL}'); A('s_cbranch_scc1 L_sch_done')
    A('s_lshl_b32 s55, s53, 15'); A('s_add_u32 s55, s55, s59'); A('v_mov_b32 v20, s55')
    A(f'ds_write_b32 v21, v20 offset:{L_Q}')
    A('v_add_u32 v21, 4, v21')
    A('s_add_u32 s52, s52, 1'); A('s_add_u32 s53, s53, 1')
    A('s_sub_u32 s54, s54, 1'); A('s_cmp_lg_u32 s54, 0'); A('s_cbranch_scc1 L_sch_put')
    A('s_branch L_sch_wait')
    g.label('L_sch_done')
    A('s_lshl_b32 s55, s52, 2'); A('v_mov_b32 v21, s55'); A('v_mov_b32 v20, -2')
    A(f'ds_write_b32 v21, v20 offset:{L_Q}')
    g.label('L_nosched')
    A('s_lshl_b32 s50, s4, 9'); A(f's_add_u32 s50, s50, {WS_ML}')
    A('v_and_b32 v11, 31, v0'); A('v_lshlrev_b32 v11, 4, v11'); A('v_add_u32 v11, s50, v11')
    A('s_lshl_b32 s50, s6, 14'); A(f's_add_u32 s50, s50, {L_SC}'); A('v_add_u32 v10, s50, v6')
    A(f's_mov_b32 s51, {hex(LOG2E)}')
    A(f's_mov_b32 s70, {SPIN_MAX*16}')
    g.label('L_kd_spin')
    A(f'ds_read_b32 v13, v12 offset:{L_KD}')
    A('s_waitcnt lgkmcnt(0)')
    A('v_readfirstlane_b32 s52, v13')
    A('s_sub_u32 s70, s70, 1'); A('s_cmp_eq_u32 s70, 0'); A('s_cbranch_scc1 L_kd_done')
    A('s_cmp_lg_u32 s52, 0'); A('s_cbranch_scc1 L_kd_done')
    A('s_sleep 8'); A('s_branch L_kd_spin')
    g.label('L_kd_done')
    g.stamp(6)
    NP = MAXROWS // 8
    for i in range(NP): A(f'ds_read_b128 v[{E+4*i}:{E+4*i+3}], v10 offset:{1024*i}')
    poll(g, lambda: A('global_load_dwordx4 v[28:31], v11, s[42:43] sc1'), chk_tags(g, [29, 31], TAG), sleep=8)
    g.stamp(8)
    M = 22; IL = 23
    A('v_mov_b32 v22, v28')
    row_allreduce(g, [22], 'max')
    A('v_mov_b32 v23, v22'); g.nop(2); A('v_permlane16_swap_b32 v22, v23'); A('v_max_f32 v22, v22, v23')
    A('v_sub_f32 v20, v28, v22'); A('v_mul_f32 v20, s51, v20'); A('v_exp_f32 v20, v20'); g.nop(1)
    A('v_mul_f32 v20, v20, v30')
    row_allreduce(g, [20])
    A('v_mov_b32 v23, v20'); g.nop(2); A('v_permlane16_swap_b32 v20, v23'); A('v_add_f32 v20, v20, v23')
    A('v_mov_b32 v16, 1.0')
    divide(g, 23, 16, 20, 21, 24)
    A('s_waitcnt lgkmcnt(0)')
    for pc in range(NSB // 8):
        to_p(g, list(range(E + 4*pc, E + 4*pc + 4)), M, IL, 's51')
        A(f'ds_write_b128 v10, v[{E+4*pc}:{E+4*pc+3}] offset:{1024*pc}')
    A('s_waitcnt lgkmcnt(0)')
    g.stamp(9)
    if 'xb2' not in exp: A('s_barrier')
    A('v_lshrrev_b32 v11, 3, v0'); A('v_lshlrev_b32 v11, 2, v11')
    for pc in range(NSB // 8, NP): A(f'ds_read_b32 v{24 + pc - NSB//8}, v11 offset:{L_Q + 32*pc}')
    A('s_lshl_b32 s53, s4, 16'); A(f's_add_u32 s53, s53, {WS_SCG}')
    A('s_lshl_b32 s54, s6, 6'); A('s_add_u32 s54, s54, s53')
    A('v_and_b32 v12, 6, v0'); A('v_lshlrev_b32 v12, 3, v12'); A('v_add_u32 v12, s54, v12')
    A('s_mov_b32 s62, 0x55555555'); A('s_mov_b32 s63, 0x55555555')
    A('s_waitcnt lgkmcnt(0)')
    for pc in range(NSB // 8, NP):
        i0 = E + 4*pc; qv = 24 + pc - NSB//8
        A(f's_cmp_le_u32 s52, {8*pc}'); A('s_cbranch_scc1 L_exp_done')
        A(f'v_lshrrev_b32 v16, 16, v{i0}'); A(f'v_or_b32 v16, v16, v{i0+1}')
        A(f'v_lshrrev_b32 v17, 16, v{i0+2}'); A(f'v_or_b32 v17, v17, v{i0+3}')
        A(f'v_subrev_u32 v13, s59, v{qv}'); A('v_lshrrev_b32 v13, 7, v13'); A('v_add_u32 v13, v13, v12')
        A('v_mov_b32_dpp v18, v16 quad_perm:[1,1,3,3] row_mask:0xf bank_mask:0xf')
        A('v_mov_b32_dpp v19, v17 quad_perm:[1,1,3,3] row_mask:0xf bank_mask:0xf')
        A(f'v_cmp_gt_u32 vcc, -2, v{qv}')
        A('s_and_b64 exec, vcc, s[62:63]')
        if 'xexp' not in exp: A('global_store_dwordx4 v13, v[16:19], s[42:43] sc1')
        A('s_mov_b64 exec, -1')
        g.nop(1)
    g.label('L_exp_done')
    A('s_waitcnt vmcnt(0)')
    last_arriver(g, 2, 'L_noxf')
    A('s_lshl_b32 s50, s2, 4'); A(f's_add_u32 s50, s50, {WS_XF}'); A('v_mov_b32 v13, s50')
    for i in range(4): A(f'v_mov_b32 v{16+i}, v{TAG}')
    A('s_mov_b64 exec, 1')
    A('global_store_dwordx4 v13, v[16:19], s[42:43] sc1')
    A('s_mov_b64 exec, -1')
    g.label('L_noxf')
    A('s_cmp_lg_u32 s3, 6'); A('s_cbranch_scc1 L_noxfall')
    A(f's_cmp_ge_u32 s57, {NMLP}'); A('s_cbranch_scc1 L_noxfall')
    A(f'v_add_u32 v13, {WS_XF}, v6')
    A('s_sleep 127'); A('s_sleep 127')
    def lds_():
        for i in range(4): A(f'global_load_dword v{16+i}, v13, s[42:43] offset:{1024*i} sc1')
    poll(g, lds_, chk_tags(g, [16, 17, 18, 19], TAG), sleep=127)
    g.label('L_noxfall')
    A('s_cmp_lg_u32 s3, 4'); A('s_cbranch_scc1 L_noschedv')
    A('s_lshl_b32 s50, s4, 7'); A(f's_add_u32 s50, s50, {WS_XF}'); A('v_and_b32 v13, 7, v0'); A('v_lshlrev_b32 v13, 4, v13'); A('v_add_u32 v13, s50, v13')
    A('s_sleep 100')
    poll(g, lambda: A('global_load_dword v16, v13, s[42:43] sc1'), chk_tags(g, [16], TAG), sleep=64)
    A(f's_lshl_b32 s50, s4, 8'); A(f's_add_u32 s50, s50, {WS_CNT + 128}'); A('v_mov_b32 v16, s50')
    A(f's_mov_b32 s52, {NSB}'); A('s_mov_b32 s56, -1'); A('s_mov_b32 s62, 0'); A('s_mov_b32 s63, 0')
    A('v_mov_b32 v17, 0')
    A('v_add_u32 v24, s53, v6')
    A('v_bfe_u32 v25, v0, 2, 2'); A('v_lshlrev_b32 v25, 14, v25'); A('v_lshrrev_b32 v26, 4, v0'); A('v_lshl_add_u32 v25, v26, 7, v25')
    A('v_lshl_add_u32 v25, v2, 5, v25'); A(f'v_add_u32 v25, {L_SC}, v25')
    A(f's_mov_b32 s70, {SPIN_MAX*16}')
    def read_progv():
        A(f'ds_read_b128 v[32:35], v17 offset:{L_PROGV}')
        A('s_waitcnt lgkmcnt(0)')
        A('v_max3_u32 v32, v32, v33, v34'); A('v_max_u32 v32, v32, v35'); g.nop(1)
        A('v_readfirstlane_b32 s64, v32')
    g.label('L_sv_top')
    read_progv()
    A('s_sub_u32 s70, s70, 1'); A('s_cmp_eq_u32 s70, 0'); A('s_cbranch_scc1 L_sv_done')
    A(f's_add_u32 s64, s64, {leadv}')
    A('s_mov_b32 s65, 0')
    A('s_cmp_lg_u32 s62, 0'); A('s_cbranch_scc1 L_sv_noclaim')
    A('s_cmp_lt_u32 s64, s52'); A('s_cbranch_scc1 L_sv_noclaim')
    A(f's_cmp_ge_u32 s52, {MAXROWS - 2}'); A('s_cbranch_scc1 L_sv_full')
    A(f's_cmp_lt_u32 s63, {NPOOL - 40}'); A('s_cselect_b32 s65, 2, 1')
    A('v_mov_b32 v18, s65')
    A('s_mov_b64 exec, 1')
    A('global_atomic_add v19, v16, v18, s[42:43] sc0 sc1')
    A('s_mov_b64 exec, -1')
    A('s_branch L_sv_pend')
    g.label('L_sv_full')
    A('s_mov_b32 s62, 1')
    g.label('L_sv_noclaim')
    A(f's_cmp_lt_u32 s56, {NPOOL}'); A('s_cbranch_scc1 L_sv_pend')
    A('s_cmp_lg_u32 s62, 0'); A('s_cbranch_scc1 L_sv_done')
    A('s_sub_u32 s64, s52, s64'); A('s_cmp_gt_u32 s64, 4'); A('s_cbranch_scc1 L_sv_long')
    A('s_sleep 2'); A('s_branch L_sv_top')
    g.label('L_sv_long')
    A('s_sleep 32'); A('s_branch L_sv_top')
    g.label('L_sv_pend')
    A(f's_cmp_ge_u32 s56, {NPOOL}'); A('s_cbranch_scc1 L_sv_nofetch')
    A('s_lshl_b32 s66, s56, 8'); A('v_add_u32 v26, s66, v24')
    A('s_cmp_eq_u32 s54, 2'); A('s_cselect_b32 s66, -1, 0xffff'); A('s_mov_b32 s67, 0')
    A('s_mov_b64 exec, s[66:67]')
    if 'xfet' not in exp: A('global_load_dwordx4 v[28:31], v26, s[42:43] sc1')
    A('s_lshl_b32 s66, s55, 7'); A('v_add_u32 v26, s66, v25')
    if 'xfet' not in exp: A('s_waitcnt vmcnt(0)')
    unpack(g, list(range(32, 40)), 28)
    to_p(g, list(range(32, 40)), M, IL, 's51')
    A('ds_write_b128 v26, v[32:35]'); A('ds_write_b128 v26, v[36:39] offset:16')
    A('v_lshrrev_b32 v26, 4, v0'); A('v_add_u32 v27, s56, v26'); A('v_lshlrev_b32 v27, 15, v27'); A('v_add_u32 v27, s59, v27')
    A('v_add_u32 v26, s55, v26'); A('v_lshlrev_b32 v26, 2, v26')
    A('s_waitcnt lgkmcnt(0)')
    A(f'ds_write_b32 v26, v27 offset:{L_QV}')
    A('s_mov_b64 exec, -1')
    A('s_mov_b32 s56, -1')
    g.label('L_sv_nofetch')
    A('s_cmp_eq_u32 s65, 0'); A('s_cbranch_scc1 L_sv_top')
    A('s_waitcnt vmcnt(0)')
    A('v_readfirstlane_b32 s56, v19')
    A('s_mov_b32 s55, s52')
    A(f's_cmp_ge_u32 s56, {NPOOL}'); A('s_cbranch_scc1 L_sv_done')
    A(f's_sub_u32 s54, {NPOOL}, s56'); A('s_min_u32 s54, s54, s65')
    A('s_add_u32 s52, s52, s54'); A('s_add_u32 s63, s56, s54')
    A('s_branch L_sv_top')
    g.label('L_sv_done')
    A('s_lshl_b32 s55, s52, 2'); A('v_mov_b32 v26, s55'); A('v_mov_b32 v27, -2')
    A(f'ds_write_b32 v26, v27 offset:{L_QV}')
    g.label('L_noschedv')
    GA = list(range(192, 200)); SB = list(range(200, 208)); CB = list(range(208, 216)); XF = list(range(216, 224)); GBR = 224
    for k in range(3): A(f'ds_read_b128 v[{16+4*k}:{19+4*k}], v6 offset:{L_MV + 1024*k}')
    A('v_lshrrev_b32 v13, 3, v48'); A('v_lshlrev_b32 v13, 2, v13')
    A(f'ds_read_b32 v28, v13 offset:{L_MV + 3072}')
    unpack(g, XF, X8)
    A('s_waitcnt lgkmcnt(0)')
    unpack(g, GA, 16); unpack(g, SB, 20); unpack(g, CB, 24)
    for i in range(8): A(f'v_add_f32 v{CB[i]}, 1.0, v{CB[i]}')
    for i in range(8): rnd(g, CB[i], CB[i])
    A('v_and_b32 v13, 16, v0'); A('v_cmp_eq_u32 vcc, 0, v13')
    A('v_lshlrev_b32 v13, 16, v28'); A('v_and_b32 v14, 0xffff0000, v28')
    A(f'v_cndmask_b32 v{GBR}, v14, v13, vcc')
    A('s_lshl_b32 s50, s4, 12'); A('s_add_u32 s50, s50, s7'); A(f's_add_u32 s50, s50, {WS_OP}')
    A('v_lshrrev_b32 v10, 3, v0'); A('v_lshlrev_b32 v13, 4, v10'); A('v_lshlrev_b32 v10, 9, v10'); A('v_and_b32 v11, 7, v0'); A('v_lshl_add_u32 v10, v11, 4, v10')
    A('v_add_u32 v10, s50, v10')
    A('v_add_u32 v15, s7, v48')
    A('v_add_u32 v9, s7, v13')
    A('v_lshrrev_b32 v14, 4, v0'); A('v_lshlrev_b32 v14, 3, v14'); A('v_lshl_add_u32 v14, v11, 5, v14')
    A('s_lshl_b32 s52, s6, 8'); A('v_add_u32 v14, s52, v14')
    A('v_and_b32 v8, 15, v0'); A('v_lshlrev_b32 v8, 4, v8'); A('v_lshrrev_b32 v7, 4, v0'); A('v_lshl_add_u32 v8, v7, 16, v8')
    A('s_lshl_b32 s51, s2, 8'); A(f's_add_u32 s51, s51, {WS_AP}'); A('v_add_u32 v8, s51, v8'); A('v_add_u32 v7, 0x40000, v8')
    A('v_and_b32 v5, 15, v0'); A('v_lshlrev_b32 v5, 4, v5')
    ACC = list(range(24, 32))
    for i in range(8): A(f'v_mov_b32 v{ACC[i]}, 0')
    A('s_barrier')
    if 'notail' in exp: A('s_branch L_end')
    g.stamp(10)
    poll(g, lambda: A('global_load_dwordx4 v[16:19], v10, s[42:43] sc1'), chk_sent(g, [16, 17, 18, 19], 20), sleep=opsl)
    g.stamp(11)
    reduce4_hi(g, [16, 17, 18, 19])
    rnd(g, 16, 16)
    A(f'ds_write_b32 v15, v16 offset:{L_OV}')
    A(f'ds_read_b128 v[16:19], v9 offset:{L_OV}')
    A('s_waitcnt lgkmcnt(0)')
    for j in range(4): A(f'v_lshrrev_b32 v{20+j}, 16, v{16+j}')
    for j in range(4): tile_mac(g, ACC, WO + 4*j, f'v{16+j}', f'v{20+j}')
    g.nop(1)
    swap_reduce8(g, ACC)
    row_allreduce(g, ACC[:2], rors=(8,))
    A(f'ds_write_b64 v14, v[{ACC[0]}:{ACC[1]}] offset:{L_AW}')
    last_arriver(g, 3, 'L_h_noap')
    for w in range(4): A(f'ds_read_b128 v[{16+4*w}:{19+4*w}], v5 offset:{L_AW + 256*w}')
    A('s_waitcnt lgkmcnt(0)')
    sum4x4(g, 16)
    A('global_store_dwordx4 v8, v[16:19], s[42:43] sc1')
    A('global_store_dwordx4 v7, v[16:19], s[42:43] sc1')
    g.stamp(12)
    g.label('L_h_noap')
    if 'xstage' in exp: A('s_branch L_end')
    A(f's_cmp_ge_u32 s57, {NMLP}'); A('s_cbranch_scc1 L_end')
    g.label('L_gather_ap')
    A('s_and_b32 s50, s3, 1'); A('s_lshl_b32 s50, s50, 10'); A('s_lshr_b32 s51, s3, 1'); A('s_lshl_b32 s52, s51, 14')
    A('s_add_u32 s52, s52, s50'); A(f's_add_u32 s52, s52, {WS_AP + 4096}')
    A('s_and_b32 s53, s57, 7'); A('s_lshl_b32 s53, s53, 16'); A('s_add_u32 s52, s52, s53')
    A('v_lshlrev_b32 v10, 4, v0'); A('v_add_u32 v11, s52, v10'); A('v_add_u32 v12, 8192, v11')
    A('s_lshl_b32 s51, s51, 11'); A('s_add_u32 s51, s51, s50'); A('v_add_u32 v13, s51, v10')
    multi_poll(g, 'L_ap', 8, lambda i: f'global_load_dwordx4 v[{16+4*i}:{19+4*i}], v{11 + i//4}, s[42:43] offset:{(i%4)*2048 - 4096} sc1', 16, 14,
               [(16*16, apsl), (8*16, apsl // 3), (apth*16, apsl // 8)])
    g.stamp(13)
    for st in (16, 8, 4):
        for i in range(0, st, 2): A(f'v_pk_add_f32 v[{16+i}:{17+i}], v[{16+i}:{17+i}], v[{16+i+st}:{17+i+st}]')
    A(f'ds_write_b128 v13, v[16:19] offset:{L_AS}')
    A('v_lshlrev_b32 v10, 5, v0')
    A('s_waitcnt lgkmcnt(0)')
    A('s_barrier')
    A('s_cmp_lt_u32 s3, 4'); A('s_cbranch_scc1 L_end')
    g.role = 'M'; g.stamp(1); g.role = 'H'
    for p in range(4):
        A(f'ds_read_b128 v[{16+8*p}:{19+8*p}], v10 offset:{L_AS + 2048*p}'); A(f'ds_read_b128 v[{20+8*p}:{23+8*p}], v10 offset:{L_AS + 2048*p + 16}')
    AG = list(range(232, 240)); AU = list(range(240, 248))
    for i in range(8): A(f'v_mov_b32 v{AG[i]}, 0'); A(f'v_mov_b32 v{AU[i]}, 0')
    A('s_waitcnt lgkmcnt(4)')
    for i in range(0, 8, 2): A(f'v_pk_add_f32 v[{16+i}:{17+i}], v[{16+i}:{17+i}], v[{24+i}:{25+i}]')
    A('s_waitcnt lgkmcnt(0)')
    for i in range(0, 8, 2): A(f'v_pk_add_f32 v[{32+i}:{33+i}], v[{32+i}:{33+i}], v[{40+i}:{41+i}]')
    for i in range(0, 8, 2): A(f'v_pk_add_f32 v[{16+i}:{17+i}], v[{16+i}:{17+i}], v[{32+i}:{33+i}]')
    X1 = list(range(16, 24))
    for i in range(8): rnd(g, X1[i], X1[i])
    for i in range(0, 8, 2): A(f'v_pk_mul_f32 v[{16+i}:{17+i}], v[{16+i}:{17+i}], v[{GA[i]}:{GA[i+1]}]')
    for i in range(8): rnd(g, X1[i], X1[i])
    for i in range(0, 8, 2): A(f'v_pk_add_f32 v[{16+i}:{17+i}], v[{16+i}:{17+i}], v[{XF[i]}:{XF[i+1]}]')
    for i in range(8): rnd(g, X1[i], X1[i])
    A(f'ds_write_b128 v10, v[16:19] offset:{L_XF}'); A(f'ds_write_b128 v10, v[20:23] offset:{L_XF + 16}')
    g.role = 'M'; g.stamp(2); g.role = 'H'
    ln_stats(g, X1, MEAN, SD, list(range(32, 40)))
    A(f'v_rcp_f32 v{RSD}, v{SD}'); g.nop(1)
    g.role = 'M'; g.stamp(3); g.role = 'H'
    modulate_n(g, [(24+i, X1[i], CB[i], SB[i], 32+i, 248+i) for i in range(8)], MEAN, SD, RSD)
    for j in range(8): A(f'v_lshrrev_b32 v{32+j}, 16, v{24+j}')
    g.role = 'M'; g.stamp(4); g.role = 'H'
    for j in range(8):
        tile_mac(g, AG, WG + 4*j, f'v{24+j}', f'v{32+j}')
        tile_mac(g, AU, WU + 4*j, f'v{24+j}', f'v{32+j}')
    AD = list(range(24, 32))
    A('v_lshlrev_b32 v10, 5, v0'); A('s_lshl_b32 s50, s6, 11'); A('v_add_u32 v10, s50, v10')
    g.role = 'M'; g.stamp(5); g.role = 'H'
    swap_reduce8(g, AG, AU)
    row_allreduce(g, AG[:2] + AU[:2])
    for r in AG[:2] + AU[:2]: rnd(g, r, r)
    A(f'v_mov_b32 v16, {hex(f2u(0.044715))}')
    for i in range(2): A(f'v_mul_f32 v{18+i}, v{AG[i]}, v{AG[i]}')
    for i in range(2): A(f'v_mul_f32 v{18+i}, v{18+i}, v{AG[i]}')
    for i in range(2): A(f'v_fma_f32 v{18+i}, v{18+i}, v16, v{AG[i]}')
    for i in range(2): A(f'v_mul_f32 v{18+i}, {hex(f2u(-2*0.7978845608028654*1.4426950408889634))}, v{18+i}')
    sigmoid_mul_n(g, [(20+i, AG[i], 18+i, 32+i, 34+i, 36+i) for i in range(2)])
    for i in range(2): rnd(g, 20+i, 20+i)
    for i in range(2): A(f'v_mul_f32 v{20+i}, v{20+i}, v{AU[i]}')
    for i in range(2): rnd(g, 20+i, 20+i)
    for i in range(8): A(f'v_mov_b32 v{AD[i]}, 0')
    g.role = 'M'; g.stamp(6); g.role = 'H'
    for j in range(8): A(f'v_readlane_b32 s{72+j}, v{20 + j%2}, {16*(j//2 % 2) + 32*(j//4)}')
    A('s_lshl_b32 s50, s6, 9'); A('v_add_u32 v11, s50, v6')
    for j in range(8): A(f's_lshr_b32 s{80+j}, s{72+j}, 16')
    for j in range(8): tile_mac(g, AD, WD + 4*j, f's{72+j}', f's{80+j}')
    A('s_lshl_b32 s51, s57, 11'); A(f's_add_u32 s51, s51, {WS_DP}'); A('v_add_u32 v12, s51, v11')
    g.role = 'M'; g.stamp(7); g.role = 'H'
    g.nop(1)
    A(f'ds_write_b128 v10, v[{AD[0]}:{AD[3]}] offset:{L_DW}'); A(f'ds_write_b128 v10, v[{AD[4]}:{AD[7]}] offset:{L_DW + 16}')
    A('s_waitcnt lgkmcnt(0)')
    A('s_barrier')
    g.role = 'M'; g.stamp(8); g.role = 'H'
    A('s_mov_b64 exec, 0xffffffff')
    for w in range(4): A(f'ds_read_b128 v[{16+4*w}:{19+4*w}], v11 offset:{L_DW + 2048*w}')
    A('s_waitcnt lgkmcnt(0)')
    sum4x4(g, 16)
    A('global_store_dwordx4 v12, v[16:19], s[42:43] sc1')
    A('s_mov_b64 exec, -1')
    g.stamp(14)
    A(f's_cmp_ge_u32 s57, {NFIN}'); A('s_cbranch_scc1 L_end')
    A('s_cmp_lg_u32 s3, 4'); A('s_cbranch_scc1 L_end')
    A('v_lshrrev_b32 v10, 3, v0'); A('v_lshlrev_b32 v10, 11, v10'); A('v_and_b32 v11, 7, v0'); A('v_lshl_add_u32 v10, v11, 4, v10')
    A('s_lshl_b32 s50, s57, 7'); A(f's_add_u32 s51, s50, {WS_DP}'); A('v_add_u32 v52, s51, v10')
    for i in range(1, 7): A(f'v_add_u32 v{52+i}, {16384*i}, v52')
    A('v_add_u32 v13, s50, v48')
    A(f'ds_read_b32 v15, v13 offset:{L_XF}')
    A('v_lshrrev_b32 v12, 1, v13')
    multi_poll(g, 'L_dp', 7, lambda i: f'global_load_dwordx4 v[{16+4*i}:{19+4*i}], v{52+i}, s[42:43] sc1', 16, 51, [])
    for i in (0, 2):
        A(f'v_pk_add_f32 v[{16+i}:{17+i}], v[{16+i}:{17+i}], v[{20+i}:{21+i}]'); A(f'v_pk_add_f32 v[{24+i}:{25+i}], v[{24+i}:{25+i}], v[{28+i}:{29+i}]')
        A(f'v_pk_add_f32 v[{32+i}:{33+i}], v[{32+i}:{33+i}], v[{36+i}:{37+i}]')
    for i in (0, 2):
        A(f'v_pk_add_f32 v[{16+i}:{17+i}], v[{16+i}:{17+i}], v[{24+i}:{25+i}]'); A(f'v_pk_add_f32 v[{32+i}:{33+i}], v[{32+i}:{33+i}], v[{40+i}:{41+i}]')
    for i in (0, 2): A(f'v_pk_add_f32 v[{16+i}:{17+i}], v[{16+i}:{17+i}], v[{32+i}:{33+i}]')
    g.nop(2)
    reduce4_hi(g, [16, 17, 18, 19])
    A('s_waitcnt lgkmcnt(0)')
    rnd(g, 16, 16); A(f'v_mul_f32 v16, v{GBR}, v16'); rnd(g, 16, 16); A('v_add_f32 v16, v15, v16')
    A('v_cvt_pk_bf16_f32 v16, v16, v16')
    A('s_mov_b32 exec_lo, 0x00ff00ff'); A('s_mov_b32 exec_hi, 0x00ff00ff')
    A('global_store_short v12, v16, s[38:39]')
    A('s_cmp_lg_u32 s57, 0'); A('s_cbranch_scc1 L_fin_noepoch')
    A('s_mov_b64 exec, 1'); A('v_mov_b32 v13, 0')
    A(f'global_store_dword v13, v{TAG}, s[42:43] sc1')
    g.label('L_fin_noepoch')
    A('s_mov_b64 exec, -1')
    g.stamp(15)
    g.label('L_end'); A('s_endpgm')
    for s in ['.section .rodata,"a"', '.p2align 6', f'.amdhsa_kernel {NAME}_kernel', '  .amdhsa_next_free_vgpr 256',
              '  .amdhsa_next_free_sgpr 102', '  .amdhsa_accum_offset 256', '  .amdhsa_group_segment_fixed_size 0',
              '  .amdhsa_kernarg_size 112', '  .amdhsa_user_sgpr_count 2', '  .amdhsa_user_sgpr_kernarg_segment_ptr 1',
              '  .amdhsa_system_sgpr_workgroup_id_x 1', '.end_amdhsa_kernel']: g.L.append(s)
    return '\n'.join(g.L) + '\n'

if __name__ == '__main__':
    import argparse
    ap = argparse.ArgumentParser()
    ap.add_argument('out'); ap.add_argument('--ts', action='store_true')
    ap.add_argument('--nsb', type=int, default=48); ap.add_argument('--exp', default='')
    ap.add_argument('--depth', type=int, default=8); ap.add_argument('--lead', type=int, default=3); ap.add_argument('--leadv', type=int, default=5)
    ap.add_argument('--header', default='')
    for k, d in (('opsl', 1), ('apth', 4), ('apsl', 8)): ap.add_argument('--' + k, type=int, default=d)
    a = ap.parse_args()
    hdr = ''
    if a.header:
        hdr = ''.join(l for l in open(a.header) if l.startswith(';') and '@launch' not in l)
    open(a.out, 'w').write(build(ts=a.ts, nsb=a.nsb, exp=a.exp, depth=a.depth, lead=a.lead, leadv=a.leadv, header=hdr, opsl=a.opsl, apth=a.apth, apsl=a.apsl))
```

```python
import sys, struct
NAME = 'adaLN_cond__mha_block_cached__glu_gated_geglu__decode'
def f2u(x): return struct.unpack('<I', struct.pack('<f', x))[0]

WS_MOD   = 0x100000
WS_ML    = 0x4000
WS_CNT   = 0x8000
WS_XF    = 0xA000
WS_OP    = 0x10000
WS_AP    = 0x140000
WS_DP    = 0x40000
WS_QX    = 0x60000
WS_TS    = 0xC0000
WS_SCG   = 0x200000
L_CNT  = 0x0000
L_KD   = 0x0040
L_PROG = 0x0060
L_PROGV = 0x0070
L_TAG  = 0x0100
L_MODP = 0x0200
L_HV   = 0x0400
L_QP   = 0x0C00
L_OB   = 0x1400
L_OV   = 0x1C00
L_AW   = 0x1E00
L_MV   = 0x2200
L_Q    = 0x2F00
L_QV   = 0x3100
L_SC   = 0x3400
L_AS   = L_SC + 0x0000
L_DW   = L_SC + 0x2000
L_XF   = L_SC + 0x4000
L_ST   = L_SC + 0x10000
LDS_BYTES = L_ST + 0x10000
MAXROWS = 96
Q_DONE = 0xfffffffe
NMLP = 56
NFIN = 16
SPIN_MAX = 1 << 17
LOG2E = f2u(1.4426950408889634)
NS = 48

class G:
    def __init__(self, ts=False, tsmask=None):
        self.L = []; self.ts = ts; self.lbl = 0; self.tsmask = tsmask; self.role = 'S'; self.ldf = ' sc1'; self.stf = ' sc1'; self.w0only = False
    def A(self, s):
        if s.endswith(' sc1') and 'atomic' not in s:
            if 'load' in s: s = s[:-4] + self.ldf
            else: s = s[:-4] + self.stf
        self.L.append('  ' + s)
        if '_store_dwordx4' in s or '_store_dwordx3' in s: self.L.append('  s_nop 1')
    def label(self, s): self.L.append(s + ':')
    def newlabel(self, p='L'):
        self.lbl += 1; return f'{p}_{self.lbl}'
    def nop(self, n): self.A(f's_nop {n-1}')
    def stamp(self, slot, sreg=None):
        if not self.ts: return
        if self.tsmask is not None and (self.role, slot) not in self.tsmask: return
        if self.tsmask is None and self.role == 'M': return
        A = self.A
        if self.w0only:
            A('s_cmp_lg_u32 s3, 0'); lb = self.newlabel('L_ns'); A(f's_cbranch_scc1 {lb}')
        if sreg is None:
            A('s_memrealtime s[96:97]'); A('s_waitcnt lgkmcnt(0)')
            A('v_mov_b32 v60, s96'); A('v_mov_b32 v61, s97')
        else:
            A(f'v_mov_b32 v60, {sreg}'); A('v_mov_b32 v61, 0')
        A('v_mov_b32 v62, s95')
        A('s_mov_b64 s[98:99], exec'); A('s_mov_b64 exec, 1')
        A(f'global_store_dwordx2 v62, v[60:61], s[42:43] offset:{slot*8}')
        A('s_mov_b64 exec, s[98:99]')
        if self.w0only: self.label(lb)

def rnd(g, d, s): g.A(f'v_cvt_pk_bf16_f32 v{d}, 0, v{s}')

def swap_reduce8(g, *sets):
    A = g.A
    g.nop(2)
    for r in sets:
        for i in range(4): A(f'v_permlane32_swap_b32 v{r[i]}, v{r[i+4]}')
    for r in sets:
        for i in range(4): A(f'v_add_f32 v{r[i]}, v{r[i]}, v{r[i+4]}')
    if len(sets) == 1: g.nop(1)
    for r in sets:
        for i in range(2): A(f'v_permlane16_swap_b32 v{r[i]}, v{r[i+2]}')
    for r in sets:
        for i in range(2): A(f'v_add_f32 v{r[i]}, v{r[i]}, v{r[i+2]}')

def row_allreduce(g, regs, op='add', rors=(8, 4, 2, 1)):
    for ro in rors:
        if len(regs) < 3: g.nop(3 - len(regs))
        for r in regs: g.A(f'v_{op}_f32_dpp v{r}, v{r}, v{r} row_ror:{ro} row_mask:0xf bank_mask:0xf')

def wave_allreduce(g, r, t, op='add'):
    A = g.A
    row_allreduce(g, [r], op)
    A(f'v_mov_b32 v{t}, v{r}'); g.nop(2)
    A(f'v_permlane16_swap_b32 v{r}, v{t}'); A(f'v_{op}_f32 v{r}, v{r}, v{t}')
    A(f'v_mov_b32 v{t}, v{r}'); g.nop(2)
    A(f'v_permlane32_swap_b32 v{r}, v{t}'); A(f'v_{op}_f32 v{r}, v{r}, v{t}')

def reduce4_hi(g, r):
    A = g.A
    A(f'v_permlane32_swap_b32 v{r[0]}, v{r[2]}'); A(f'v_permlane32_swap_b32 v{r[1]}, v{r[3]}')
    A(f'v_add_f32 v{r[0]}, v{r[0]}, v{r[2]}'); A(f'v_add_f32 v{r[1]}, v{r[1]}, v{r[3]}'); g.nop(2)
    A(f'v_permlane16_swap_b32 v{r[0]}, v{r[1]}'); A(f'v_add_f32 v{r[0]}, v{r[0]}, v{r[1]}'); g.nop(2)
    A(f'v_add_f32_dpp v{r[0]}, v{r[0]}, v{r[0]} row_ror:8 row_mask:0xf bank_mask:0xf')

def tile_mac(g, acc, data, pP, pL):
    for i in range(4):
        g.A(f'v_dot2c_f32_bf16 v{acc[2*i]}, {pL}, v{data+i}')
        g.A(f'v_dot2c_f32_bf16 v{acc[2*i+1]}, {pP}, v{data+i}')

def divide(g, q, a, b, t0, t1):
    A = g.A
    A(f'v_rcp_f32 v{t0}, v{b}'); g.nop(1)
    A(f'v_mul_f32 v{q}, v{a}, v{t0}')
    A(f'v_fma_f32 v{t1}, -v{q}, v{b}, v{a}')
    A(f'v_fma_f32 v{q}, v{t1}, v{t0}, v{q}')

def sigmoid_mul_n(g, items):
    A = g.A
    for d, x, arg, t0, t1, t2 in items: A(f'v_min_f32 v{t2}, 0x42fc0000, v{arg}')
    for d, x, arg, t0, t1, t2 in items: A(f'v_exp_f32 v{t2}, v{t2}')
    if len(items) == 1: g.nop(1)
    for d, x, arg, t0, t1, t2 in items: A(f'v_add_f32 v{t2}, 1.0, v{t2}')
    for d, x, arg, t0, t1, t2 in items: A(f'v_rcp_f32 v{t0}, v{t2}')
    if len(items) == 1: g.nop(1)
    for d, x, arg, t0, t1, t2 in items: A(f'v_mul_f32 v{d}, v{x}, v{t0}')
    for d, x, arg, t0, t1, t2 in items: A(f'v_fma_f32 v{t1}, -v{d}, v{t2}, v{x}')
    for d, x, arg, t0, t1, t2 in items: A(f'v_fma_f32 v{d}, v{t1}, v{t0}, v{d}')

def ln_stats(g, xs, mean_bf, sd, t):
    A = g.A
    A(f'v_pk_add_f32 v[{t[0]}:{t[1]}], v[{xs[0]}:{xs[1]}], v[{xs[2]}:{xs[3]}]')
    A(f'v_pk_add_f32 v[{t[2]}:{t[3]}], v[{xs[4]}:{xs[5]}], v[{xs[6]}:{xs[7]}]')
    A(f'v_pk_add_f32 v[{t[0]}:{t[1]}], v[{t[0]}:{t[1]}], v[{t[2]}:{t[3]}]')
    A(f'v_add_f32 v{t[0]}, v{t[0]}, v{t[1]}')
    wave_allreduce(g, t[0], t[1])
    A(f'v_mul_f32 v{t[0]}, 0x3b000000, v{t[0]}')
    rnd(g, mean_bf, t[0])
    for i in range(4): A(f'v_sub_f32 v{t[2+i]}, v{xs[i]}, v{t[0]}')
    A(f'v_mul_f32 v{t[6]}, v{t[2]}, v{t[2]}'); A(f'v_mul_f32 v{t[7]}, v{t[3]}, v{t[3]}')
    A(f'v_fmac_f32 v{t[6]}, v{t[4]}, v{t[4]}'); A(f'v_fmac_f32 v{t[7]}, v{t[5]}, v{t[5]}')
    for i in range(4): A(f'v_sub_f32 v{t[2+i]}, v{xs[4+i]}, v{t[0]}')
    A(f'v_fmac_f32 v{t[6]}, v{t[2]}, v{t[2]}'); A(f'v_fmac_f32 v{t[7]}, v{t[3]}, v{t[3]}')
    A(f'v_fmac_f32 v{t[6]}, v{t[4]}, v{t[4]}'); A(f'v_fmac_f32 v{t[7]}, v{t[5]}, v{t[5]}')
    A(f'v_add_f32 v{t[2]}, v{t[6]}, v{t[7]}')
    wave_allreduce(g, t[2], t[1])
    A(f'v_mul_f32 v{t[2]}, 0x3b000000, v{t[2]}')
    rnd(g, t[2], t[2])
    A(f'v_add_f32 v{t[2]}, {hex(f2u(1e-5))}, v{t[2]}')
    rnd(g, t[2], t[2])
    A(f'v_sqrt_f32 v{t[0]}, v{t[2]}'); g.nop(1)
    A(f'v_rcp_f32 v{t[1]}, v{t[0]}')
    A(f'v_fma_f32 v{t[3]}, -v{t[0]}, v{t[0]}, v{t[2]}')
    A(f'v_mul_f32 v{t[1]}, 0.5, v{t[1]}')
    A(f'v_fma_f32 v{t[0]}, v{t[3]}, v{t[1]}, v{t[0]}')
    rnd(g, sd, t[0])

def modulate_n(g, items, mean_bf, sd, rcp_sd):
    A = g.A
    for d, x, c, s, t0, t1 in items: A(f'v_sub_f32 v{t0}, v{x}, v{mean_bf}')
    for d, x, c, s, t0, t1 in items: rnd(g, t0, t0)
    for d, x, c, s, t0, t1 in items: A(f'v_mul_f32 v{d}, v{t0}, v{rcp_sd}')
    for d, x, c, s, t0, t1 in items: A(f'v_fma_f32 v{t1}, -v{d}, v{sd}, v{t0}')
    for d, x, c, s, t0, t1 in items: A(f'v_fma_f32 v{d}, v{t1}, v{rcp_sd}, v{d}')
    for d, x, c, s, t0, t1 in items: rnd(g, d, d)
    for d, x, c, s, t0, t1 in items: A(f'v_mul_f32 v{d}, v{d}, v{c}')
    for d, x, c, s, t0, t1 in items: rnd(g, d, d)
    for d, x, c, s, t0, t1 in items: A(f'v_add_f32 v{d}, v{d}, v{s}')
    for d, x, c, s, t0, t1 in items: rnd(g, d, d)

def unpack(g, dst, src, n=4):
    for i in range(n):
        g.A(f'v_lshlrev_b32 v{dst[2*i]}, 16, v{src+i}')
        g.A(f'v_and_b32 v{dst[2*i+1]}, 0xffff0000, v{src+i}')

def to_p(g, regs, M, IL, slog):
    A = g.A
    for r in regs: A(f'v_sub_f32 v{r}, v{r}, v{M}')
    for r in regs: A(f'v_mul_f32 v{r}, {slog}, v{r}')
    for r in regs: A(f'v_exp_f32 v{r}, v{r}')
    for r in regs: A(f'v_mul_f32 v{r}, v{r}, v{IL}')
    for r in regs: rnd(g, r, r)

def srd(g, d, base, nbytes):
    g.A(f's_mov_b32 s{d}, s{base}'); g.A(f's_mov_b32 s{d+1}, s{base+1}')
    g.A(f's_mov_b32 s{d+2}, {hex(nbytes)}'); g.A(f's_mov_b32 s{d+3}, 0x20000')

def poll(g, loads, check, sleep=1):
    A = g.A
    l = g.newlabel('L_poll'); done = g.newlabel('L_poll_done')
    A('s_mov_b64 s[68:69], exec'); A(f's_mov_b32 s70, {SPIN_MAX}')
    g.label(l)
    loads()
    A('s_waitcnt vmcnt(0)')
    check()
    A(f's_cbranch_vccz {done}')
    A('s_mov_b64 exec, vcc')
    A('s_sub_u32 s70, s70, 1'); A('s_cmp_eq_u32 s70, 0'); A(f's_cbranch_scc1 {done}')
    if sleep: A(f's_sleep {sleep}')
    A(f's_branch {l}')
    g.label(done)
    A('s_mov_b64 exec, s[68:69]')

def multi_poll(g, pref, n, load, base, t, ladder):
    A = g.A
    for i in range(n): A(f's_mov_b64 s[{72+2*i}:{73+2*i}], -1')
    A(f's_mov_b32 s70, {SPIN_MAX}')
    g.label(f'{pref}_poll')
    for i in range(n):
        lb = g.newlabel(f'{pref}_skip')
        A(f's_mov_b64 exec, s[{72+2*i}:{73+2*i}]'); A(f's_cbranch_execz {lb}')
        A(load(i))
        g.label(lb)
    A('s_mov_b32 s71, 0')
    A('s_waitcnt vmcnt(0)')
    for i in range(n):
        lb = g.newlabel(f'{pref}_skip')
        r = base + 4*i
        A(f's_mov_b64 exec, s[{72+2*i}:{73+2*i}]'); A(f's_cbranch_execz {lb}')
        A(f'v_max3_u32 v{t}, v{r}, v{r+1}, v{r+2}'); A(f'v_max_u32 v{t}, v{t}, v{r+3}')
        A(f'v_cmp_eq_u32 vcc, -1, v{t}')
        A(f's_mov_b64 s[{72+2*i}:{73+2*i}], vcc'); A('s_bcnt1_i32_b64 s50, vcc'); A('s_add_u32 s71, s71, s50')
        g.label(lb)
    A('s_cmp_eq_u32 s71, 0'); A(f's_cbranch_scc1 {pref}_done')
    A('s_sub_u32 s70, s70, 1'); A('s_cmp_eq_u32 s70, 0'); A(f's_cbranch_scc1 {pref}_done')
    for th, sl in reversed(ladder):
        A(f's_cmp_le_u32 s71, {th}'); A(f's_cbranch_scc1 {pref}_poll')
        if sl: A(f's_sleep {sl}')
    A(f's_branch {pref}_poll')
    g.label(f'{pref}_done')
    A('s_mov_b64 exec, -1')

def chk_tags(g, regs, tag):
    def f():
        g.A(f'v_cmp_ne_u32 vcc, v{regs[0]}, v{tag}')
        for r in regs[1:]:
            g.A(f'v_cmp_ne_u32 s[60:61], v{r}, v{tag}'); g.A('s_or_b64 vcc, vcc, s[60:61]')
    return f
def chk_sent(g, regs, t):
    def f():
        g.A(f'v_max3_u32 v{t}, v{regs[0]}, v{regs[1]}, v{regs[2]}')
        rest = regs[3:]
        while len(rest) >= 2:
            g.A(f'v_max3_u32 v{t}, v{t}, v{rest[0]}, v{rest[1]}'); rest = rest[2:]
        if rest: g.A(f'v_max_u32 v{t}, v{t}, v{rest[0]}')
        g.A(f'v_cmp_eq_u32 vcc, -1, v{t}')
    return f

def last_arriver(g, idx, skip):
    A = g.A
    A('v_mov_b32 v11, 1'); A('v_mov_b32 v12, 0')
    A('s_waitcnt lgkmcnt(0)')
    A('s_mov_b64 exec, 1')
    A(f'ds_add_rtn_u32 v13, v12, v11 offset:{L_CNT + 4*idx}')
    A('s_mov_b64 exec, -1')
    A('s_waitcnt lgkmcnt(0)')
    A('v_readfirstlane_b32 s50, v13')
    g.nop(1)
    A('s_cmp_lg_u32 s50, 3'); A(f's_cbranch_scc1 {skip}')

def sum4x4(g, r, sanitize=True):
    A = g.A
    for i in (0, 2):
        A(f'v_pk_add_f32 v[{r+i}:{r+i+1}], v[{r+i}:{r+i+1}], v[{r+4+i}:{r+5+i}]')
        A(f'v_pk_add_f32 v[{r+8+i}:{r+9+i}], v[{r+8+i}:{r+9+i}], v[{r+12+i}:{r+13+i}]')
    for i in (0, 2): A(f'v_pk_add_f32 v[{r+i}:{r+i+1}], v[{r+i}:{r+i+1}], v[{r+8+i}:{r+9+i}]')
    if sanitize:
        for i in range(4): A(f'v_min_u32 v{r+i}, -2, v{r+i}')

def build(ts=False, nsb=56, exp='', depth=8, lead=3, leadv=5, header='', opsl=1, apth=4, apsl=8, psl=2, sing=24, mlsl=8):
    tsmask = None
    if 'tailts' in exp: tsmask = {('S', 0), ('S', 6), ('S', 7)} | {('H', i) for i in (10, 11, 12, 13, 14, 15)}
    if 'prog' in exp: tsmask = {('S', 0), ('S', 3), ('S', 5), ('S', 6)}
    if 'mlpts' in exp: tsmask = {('S', 0), ('S', 6)} | {('H', i) for i in (13, 14, 15)} | {('M', i) for i in range(1, 10)}
    g = G(ts, tsmask); A = g.A
    g.w0only = 'prog' in exp
    if 'ld01' in exp: g.ldf = ' sc0 sc1'
    if 'st01' in exp: g.stf = ' sc0 sc1'
    if 'ldnt' in exp: g.ldf = ' sc1 nt'
    if 'stnt' in exp: g.stf = ' sc1 nt'
    NSB = nsb; NPOOL = (64 - NSB)*8; D = depth
    g.L.append(header + f'; @launch grid=(256,1,1) block=(512,1,1) lds={LDS_BYTES}')
    g.L.append('.amdgcn_target "amdgcn-amd-amdhsa--gfx950"')
    g.L.append('.text'); g.L.append(f'.globl {NAME}_kernel'); g.L.append('.p2align 8')
    g.L.append(f'.type {NAME}_kernel,@function'); g.label(f'{NAME}_kernel')
    A('s_cmp_ge_u32 s2, 256'); A('s_cbranch_scc1 L_end')
    A('s_load_dwordx16 s[16:31], s[0:1], 0')
    A('s_load_dwordx8 s[32:39], s[0:1], 64')
    A('s_load_dwordx4 s[40:43], s[0:1], 96')
    A('v_lshrrev_b32 v1, 6, v0'); A('v_and_b32 v0, 63, v0')
    A('v_readfirstlane_b32 s3, v1')
    A('s_lshr_b32 s4, s2, 3'); A('s_and_b32 s5, s2, 7')
    A('s_mul_i32 s58, s4, 3'); A('s_add_u32 s58, s58, s5'); A('s_cmp_lt_u32 s5, 3'); A('s_cselect_b32 s58, s58, 255')
    A('s_add_u32 s57, s4, 32'); A('s_cmp_eq_u32 s5, 4'); A('s_cselect_b32 s57, s57, 255'); A('s_cmp_eq_u32 s5, 3'); A('s_cselect_b32 s57, s4, s57')
    A('s_and_b32 s6, s3, 3')
    if ts:
        A('s_lshl_b32 s95, s2, 3'); A('s_add_u32 s95, s95, s3'); A('s_lshl_b32 s95, s95, 7'); A(f's_add_u32 s95, s95, {WS_TS}')
    A('s_cmp_ge_u32 s3, 4'); A('s_cbranch_scc1 L_helper')

    VOFF = 1; VL = 2; VL2 = 3; Q = 4
    AA = list(range(8, 16)); BB = list(range(16, 24)); T = list(range(24, 32)); PA = list(range(32, 40)); PB = list(range(40, 48))
    PL = 48; OM = 54; OL = 55; VQA = 56; VQ = 57; VPA = 58; VN = 59
    NB = NS // 8 - 1; NX = 8*NB
    def slot(i): return 64 + 4*i
    def pslot(t): return 8 + t if t < NX else t - NX
    A('s_lshl_b32 s51, s4, 24')
    A(f's_mul_i32 s44, s5, {NSB*32768}'); A('s_add_u32 s44, s44, s51')
    A('s_lshl_b32 s53, s6, 10'); A('s_add_u32 s44, s44, s53'); A('s_mov_b32 s45, s44')
    A(f'v_lshlrev_b32 v{VOFF}, 4, v0')
    A('s_waitcnt lgkmcnt(0)')
    srd(g, 8, 18, 1 << 29); srd(g, 12, 20, 1 << 29)
    g.stamp(0)
    def ld(sl, sr):
        A(f'buffer_load_dwordx4 v[{slot(sl)}:{slot(sl)+3}], v{VOFF}, s[{sr}:{sr+3}], s44 offen nt')
        A('s_add_u32 s44, s44, 4096')
    def prefetch(sr, first, D):
        for t in range(first, NS):
            A(f's_waitcnt vmcnt({D-1})'); ld(pslot(t), sr)
    for t in range(D): ld(pslot(t), 8)
    A('s_barrier')
    A(f'v_lshrrev_b32 v{VL2}, 4, v0'); A(f'v_lshlrev_b32 v{VL2}, 5, v{VL2}')
    A('s_lshl_b32 s46, s6, 14'); A(f's_add_u32 s46, s46, {L_SC}'); A(f'v_add_u32 v{VL2}, s46, v{VL2}')
    A(f'v_bfe_u32 v{VL}, v0, 1, 3'); A(f'v_lshl_add_u32 v{VL}, v{VL}, 2, v{VL2}')
    A('s_mov_b32 s48, 0xcccccccc'); A('s_mov_b32 s49, 0xcccccccc')
    A(f's_mov_b32 s47, {hex(f2u(128 ** -0.5))}'); A(f's_mov_b32 s52, {hex(LOG2E)}')
    A(f'v_mov_b32 v{OM}, 0xff7fffff'); A(f'v_mov_b32 v{OL}, 0')
    A(f'v_mov_b32 v{VPA}, s6'); A(f'v_lshlrev_b32 v{VPA}, 2, v{VPA}')
    A(f'v_and_b32 v50, 15, v0'); A(f'v_lshlrev_b32 v50, 5, v50')
    A(f'v_mov_b32 v{VQA}, {L_Q + 4*(NB+2)}'); A(f'v_mov_b32 v{VN}, {NB+2}')
    A(f's_mov_b32 s70, {SPIN_MAX*64}')
    prefetch(8, D, D)
    g.stamp(1)
    if 'xb1' not in exp: A('s_barrier')
    g.stamp(2)
    A(f'ds_read_b128 v[8:11], v50 offset:{L_HV}'); A(f'ds_read_b128 v[12:15], v50 offset:{L_HV + 16}')
    A('s_waitcnt lgkmcnt(0)')
    for i in range(4): A(f'v_cvt_pk_bf16_f32 v{Q+i}, v{8+2*i}, v{9+2*i}')
    def kdot(a, sl):
        A(f'v_mov_b32 v{a}, 0')
        for i in range(4): A(f'v_dot2c_f32_bf16 v{a}, v{slot(sl)+i}, v{Q+i}')
    def kreduce(a, off=None):
        g.nop(3)
        for j in range(4):
            A(f'v_add_f32_dpp v{T[j]}, v{a[j]}, v{a[j]} row_ror:8 row_mask:0xf bank_mask:0x3')
            A(f'v_add_f32_dpp v{T[j]}, v{a[j+4]}, v{a[j+4]} row_ror:8 row_mask:0xf bank_mask:0xc')
        for j in range(2):
            A(f'v_add_f32_dpp v{T[4+j]}, v{T[j]}, v{T[j]} row_half_mirror row_mask:0xf bank_mask:0x5')
            A(f'v_add_f32_dpp v{T[4+j]}, v{T[j+2]}, v{T[j+2]} row_half_mirror row_mask:0xf bank_mask:0xa')
        g.nop(1)
        A(f'v_add_f32_dpp v{T[6]}, v{T[4]}, v{T[4]} quad_perm:[2,3,0,1] row_mask:0xf bank_mask:0xf')
        A(f'v_add_f32_dpp v{T[7]}, v{T[5]}, v{T[5]} quad_perm:[2,3,0,1] row_mask:0xf bank_mask:0xf')
        A(f'v_cndmask_b32 v{T[6]}, v{T[6]}, v{T[7]}, s[48:49]')
        g.nop(2)
        A(f'v_add_f32_dpp v{T[6]}, v{T[6]}, v{T[6]} quad_perm:[1,0,3,2] row_mask:0xf bank_mask:0xf')
        rnd(g, T[6], T[6]); A(f'v_mul_f32 v{T[6]}, s47, v{T[6]}'); rnd(g, T[6], T[6])
        A(f'ds_write_b32 v{VL}, v{T[6]}' + ('' if off is None else f' offset:{off}'))
        A(f'v_max_f32 v{T[0]}, v{OM}, v{T[6]}')
        A(f'v_sub_f32 v{T[1]}, v{OM}, v{T[0]}'); A(f'v_sub_f32 v{T[2]}, v{T[6]}, v{T[0]}')
        A(f'v_mul_f32 v{T[1]}, s52, v{T[1]}'); A(f'v_mul_f32 v{T[2]}, s52, v{T[2]}')
        A(f'v_exp_f32 v{T[1]}, v{T[1]}'); A(f'v_exp_f32 v{T[2]}, v{T[2]}')
        A(f'v_mov_b32 v{OM}, v{T[0]}')
        if off is None: A(f'v_add_u32 v{VL}, 128, v{VL}')
        else: g.nop(1)
        A(f'v_fma_f32 v{OL}, v{OL}, v{T[1]}, v{T[2]}')
    def qread(): A(f'ds_read_b32 v{VQ}, v{VQA}')
    def qtop(pref, prog):
        g.label(f'{pref}_top')
        A('s_waitcnt lgkmcnt(0)')
        A(f'v_readfirstlane_b32 s50, v{VQ}')
        g.nop(1)
        A(f's_cmp_ge_u32 s50, {hex(Q_DONE)}'); A(f's_cbranch_scc1 {pref}_slow')
        A('s_add_u32 s44, s50, s53')
        if ts and ('kprog' in exp and prog == L_PROG or 'vprog' in exp and prog == L_PROGV):
            A(f'v_readfirstlane_b32 s71, v{VN}'); g.nop(2)
            lb = g.newlabel('L_st')
            A('s_and_b32 s72, s71, 7'); A('s_cmp_lg_u32 s72, 0'); A(f's_cbranch_scc1 {lb}')
            A('s_cmp_lg_u32 s3, 0'); A(f's_cbranch_scc1 {lb}')
            A('s_memrealtime s[96:97]'); A('s_waitcnt lgkmcnt(0)')
            A('v_mov_b32 v60, s96'); A('v_mov_b32 v61, s97'); A('s_add_u32 s72, s95, s71'); A('s_add_u32 s72, s72, 128'); A('v_mov_b32 v62, s72')
            A('s_mov_b64 exec, 1'); A('global_store_dwordx2 v62, v[60:61], s[42:43]'); A('s_mov_b64 exec, -1')
            g.label(lb)
        A(f'v_add_u32 v{VQA}, 4, v{VQA}')
        A(f'ds_write_b32 v{VPA}, v{VN} offset:{prog}'); A(f'v_add_u32 v{VN}, 1, v{VN}')
    def qslow(pref):
        g.label(f'{pref}_slow')
        A(f's_cmp_eq_u32 s50, {hex(Q_DONE)}'); A(f's_cbranch_scc1 {pref}_last')
        A('s_sub_u32 s70, s70, 1'); A('s_cmp_eq_u32 s70, 0'); A(f's_cbranch_scc1 {pref}_last')
        A('s_sleep 1'); qread(); A(f's_branch {pref}_top')
        g.label(f'{pref}_last')
    for j in range(8):
        A('s_waitcnt vmcnt(7)')
        kdot(AA[j], j); ld(j, 8)
        for e in range(NB*j, NB*(j+1)):
            kdot(BB[e % 8], 8 + e)
            if e % 8 == 7: kreduce(BB, off=(e // 8)*128)
    qread(); A(f'v_add_u32 v{VL}, {NB*128}, v{VL}'); kreduce(AA)
    g.stamp(8)
    qtop('L_k', L_PROG)
    for j in range(8):
        A('s_waitcnt vmcnt(7)')
        kdot(AA[j], j); ld(j, 8)
        if j == 6: qread()
    kreduce(AA)
    A('s_branch L_k_top')
    qslow('L_k')
    A('s_mov_b32 s44, s45')
    for j in range(8):
        A('s_waitcnt vmcnt(7)')
        kdot(AA[j], j); ld(pslot(j), 12)
    kreduce(AA)
    A(f'v_mov_b32 v{T[0]}, v{OM}')
    wave_allreduce(g, T[0], T[1], 'max')
    A(f'v_sub_f32 v{T[2]}, v{OM}, v{T[0]}'); A(f'v_mul_f32 v{T[2]}, s52, v{T[2]}'); A(f'v_exp_f32 v{T[2]}, v{T[2]}')
    A(f'ds_read_b32 v{T[3]}, v{VPA} offset:{L_TAG}')
    A('s_lshl_b32 s50, s2, 6'); A('s_lshl_b32 s56, s6, 4'); A('s_add_u32 s50, s50, s56')
    A(f'v_mul_f32 v{T[2]}, v{T[2]}, v{OL}')
    wave_allreduce(g, T[2], T[1])
    A(f'v_mul_f32 v{T[2]}, 0.5, v{T[2]}')
    A(f's_add_u32 s50, s50, {WS_ML}'); A(f'v_mov_b32 v{T[4]}, s50')
    A('s_waitcnt lgkmcnt(0)')
    A(f'v_mov_b32 v{T[1]}, v{T[3]}')
    A(f'ds_write_b32 v{VPA}, v{VN} offset:{L_KD}')
    A('s_mov_b64 exec, 1')
    A(f'global_store_dwordx4 v{T[4]}, v[{T[0]}:{T[3]}], s[42:43] sc1')
    A('s_mov_b64 exec, -1')
    g.stamp(3)
    prefetch(12, 8, 8)
    ACC = AA
    for i in range(8): A(f'v_mov_b32 v{ACC[i]}, 0')
    A(f'v_mov_b32 v{VQA}, {L_QV + 4*(NB+2)}'); A(f'v_mov_b32 v{VN}, {NB+2}')
    g.stamp(4)
    if 'xb2' not in exp: A('s_barrier')
    g.stamp(5)
    def pread(P, off):
        A(f'ds_read_b128 v[{P[0]}:{P[3]}], v{VL2} offset:{off}'); A(f'ds_read_b128 v[{P[4]}:{P[7]}], v{VL2} offset:{off+16}')
    def vmac(sl, p):
        A(f'v_lshrrev_b32 v{PL}, 16, v{p}')
        tile_mac(g, ACC, slot(sl), f'v{p}', f'v{PL}')
    pread(PA, NB*128); pread(PB, 0)
    PC = BB
    for j in range(8):
        A('s_waitcnt vmcnt(7) lgkmcnt(0)' if j == 0 else 's_waitcnt vmcnt(7)')
        vmac(j, PA[j]); ld(j, 12)
        for e in range(NB*j, NB*(j+1)):
            cur, nxt = (PB, PC) if (e // 8) % 2 == 0 else (PC, PB)
            if e % 8 == 0:
                A('s_waitcnt lgkmcnt(0)')
                if e // 8 + 1 < NB: pread(nxt, (e // 8 + 1)*128)
            vmac(8 + e, cur[e % 8])
    A(f'v_add_u32 v{VL2}, {(NB+1)*128}, v{VL2}')
    qread(); pread(PA, 0)
    g.stamp(10)
    qtop('L_v', L_PROGV)
    for j in range(8):
        A('s_waitcnt vmcnt(7)')
        vmac(j, PA[j]); ld(j, 12)
        if j == 6: qread()
    A(f'v_add_u32 v{VL2}, 128, v{VL2}')
    pread(PA, 0)
    A('s_branch L_v_top')
    qslow('L_v')
    A('v_lshrrev_b32 v51, 4, v0'); A('v_lshl_add_u32 v50, v51, 3, v50')
    A('s_lshl_b32 s46, s6, 9'); A('v_add_u32 v50, s46, v50')
    A('s_lshl_b32 s46, s2, 9'); A(f's_add_u32 s46, s46, {WS_OP}'); A(f'v_add_u32 v51, s46, v{VOFF}')
    for j in range(8):
        A(f's_waitcnt vmcnt({7-j})')
        vmac(j, PA[j])
    g.stamp(6)
    g.nop(1)
    swap_reduce8(g, ACC)
    A(f'ds_write_b64 v50, v[{ACC[0]}:{ACC[1]}] offset:{L_OB}')
    A('s_waitcnt lgkmcnt(0)')
    A('s_barrier')
    if 'notail' in exp: A('s_branch L_end')
    A('s_cmp_lg_u32 s3, 0'); A('s_cbranch_scc1 L_s_after_pub')
    A('s_mov_b64 exec, 0xffffffff')
    for w in range(4): A(f'ds_read_b128 v[{8+4*w}:{11+4*w}], v{VOFF} offset:{L_OB + 512*w}')
    A('s_waitcnt lgkmcnt(0)')
    sum4x4(g, 8)
    A('global_store_dwordx4 v51, v[8:11], s[42:43] sc1')
    A('s_mov_b64 exec, -1')
    g.stamp(7)
    g.label('L_s_after_pub')
    if 'xstage' in exp: A('s_branch L_end')
    A(f's_cmp_ge_u32 s57, {NMLP}'); A('s_cbranch_scc1 L_end')
    A('s_branch L_gather_ap')

    g.label('L_helper'); g.role = 'H'
    WQ = 64; WM = 192; CC = 52; X8 = 56; X4 = 46; TAG = 49; MEAN = 40; SD = 41; RSD = 42
    A('v_lshrrev_b32 v1, 2, v0'); A('v_and_b32 v2, 3, v0')
    A('s_lshl_b32 s7, s6, 7')
    A('v_add_u32 v3, s7, v1')
    A('v_lshlrev_b32 v4, 2, v0'); A('s_lshl_b32 s50, s6, 8'); A('v_add_u32 v4, s50, v4')
    A('s_movk_i32 s50, 6144'); A('v_mul_lo_u32 v5, v3, s50'); A('v_lshl_add_u32 v5, v2, 4, v5')
    A('v_lshlrev_b32 v6, 4, v0')
    A('s_lshl_b32 s50, s5, 6'); A('s_lshl_b32 s51, s6, 4'); A('s_add_u32 s50, s50, s51')
    A('v_lshrrev_b32 v7, 4, v0'); A('v_lshl_add_u32 v7, v7, 2, s50')
    A('v_lshlrev_b32 v10, 1, v7')
    A('v_lshlrev_b32 v9, 13, v7'); A('v_and_b32 v11, 15, v0'); A('v_lshl_add_u32 v9, v11, 4, v9')
    A('v_mov_b32 v8, 0')
    A('s_waitcnt lgkmcnt(0)')
    g.stamp(0)
    A(f'global_load_dword v{TAG}, v8, s[42:43]')
    A('s_cmp_ge_u32 s58, 96'); A('s_cbranch_scc1 L_h_noprod1')
    srd(g, 8, 36, 512*3072*2)
    A(f'global_load_dword v{CC}, v4, s[34:35]')
    A('s_lshl_b32 s50, s58, 6')
    for j in range(0 if 'xwm' in exp else 8):
        A(f'buffer_load_dwordx4 v[{WM+4*j}:{WM+4*j+3}], v5, s[8:11], s50 offen nt')
        if j < 7: A(f's_add_u32 s50, s50, {6144*16}')
    g.label('L_h_noprod1')
    A('s_lshl_b32 s50, s5, 3'); A('s_add_u32 s50, s50, s3'); A('s_cmp_lg_u32 s50, 4'); A('s_cbranch_scc1 L_h_nocinit')
    A('v_and_b32 v11, 1, v0'); A('v_lshlrev_b32 v11, 7, v11'); A(f's_lshl_b32 s50, s4, 8'); A(f's_add_u32 s50, s50, {WS_CNT}'); A('v_add_u32 v11, s50, v11')
    A('s_mov_b64 exec, 3')
    A('global_store_dword v11, v8, s[42:43] sc1')
    A('s_mov_b64 exec, -1')
    g.label('L_h_nocinit')
    A(f'global_load_dwordx4 v[{X8}:{X8+3}], v6, s[16:17]')
    A(f'global_load_dwordx2 v[{X4}:{X4+1}], v10, s[16:17]')
    srd(g, 12, 22, 512*4096*2)
    A('s_lshl_b32 s50, s4, 8')
    for j in range(0 if 'xwq' in exp else 4):
        A(f'buffer_load_dwordx4 v[{WQ+4*j}:{WQ+4*j+3}], v9, s[12:15], s50 offen nt')
        if j < 3: A('s_add_u32 s50, s50, 8192')
    A('s_cmp_lg_u32 s3, 4'); A('s_cbranch_scc1 L_h_nozero')
    A('v_lshlrev_b32 v10, 2, v0')
    A(f'ds_write_b32 v10, v8 offset:{L_CNT}')
    A('s_lshl_b32 s51, s4, 24'); A(f's_mul_i32 s50, s5, {NSB*32768}'); A('s_add_u32 s50, s50, s51')
    A('v_lshlrev_b32 v11, 15, v0'); A('v_add_u32 v11, s50, v11'); A('v_mov_b32 v12, -1')
    A(f'v_cmp_gt_u32 vcc, {NSB}, v0'); g.nop(2); A('v_cndmask_b32 v11, v12, v11, vcc')
    for q in (L_Q, L_QV):
        A(f'ds_write_b32 v10, v11 offset:{q}'); A(f'ds_write_b32 v10, v12 offset:{q + 256}')
    A('s_waitcnt lgkmcnt(0)')
    g.label('L_h_nozero')
    A('s_barrier')
    A('s_cmp_ge_u32 s58, 96'); A('s_cbranch_scc1 L_h_w1')
    A('s_waitcnt vmcnt(14)'); A('s_branch L_h_w2')
    g.label('L_h_w1')
    A('s_waitcnt vmcnt(4)')
    g.label('L_h_w2')
    A('s_mov_b32 s50, 0x9e3779b1')
    A(f'v_mul_lo_u32 v{TAG}, v{TAG}, s50'); A(f'v_add_u32 v{TAG}, 0x7f4a7c15, v{TAG}')
    A('v_mov_b32 v10, s6'); A('v_lshlrev_b32 v10, 2, v10'); A(f'ds_write_b32 v10, v{TAG} offset:{L_TAG}')
    g.stamp(1)
    A('s_cmp_ge_u32 s58, 96'); A('s_cbranch_scc1 L_h_noprod2')
    CV = list(range(16, 24)); ACC = list(range(24, 32))
    unpack(g, [32, 33], CC, 1)
    for i in range(2): A(f'v_mul_f32 v{80+i}, {hex(f2u(-1.4426950408889634))}, v{32+i}')
    sigmoid_mul_n(g, [(88+i, 32+i, 80+i, 96+i, 104+i, 112+i) for i in range(2)])
    for i in range(2): rnd(g, 88+i, 88+i)
    A('v_and_b32 v10, 7, v0'); A('v_lshlrev_b32 v10, 6, v10'); A('v_lshrrev_b32 v11, 3, v0'); A('v_lshl_add_u32 v10, v11, 2, v10')
    A('s_lshl_b32 s50, s6, 9'); A('v_add_u32 v10, s50, v10')
    A(f'ds_write_b32 v10, v88 offset:{L_QP}'); A(f'ds_write_b32 v10, v89 offset:{L_QP + 32}')
    A('v_lshl_add_u32 v10, v1, 5, s50')
    A(f'ds_read_b128 v[16:19], v10 offset:{L_QP}'); A(f'ds_read_b128 v[20:23], v10 offset:{L_QP + 16}')
    A('s_waitcnt vmcnt(0) lgkmcnt(0)' if 'xwq' in exp else 's_waitcnt vmcnt(6) lgkmcnt(0)')
    for i in range(8): A(f'v_mov_b32 v{ACC[i]}, 0'); A(f'v_lshrrev_b32 v{80+i}, 16, v{CV[i]}')
    for j in range(8): tile_mac(g, ACC, WM + 4*j, f'v{CV[j]}', f'v{80+j}')
    A('v_lshrrev_b32 v10, 4, v0'); A('v_lshlrev_b32 v10, 3, v10'); A('v_lshl_add_u32 v10, v2, 5, v10')
    A('v_add_u32 v10, s7, v10')
    swap_reduce8(g, ACC)
    row_allreduce(g, ACC[:2], rors=(8, 4))
    A(f'ds_write_b64 v10, v[{ACC[0]}:{ACC[1]}] offset:{L_MODP}')
    last_arriver(g, 0, 'L_h_noprod2')
    A('v_and_b32 v11, 7, v0'); A('v_lshlrev_b32 v11, 4, v11')
    for w in range(4): A(f'ds_read_b128 v[{16+4*w}:{19+4*w}], v11 offset:{L_MODP + 128*w}')
    A('s_lshl_b32 s50, s58, 7'); A(f's_add_u32 s50, s50, {WS_MOD}'); A('v_add_u32 v10, s50, v11')
    A('v_lshrrev_b32 v11, 3, v0'); A('v_lshl_add_u32 v10, v11, 14, v10')
    A('s_waitcnt lgkmcnt(0)')
    sum4x4(g, 16, False)
    A('v_cvt_pk_bf16_f32 v16, v16, v17'); A('v_cvt_pk_bf16_f32 v18, v18, v19'); A(f'v_mov_b32 v17, v{TAG}'); A(f'v_mov_b32 v19, v{TAG}')
    A('global_store_dwordx4 v10, v[16:19], s[42:43] sc1')
    g.stamp(2)
    g.label('L_h_noprod2')
    A('s_waitcnt vmcnt(4)')
    XS = list(range(16, 24))
    unpack(g, XS, X8)
    ln_stats(g, XS, MEAN, SD, list(range(32, 40)))
    A(f'v_rcp_f32 v{RSD}, v{SD}')
    A('s_and_b32 s50, s4, 7'); A('s_lshl_b32 s50, s50, 14'); A(f's_add_u32 s50, s50, {WS_MOD}')
    A('v_lshlrev_b32 v10, 2, v7'); A('v_add_u32 v10, s50, v10')
    unpack(g, [16, 17, 18, 19], X4, 2)
    def lds_():
        A('global_load_dwordx4 v[24:27], v10, s[42:43] sc1'); A('global_load_dwordx4 v[28:31], v10, s[42:43] offset:2048 sc1')
    poll(g, lds_, chk_tags(g, [25, 27, 29, 31], TAG), sleep=psl)
    g.stamp(3)
    for k, src in enumerate((24, 26)):
        A(f'v_lshlrev_b32 v{20+2*k}, 16, v{src}'); A(f'v_and_b32 v{21+2*k}, 0xffff0000, v{src}')
    for k, src in enumerate((28, 30)):
        A(f'v_lshlrev_b32 v{32+2*k}, 16, v{src}'); A(f'v_and_b32 v{33+2*k}, 0xffff0000, v{src}')
    for i in range(4): A(f'v_add_f32 v{32+i}, 1.0, v{32+i}')
    for i in range(4): rnd(g, 32+i, 32+i)
    modulate_n(g, [(36+i, 16+i, 32+i, 20+i, 80+i, 84+i) for i in range(4)], MEAN, SD, RSD)
    ACC = list(range(24, 32))
    for i in range(8): A(f'v_mov_b32 v{ACC[i]}, 0')
    for j in range(4): A(f'v_lshrrev_b32 v{80+j}, 16, v{36+j}')
    for j in range(4): tile_mac(g, ACC, WQ + 4*j, f'v{36+j}', f'v{80+j}')
    A('v_and_b32 v10, 15, v0'); A('v_lshlrev_b32 v10, 5, v10'); A('v_lshrrev_b32 v11, 4, v0'); A('v_lshl_add_u32 v10, v11, 3, v10')
    A('s_lshl_b32 s50, s6, 9'); A('v_add_u32 v10, s50, v10')
    swap_reduce8(g, ACC)
    A(f'ds_write_b64 v10, v[{ACC[0]}:{ACC[1]}] offset:{L_QP}')
    A('v_lshlrev_b32 v10, 3, v0')
    last_arriver(g, 1, 'L_h_noqpub')
    for w in range(4): A(f'ds_read_b64 v[{16+2*w}:{17+2*w}], v10 offset:{L_QP + 512*w}')
    A('s_lshl_b32 s50, s2, 10'); A(f's_add_u32 s50, s50, {WS_QX}'); A('v_add_u32 v10, s50, v6')
    A('s_waitcnt lgkmcnt(0)')
    A('v_pk_add_f32 v[16:17], v[16:17], v[18:19]'); A('v_pk_add_f32 v[20:21], v[20:21], v[22:23]'); A('v_pk_add_f32 v[16:17], v[16:17], v[20:21]')
    A(f'v_mov_b32 v19, v{TAG}'); A('v_mov_b32 v18, v17'); A(f'v_mov_b32 v17, v{TAG}')
    A('global_store_dwordx4 v10, v[16:19], s[42:43] sc1')
    g.label('L_h_noqpub')
    A('s_lshl_b32 s50, s4, 13'); A('s_lshl_b32 s51, s6, 8'); A('s_add_u32 s50, s50, s51'); A(f's_add_u32 s50, s50, {WS_QX}')
    A('v_lshrrev_b32 v10, 3, v0'); A('v_lshlrev_b32 v10, 10, v10'); A('v_and_b32 v11, 7, v0'); A('v_lshl_add_u32 v10, v11, 5, v10')
    A('v_add_u32 v10, s50, v10')
    A('v_lshlrev_b32 v48, 4, v11'); A('v_bfe_u32 v13, v0, 5, 1'); A('v_lshl_add_u32 v48, v13, 3, v48')
    A('v_bfe_u32 v13, v0, 4, 1'); A('v_lshl_add_u32 v48, v13, 2, v48'); A('v_add_u32 v12, s7, v48')
    def lds_():
        A('global_load_dwordx4 v[24:27], v10, s[42:43] sc1'); A('global_load_dwordx4 v[28:31], v10, s[42:43] offset:16 sc1')
    poll(g, lds_, chk_tags(g, [25, 27, 29, 31], TAG), sleep=psl)
    reduce4_hi(g, [24, 26, 28, 30])
    A(f'ds_write_b32 v12, v24 offset:{L_HV}')
    A('s_waitcnt lgkmcnt(0)')
    g.stamp(4)
    if 'xb1' not in exp: A('s_barrier')
    if 'xclr' in exp: A('s_branch L_h_noclear')
    A('s_cmp_lg_u32 s3, 7'); A('s_cbranch_scc1 L_h_noclear')
    for i in range(4): A(f'v_mov_b32 v{16+i}, -1')
    A('s_lshl_b32 s51, s2, 9'); A(f's_add_u32 s51, s51, {WS_OP}'); A('v_add_u32 v10, s51, v6')
    A('v_and_b32 v11, 15, v0'); A('v_lshlrev_b32 v11, 4, v11'); A('v_lshrrev_b32 v12, 4, v0'); A('v_lshl_add_u32 v11, v12, 16, v11')
    A('s_lshl_b32 s51, s2, 8'); A(f's_add_u32 s51, s51, {WS_AP}'); A('v_add_u32 v11, s51, v11'); A('v_add_u32 v12, 0x40000, v11')
    A('s_mov_b64 exec, 0xffffffff')
    A('global_store_dwordx4 v10, v[16:19], s[42:43] sc1')
    A('s_mov_b64 exec, -1')
    A('global_store_dwordx4 v11, v[16:19], s[42:43] sc1')
    A('global_store_dwordx4 v12, v[16:19], s[42:43] sc1')
    A(f's_cmp_ge_u32 s57, {NMLP}'); A('s_cbranch_scc1 L_h_noclear')
    A('s_lshl_b32 s51, s57, 11'); A(f's_add_u32 s51, s51, {WS_DP}'); A('v_add_u32 v10, s51, v6')
    A('global_store_dwordx4 v10, v[16:19], s[42:43] sc1')
    A('global_store_dwordx4 v10, v[16:19], s[42:43] offset:1024 sc1')
    g.label('L_h_noclear')
    WO = 64; WG = 80; WU = 112; WD = 144; E = 192
    srd(g, 8, 24, 4096*512*2)
    A('v_lshrrev_b32 v10, 3, v0'); A('v_lshlrev_b32 v10, 2, v10')
    A('s_lshl_b32 s50, s4, 7'); A('s_lshl_b32 s51, s6, 5'); A('s_add_u32 s50, s50, s51')
    A('v_add_u32 v10, s50, v10'); A('v_lshlrev_b32 v10, 10, v10')
    A('v_and_b32 v11, 7, v0'); A('v_lshl_add_u32 v10, v11, 4, v10')
    A('s_lshl_b32 s50, s5, 7')
    for j in range(0 if 'xwo' in exp else 4):
        A(f'buffer_load_dwordx4 v[{WO+4*j}:{WO+4*j+3}], v10, s[8:11], s50 offen offset:{1024*j} nt')
    A(f's_cmp_ge_u32 s57, {NMLP}'); A('s_cbranch_scc1 L_h_nomlpw')
    srd(g, 8, 28, 512*1792*2); srd(g, 12, 30, 512*1792*2)
    A('s_movk_i32 s50, 3584'); A('v_mul_lo_u32 v10, v3, s50'); A('v_lshl_add_u32 v10, v2, 4, v10')
    A('s_lshl_b32 s50, s57, 6')
    for j in range(0 if 'xgu' in exp else 8):
        A(f'buffer_load_dwordx4 v[{WG+4*j}:{WG+4*j+3}], v10, s[8:11], s50 offen nt')
        A(f'buffer_load_dwordx4 v[{WU+4*j}:{WU+4*j+3}], v10, s[12:15], s50 offen nt')
        if j < 7: A(f's_add_u32 s50, s50, {3584*16}')
    srd(g, 8, 32, 1792*512*2)
    A('s_lshl_b32 s50, s57, 5'); A('s_lshl_b32 s51, s6, 3'); A('s_add_u32 s50, s50, s51'); A('s_lshl_b32 s50, s50, 10')
    for j in range(0 if 'xwd' in exp else 8):
        if j == 4: A('s_add_u32 s50, s50, 4096')
        A(f'buffer_load_dwordx4 v[{WD+4*j}:{WD+4*j+3}], v6, s[8:11], s50 offen offset:{1024*(j%4)} nt')
    A('v_lshlrev_b32 v10, 6, v3'); A('v_lshl_add_u32 v10, v2, 4, v10'); A(f'v_add_u32 v10, {L_ST}, v10')
    A('s_waitcnt vmcnt(0)' if 'xwd' in exp else 's_waitcnt vmcnt(8)')
    for j in range(8):
        A(f'ds_write_b128 v10, v[{WG+4*j}:{WG+4*j+3}] offset:{1024*j}'); A(f'ds_write_b128 v10, v[{WU+4*j}:{WU+4*j+3}] offset:{32768 + 1024*j}')
    A('v_mov_b32 v11, 1'); A('v_mov_b32 v12, 0')
    A('v_lshlrev_b32 v10, 9, v0'); A('s_lshl_b32 s50, s6, 4'); A(f's_add_u32 s50, s50, {L_ST}'); A('v_add_u32 v10, s50, v10')
    A('s_waitcnt lgkmcnt(0)')
    A('s_mov_b64 exec, 1')
    A(f'ds_add_u32 v12, v11 offset:{L_CNT + 16}')
    A('s_mov_b64 exec, -1')
    A(f's_mov_b32 s70, {SPIN_MAX*16}')
    g.label('L_st_spin')
    A(f'ds_read_b32 v13, v12 offset:{L_CNT + 16}')
    A('s_waitcnt lgkmcnt(0)')
    A('v_readfirstlane_b32 s50, v13')
    A('s_sub_u32 s70, s70, 1'); A('s_cmp_eq_u32 s70, 0'); A('s_cbranch_scc1 L_st_done')
    A('s_cmp_ge_u32 s50, 4'); A('s_cbranch_scc1 L_st_done')
    A('s_sleep 8'); A('s_branch L_st_spin')
    g.label('L_st_done')
    for j in range(8):
        A(f'ds_read_b128 v[{WG+4*j}:{WG+4*j+3}], v10 offset:{64*j}'); A(f'ds_read_b128 v[{WU+4*j}:{WU+4*j+3}], v10 offset:{32768 + 64*j}')
        if j % 4 == 3: A('s_waitcnt lgkmcnt(0)')
    A('s_cmp_lg_u32 s3, 6'); A('s_cbranch_scc1 L_h_nomlpw')
    A('s_and_b32 s51, s57, 7'); A('s_lshl_b32 s51, s51, 14'); A(f's_add_u32 s51, s51, {WS_MOD + 4096}')
    A('v_lshlrev_b32 v10, 5, v0'); A('v_add_u32 v10, s51, v10'); A('v_add_u32 v11, 4096, v10')
    A('v_and_b32 v12, 15, v0'); A('v_lshlrev_b32 v12, 3, v12'); A('s_and_b32 s50, s57, 15'); A('s_lshl_b32 s50, s50, 7')
    A('s_add_u32 s50, s50, s51'); A(f's_add_u32 s50, s50, {1280*8 - 4096}'); A('v_add_u32 v12, s50, v12')
    def lds_():
        A('global_load_dwordx4 v[16:19], v10, s[42:43] sc1'); A('global_load_dwordx4 v[20:23], v10, s[42:43] offset:16 sc1')
        A('global_load_dwordx4 v[24:27], v10, s[42:43] offset:2048 sc1'); A('global_load_dwordx4 v[28:31], v10, s[42:43] offset:2064 sc1')
        A('global_load_dwordx4 v[32:35], v11, s[42:43] sc1'); A('global_load_dwordx4 v[36:39], v11, s[42:43] offset:16 sc1')
        A('global_load_dwordx2 v[44:45], v12, s[42:43] sc1')
    poll(g, lds_, chk_tags(g, [45] + list(range(17, 40, 2)), TAG), sleep=32)
    for k in range(3):
        b = 16 + 8*k
        A(f'v_mov_b32 v{b+1}, v{b+2}'); A(f'v_mov_b32 v{b+2}, v{b+4}'); A(f'v_mov_b32 v{b+3}, v{b+6}')
        A(f'ds_write_b128 v6, v[{b}:{b+3}] offset:{L_MV + 1024*k}')
    A('v_and_b32 v12, 15, v0'); A('v_lshlrev_b32 v12, 2, v12')
    A(f'ds_write_b32 v12, v44 offset:{L_MV + 3072}')
    g.label('L_h_nomlpw')
    A('s_waitcnt vmcnt(0) lgkmcnt(0)')
    g.stamp(5)
    A('v_mov_b32 v12, s6'); A('v_lshlrev_b32 v12, 2, v12')
    A('s_lshl_b32 s59, s4, 24'); A(f's_add_u32 s59, s59, {NSB*8*32768}')
    A('v_mov_b32 v17, 0')
    def read_prog(off, dst):
        A(f'ds_read_b128 v[20:23], v17 offset:{off}')
        A('s_waitcnt lgkmcnt(0)')
        A('v_max3_u32 v20, v20, v21, v22'); A('v_max_u32 v20, v20, v23'); g.nop(1)
        A(f'v_readfirstlane_b32 {dst}, v20')
    A('s_cmp_lg_u32 s3, 4'); A('s_cbranch_scc1 L_nosched')
    A(f's_lshl_b32 s50, s4, 8'); A(f's_add_u32 s50, s50, {WS_CNT}'); A('v_mov_b32 v16, s50')
    A(f's_mov_b32 s52, {NSB}'); A('s_mov_b32 s53, 0')
    A(f's_mov_b32 s70, {SPIN_MAX*16}')
    g.label('L_sch_wait')
    read_prog(L_PROG, 's50')
    A('s_sub_u32 s70, s70, 1'); A('s_cmp_eq_u32 s70, 0'); A('s_cbranch_scc1 L_sch_done')
    A(f's_add_u32 s50, s50, {lead}'); A('s_cmp_ge_u32 s50, s52'); A('s_cbranch_scc1 L_sch_claim')
    A('s_sub_u32 s50, s52, s50'); A('s_cmp_gt_u32 s50, 4'); A('s_cbranch_scc1 L_sch_long')
    A('s_sleep 2'); A('s_branch L_sch_wait')
    g.label('L_sch_long')
    A('s_sleep 32'); A('s_branch L_sch_wait')
    g.label('L_sch_claim')
    A(f's_cmp_ge_u32 s52, {MAXROWS - 2}'); A('s_cbranch_scc1 L_sch_done')
    A(f's_cmp_lt_u32 s53, {NPOOL - sing}'); A('s_cselect_b32 s54, 2, 1')
    A('v_mov_b32 v18, s54')
    A('s_mov_b64 exec, 1')
    A('global_atomic_add v19, v16, v18, s[42:43] sc0 sc1')
    A('s_mov_b64 exec, -1')
    A('s_lshl_b32 s55, s52, 2'); A('v_mov_b32 v21, s55')
    A('s_waitcnt vmcnt(0)')
    A('v_readfirstlane_b32 s53, v19')
    g.label('L_sch_put')
    A(f's_cmp_ge_u32 s53, {NPOOL}'); A('s_cbranch_scc1 L_sch_done')
    A('s_lshl_b32 s55, s53, 15'); A('s_add_u32 s55, s55, s59'); A('v_mov_b32 v20, s55')
    A(f'ds_write_b32 v21, v20 offset:{L_Q}')
    A('v_add_u32 v21, 4, v21')
    A('s_add_u32 s52, s52, 1'); A('s_add_u32 s53, s53, 1')
    A('s_sub_u32 s54, s54, 1'); A('s_cmp_lg_u32 s54, 0'); A('s_cbranch_scc1 L_sch_put')
    A('s_branch L_sch_wait')
    g.label('L_sch_done')
    A('s_lshl_b32 s55, s52, 2'); A('v_mov_b32 v21, s55'); A('v_mov_b32 v20, -2')
    A(f'ds_write_b32 v21, v20 offset:{L_Q}')
    g.label('L_nosched')
    A('s_lshl_b32 s50, s4, 9'); A(f's_add_u32 s50, s50, {WS_ML}')
    A('v_and_b32 v11, 31, v0'); A('v_lshlrev_b32 v11, 4, v11'); A('v_add_u32 v11, s50, v11')
    A('s_lshl_b32 s50, s6, 14'); A(f's_add_u32 s50, s50, {L_SC}'); A('v_add_u32 v10, s50, v6')
    A(f's_mov_b32 s51, {hex(LOG2E)}')
    A(f's_mov_b32 s70, {SPIN_MAX*16}')
    g.label('L_kd_spin')
    A(f'ds_read_b32 v13, v12 offset:{L_KD}')
    A('s_waitcnt lgkmcnt(0)')
    A('v_readfirstlane_b32 s52, v13')
    A('s_sub_u32 s70, s70, 1'); A('s_cmp_eq_u32 s70, 0'); A('s_cbranch_scc1 L_kd_done')
    A('s_cmp_lg_u32 s52, 0'); A('s_cbranch_scc1 L_kd_done')
    A('s_sleep 8'); A('s_branch L_kd_spin')
    g.label('L_kd_done')
    g.stamp(6)
    NP = MAXROWS // 8
    for i in range(NP): A(f'ds_read_b128 v[{E+4*i}:{E+4*i+3}], v10 offset:{1024*i}')
    poll(g, lambda: A('global_load_dwordx4 v[28:31], v11, s[42:43] sc1'), chk_tags(g, [29, 31], TAG), sleep=mlsl)
    g.stamp(8)
    M = 22; IL = 23
    A('v_mov_b32 v22, v28')
    row_allreduce(g, [22], 'max')
    A('v_mov_b32 v23, v22'); g.nop(2); A('v_permlane16_swap_b32 v22, v23'); A('v_max_f32 v22, v22, v23')
    A('v_sub_f32 v20, v28, v22'); A('v_mul_f32 v20, s51, v20'); A('v_exp_f32 v20, v20'); g.nop(1)
    A('v_mul_f32 v20, v20, v30')
    row_allreduce(g, [20])
    A('v_mov_b32 v23, v20'); g.nop(2); A('v_permlane16_swap_b32 v20, v23'); A('v_add_f32 v20, v20, v23')
    A('v_mov_b32 v16, 1.0')
    divide(g, 23, 16, 20, 21, 24)
    A('s_waitcnt lgkmcnt(0)')
    for pc in range(NSB // 8):
        to_p(g, list(range(E + 4*pc, E + 4*pc + 4)), M, IL, 's51')
        A(f'ds_write_b128 v10, v[{E+4*pc}:{E+4*pc+3}] offset:{1024*pc}')
    A('s_waitcnt lgkmcnt(0)')
    g.stamp(9)
    if 'xb2' not in exp: A('s_barrier')
    A('v_lshrrev_b32 v11, 3, v0'); A('v_lshlrev_b32 v11, 2, v11')
    for pc in range(NSB // 8, NP): A(f'ds_read_b32 v{24 + pc - NSB//8}, v11 offset:{L_Q + 32*pc}')
    A('s_lshl_b32 s53, s4, 16'); A(f's_add_u32 s53, s53, {WS_SCG}')
    A('s_lshl_b32 s54, s6, 6'); A('s_add_u32 s54, s54, s53')
    A('v_and_b32 v12, 6, v0'); A('v_lshlrev_b32 v12, 3, v12'); A('v_add_u32 v12, s54, v12')
    A('s_mov_b32 s62, 0x55555555'); A('s_mov_b32 s63, 0x55555555')
    A('s_waitcnt lgkmcnt(0)')
    for pc in range(NSB // 8, NP):
        i0 = E + 4*pc; qv = 24 + pc - NSB//8
        A(f's_cmp_le_u32 s52, {8*pc}'); A('s_cbranch_scc1 L_exp_done')
        A(f'v_lshrrev_b32 v16, 16, v{i0}'); A(f'v_or_b32 v16, v16, v{i0+1}')
        A(f'v_lshrrev_b32 v17, 16, v{i0+2}'); A(f'v_or_b32 v17, v17, v{i0+3}')
        A(f'v_subrev_u32 v13, s59, v{qv}'); A('v_lshrrev_b32 v13, 7, v13'); A('v_add_u32 v13, v13, v12')
        A('v_mov_b32_dpp v18, v16 quad_perm:[1,1,3,3] row_mask:0xf bank_mask:0xf')
        A('v_mov_b32_dpp v19, v17 quad_perm:[1,1,3,3] row_mask:0xf bank_mask:0xf')
        A(f'v_cmp_gt_u32 vcc, -2, v{qv}')
        A('s_and_b64 exec, vcc, s[62:63]')
        if 'xexp' not in exp: A('global_store_dwordx4 v13, v[16:19], s[42:43] sc1')
        A('s_mov_b64 exec, -1')
        g.nop(1)
    g.label('L_exp_done')
    A('s_waitcnt vmcnt(0)')
    last_arriver(g, 2, 'L_noxf')
    A('s_lshl_b32 s50, s2, 4'); A(f's_add_u32 s50, s50, {WS_XF}'); A('v_mov_b32 v13, s50')
    for i in range(4): A(f'v_mov_b32 v{16+i}, v{TAG}')
    A('s_mov_b64 exec, 1')
    A('global_store_dwordx4 v13, v[16:19], s[42:43] sc1')
    A('s_mov_b64 exec, -1')
    g.label('L_noxf')
    A('s_cmp_lg_u32 s3, 6'); A('s_cbranch_scc1 L_noxfall')
    A(f's_cmp_ge_u32 s57, {NMLP}'); A('s_cbranch_scc1 L_noxfall')
    A(f'v_add_u32 v13, {WS_XF}, v6')
    A('s_sleep 127'); A('s_sleep 127')
    def lds_():
        for i in range(4): A(f'global_load_dword v{16+i}, v13, s[42:43] offset:{1024*i} sc1')
    poll(g, lds_, chk_tags(g, [16, 17, 18, 19], TAG), sleep=127)
    g.label('L_noxfall')
    A('s_cmp_lg_u32 s3, 4'); A('s_cbranch_scc1 L_noschedv')
    A('s_lshl_b32 s50, s4, 7'); A(f's_add_u32 s50, s50, {WS_XF}'); A('v_and_b32 v13, 7, v0'); A('v_lshlrev_b32 v13, 4, v13'); A('v_add_u32 v13, s50, v13')
    A('s_sleep 100')
    poll(g, lambda: A('global_load_dword v16, v13, s[42:43] sc1'), chk_tags(g, [16], TAG), sleep=64)
    A(f's_lshl_b32 s50, s4, 8'); A(f's_add_u32 s50, s50, {WS_CNT + 128}'); A('v_mov_b32 v16, s50')
    A(f's_mov_b32 s52, {NSB}'); A('s_mov_b32 s56, -1'); A('s_mov_b32 s62, 0'); A('s_mov_b32 s63, 0')
    A('v_mov_b32 v17, 0')
    A('v_add_u32 v24, s53, v6')
    A('v_bfe_u32 v25, v0, 2, 2'); A('v_lshlrev_b32 v25, 14, v25'); A('v_lshrrev_b32 v26, 4, v0'); A('v_lshl_add_u32 v25, v26, 7, v25')
    A('v_lshl_add_u32 v25, v2, 5, v25'); A(f'v_add_u32 v25, {L_SC}, v25')
    A(f's_mov_b32 s70, {SPIN_MAX*16}')
    def read_progv():
        A(f'ds_read_b128 v[32:35], v17 offset:{L_PROGV}')
        A('s_waitcnt lgkmcnt(0)')
        A('v_max3_u32 v32, v32, v33, v34'); A('v_max_u32 v32, v32, v35'); g.nop(1)
        A('v_readfirstlane_b32 s64, v32')
    g.label('L_sv_top')
    read_progv()
    A('s_sub_u32 s70, s70, 1'); A('s_cmp_eq_u32 s70, 0'); A('s_cbranch_scc1 L_sv_done')
    A(f's_add_u32 s64, s64, {leadv}')
    A('s_mov_b32 s65, 0')
    A('s_cmp_lg_u32 s62, 0'); A('s_cbranch_scc1 L_sv_noclaim')
    A('s_cmp_lt_u32 s64, s52'); A('s_cbranch_scc1 L_sv_noclaim')
    A(f's_cmp_ge_u32 s52, {MAXROWS - 2}'); A('s_cbranch_scc1 L_sv_full')
    A(f's_cmp_lt_u32 s63, {NPOOL - sing}'); A('s_cselect_b32 s65, 2, 1')
    A('v_mov_b32 v18, s65')
    A('s_mov_b64 exec, 1')
    A('global_atomic_add v19, v16, v18, s[42:43] sc0 sc1')
    A('s_mov_b64 exec, -1')
    A('s_branch L_sv_pend')
    g.label('L_sv_full')
    A('s_mov_b32 s62, 1')
    g.label('L_sv_noclaim')
    A(f's_cmp_lt_u32 s56, {NPOOL}'); A('s_cbranch_scc1 L_sv_pend')
    A('s_cmp_lg_u32 s62, 0'); A('s_cbranch_scc1 L_sv_done')
    A('s_sub_u32 s64, s52, s64'); A('s_cmp_gt_u32 s64, 4'); A('s_cbranch_scc1 L_sv_long')
    A('s_sleep 2'); A('s_branch L_sv_top')
    g.label('L_sv_long')
    A('s_sleep 32'); A('s_branch L_sv_top')
    g.label('L_sv_pend')
    A(f's_cmp_ge_u32 s56, {NPOOL}'); A('s_cbranch_scc1 L_sv_nofetch')
    A('s_lshl_b32 s66, s56, 8'); A('v_add_u32 v26, s66, v24')
    A('s_cmp_eq_u32 s54, 2'); A('s_cselect_b32 s66, -1, 0xffff'); A('s_mov_b32 s67, 0')
    A('s_mov_b64 exec, s[66:67]')
    if 'xfet' not in exp: A('global_load_dwordx4 v[28:31], v26, s[42:43] sc1')
    A('s_lshl_b32 s66, s55, 7'); A('v_add_u32 v26, s66, v25')
    if 'xfet' not in exp: A('s_waitcnt vmcnt(0)')
    unpack(g, list(range(32, 40)), 28)
    to_p(g, list(range(32, 40)), M, IL, 's51')
    A('ds_write_b128 v26, v[32:35]'); A('ds_write_b128 v26, v[36:39] offset:16')
    A('v_lshrrev_b32 v26, 4, v0'); A('v_add_u32 v27, s56, v26'); A('v_lshlrev_b32 v27, 15, v27'); A('v_add_u32 v27, s59, v27')
    A('v_add_u32 v26, s55, v26'); A('v_lshlrev_b32 v26, 2, v26')
    A('s_waitcnt lgkmcnt(0)')
    A(f'ds_write_b32 v26, v27 offset:{L_QV}')
    A('s_mov_b64 exec, -1')
    A('s_mov_b32 s56, -1')
    g.label('L_sv_nofetch')
    A('s_cmp_eq_u32 s65, 0'); A('s_cbranch_scc1 L_sv_top')
    A('s_waitcnt vmcnt(0)')
    A('v_readfirstlane_b32 s56, v19')
    A('s_mov_b32 s55, s52')
    A(f's_cmp_ge_u32 s56, {NPOOL}'); A('s_cbranch_scc1 L_sv_done')
    A(f's_sub_u32 s54, {NPOOL}, s56'); A('s_min_u32 s54, s54, s65')
    A('s_add_u32 s52, s52, s54'); A('s_add_u32 s63, s56, s54')
    A('s_branch L_sv_top')
    g.label('L_sv_done')
    A('s_lshl_b32 s55, s52, 2'); A('v_mov_b32 v26, s55'); A('v_mov_b32 v27, -2')
    A(f'ds_write_b32 v26, v27 offset:{L_QV}')
    g.label('L_noschedv')
    GA = list(range(192, 200)); SB = list(range(200, 208)); CB = list(range(208, 216)); XF = list(range(216, 224)); GBR = 224
    for k in range(3): A(f'ds_read_b128 v[{16+4*k}:{19+4*k}], v6 offset:{L_MV + 1024*k}')
    A('v_lshrrev_b32 v13, 3, v48'); A('v_lshlrev_b32 v13, 2, v13')
    A(f'ds_read_b32 v28, v13 offset:{L_MV + 3072}')
    unpack(g, XF, X8)
    A('s_waitcnt lgkmcnt(0)')
    unpack(g, GA, 16); unpack(g, SB, 20); unpack(g, CB, 24)
    for i in range(8): A(f'v_add_f32 v{CB[i]}, 1.0, v{CB[i]}')
    for i in range(8): rnd(g, CB[i], CB[i])
    A('v_and_b32 v13, 16, v0'); A('v_cmp_eq_u32 vcc, 0, v13')
    A('v_lshlrev_b32 v13, 16, v28'); A('v_and_b32 v14, 0xffff0000, v28')
    A(f'v_cndmask_b32 v{GBR}, v14, v13, vcc')
    A('s_lshl_b32 s50, s4, 12'); A('s_add_u32 s50, s50, s7'); A(f's_add_u32 s50, s50, {WS_OP}')
    A('v_lshrrev_b32 v10, 3, v0'); A('v_lshlrev_b32 v13, 4, v10'); A('v_lshlrev_b32 v10, 9, v10'); A('v_and_b32 v11, 7, v0'); A('v_lshl_add_u32 v10, v11, 4, v10')
    A('v_add_u32 v10, s50, v10')
    A('v_add_u32 v15, s7, v48')
    A('v_add_u32 v9, s7, v13')
    A('v_lshrrev_b32 v14, 4, v0'); A('v_lshlrev_b32 v14, 3, v14'); A('v_lshl_add_u32 v14, v11, 5, v14')
    A('s_lshl_b32 s52, s6, 8'); A('v_add_u32 v14, s52, v14')
    A('v_and_b32 v8, 15, v0'); A('v_lshlrev_b32 v8, 4, v8'); A('v_lshrrev_b32 v7, 4, v0'); A('v_lshl_add_u32 v8, v7, 16, v8')
    A('s_lshl_b32 s51, s2, 8'); A(f's_add_u32 s51, s51, {WS_AP}'); A('v_add_u32 v8, s51, v8'); A('v_add_u32 v7, 0x40000, v8')
    A('v_and_b32 v5, 15, v0'); A('v_lshlrev_b32 v5, 4, v5')
    ACC = list(range(24, 32))
    for i in range(8): A(f'v_mov_b32 v{ACC[i]}, 0')
    if 'nopt' not in exp:
        A(f's_cmp_ge_u32 s57, {NFIN}'); A('s_cbranch_scc1 L_nopt')
        A('s_cmp_lg_u32 s3, 4'); A('s_cbranch_scc1 L_nopt')
        A('v_mov_b32 v13, 0'); A('global_load_dword v12, v13, s[38:39]')
        g.label('L_nopt')
    A('s_barrier')
    if 'notail' in exp: A('s_branch L_end')
    g.stamp(10)
    poll(g, lambda: A('global_load_dwordx4 v[16:19], v10, s[42:43] sc1'), chk_sent(g, [16, 17, 18, 19], 20), sleep=opsl)
    g.stamp(11)
    reduce4_hi(g, [16, 17, 18, 19])
    rnd(g, 16, 16)
    A(f'ds_write_b32 v15, v16 offset:{L_OV}')
    A(f'ds_read_b128 v[16:19], v9 offset:{L_OV}')
    A('s_waitcnt lgkmcnt(0)')
    for j in range(4): A(f'v_lshrrev_b32 v{20+j}, 16, v{16+j}')
    for j in range(4): tile_mac(g, ACC, WO + 4*j, f'v{16+j}', f'v{20+j}')
    g.nop(1)
    swap_reduce8(g, ACC)
    row_allreduce(g, ACC[:2], rors=(8,))
    A(f'ds_write_b64 v14, v[{ACC[0]}:{ACC[1]}] offset:{L_AW}')
    last_arriver(g, 3, 'L_h_noap')
    for w in range(4): A(f'ds_read_b128 v[{16+4*w}:{19+4*w}], v5 offset:{L_AW + 256*w}')
    A('s_waitcnt lgkmcnt(0)')
    sum4x4(g, 16)
    A('global_store_dwordx4 v8, v[16:19], s[42:43] sc1')
    A('global_store_dwordx4 v7, v[16:19], s[42:43] sc1')
    g.stamp(12)
    g.label('L_h_noap')
    if 'xstage' in exp: A('s_branch L_end')
    A(f's_cmp_ge_u32 s57, {NMLP}'); A('s_cbranch_scc1 L_end')
    g.label('L_gather_ap')
    A('s_and_b32 s50, s3, 1'); A('s_lshl_b32 s50, s50, 10'); A('s_lshr_b32 s51, s3, 1'); A('s_lshl_b32 s52, s51, 14')
    A('s_add_u32 s52, s52, s50'); A(f's_add_u32 s52, s52, {WS_AP + 4096}')
    A('s_and_b32 s53, s57, 7'); A('s_lshl_b32 s53, s53, 16'); A('s_add_u32 s52, s52, s53')
    A('v_lshlrev_b32 v10, 4, v0'); A('v_add_u32 v11, s52, v10'); A('v_add_u32 v12, 8192, v11')
    A('s_lshl_b32 s51, s51, 11'); A('s_add_u32 s51, s51, s50'); A('v_add_u32 v13, s51, v10')
    multi_poll(g, 'L_ap', 8, lambda i: f'global_load_dwordx4 v[{16+4*i}:{19+4*i}], v{11 + i//4}, s[42:43] offset:{(i%4)*2048 - 4096} sc1', 16, 14,
               [(16*16, apsl), (8*16, apsl // 3), (apth*16, apsl // 8)])
    g.stamp(13)
    for st in (16, 8, 4):
        for i in range(0, st, 2): A(f'v_pk_add_f32 v[{16+i}:{17+i}], v[{16+i}:{17+i}], v[{16+i+st}:{17+i+st}]')
    A(f'ds_write_b128 v13, v[16:19] offset:{L_AS}')
    A('v_lshlrev_b32 v10, 5, v0')
    A('s_waitcnt lgkmcnt(0)')
    A('s_barrier')
    A('s_cmp_lt_u32 s3, 4'); A('s_cbranch_scc1 L_end')
    g.role = 'M'; g.stamp(1); g.role = 'H'
    for p in range(4):
        A(f'ds_read_b128 v[{16+8*p}:{19+8*p}], v10 offset:{L_AS + 2048*p}'); A(f'ds_read_b128 v[{20+8*p}:{23+8*p}], v10 offset:{L_AS + 2048*p + 16}')
    AG = list(range(232, 240)); AU = list(range(240, 248))
    for i in range(8): A(f'v_mov_b32 v{AG[i]}, 0'); A(f'v_mov_b32 v{AU[i]}, 0')
    A('s_waitcnt lgkmcnt(4)')
    for i in range(0, 8, 2): A(f'v_pk_add_f32 v[{16+i}:{17+i}], v[{16+i}:{17+i}], v[{24+i}:{25+i}]')
    A('s_waitcnt lgkmcnt(0)')
    for i in range(0, 8, 2): A(f'v_pk_add_f32 v[{32+i}:{33+i}], v[{32+i}:{33+i}], v[{40+i}:{41+i}]')
    for i in range(0, 8, 2): A(f'v_pk_add_f32 v[{16+i}:{17+i}], v[{16+i}:{17+i}], v[{32+i}:{33+i}]')
    X1 = list(range(16, 24))
    for i in range(8): rnd(g, X1[i], X1[i])
    for i in range(0, 8, 2): A(f'v_pk_mul_f32 v[{16+i}:{17+i}], v[{16+i}:{17+i}], v[{GA[i]}:{GA[i+1]}]')
    for i in range(8): rnd(g, X1[i], X1[i])
    for i in range(0, 8, 2): A(f'v_pk_add_f32 v[{16+i}:{17+i}], v[{16+i}:{17+i}], v[{XF[i]}:{XF[i+1]}]')
    for i in range(8): rnd(g, X1[i], X1[i])
    A(f'ds_write_b128 v10, v[16:19] offset:{L_XF}'); A(f'ds_write_b128 v10, v[20:23] offset:{L_XF + 16}')
    g.role = 'M'; g.stamp(2); g.role = 'H'
    ln_stats(g, X1, MEAN, SD, list(range(32, 40)))
    A(f'v_rcp_f32 v{RSD}, v{SD}'); g.nop(1)
    g.role = 'M'; g.stamp(3); g.role = 'H'
    modulate_n(g, [(24+i, X1[i], CB[i], SB[i], 32+i, 248+i) for i in range(8)], MEAN, SD, RSD)
    for j in range(8): A(f'v_lshrrev_b32 v{32+j}, 16, v{24+j}')
    g.role = 'M'; g.stamp(4); g.role = 'H'
    for j in range(8):
        tile_mac(g, AG, WG + 4*j, f'v{24+j}', f'v{32+j}')
        tile_mac(g, AU, WU + 4*j, f'v{24+j}', f'v{32+j}')
    AD = list(range(24, 32))
    A('v_lshlrev_b32 v10, 5, v0'); A('s_lshl_b32 s50, s6, 11'); A('v_add_u32 v10, s50, v10')
    g.role = 'M'; g.stamp(5); g.role = 'H'
    swap_reduce8(g, AG, AU)
    row_allreduce(g, AG[:2] + AU[:2])
    for r in AG[:2] + AU[:2]: rnd(g, r, r)
    A(f'v_mov_b32 v16, {hex(f2u(0.044715))}')
    for i in range(2): A(f'v_mul_f32 v{18+i}, v{AG[i]}, v{AG[i]}')
    for i in range(2): A(f'v_mul_f32 v{18+i}, v{18+i}, v{AG[i]}')
    for i in range(2): A(f'v_fma_f32 v{18+i}, v{18+i}, v16, v{AG[i]}')
    for i in range(2): A(f'v_mul_f32 v{18+i}, {hex(f2u(-2*0.7978845608028654*1.4426950408889634))}, v{18+i}')
    sigmoid_mul_n(g, [(20+i, AG[i], 18+i, 32+i, 34+i, 36+i) for i in range(2)])
    for i in range(2): rnd(g, 20+i, 20+i)
    for i in range(2): A(f'v_mul_f32 v{20+i}, v{20+i}, v{AU[i]}')
    for i in range(2): rnd(g, 20+i, 20+i)
    for i in range(8): A(f'v_mov_b32 v{AD[i]}, 0')
    g.role = 'M'; g.stamp(6); g.role = 'H'
    for j in range(8): A(f'v_readlane_b32 s{72+j}, v{20 + j%2}, {16*(j//2 % 2) + 32*(j//4)}')
    A('s_lshl_b32 s50, s6, 9'); A('v_add_u32 v11, s50, v6')
    for j in range(8): A(f's_lshr_b32 s{80+j}, s{72+j}, 16')
    for j in range(8): tile_mac(g, AD, WD + 4*j, f's{72+j}', f's{80+j}')
    A('s_lshl_b32 s51, s57, 11'); A(f's_add_u32 s51, s51, {WS_DP}'); A('v_add_u32 v12, s51, v11')
    g.role = 'M'; g.stamp(7); g.role = 'H'
    g.nop(1)
    A(f'ds_write_b128 v10, v[{AD[0]}:{AD[3]}] offset:{L_DW}'); A(f'ds_write_b128 v10, v[{AD[4]}:{AD[7]}] offset:{L_DW + 16}')
    A('s_waitcnt lgkmcnt(0)')
    A('s_barrier')
    g.role = 'M'; g.stamp(8); g.role = 'H'
    A('s_mov_b64 exec, 0xffffffff')
    for w in range(4): A(f'ds_read_b128 v[{16+4*w}:{19+4*w}], v11 offset:{L_DW + 2048*w}')
    A('s_waitcnt lgkmcnt(0)')
    sum4x4(g, 16)
    A('global_store_dwordx4 v12, v[16:19], s[42:43] sc1')
    A('s_mov_b64 exec, -1')
    g.stamp(14)
    A(f's_cmp_ge_u32 s57, {NFIN}'); A('s_cbranch_scc1 L_end')
    A('s_cmp_lg_u32 s3, 4'); A('s_cbranch_scc1 L_end')
    A('v_lshrrev_b32 v10, 3, v0'); A('v_lshlrev_b32 v10, 11, v10'); A('v_and_b32 v11, 7, v0'); A('v_lshl_add_u32 v10, v11, 4, v10')
    A('s_lshl_b32 s50, s57, 7'); A(f's_add_u32 s51, s50, {WS_DP}'); A('v_add_u32 v52, s51, v10')
    for i in range(1, 7): A(f'v_add_u32 v{52+i}, {16384*i}, v52')
    A('v_add_u32 v13, s50, v48')
    A(f'ds_read_b32 v15, v13 offset:{L_XF}')
    A('v_lshrrev_b32 v12, 1, v13')
    multi_poll(g, 'L_dp', 7, lambda i: f'global_load_dwordx4 v[{16+4*i}:{19+4*i}], v{52+i}, s[42:43] sc1', 16, 51, [])
    for i in (0, 2):
        A(f'v_pk_add_f32 v[{16+i}:{17+i}], v[{16+i}:{17+i}], v[{20+i}:{21+i}]'); A(f'v_pk_add_f32 v[{24+i}:{25+i}], v[{24+i}:{25+i}], v[{28+i}:{29+i}]')
        A(f'v_pk_add_f32 v[{32+i}:{33+i}], v[{32+i}:{33+i}], v[{36+i}:{37+i}]')
    for i in (0, 2):
        A(f'v_pk_add_f32 v[{16+i}:{17+i}], v[{16+i}:{17+i}], v[{24+i}:{25+i}]'); A(f'v_pk_add_f32 v[{32+i}:{33+i}], v[{32+i}:{33+i}], v[{40+i}:{41+i}]')
    for i in (0, 2): A(f'v_pk_add_f32 v[{16+i}:{17+i}], v[{16+i}:{17+i}], v[{32+i}:{33+i}]')
    g.nop(2)
    reduce4_hi(g, [16, 17, 18, 19])
    A('s_waitcnt lgkmcnt(0)')
    rnd(g, 16, 16); A(f'v_mul_f32 v16, v{GBR}, v16'); rnd(g, 16, 16); A('v_add_f32 v16, v15, v16')
    A('v_cvt_pk_bf16_f32 v16, v16, v16')
    A('s_mov_b32 exec_lo, 0x00ff00ff'); A('s_mov_b32 exec_hi, 0x00ff00ff')
    A('global_store_short v12, v16, s[38:39]')
    A('s_cmp_lg_u32 s57, 0'); A('s_cbranch_scc1 L_fin_noepoch')
    A('s_mov_b64 exec, 1'); A('v_mov_b32 v13, 0')
    A(f'global_store_dword v13, v{TAG}, s[42:43] sc1')
    g.label('L_fin_noepoch')
    A('s_mov_b64 exec, -1')
    g.stamp(15)
    g.label('L_end'); A('s_endpgm')
    for s in ['.section .rodata,"a"', '.p2align 6', f'.amdhsa_kernel {NAME}_kernel', '  .amdhsa_next_free_vgpr 256',
              '  .amdhsa_next_free_sgpr 102', '  .amdhsa_accum_offset 256', '  .amdhsa_group_segment_fixed_size 0',
              '  .amdhsa_kernarg_size 112', '  .amdhsa_user_sgpr_count 2', '  .amdhsa_user_sgpr_kernarg_segment_ptr 1',
              '  .amdhsa_system_sgpr_workgroup_id_x 1', '.end_amdhsa_kernel']: g.L.append(s)
    return '\n'.join(g.L) + '\n'

if __name__ == '__main__':
    import argparse
    ap = argparse.ArgumentParser()
    ap.add_argument('out'); ap.add_argument('--ts', action='store_true')
    ap.add_argument('--nsb', type=int, default=56); ap.add_argument('--exp', default='')
    ap.add_argument('--depth', type=int, default=8); ap.add_argument('--lead', type=int, default=3); ap.add_argument('--leadv', type=int, default=5)
    ap.add_argument('--header', default='')
    for k, d in (('opsl', 1), ('apth', 4), ('apsl', 8), ('psl', 2), ('sing', 24), ('mlsl', 8)): ap.add_argument('--' + k, type=int, default=d)
    a = ap.parse_args()
    hdr = ''
    if a.header:
        hdr = ''.join(l for l in open(a.header) if l.startswith(';') and '@launch' not in l)
    open(a.out, 'w').write(build(ts=a.ts, nsb=a.nsb, exp=a.exp, depth=a.depth, lead=a.lead, leadv=a.leadv, header=hdr, opsl=a.opsl, apth=a.apth, apsl=a.apsl, psl=a.psl, sing=a.sing, mlsl=a.mlsl))
```

```python
import sys, struct
NAME = 'adaLN_cond__mha_block_cached__glu_gated_geglu__decode'
def f2u(x): return struct.unpack('<I', struct.pack('<f', x))[0]

WS_MOD   = 0x1000
WS_ML    = 0x4000
WS_CNT   = 0x8000
WS_XF    = 0xA000
WS_OP    = 0x10000
WS_AP    = 0x30000
WS_DP    = 0x40000
WS_QX    = 0x60000
WS_TS    = 0xC0000
WS_SCG   = 0x200000
L_CNT  = 0x0000
L_KD   = 0x0040
L_PROG = 0x0060
L_PROGV = 0x0070
L_TAG  = 0x0100
L_MODP = 0x0200
L_HV   = 0x0400
L_QP   = 0x0C00
L_OB   = 0x1400
L_OV   = 0x1C00
L_AW   = 0x1E00
L_MV   = 0x2200
L_Q    = 0x2F00
L_QV   = 0x3100
L_SC   = 0x3400
L_AS   = L_SC + 0x0000
L_DW   = L_SC + 0x2000
L_XF   = L_SC + 0x4000
L_ST   = L_SC + 0x10000
LDS_BYTES = L_ST + 0x10000
MAXROWS = 96
Q_DONE = 0xfffffffe
NMLP = 56
NFIN = 16
SPIN_MAX = 1 << 17
LOG2E = f2u(1.4426950408889634)
NS = 48

class G:
    def __init__(self, ts=False, tsmask=None):
        self.L = []; self.ts = ts; self.lbl = 0; self.tsmask = tsmask; self.role = 'S'; self.ldf = ' sc1'; self.stf = ' sc1'; self.w0only = False
    def A(self, s):
        if s.endswith(' sc1') and 'atomic' not in s:
            if 'load' in s: s = s[:-4] + self.ldf
            else: s = s[:-4] + self.stf
        self.L.append('  ' + s)
        if '_store_dwordx4' in s or '_store_dwordx3' in s: self.L.append('  s_nop 1')
    def label(self, s): self.L.append(s + ':')
    def newlabel(self, p='L'):
        self.lbl += 1; return f'{p}_{self.lbl}'
    def nop(self, n): self.A(f's_nop {n-1}')
    def stamp(self, slot, sreg=None):
        if not self.ts: return
        if self.tsmask is not None and (self.role, slot) not in self.tsmask: return
        if self.tsmask is None and self.role == 'M': return
        A = self.A
        if self.w0only:
            A('s_cmp_lg_u32 s3, 0'); lb = self.newlabel('L_ns'); A(f's_cbranch_scc1 {lb}')
        if sreg is None:
            A('s_memrealtime s[96:97]'); A('s_waitcnt lgkmcnt(0)')
            A('v_mov_b32 v60, s96'); A('v_mov_b32 v61, s97')
        else:
            A(f'v_mov_b32 v60, {sreg}'); A('v_mov_b32 v61, 0')
        A('v_mov_b32 v62, s95')
        A('s_mov_b64 s[98:99], exec'); A('s_mov_b64 exec, 1')
        A(f'global_store_dwordx2 v62, v[60:61], s[42:43] offset:{slot*8}')
        A('s_mov_b64 exec, s[98:99]')
        if self.w0only: self.label(lb)

def rnd(g, d, s): g.A(f'v_cvt_pk_bf16_f32 v{d}, 0, v{s}')

def swap_reduce8(g, *sets):
    A = g.A
    g.nop(2)
    for r in sets:
        for i in range(4): A(f'v_permlane32_swap_b32 v{r[i]}, v{r[i+4]}')
    for r in sets:
        for i in range(4): A(f'v_add_f32 v{r[i]}, v{r[i]}, v{r[i+4]}')
    if len(sets) == 1: g.nop(1)
    for r in sets:
        for i in range(2): A(f'v_permlane16_swap_b32 v{r[i]}, v{r[i+2]}')
    for r in sets:
        for i in range(2): A(f'v_add_f32 v{r[i]}, v{r[i]}, v{r[i+2]}')

def row_allreduce(g, regs, op='add', rors=(8, 4, 2, 1)):
    for ro in rors:
        if len(regs) < 3: g.nop(3 - len(regs))
        for r in regs: g.A(f'v_{op}_f32_dpp v{r}, v{r}, v{r} row_ror:{ro} row_mask:0xf bank_mask:0xf')

def wave_allreduce(g, r, t, op='add'):
    A = g.A
    row_allreduce(g, [r], op)
    A(f'v_mov_b32 v{t}, v{r}'); g.nop(2)
    A(f'v_permlane16_swap_b32 v{r}, v{t}'); A(f'v_{op}_f32 v{r}, v{r}, v{t}')
    A(f'v_mov_b32 v{t}, v{r}'); g.nop(2)
    A(f'v_permlane32_swap_b32 v{r}, v{t}'); A(f'v_{op}_f32 v{r}, v{r}, v{t}')

def reduce4_hi(g, r):
    A = g.A
    A(f'v_permlane32_swap_b32 v{r[0]}, v{r[2]}'); A(f'v_permlane32_swap_b32 v{r[1]}, v{r[3]}')
    A(f'v_add_f32 v{r[0]}, v{r[0]}, v{r[2]}'); A(f'v_add_f32 v{r[1]}, v{r[1]}, v{r[3]}'); g.nop(2)
    A(f'v_permlane16_swap_b32 v{r[0]}, v{r[1]}'); A(f'v_add_f32 v{r[0]}, v{r[0]}, v{r[1]}'); g.nop(2)
    A(f'v_add_f32_dpp v{r[0]}, v{r[0]}, v{r[0]} row_ror:8 row_mask:0xf bank_mask:0xf')

def tile_mac(g, acc, data, pP, pL):
    for i in range(4):
        g.A(f'v_dot2c_f32_bf16 v{acc[2*i]}, {pL}, v{data+i}')
        g.A(f'v_dot2c_f32_bf16 v{acc[2*i+1]}, {pP}, v{data+i}')

def divide(g, q, a, b, t0, t1):
    A = g.A
    A(f'v_rcp_f32 v{t0}, v{b}'); g.nop(1)
    A(f'v_mul_f32 v{q}, v{a}, v{t0}')
    A(f'v_fma_f32 v{t1}, -v{q}, v{b}, v{a}')
    A(f'v_fma_f32 v{q}, v{t1}, v{t0}, v{q}')

def sigmoid_mul_n(g, items):
    A = g.A
    for d, x, arg, t0, t1, t2 in items: A(f'v_min_f32 v{t2}, 0x42fc0000, v{arg}')
    for d, x, arg, t0, t1, t2 in items: A(f'v_exp_f32 v{t2}, v{t2}')
    if len(items) == 1: g.nop(1)
    for d, x, arg, t0, t1, t2 in items: A(f'v_add_f32 v{t2}, 1.0, v{t2}')
    for d, x, arg, t0, t1, t2 in items: A(f'v_rcp_f32 v{t0}, v{t2}')
    if len(items) == 1: g.nop(1)
    for d, x, arg, t0, t1, t2 in items: A(f'v_mul_f32 v{d}, v{x}, v{t0}')
    for d, x, arg, t0, t1, t2 in items: A(f'v_fma_f32 v{t1}, -v{d}, v{t2}, v{x}')
    for d, x, arg, t0, t1, t2 in items: A(f'v_fma_f32 v{d}, v{t1}, v{t0}, v{d}')

def ln_stats(g, xs, mean_bf, sd, t):
    A = g.A
    A(f'v_pk_add_f32 v[{t[0]}:{t[1]}], v[{xs[0]}:{xs[1]}], v[{xs[2]}:{xs[3]}]')
    A(f'v_pk_add_f32 v[{t[2]}:{t[3]}], v[{xs[4]}:{xs[5]}], v[{xs[6]}:{xs[7]}]')
    A(f'v_pk_add_f32 v[{t[0]}:{t[1]}], v[{t[0]}:{t[1]}], v[{t[2]}:{t[3]}]')
    A(f'v_add_f32 v{t[0]}, v{t[0]}, v{t[1]}')
    wave_allreduce(g, t[0], t[1])
    A(f'v_mul_f32 v{t[0]}, 0x3b000000, v{t[0]}')
    rnd(g, mean_bf, t[0])
    for i in range(4): A(f'v_sub_f32 v{t[2+i]}, v{xs[i]}, v{t[0]}')
    A(f'v_mul_f32 v{t[6]}, v{t[2]}, v{t[2]}'); A(f'v_mul_f32 v{t[7]}, v{t[3]}, v{t[3]}')
    A(f'v_fmac_f32 v{t[6]}, v{t[4]}, v{t[4]}'); A(f'v_fmac_f32 v{t[7]}, v{t[5]}, v{t[5]}')
    for i in range(4): A(f'v_sub_f32 v{t[2+i]}, v{xs[4+i]}, v{t[0]}')
    A(f'v_fmac_f32 v{t[6]}, v{t[2]}, v{t[2]}'); A(f'v_fmac_f32 v{t[7]}, v{t[3]}, v{t[3]}')
    A(f'v_fmac_f32 v{t[6]}, v{t[4]}, v{t[4]}'); A(f'v_fmac_f32 v{t[7]}, v{t[5]}, v{t[5]}')
    A(f'v_add_f32 v{t[2]}, v{t[6]}, v{t[7]}')
    wave_allreduce(g, t[2], t[1])
    A(f'v_mul_f32 v{t[2]}, 0x3b000000, v{t[2]}')
    rnd(g, t[2], t[2])
    A(f'v_add_f32 v{t[2]}, {hex(f2u(1e-5))}, v{t[2]}')
    rnd(g, t[2], t[2])
    A(f'v_sqrt_f32 v{t[0]}, v{t[2]}'); g.nop(1)
    A(f'v_rcp_f32 v{t[1]}, v{t[0]}')
    A(f'v_fma_f32 v{t[3]}, -v{t[0]}, v{t[0]}, v{t[2]}')
    A(f'v_mul_f32 v{t[1]}, 0.5, v{t[1]}')
    A(f'v_fma_f32 v{t[0]}, v{t[3]}, v{t[1]}, v{t[0]}')
    rnd(g, sd, t[0])

def modulate_n(g, items, mean_bf, sd, rcp_sd):
    A = g.A
    for d, x, c, s, t0, t1 in items: A(f'v_sub_f32 v{t0}, v{x}, v{mean_bf}')
    for d, x, c, s, t0, t1 in items: rnd(g, t0, t0)
    for d, x, c, s, t0, t1 in items: A(f'v_mul_f32 v{d}, v{t0}, v{rcp_sd}')
    for d, x, c, s, t0, t1 in items: A(f'v_fma_f32 v{t1}, -v{d}, v{sd}, v{t0}')
    for d, x, c, s, t0, t1 in items: A(f'v_fma_f32 v{d}, v{t1}, v{rcp_sd}, v{d}')
    for d, x, c, s, t0, t1 in items: rnd(g, d, d)
    for d, x, c, s, t0, t1 in items: A(f'v_mul_f32 v{d}, v{d}, v{c}')
    for d, x, c, s, t0, t1 in items: rnd(g, d, d)
    for d, x, c, s, t0, t1 in items: A(f'v_add_f32 v{d}, v{d}, v{s}')
    for d, x, c, s, t0, t1 in items: rnd(g, d, d)

def unpack(g, dst, src, n=4):
    for i in range(n):
        g.A(f'v_lshlrev_b32 v{dst[2*i]}, 16, v{src+i}')
        g.A(f'v_and_b32 v{dst[2*i+1]}, 0xffff0000, v{src+i}')

def to_p(g, regs, M, IL, slog):
    A = g.A
    for r in regs: A(f'v_sub_f32 v{r}, v{r}, v{M}')
    for r in regs: A(f'v_mul_f32 v{r}, {slog}, v{r}')
    for r in regs: A(f'v_exp_f32 v{r}, v{r}')
    for r in regs: A(f'v_mul_f32 v{r}, v{r}, v{IL}')
    for r in regs: rnd(g, r, r)

def srd(g, d, base, nbytes):
    g.A(f's_mov_b32 s{d}, s{base}'); g.A(f's_mov_b32 s{d+1}, s{base+1}')
    g.A(f's_mov_b32 s{d+2}, {hex(nbytes)}'); g.A(f's_mov_b32 s{d+3}, 0x20000')

def poll(g, loads, check, sleep=1):
    A = g.A
    l = g.newlabel('L_poll'); done = g.newlabel('L_poll_done')
    A('s_mov_b64 s[68:69], exec'); A(f's_mov_b32 s70, {SPIN_MAX}')
    g.label(l)
    loads()
    A('s_waitcnt vmcnt(0)')
    check()
    A(f's_cbranch_vccz {done}')
    A('s_mov_b64 exec, vcc')
    A('s_sub_u32 s70, s70, 1'); A('s_cmp_eq_u32 s70, 0'); A(f's_cbranch_scc1 {done}')
    if sleep: A(f's_sleep {sleep}')
    A(f's_branch {l}')
    g.label(done)
    A('s_mov_b64 exec, s[68:69]')

def multi_poll(g, pref, n, load, base, t, ladder):
    A = g.A
    for i in range(n): A(f's_mov_b64 s[{72+2*i}:{73+2*i}], -1')
    A(f's_mov_b32 s70, {SPIN_MAX}')
    g.label(f'{pref}_poll')
    for i in range(n):
        lb = g.newlabel(f'{pref}_skip')
        A(f's_mov_b64 exec, s[{72+2*i}:{73+2*i}]'); A(f's_cbranch_execz {lb}')
        A(load(i))
        g.label(lb)
    A('s_mov_b32 s71, 0')
    A('s_waitcnt vmcnt(0)')
    for i in range(n):
        lb = g.newlabel(f'{pref}_skip')
        r = base + 4*i
        A(f's_mov_b64 exec, s[{72+2*i}:{73+2*i}]'); A(f's_cbranch_execz {lb}')
        A(f'v_max3_u32 v{t}, v{r}, v{r+1}, v{r+2}'); A(f'v_max_u32 v{t}, v{t}, v{r+3}')
        A(f'v_cmp_eq_u32 vcc, -1, v{t}')
        A(f's_mov_b64 s[{72+2*i}:{73+2*i}], vcc'); A('s_bcnt1_i32_b64 s50, vcc'); A('s_add_u32 s71, s71, s50')
        g.label(lb)
    A('s_cmp_eq_u32 s71, 0'); A(f's_cbranch_scc1 {pref}_done')
    A('s_sub_u32 s70, s70, 1'); A('s_cmp_eq_u32 s70, 0'); A(f's_cbranch_scc1 {pref}_done')
    for th, sl in reversed(ladder):
        A(f's_cmp_le_u32 s71, {th}'); A(f's_cbranch_scc1 {pref}_poll')
        if sl: A(f's_sleep {sl}')
    A(f's_branch {pref}_poll')
    g.label(f'{pref}_done')
    A('s_mov_b64 exec, -1')

def chk_tags(g, regs, tag):
    def f():
        g.A(f'v_cmp_ne_u32 vcc, v{regs[0]}, v{tag}')
        for r in regs[1:]:
            g.A(f'v_cmp_ne_u32 s[60:61], v{r}, v{tag}'); g.A('s_or_b64 vcc, vcc, s[60:61]')
    return f
def chk_sent(g, regs, t):
    def f():
        g.A(f'v_max3_u32 v{t}, v{regs[0]}, v{regs[1]}, v{regs[2]}')
        rest = regs[3:]
        while len(rest) >= 2:
            g.A(f'v_max3_u32 v{t}, v{t}, v{rest[0]}, v{rest[1]}'); rest = rest[2:]
        if rest: g.A(f'v_max_u32 v{t}, v{t}, v{rest[0]}')
        g.A(f'v_cmp_eq_u32 vcc, -1, v{t}')
    return f

def last_arriver(g, idx, skip):
    A = g.A
    A('v_mov_b32 v11, 1'); A('v_mov_b32 v12, 0')
    A('s_mov_b64 exec, 1')
    A(f'ds_add_rtn_u32 v13, v12, v11 offset:{L_CNT + 4*idx}')
    A('s_mov_b64 exec, -1')
    A('s_waitcnt lgkmcnt(0)')
    A('v_readfirstlane_b32 s50, v13')
    g.nop(1)
    A('s_cmp_lg_u32 s50, 3'); A(f's_cbranch_scc1 {skip}')

def sum4x4(g, r, sanitize=True):
    A = g.A
    for i in (0, 2):
        A(f'v_pk_add_f32 v[{r+i}:{r+i+1}], v[{r+i}:{r+i+1}], v[{r+4+i}:{r+5+i}]')
        A(f'v_pk_add_f32 v[{r+8+i}:{r+9+i}], v[{r+8+i}:{r+9+i}], v[{r+12+i}:{r+13+i}]')
    for i in (0, 2): A(f'v_pk_add_f32 v[{r+i}:{r+i+1}], v[{r+i}:{r+i+1}], v[{r+8+i}:{r+9+i}]')
    if sanitize:
        for i in range(4): A(f'v_min_u32 v{r+i}, -2, v{r+i}')

def build(ts=False, nsb=56, exp='', depth=8, lead=3, leadv=5, header='', opsl=1, apth=4, apsl=8, psl=2, sing=24, mlsl=8):
    tsmask = None
    if 'tailts' in exp: tsmask = {('S', 0), ('S', 6), ('S', 7)} | {('H', i) for i in (10, 11, 12, 13, 14, 15)}
    if 'prog' in exp: tsmask = {('S', 0), ('S', 3), ('S', 5), ('S', 6)}
    if 'mlpts' in exp: tsmask = {('S', 0), ('S', 6)} | {('H', i) for i in (13, 14, 15)} | {('M', i) for i in range(1, 10)}
    g = G(ts, tsmask); A = g.A
    g.w0only = 'prog' in exp
    if 'ld01' in exp: g.ldf = ' sc0 sc1'
    if 'st01' in exp: g.stf = ' sc0 sc1'
    if 'ldnt' in exp: g.ldf = ' sc1 nt'
    if 'stnt' in exp: g.stf = ' sc1 nt'
    NSB = nsb; NPOOL = (64 - NSB)*8; D = depth
    g.L.append(header + f'; @launch grid=(256,1,1) block=(512,1,1) lds={LDS_BYTES}')
    g.L.append('.amdgcn_target "amdgcn-amd-amdhsa--gfx950"')
    g.L.append('.text'); g.L.append(f'.globl {NAME}_kernel'); g.L.append('.p2align 8')
    g.L.append(f'.type {NAME}_kernel,@function'); g.label(f'{NAME}_kernel')
    A('s_cmp_ge_u32 s2, 256'); A('s_cbranch_scc1 L_end')
    A('s_load_dwordx16 s[16:31], s[0:1], 0')
    A('s_load_dwordx8 s[32:39], s[0:1], 64')
    A('s_load_dwordx4 s[40:43], s[0:1], 96')
    A('v_lshrrev_b32 v1, 6, v0'); A('v_and_b32 v0, 63, v0')
    A('v_readfirstlane_b32 s3, v1')
    A('s_lshr_b32 s4, s2, 3'); A('s_and_b32 s5, s2, 7')
    A('s_lshr_b32 s50, s4, 1'); A('s_mul_i32 s51, s50, 3'); A('s_sub_u32 s52, s5, s51'); A('s_and_b32 s52, s52, 7')
    A('s_and_b32 s53, s4, 1')
    A('s_add_u32 s58, s51, s52'); A('s_lshl_b32 s58, s58, 1'); A('s_add_u32 s58, s58, s53'); A('s_cmp_lt_u32 s52, 3'); A('s_cselect_b32 s58, s58, 255')
    A('s_add_u32 s57, s4, 32'); A('s_cmp_eq_u32 s52, 4'); A('s_cselect_b32 s57, s57, 255'); A('s_cmp_eq_u32 s52, 3'); A('s_cselect_b32 s57, s4, s57')
    A('s_and_b32 s6, s3, 3')
    if ts:
        A('s_lshl_b32 s95, s2, 3'); A('s_add_u32 s95, s95, s3'); A('s_lshl_b32 s95, s95, 7'); A(f's_add_u32 s95, s95, {WS_TS}')
    A('s_cmp_ge_u32 s3, 4'); A('s_cbranch_scc1 L_helper')

    VOFF = 1; VL = 2; VL2 = 3; Q = 4
    AA = list(range(8, 16)); BB = list(range(16, 24)); T = list(range(24, 32)); PA = list(range(32, 40)); PB = list(range(40, 48))
    PL = 48; OM = 54; OL = 55; VQA = 56; VQ = 57; VPA = 58; VN = 59
    NB = NS // 8 - 1; NX = 8*NB
    def slot(i): return 64 + 4*i
    def pslot(t): return 8 + t if t < NX else t - NX
    A('s_lshl_b32 s51, s4, 24')
    A(f's_mul_i32 s44, s5, {NSB*32768}'); A('s_add_u32 s44, s44, s51')
    A('s_lshl_b32 s53, s6, 10'); A('s_add_u32 s44, s44, s53'); A('s_mov_b32 s45, s44')
    A(f'v_lshlrev_b32 v{VOFF}, 4, v0')
    A('s_waitcnt lgkmcnt(0)')
    srd(g, 8, 18, 1 << 29); srd(g, 12, 20, 1 << 29)
    g.stamp(0)
    def ld(sl, sr):
        A(f'buffer_load_dwordx4 v[{slot(sl)}:{slot(sl)+3}], v{VOFF}, s[{sr}:{sr+3}], s44 offen nt')
        A('s_add_u32 s44, s44, 4096')
    def prefetch(sr, first, D):
        for t in range(first, NS):
            A(f's_waitcnt vmcnt({D-1})'); ld(pslot(t), sr)
    for t in range(D): ld(pslot(t), 8)
    A('s_barrier')
    A(f'v_lshrrev_b32 v{VL2}, 4, v0'); A(f'v_lshlrev_b32 v{VL2}, 5, v{VL2}')
    A('s_lshl_b32 s46, s6, 14'); A(f's_add_u32 s46, s46, {L_SC}'); A(f'v_add_u32 v{VL2}, s46, v{VL2}')
    A(f'v_bfe_u32 v{VL}, v0, 1, 3'); A(f'v_lshl_add_u32 v{VL}, v{VL}, 2, v{VL2}')
    A('s_mov_b32 s48, 0xcccccccc'); A('s_mov_b32 s49, 0xcccccccc')
    A(f's_mov_b32 s47, {hex(f2u(128 ** -0.5))}'); A(f's_mov_b32 s52, {hex(LOG2E)}')
    A(f'v_mov_b32 v{OM}, 0xff7fffff'); A(f'v_mov_b32 v{OL}, 0')
    A(f'v_mov_b32 v{VPA}, s6'); A(f'v_lshlrev_b32 v{VPA}, 2, v{VPA}')
    A(f'v_and_b32 v50, 15, v0'); A(f'v_lshlrev_b32 v50, 5, v50')
    A(f'v_mov_b32 v{VQA}, {L_Q + 4*(NB+2)}'); A(f'v_mov_b32 v{VN}, {NB+2}')
    A(f's_mov_b32 s70, {SPIN_MAX*64}')
    prefetch(8, D, D)
    g.stamp(1)
    if 'xb1' not in exp: A('s_barrier')
    g.stamp(2)
    A(f'ds_read_b128 v[8:11], v50 offset:{L_HV}'); A(f'ds_read_b128 v[12:15], v50 offset:{L_HV + 16}')
    A('s_waitcnt lgkmcnt(0)')
    for i in range(4): A(f'v_cvt_pk_bf16_f32 v{Q+i}, v{8+2*i}, v{9+2*i}')
    def kdot(a, sl):
        A(f'v_mov_b32 v{a}, 0')
        for i in range(4): A(f'v_dot2c_f32_bf16 v{a}, v{slot(sl)+i}, v{Q+i}')
    def kreduce(a, off=None):
        g.nop(3)
        for j in range(4):
            A(f'v_add_f32_dpp v{T[j]}, v{a[j]}, v{a[j]} row_ror:8 row_mask:0xf bank_mask:0x3')
            A(f'v_add_f32_dpp v{T[j]}, v{a[j+4]}, v{a[j+4]} row_ror:8 row_mask:0xf bank_mask:0xc')
        for j in range(2):
            A(f'v_add_f32_dpp v{T[4+j]}, v{T[j]}, v{T[j]} row_half_mirror row_mask:0xf bank_mask:0x5')
            A(f'v_add_f32_dpp v{T[4+j]}, v{T[j+2]}, v{T[j+2]} row_half_mirror row_mask:0xf bank_mask:0xa')
        g.nop(1)
        A(f'v_add_f32_dpp v{T[6]}, v{T[4]}, v{T[4]} quad_perm:[2,3,0,1] row_mask:0xf bank_mask:0xf')
        A(f'v_add_f32_dpp v{T[7]}, v{T[5]}, v{T[5]} quad_perm:[2,3,0,1] row_mask:0xf bank_mask:0xf')
        A(f'v_cndmask_b32 v{T[6]}, v{T[6]}, v{T[7]}, s[48:49]')
        g.nop(2)
        A(f'v_add_f32_dpp v{T[6]}, v{T[6]}, v{T[6]} quad_perm:[1,0,3,2] row_mask:0xf bank_mask:0xf')
        rnd(g, T[6], T[6]); A(f'v_mul_f32 v{T[6]}, s47, v{T[6]}'); rnd(g, T[6], T[6])
        A(f'ds_write_b32 v{VL}, v{T[6]}' + ('' if off is None else f' offset:{off}'))
        A(f'v_max_f32 v{T[0]}, v{OM}, v{T[6]}')
        A(f'v_sub_f32 v{T[1]}, v{OM}, v{T[0]}'); A(f'v_sub_f32 v{T[2]}, v{T[6]}, v{T[0]}')
        A(f'v_mul_f32 v{T[1]}, s52, v{T[1]}'); A(f'v_mul_f32 v{T[2]}, s52, v{T[2]}')
        A(f'v_exp_f32 v{T[1]}, v{T[1]}'); A(f'v_exp_f32 v{T[2]}, v{T[2]}')
        A(f'v_mov_b32 v{OM}, v{T[0]}')
        if off is None: A(f'v_add_u32 v{VL}, 128, v{VL}')
        else: g.nop(1)
        A(f'v_fma_f32 v{OL}, v{OL}, v{T[1]}, v{T[2]}')
    def qread(): A(f'ds_read_b32 v{VQ}, v{VQA}')
    def qtop(pref, prog):
        g.label(f'{pref}_top')
        A('s_waitcnt lgkmcnt(0)')
        A(f'v_readfirstlane_b32 s50, v{VQ}')
        g.nop(1)
        A(f's_cmp_ge_u32 s50, {hex(Q_DONE)}'); A(f's_cbranch_scc1 {pref}_slow')
        A('s_add_u32 s44, s50, s53')
        if ts and ('kprog' in exp and prog == L_PROG or 'vprog' in exp and prog == L_PROGV):
            A(f'v_readfirstlane_b32 s71, v{VN}'); g.nop(2)
            lb = g.newlabel('L_st')
            A('s_and_b32 s72, s71, 7'); A('s_cmp_lg_u32 s72, 0'); A(f's_cbranch_scc1 {lb}')
            A('s_cmp_lg_u32 s3, 0'); A(f's_cbranch_scc1 {lb}')
            A('s_memrealtime s[96:97]'); A('s_waitcnt lgkmcnt(0)')
            A('v_mov_b32 v60, s96'); A('v_mov_b32 v61, s97'); A('s_add_u32 s72, s95, s71'); A('s_add_u32 s72, s72, 128'); A('v_mov_b32 v62, s72')
            A('s_mov_b64 exec, 1'); A('global_store_dwordx2 v62, v[60:61], s[42:43]'); A('s_mov_b64 exec, -1')
            g.label(lb)
        A(f'v_add_u32 v{VQA}, 4, v{VQA}')
        A(f'ds_write_b32 v{VPA}, v{VN} offset:{prog}'); A(f'v_add_u32 v{VN}, 1, v{VN}')
    def qslow(pref):
        g.label(f'{pref}_slow')
        A(f's_cmp_eq_u32 s50, {hex(Q_DONE)}'); A(f's_cbranch_scc1 {pref}_last')
        A('s_sub_u32 s70, s70, 1'); A('s_cmp_eq_u32 s70, 0'); A(f's_cbranch_scc1 {pref}_last')
        A('s_sleep 1'); qread(); A(f's_branch {pref}_top')
        g.label(f'{pref}_last')
    for j in range(8):
        A('s_waitcnt vmcnt(7)')
        kdot(AA[j], j); ld(j, 8)
        for e in range(NB*j, NB*(j+1)):
            kdot(BB[e % 8], 8 + e)
            if e % 8 == 7: kreduce(BB, off=(e // 8)*128)
    qread(); A(f'v_add_u32 v{VL}, {NB*128}, v{VL}'); kreduce(AA)
    g.stamp(8)
    qtop('L_k', L_PROG)
    for j in range(8):
        A('s_waitcnt vmcnt(7)')
        kdot(AA[j], j); ld(j, 8)
        if j == 6: qread()
    kreduce(AA)
    A('s_branch L_k_top')
    qslow('L_k')
    A('s_mov_b32 s44, s45')
    for j in range(8):
        A('s_waitcnt vmcnt(7)')
        kdot(AA[j], j); ld(pslot(j), 12)
    kreduce(AA)
    A(f'v_mov_b32 v{T[0]}, v{OM}')
    wave_allreduce(g, T[0], T[1], 'max')
    A(f'v_sub_f32 v{T[2]}, v{OM}, v{T[0]}'); A(f'v_mul_f32 v{T[2]}, s52, v{T[2]}'); A(f'v_exp_f32 v{T[2]}, v{T[2]}')
    A(f'ds_read_b32 v{T[3]}, v{VPA} offset:{L_TAG}')
    A('s_lshl_b32 s50, s2, 6'); A('s_lshl_b32 s56, s6, 4'); A('s_add_u32 s50, s50, s56')
    A(f'v_mul_f32 v{T[2]}, v{T[2]}, v{OL}')
    wave_allreduce(g, T[2], T[1])
    A(f'v_mul_f32 v{T[2]}, 0.5, v{T[2]}')
    A(f's_add_u32 s50, s50, {WS_ML}'); A(f'v_mov_b32 v{T[4]}, s50')
    A('s_waitcnt lgkmcnt(0)')
    A(f'v_mov_b32 v{T[1]}, v{T[3]}')
    A(f'ds_write_b32 v{VPA}, v{VN} offset:{L_KD}')
    A('s_mov_b64 exec, 1')
    A(f'global_store_dwordx4 v{T[4]}, v[{T[0]}:{T[3]}], s[42:43] sc1')
    A('s_mov_b64 exec, -1')
    g.stamp(3)
    prefetch(12, 8, 8)
    ACC = AA
    for i in range(8): A(f'v_mov_b32 v{ACC[i]}, 0')
    A(f'v_mov_b32 v{VQA}, {L_QV + 4*(NB+2)}'); A(f'v_mov_b32 v{VN}, {NB+2}')
    g.stamp(4)
    if 'xb2' not in exp: A('s_barrier')
    g.stamp(5)
    def pread(P, off):
        A(f'ds_read_b128 v[{P[0]}:{P[3]}], v{VL2} offset:{off}'); A(f'ds_read_b128 v[{P[4]}:{P[7]}], v{VL2} offset:{off+16}')
    def vmac(sl, p):
        A(f'v_lshrrev_b32 v{PL}, 16, v{p}')
        tile_mac(g, ACC, slot(sl), f'v{p}', f'v{PL}')
    pread(PA, NB*128); pread(PB, 0)
    PC = BB
    for j in range(8):
        A('s_waitcnt vmcnt(7) lgkmcnt(0)' if j == 0 else 's_waitcnt vmcnt(7)')
        vmac(j, PA[j]); ld(j, 12)
        for e in range(NB*j, NB*(j+1)):
            cur, nxt = (PB, PC) if (e // 8) % 2 == 0 else (PC, PB)
            if e % 8 == 0:
                A('s_waitcnt lgkmcnt(0)')
                if e // 8 + 1 < NB: pread(nxt, (e // 8 + 1)*128)
            vmac(8 + e, cur[e % 8])
    A(f'v_add_u32 v{VL2}, {(NB+1)*128}, v{VL2}')
    qread(); pread(PA, 0)
    g.stamp(10)
    qtop('L_v', L_PROGV)
    for j in range(8):
        A('s_waitcnt vmcnt(7)')
        vmac(j, PA[j]); ld(j, 12)
        if j == 6: qread()
    A(f'v_add_u32 v{VL2}, 128, v{VL2}')
    pread(PA, 0)
    A('s_branch L_v_top')
    qslow('L_v')
    A('v_lshrrev_b32 v51, 4, v0'); A('v_lshl_add_u32 v50, v51, 3, v50')
    A('s_lshl_b32 s46, s6, 9'); A('v_add_u32 v50, s46, v50')
    A('s_lshl_b32 s46, s2, 9'); A(f's_add_u32 s46, s46, {WS_OP}'); A(f'v_add_u32 v51, s46, v{VOFF}')
    for j in range(8):
        A(f's_waitcnt vmcnt({7-j})')
        vmac(j, PA[j])
    g.stamp(6)
    g.nop(1)
    swap_reduce8(g, ACC)
    A(f'ds_write_b64 v50, v[{ACC[0]}:{ACC[1]}] offset:{L_OB}')
    A('s_waitcnt lgkmcnt(0)')
    A('s_barrier')
    if 'notail' in exp: A('s_branch L_end')
    A('s_cmp_lg_u32 s3, 0'); A('s_cbranch_scc1 L_s_after_pub')
    A('s_mov_b64 exec, 0xffffffff')
    for w in range(4): A(f'ds_read_b128 v[{8+4*w}:{11+4*w}], v{VOFF} offset:{L_OB + 512*w}')
    A('s_waitcnt lgkmcnt(0)')
    sum4x4(g, 8)
    A('global_store_dwordx4 v51, v[8:11], s[42:43] sc1')
    A('s_mov_b64 exec, -1')
    g.stamp(7)
    g.label('L_s_after_pub')
    if 'xstage' in exp: A('s_branch L_end')
    A(f's_cmp_ge_u32 s57, {NMLP}'); A('s_cbranch_scc1 L_end')
    A('s_branch L_gather_ap')

    g.label('L_helper'); g.role = 'H'
    WQ = 64; WM = 192; CC = 52; X8 = 56; X4 = 46; TAG = 49; MEAN = 40; SD = 41; RSD = 42
    A('v_lshrrev_b32 v1, 2, v0'); A('v_and_b32 v2, 3, v0')
    A('s_lshl_b32 s7, s6, 7')
    A('v_add_u32 v3, s7, v1')
    A('v_lshlrev_b32 v4, 2, v0'); A('s_lshl_b32 s50, s6, 8'); A('v_add_u32 v4, s50, v4')
    A('s_movk_i32 s50, 6144'); A('v_mul_lo_u32 v5, v3, s50'); A('v_lshl_add_u32 v5, v2, 4, v5')
    A('v_lshlrev_b32 v6, 4, v0')
    A('s_lshl_b32 s50, s5, 6'); A('s_lshl_b32 s51, s6, 4'); A('s_add_u32 s50, s50, s51')
    A('v_lshrrev_b32 v7, 4, v0'); A('v_lshl_add_u32 v7, v7, 2, s50')
    A('v_lshlrev_b32 v10, 1, v7')
    A('v_lshlrev_b32 v9, 13, v7'); A('v_and_b32 v11, 15, v0'); A('v_lshl_add_u32 v9, v11, 4, v9')
    A('v_mov_b32 v8, 0')
    A('s_waitcnt lgkmcnt(0)')
    g.stamp(0)
    A(f'global_load_dword v{TAG}, v8, s[42:43]')
    A('s_cmp_ge_u32 s58, 96'); A('s_cbranch_scc1 L_h_noprod1')
    srd(g, 8, 36, 512*3072*2)
    A(f'global_load_dword v{CC}, v4, s[34:35]')
    A('s_lshl_b32 s50, s58, 6')
    for j in range(0 if 'xwm' in exp else 8):
        A(f'buffer_load_dwordx4 v[{WM+4*j}:{WM+4*j+3}], v5, s[8:11], s50 offen' + (' nt' if 'wdef' not in exp else ''))
        if j < 7: A(f's_add_u32 s50, s50, {6144*16}')
    g.label('L_h_noprod1')
    A('s_lshl_b32 s50, s5, 3'); A('s_add_u32 s50, s50, s3'); A('s_cmp_lg_u32 s50, 4'); A('s_cbranch_scc1 L_h_nocinit')
    A('v_and_b32 v11, 1, v0'); A('v_lshlrev_b32 v11, 7, v11'); A(f's_lshl_b32 s50, s4, 8'); A(f's_add_u32 s50, s50, {WS_CNT}'); A('v_add_u32 v11, s50, v11')
    A('s_mov_b64 exec, 3')
    A('global_store_dword v11, v8, s[42:43] sc1')
    A('s_mov_b64 exec, -1')
    g.label('L_h_nocinit')
    A(f'global_load_dwordx4 v[{X8}:{X8+3}], v6, s[16:17]')
    A(f'global_load_dwordx2 v[{X4}:{X4+1}], v10, s[16:17]')
    srd(g, 12, 22, 512*4096*2)
    A('s_lshl_b32 s50, s4, 8')
    for j in range(0 if 'xwq' in exp else 4):
        A(f'buffer_load_dwordx4 v[{WQ+4*j}:{WQ+4*j+3}], v9, s[12:15], s50 offen nt')
        if j < 3: A('s_add_u32 s50, s50, 8192')
    A('s_cmp_lg_u32 s3, 4'); A('s_cbranch_scc1 L_h_nozero')
    A('v_lshlrev_b32 v10, 2, v0')
    A(f'ds_write_b32 v10, v8 offset:{L_CNT}')
    A('s_lshl_b32 s51, s4, 24'); A(f's_mul_i32 s50, s5, {NSB*32768}'); A('s_add_u32 s50, s50, s51')
    A('v_lshlrev_b32 v11, 15, v0'); A('v_add_u32 v11, s50, v11'); A('v_mov_b32 v12, -1')
    A(f'v_cmp_gt_u32 vcc, {NSB}, v0'); g.nop(2); A('v_cndmask_b32 v11, v12, v11, vcc')
    for q in (L_Q, L_QV):
        A(f'ds_write_b32 v10, v11 offset:{q}'); A(f'ds_write_b32 v10, v12 offset:{q + 256}')
    A('s_waitcnt lgkmcnt(0)')
    g.label('L_h_nozero')
    A('s_barrier')
    A('s_cmp_ge_u32 s58, 96'); A('s_cbranch_scc1 L_h_w1')
    A('s_waitcnt vmcnt(14)'); A('s_branch L_h_w2')
    g.label('L_h_w1')
    A('s_waitcnt vmcnt(4)')
    g.label('L_h_w2')
    A('s_mov_b32 s50, 0x9e3779b1')
    A(f'v_mul_lo_u32 v{TAG}, v{TAG}, s50'); A(f'v_add_u32 v{TAG}, 0x7f4a7c15, v{TAG}')
    A('v_mov_b32 v10, s6'); A('v_lshlrev_b32 v10, 2, v10'); A(f'ds_write_b32 v10, v{TAG} offset:{L_TAG}')
    g.stamp(1)
    A('s_cmp_ge_u32 s58, 96'); A('s_cbranch_scc1 L_h_noprod2')
    CV = list(range(16, 24)); ACC = list(range(24, 32))
    unpack(g, [32, 33], CC, 1)
    for i in range(2): A(f'v_mul_f32 v{80+i}, {hex(f2u(-1.4426950408889634))}, v{32+i}')
    sigmoid_mul_n(g, [(88+i, 32+i, 80+i, 96+i, 104+i, 112+i) for i in range(2)])
    for i in range(2): rnd(g, 88+i, 88+i)
    A('v_and_b32 v10, 7, v0'); A('v_lshlrev_b32 v10, 6, v10'); A('v_lshrrev_b32 v11, 3, v0'); A('v_lshl_add_u32 v10, v11, 2, v10')
    A('s_lshl_b32 s50, s6, 9'); A('v_add_u32 v10, s50, v10')
    A(f'ds_write_b32 v10, v88 offset:{L_QP}'); A(f'ds_write_b32 v10, v89 offset:{L_QP + 32}')
    A('v_lshl_add_u32 v10, v1, 5, s50')
    A(f'ds_read_b128 v[16:19], v10 offset:{L_QP}'); A(f'ds_read_b128 v[20:23], v10 offset:{L_QP + 16}')
    A('s_waitcnt vmcnt(0) lgkmcnt(0)' if 'xwq' in exp else 's_waitcnt vmcnt(6) lgkmcnt(0)')
    for i in range(8): A(f'v_mov_b32 v{ACC[i]}, 0'); A(f'v_lshrrev_b32 v{80+i}, 16, v{CV[i]}')
    for j in range(8): tile_mac(g, ACC, WM + 4*j, f'v{CV[j]}', f'v{80+j}')
    A('v_lshrrev_b32 v10, 4, v0'); A('v_lshlrev_b32 v10, 3, v10'); A('v_lshl_add_u32 v10, v2, 5, v10')
    A('v_add_u32 v10, s7, v10')
    swap_reduce8(g, ACC)
    row_allreduce(g, ACC[:2], rors=(8, 4))
    A(f'ds_write_b64 v10, v[{ACC[0]}:{ACC[1]}] offset:{L_MODP}')
    last_arriver(g, 0, 'L_h_noprod2')
    A('v_and_b32 v11, 7, v0'); A('v_lshlrev_b32 v11, 4, v11')
    for w in range(4): A(f'ds_read_b128 v[{16+4*w}:{19+4*w}], v11 offset:{L_MODP + 128*w}')
    A('s_lshl_b32 s50, s58, 7'); A(f's_add_u32 s50, s50, {WS_MOD}'); A('v_add_u32 v10, s50, v11')
    A('s_mov_b64 exec, 0xff')
    A('s_waitcnt lgkmcnt(0)')
    sum4x4(g, 16, False)
    A('v_cvt_pk_bf16_f32 v16, v16, v17'); A('v_cvt_pk_bf16_f32 v18, v18, v19'); A(f'v_mov_b32 v17, v{TAG}'); A(f'v_mov_b32 v19, v{TAG}')
    A('global_store_dwordx4 v10, v[16:19], s[42:43] sc1')
    A('s_mov_b64 exec, -1')
    g.stamp(2)
    g.label('L_h_noprod2')
    A('s_waitcnt vmcnt(4)')
    XS = list(range(16, 24))
    unpack(g, XS, X8)
    ln_stats(g, XS, MEAN, SD, list(range(32, 40)))
    A(f'v_rcp_f32 v{RSD}, v{SD}')
    A(f's_mov_b32 s50, {WS_MOD}')
    A('v_lshlrev_b32 v10, 2, v7'); A('v_add_u32 v10, s50, v10')
    unpack(g, [16, 17, 18, 19], X4, 2)
    def lds_():
        A('global_load_dwordx4 v[24:27], v10, s[42:43] sc1'); A('global_load_dwordx4 v[28:31], v10, s[42:43] offset:2048 sc1')
    poll(g, lds_, chk_tags(g, [25, 27, 29, 31], TAG), sleep=psl)
    g.stamp(3)
    for k, src in enumerate((24, 26)):
        A(f'v_lshlrev_b32 v{20+2*k}, 16, v{src}'); A(f'v_and_b32 v{21+2*k}, 0xffff0000, v{src}')
    for k, src in enumerate((28, 30)):
        A(f'v_lshlrev_b32 v{32+2*k}, 16, v{src}'); A(f'v_and_b32 v{33+2*k}, 0xffff0000, v{src}')
    for i in range(4): A(f'v_add_f32 v{32+i}, 1.0, v{32+i}')
    for i in range(4): rnd(g, 32+i, 32+i)
    modulate_n(g, [(36+i, 16+i, 32+i, 20+i, 80+i, 84+i) for i in range(4)], MEAN, SD, RSD)
    ACC = list(range(24, 32))
    for i in range(8): A(f'v_mov_b32 v{ACC[i]}, 0')
    for j in range(4): A(f'v_lshrrev_b32 v{80+j}, 16, v{36+j}')
    for j in range(4): tile_mac(g, ACC, WQ + 4*j, f'v{36+j}', f'v{80+j}')
    A('v_and_b32 v10, 15, v0'); A('v_lshlrev_b32 v10, 5, v10'); A('v_lshrrev_b32 v11, 4, v0'); A('v_lshl_add_u32 v10, v11, 3, v10')
    A('s_lshl_b32 s50, s6, 9'); A('v_add_u32 v10, s50, v10')
    swap_reduce8(g, ACC)
    A(f'ds_write_b64 v10, v[{ACC[0]}:{ACC[1]}] offset:{L_QP}')
    A('v_lshlrev_b32 v10, 3, v0')
    last_arriver(g, 1, 'L_h_noqpub')
    for w in range(4): A(f'ds_read_b64 v[{16+2*w}:{17+2*w}], v10 offset:{L_QP + 512*w}')
    A('s_lshl_b32 s50, s2, 10'); A(f's_add_u32 s50, s50, {WS_QX}'); A('v_add_u32 v10, s50, v6')
    A('s_waitcnt lgkmcnt(0)')
    A('v_pk_add_f32 v[16:17], v[16:17], v[18:19]'); A('v_pk_add_f32 v[20:21], v[20:21], v[22:23]'); A('v_pk_add_f32 v[16:17], v[16:17], v[20:21]')
    A(f'v_mov_b32 v19, v{TAG}'); A('v_mov_b32 v18, v17'); A(f'v_mov_b32 v17, v{TAG}')
    A('global_store_dwordx4 v10, v[16:19], s[42:43] sc1')
    g.label('L_h_noqpub')
    A('s_lshl_b32 s50, s4, 13'); A('s_lshl_b32 s51, s6, 8'); A('s_add_u32 s50, s50, s51'); A(f's_add_u32 s50, s50, {WS_QX}')
    A('v_lshrrev_b32 v10, 3, v0'); A('v_lshlrev_b32 v10, 10, v10'); A('v_and_b32 v11, 7, v0'); A('v_lshl_add_u32 v10, v11, 5, v10')
    A('v_add_u32 v10, s50, v10')
    A('v_lshlrev_b32 v48, 4, v11'); A('v_bfe_u32 v13, v0, 5, 1'); A('v_lshl_add_u32 v48, v13, 3, v48')
    A('v_bfe_u32 v13, v0, 4, 1'); A('v_lshl_add_u32 v48, v13, 2, v48'); A('v_add_u32 v12, s7, v48')
    def lds_():
        A('global_load_dwordx4 v[24:27], v10, s[42:43] sc1'); A('global_load_dwordx4 v[28:31], v10, s[42:43] offset:16 sc1')
    poll(g, lds_, chk_tags(g, [25, 27, 29, 31], TAG), sleep=psl)
    reduce4_hi(g, [24, 26, 28, 30])
    A(f'ds_write_b32 v12, v24 offset:{L_HV}')
    A('s_waitcnt lgkmcnt(0)')
    g.stamp(4)
    if 'xb1' not in exp: A('s_barrier')
    if 'xclr' in exp: A('s_branch L_h_noclear')
    A('s_cmp_lg_u32 s3, 7'); A('s_cbranch_scc1 L_h_noclear')
    for i in range(4): A(f'v_mov_b32 v{16+i}, -1')
    A('s_lshl_b32 s51, s2, 9'); A(f's_add_u32 s51, s51, {WS_OP}'); A('v_add_u32 v10, s51, v6')
    A('v_and_b32 v11, 15, v0'); A('v_lshlrev_b32 v11, 4, v11'); A('v_lshrrev_b32 v12, 4, v0'); A('v_lshl_add_u32 v11, v12, 16, v11')
    A('s_lshl_b32 s51, s2, 8'); A(f's_add_u32 s51, s51, {WS_AP}'); A('v_add_u32 v11, s51, v11'); A('v_add_u32 v12, 0x40000, v11')
    A('s_mov_b64 exec, 0xffffffff')
    A('global_store_dwordx4 v10, v[16:19], s[42:43] sc1')
    A('s_mov_b64 exec, 0xffff')
    A('global_store_dwordx4 v11, v[16:19], s[42:43] sc1')
    A('s_mov_b64 exec, -1')
    A(f's_cmp_ge_u32 s57, {NMLP}'); A('s_cbranch_scc1 L_h_noclear')
    A('s_lshl_b32 s51, s57, 11'); A(f's_add_u32 s51, s51, {WS_DP}'); A('v_add_u32 v10, s51, v6')
    A('global_store_dwordx4 v10, v[16:19], s[42:43] sc1')
    A('global_store_dwordx4 v10, v[16:19], s[42:43] offset:1024 sc1')
    g.label('L_h_noclear')
    WO = 64; WG = 80; WU = 112; WD = 144; E = 192
    srd(g, 8, 24, 4096*512*2)
    A('v_lshrrev_b32 v10, 3, v0'); A('v_lshlrev_b32 v10, 2, v10')
    A('s_lshl_b32 s50, s4, 7'); A('s_lshl_b32 s51, s6, 5'); A('s_add_u32 s50, s50, s51')
    A('v_add_u32 v10, s50, v10'); A('v_lshlrev_b32 v10, 10, v10')
    A('v_and_b32 v11, 7, v0'); A('v_lshl_add_u32 v10, v11, 4, v10')
    A('s_lshl_b32 s50, s5, 7')
    for j in range(0 if 'xwo' in exp else 4):
        A(f'buffer_load_dwordx4 v[{WO+4*j}:{WO+4*j+3}], v10, s[8:11], s50 offen offset:{1024*j} nt')
    A(f's_cmp_ge_u32 s57, {NMLP}'); A('s_cbranch_scc1 L_h_nomlpw')
    srd(g, 8, 28, 512*1792*2); srd(g, 12, 30, 512*1792*2)
    A('s_movk_i32 s50, 3584'); A('v_mul_lo_u32 v10, v3, s50'); A('v_lshl_add_u32 v10, v2, 4, v10')
    A('s_lshl_b32 s50, s57, 6')
    for j in range(0 if 'xgu' in exp else 8):
        A(f'buffer_load_dwordx4 v[{WG+4*j}:{WG+4*j+3}], v10, s[8:11], s50 offen' + (' nt' if 'wdef' not in exp else ''))
        A(f'buffer_load_dwordx4 v[{WU+4*j}:{WU+4*j+3}], v10, s[12:15], s50 offen' + (' nt' if 'wdef' not in exp else ''))
        if j < 7: A(f's_add_u32 s50, s50, {3584*16}')
    srd(g, 8, 32, 1792*512*2)
    A('s_lshl_b32 s50, s57, 5'); A('s_lshl_b32 s51, s6, 3'); A('s_add_u32 s50, s50, s51'); A('s_lshl_b32 s50, s50, 10')
    for j in range(0 if 'xwd' in exp else 8):
        if j == 4: A('s_add_u32 s50, s50, 4096')
        A(f'buffer_load_dwordx4 v[{WD+4*j}:{WD+4*j+3}], v6, s[8:11], s50 offen offset:{1024*(j%4)} nt')
    A('v_lshlrev_b32 v10, 6, v3'); A('v_lshl_add_u32 v10, v2, 4, v10'); A(f'v_add_u32 v10, {L_ST}, v10')
    A('s_waitcnt vmcnt(0)' if 'xwd' in exp else 's_waitcnt vmcnt(8)')
    for j in range(8):
        A(f'ds_write_b128 v10, v[{WG+4*j}:{WG+4*j+3}] offset:{1024*j}'); A(f'ds_write_b128 v10, v[{WU+4*j}:{WU+4*j+3}] offset:{32768 + 1024*j}')
    A('v_mov_b32 v11, 1'); A('v_mov_b32 v12, 0')
    A('v_lshlrev_b32 v10, 9, v0'); A('s_lshl_b32 s50, s6, 4'); A(f's_add_u32 s50, s50, {L_ST}'); A('v_add_u32 v10, s50, v10')
    A('s_waitcnt lgkmcnt(0)')
    A('s_mov_b64 exec, 1')
    A(f'ds_add_u32 v12, v11 offset:{L_CNT + 16}')
    A('s_mov_b64 exec, -1')
    A(f's_mov_b32 s70, {SPIN_MAX*16}')
    g.label('L_st_spin')
    A(f'ds_read_b32 v13, v12 offset:{L_CNT + 16}')
    A('s_waitcnt lgkmcnt(0)')
    A('v_readfirstlane_b32 s50, v13')
    A('s_sub_u32 s70, s70, 1'); A('s_cmp_eq_u32 s70, 0'); A('s_cbranch_scc1 L_st_done')
    A('s_cmp_ge_u32 s50, 4'); A('s_cbranch_scc1 L_st_done')
    A('s_sleep 8'); A('s_branch L_st_spin')
    g.label('L_st_done')
    for j in range(8):
        A(f'ds_read_b128 v[{WG+4*j}:{WG+4*j+3}], v10 offset:{64*j}'); A(f'ds_read_b128 v[{WU+4*j}:{WU+4*j+3}], v10 offset:{32768 + 64*j}')
        if j % 4 == 3: A('s_waitcnt lgkmcnt(0)')
    A('s_cmp_lg_u32 s3, 6'); A('s_cbranch_scc1 L_h_nomlpw')
    A(f's_mov_b32 s51, {WS_MOD + 4096}')
    A('v_lshlrev_b32 v10, 5, v0'); A('v_add_u32 v10, s51, v10'); A('v_add_u32 v11, 4096, v10')
    A('v_and_b32 v12, 15, v0'); A('v_lshlrev_b32 v12, 3, v12'); A('s_and_b32 s50, s57, 15'); A('s_lshl_b32 s50, s50, 7')
    A('s_add_u32 s50, s50, s51'); A(f's_add_u32 s50, s50, {1280*8 - 4096}'); A('v_add_u32 v12, s50, v12')
    def lds_():
        A('global_load_dwordx4 v[16:19], v10, s[42:43] sc1'); A('global_load_dwordx4 v[20:23], v10, s[42:43] offset:16 sc1')
        A('global_load_dwordx4 v[24:27], v10, s[42:43] offset:2048 sc1'); A('global_load_dwordx4 v[28:31], v10, s[42:43] offset:2064 sc1')
        A('global_load_dwordx4 v[32:35], v11, s[42:43] sc1'); A('global_load_dwordx4 v[36:39], v11, s[42:43] offset:16 sc1')
        A('global_load_dwordx2 v[44:45], v12, s[42:43] sc1')
    poll(g, lds_, chk_tags(g, [45] + list(range(17, 40, 2)), TAG), sleep=32)
    for k in range(3):
        b = 16 + 8*k
        A(f'v_mov_b32 v{b+1}, v{b+2}'); A(f'v_mov_b32 v{b+2}, v{b+4}'); A(f'v_mov_b32 v{b+3}, v{b+6}')
        A(f'ds_write_b128 v6, v[{b}:{b+3}] offset:{L_MV + 1024*k}')
    A('v_and_b32 v12, 15, v0'); A('v_lshlrev_b32 v12, 2, v12')
    A(f'ds_write_b32 v12, v44 offset:{L_MV + 3072}')
    g.label('L_h_nomlpw')
    A('s_waitcnt vmcnt(0) lgkmcnt(0)')
    g.stamp(5)
    A('v_mov_b32 v12, s6'); A('v_lshlrev_b32 v12, 2, v12')
    A('s_lshl_b32 s59, s4, 24'); A(f's_add_u32 s59, s59, {NSB*8*32768}')
    A('v_mov_b32 v17, 0')
    def read_prog(off, dst):
        A(f'ds_read_b128 v[20:23], v17 offset:{off}')
        A('s_waitcnt lgkmcnt(0)')
        A('v_max3_u32 v20, v20, v21, v22'); A('v_max_u32 v20, v20, v23'); g.nop(1)
        A(f'v_readfirstlane_b32 {dst}, v20')
    A('s_cmp_lg_u32 s3, 4'); A('s_cbranch_scc1 L_nosched')
    A(f's_lshl_b32 s50, s4, 8'); A(f's_add_u32 s50, s50, {WS_CNT}'); A('v_mov_b32 v16, s50')
    A(f's_mov_b32 s52, {NSB}'); A('s_mov_b32 s53, 0')
    A(f's_mov_b32 s70, {SPIN_MAX*16}')
    g.label('L_sch_wait')
    read_prog(L_PROG, 's50')
    A('s_sub_u32 s70, s70, 1'); A('s_cmp_eq_u32 s70, 0'); A('s_cbranch_scc1 L_sch_done')
    A(f's_add_u32 s50, s50, {lead}'); A('s_cmp_ge_u32 s50, s52'); A('s_cbranch_scc1 L_sch_claim')
    A('s_sub_u32 s50, s52, s50'); A('s_cmp_gt_u32 s50, 4'); A('s_cbranch_scc1 L_sch_long')
    A('s_sleep 2'); A('s_branch L_sch_wait')
    g.label('L_sch_long')
    A('s_sleep 32'); A('s_branch L_sch_wait')
    g.label('L_sch_claim')
    A(f's_cmp_ge_u32 s52, {MAXROWS - 2}'); A('s_cbranch_scc1 L_sch_done')
    A(f's_cmp_lt_u32 s53, {NPOOL - sing}'); A('s_cselect_b32 s54, 2, 1')
    A('v_mov_b32 v18, s54')
    A('s_mov_b64 exec, 1')
    A('global_atomic_add v19, v16, v18, s[42:43] sc0 sc1')
    A('s_mov_b64 exec, -1')
    A('s_lshl_b32 s55, s52, 2'); A('v_mov_b32 v21, s55')
    A('s_waitcnt vmcnt(0)')
    A('v_readfirstlane_b32 s53, v19')
    g.label('L_sch_put')
    A(f's_cmp_ge_u32 s53, {NPOOL}'); A('s_cbranch_scc1 L_sch_done')
    A('s_lshl_b32 s55, s53, 15'); A('s_add_u32 s55, s55, s59'); A('v_mov_b32 v20, s55')
    A(f'ds_write_b32 v21, v20 offset:{L_Q}')
    A('v_add_u32 v21, 4, v21')
    A('s_add_u32 s52, s52, 1'); A('s_add_u32 s53, s53, 1')
    A('s_sub_u32 s54, s54, 1'); A('s_cmp_lg_u32 s54, 0'); A('s_cbranch_scc1 L_sch_put')
    A('s_branch L_sch_wait')
    g.label('L_sch_done')
    A('s_lshl_b32 s55, s52, 2'); A('v_mov_b32 v21, s55'); A('v_mov_b32 v20, -2')
    A(f'ds_write_b32 v21, v20 offset:{L_Q}')
    g.label('L_nosched')
    A('s_lshl_b32 s50, s4, 9'); A(f's_add_u32 s50, s50, {WS_ML}')
    A('v_and_b32 v11, 31, v0'); A('v_lshlrev_b32 v11, 4, v11'); A('v_add_u32 v11, s50, v11')
    A('s_lshl_b32 s50, s6, 14'); A(f's_add_u32 s50, s50, {L_SC}'); A('v_add_u32 v10, s50, v6')
    A(f's_mov_b32 s51, {hex(LOG2E)}')
    A(f's_mov_b32 s70, {SPIN_MAX*16}')
    g.label('L_kd_spin')
    A(f'ds_read_b32 v13, v12 offset:{L_KD}')
    A('s_waitcnt lgkmcnt(0)')
    A('v_readfirstlane_b32 s52, v13')
    A('s_sub_u32 s70, s70, 1'); A('s_cmp_eq_u32 s70, 0'); A('s_cbranch_scc1 L_kd_done')
    A('s_cmp_lg_u32 s52, 0'); A('s_cbranch_scc1 L_kd_done')
    A('s_sleep 8'); A('s_branch L_kd_spin')
    g.label('L_kd_done')
    g.stamp(6)
    NP = MAXROWS // 8
    for i in range(NP): A(f'ds_read_b128 v[{E+4*i}:{E+4*i+3}], v10 offset:{1024*i}')
    poll(g, lambda: A('global_load_dwordx4 v[28:31], v11, s[42:43] sc1'), chk_tags(g, [29, 31], TAG), sleep=mlsl)
    g.stamp(8)
    M = 22; IL = 23
    A('v_mov_b32 v22, v28')
    row_allreduce(g, [22], 'max')
    A('v_mov_b32 v23, v22'); g.nop(2); A('v_permlane16_swap_b32 v22, v23'); A('v_max_f32 v22, v22, v23')
    A('v_sub_f32 v20, v28, v22'); A('v_mul_f32 v20, s51, v20'); A('v_exp_f32 v20, v20'); g.nop(1)
    A('v_mul_f32 v20, v20, v30')
    row_allreduce(g, [20])
    A('v_mov_b32 v23, v20'); g.nop(2); A('v_permlane16_swap_b32 v20, v23'); A('v_add_f32 v20, v20, v23')
    A('v_mov_b32 v16, 1.0')
    divide(g, 23, 16, 20, 21, 24)
    A('s_waitcnt lgkmcnt(0)')
    for pc in range(NSB // 8):
        to_p(g, list(range(E + 4*pc, E + 4*pc + 4)), M, IL, 's51')
        A(f'ds_write_b128 v10, v[{E+4*pc}:{E+4*pc+3}] offset:{1024*pc}')
    A('s_waitcnt lgkmcnt(0)')
    g.stamp(9)
    if 'xb2' not in exp: A('s_barrier')
    A('v_lshrrev_b32 v11, 3, v0'); A('v_lshlrev_b32 v11, 2, v11')
    for pc in range(NSB // 8, NP): A(f'ds_read_b32 v{24 + pc - NSB//8}, v11 offset:{L_Q + 32*pc}')
    A('s_lshl_b32 s53, s4, 16'); A(f's_add_u32 s53, s53, {WS_SCG}')
    A('s_lshl_b32 s54, s6, 6'); A('s_add_u32 s54, s54, s53')
    A('v_and_b32 v12, 6, v0'); A('v_lshlrev_b32 v12, 3, v12'); A('v_add_u32 v12, s54, v12')
    A('s_mov_b32 s62, 0x55555555'); A('s_mov_b32 s63, 0x55555555')
    A('s_waitcnt lgkmcnt(0)')
    for pc in range(NSB // 8, NP):
        i0 = E + 4*pc; qv = 24 + pc - NSB//8
        A(f's_cmp_le_u32 s52, {8*pc}'); A('s_cbranch_scc1 L_exp_done')
        A(f'v_lshrrev_b32 v16, 16, v{i0}'); A(f'v_or_b32 v16, v16, v{i0+1}')
        A(f'v_lshrrev_b32 v17, 16, v{i0+2}'); A(f'v_or_b32 v17, v17, v{i0+3}')
        A(f'v_subrev_u32 v13, s59, v{qv}'); A('v_lshrrev_b32 v13, 7, v13'); A('v_add_u32 v13, v13, v12')
        A('v_mov_b32_dpp v18, v16 quad_perm:[1,1,3,3] row_mask:0xf bank_mask:0xf')
        A('v_mov_b32_dpp v19, v17 quad_perm:[1,1,3,3] row_mask:0xf bank_mask:0xf')
        A(f'v_cmp_gt_u32 vcc, -2, v{qv}')
        A('s_and_b64 exec, vcc, s[62:63]')
        if 'xexp' not in exp: A('global_store_dwordx4 v13, v[16:19], s[42:43] sc1')
        A('s_mov_b64 exec, -1')
        g.nop(1)
    g.label('L_exp_done')
    A('s_waitcnt vmcnt(0)')
    last_arriver(g, 2, 'L_noxf')
    A('s_lshl_b32 s50, s2, 4'); A(f's_add_u32 s50, s50, {WS_XF}'); A('v_mov_b32 v13, s50')
    for i in range(4): A(f'v_mov_b32 v{16+i}, v{TAG}')
    A('s_mov_b64 exec, 1')
    A('global_store_dwordx4 v13, v[16:19], s[42:43] sc1')
    A('s_mov_b64 exec, -1')
    g.label('L_noxf')
    A('s_cmp_lg_u32 s3, 6'); A('s_cbranch_scc1 L_noxfall')
    A(f's_cmp_ge_u32 s57, {NMLP}'); A('s_cbranch_scc1 L_noxfall')
    A(f'v_add_u32 v13, {WS_XF}, v6')
    A('s_sleep 127'); A('s_sleep 127')
    def lds_():
        for i in range(4): A(f'global_load_dword v{16+i}, v13, s[42:43] offset:{1024*i} sc1')
    poll(g, lds_, chk_tags(g, [16, 17, 18, 19], TAG), sleep=127)
    g.label('L_noxfall')
    A('s_cmp_lg_u32 s3, 4'); A('s_cbranch_scc1 L_noschedv')
    A('s_lshl_b32 s50, s4, 7'); A(f's_add_u32 s50, s50, {WS_XF}'); A('v_and_b32 v13, 7, v0'); A('v_lshlrev_b32 v13, 4, v13'); A('v_add_u32 v13, s50, v13')
    A('s_sleep 100')
    poll(g, lambda: A('global_load_dword v16, v13, s[42:43] sc1'), chk_tags(g, [16], TAG), sleep=64)
    A(f's_lshl_b32 s50, s4, 8'); A(f's_add_u32 s50, s50, {WS_CNT + 128}'); A('v_mov_b32 v16, s50')
    A(f's_mov_b32 s52, {NSB}'); A('s_mov_b32 s56, -1'); A('s_mov_b32 s62, 0'); A('s_mov_b32 s63, 0')
    A('v_mov_b32 v17, 0')
    A('v_add_u32 v24, s53, v6')
    A('v_bfe_u32 v25, v0, 2, 2'); A('v_lshlrev_b32 v25, 14, v25'); A('v_lshrrev_b32 v26, 4, v0'); A('v_lshl_add_u32 v25, v26, 7, v25')
    A('v_lshl_add_u32 v25, v2, 5, v25'); A(f'v_add_u32 v25, {L_SC}, v25')
    A(f's_mov_b32 s70, {SPIN_MAX*16}')
    def read_progv():
        A(f'ds_read_b128 v[32:35], v17 offset:{L_PROGV}')
        A('s_waitcnt lgkmcnt(0)')
        A('v_max3_u32 v32, v32, v33, v34'); A('v_max_u32 v32, v32, v35'); g.nop(1)
        A('v_readfirstlane_b32 s64, v32')
    g.label('L_sv_top')
    read_progv()
    A('s_sub_u32 s70, s70, 1'); A('s_cmp_eq_u32 s70, 0'); A('s_cbranch_scc1 L_sv_done')
    A(f's_add_u32 s64, s64, {leadv}')
    A('s_mov_b32 s65, 0')
    A('s_cmp_lg_u32 s62, 0'); A('s_cbranch_scc1 L_sv_noclaim')
    A('s_cmp_lt_u32 s64, s52'); A('s_cbranch_scc1 L_sv_noclaim')
    A(f's_cmp_ge_u32 s52, {MAXROWS - 2}'); A('s_cbranch_scc1 L_sv_full')
    A(f's_cmp_lt_u32 s63, {NPOOL - sing}'); A('s_cselect_b32 s65, 2, 1')
    A('v_mov_b32 v18, s65')
    A('s_mov_b64 exec, 1')
    A('global_atomic_add v19, v16, v18, s[42:43] sc0 sc1')
    A('s_mov_b64 exec, -1')
    A('s_branch L_sv_pend')
    g.label('L_sv_full')
    A('s_mov_b32 s62, 1')
    g.label('L_sv_noclaim')
    A(f's_cmp_lt_u32 s56, {NPOOL}'); A('s_cbranch_scc1 L_sv_pend')
    A('s_cmp_lg_u32 s62, 0'); A('s_cbranch_scc1 L_sv_done')
    A('s_sub_u32 s64, s52, s64'); A('s_cmp_gt_u32 s64, 4'); A('s_cbranch_scc1 L_sv_long')
    A('s_sleep 2'); A('s_branch L_sv_top')
    g.label('L_sv_long')
    A('s_sleep 32'); A('s_branch L_sv_top')
    g.label('L_sv_pend')
    A(f's_cmp_ge_u32 s56, {NPOOL}'); A('s_cbranch_scc1 L_sv_nofetch')
    A('s_lshl_b32 s66, s56, 8'); A('v_add_u32 v26, s66, v24')
    A('s_cmp_eq_u32 s54, 2'); A('s_cselect_b32 s66, -1, 0xffff'); A('s_mov_b32 s67, 0')
    A('s_mov_b64 exec, s[66:67]')
    if 'xfet' not in exp: A('global_load_dwordx4 v[28:31], v26, s[42:43] sc1')
    A('s_lshl_b32 s66, s55, 7'); A('v_add_u32 v26, s66, v25')
    if 'xfet' not in exp: A('s_waitcnt vmcnt(0)')
    unpack(g, list(range(32, 40)), 28)
    to_p(g, list(range(32, 40)), M, IL, 's51')
    A('ds_write_b128 v26, v[32:35]'); A('ds_write_b128 v26, v[36:39] offset:16')
    A('v_lshrrev_b32 v26, 4, v0'); A('v_add_u32 v27, s56, v26'); A('v_lshlrev_b32 v27, 15, v27'); A('v_add_u32 v27, s59, v27')
    A('v_add_u32 v26, s55, v26'); A('v_lshlrev_b32 v26, 2, v26')
    A('s_waitcnt lgkmcnt(0)')
    A(f'ds_write_b32 v26, v27 offset:{L_QV}')
    A('s_mov_b64 exec, -1')
    A('s_mov_b32 s56, -1')
    g.label('L_sv_nofetch')
    A('s_cmp_eq_u32 s65, 0'); A('s_cbranch_scc1 L_sv_top')
    A('s_waitcnt vmcnt(0)')
    A('v_readfirstlane_b32 s56, v19')
    A('s_mov_b32 s55, s52')
    A(f's_cmp_ge_u32 s56, {NPOOL}'); A('s_cbranch_scc1 L_sv_done')
    A(f's_sub_u32 s54, {NPOOL}, s56'); A('s_min_u32 s54, s54, s65')
    A('s_add_u32 s52, s52, s54'); A('s_add_u32 s63, s56, s54')
    A('s_branch L_sv_top')
    g.label('L_sv_done')
    A('s_lshl_b32 s55, s52, 2'); A('v_mov_b32 v26, s55'); A('v_mov_b32 v27, -2')
    A(f'ds_write_b32 v26, v27 offset:{L_QV}')
    g.label('L_noschedv')
    GA = list(range(192, 200)); SB = list(range(200, 208)); CB = list(range(208, 216)); XF = list(range(216, 224)); GBR = 224
    for k in range(3): A(f'ds_read_b128 v[{16+4*k}:{19+4*k}], v6 offset:{L_MV + 1024*k}')
    A('v_lshrrev_b32 v13, 3, v48'); A('v_lshlrev_b32 v13, 2, v13')
    A(f'ds_read_b32 v28, v13 offset:{L_MV + 3072}')
    unpack(g, XF, X8)
    A('s_waitcnt lgkmcnt(0)')
    unpack(g, GA, 16); unpack(g, SB, 20); unpack(g, CB, 24)
    for i in range(8): A(f'v_add_f32 v{CB[i]}, 1.0, v{CB[i]}')
    for i in range(8): rnd(g, CB[i], CB[i])
    A('v_and_b32 v13, 16, v0'); A('v_cmp_eq_u32 vcc, 0, v13')
    A('v_lshlrev_b32 v13, 16, v28'); A('v_and_b32 v14, 0xffff0000, v28')
    A(f'v_cndmask_b32 v{GBR}, v14, v13, vcc')
    A('s_lshl_b32 s50, s4, 12'); A('s_add_u32 s50, s50, s7'); A(f's_add_u32 s50, s50, {WS_OP}')
    A('v_lshrrev_b32 v10, 3, v0'); A('v_lshlrev_b32 v13, 4, v10'); A('v_lshlrev_b32 v10, 9, v10'); A('v_and_b32 v11, 7, v0'); A('v_lshl_add_u32 v10, v11, 4, v10')
    A('v_add_u32 v10, s50, v10')
    A('v_add_u32 v15, s7, v48')
    A('v_add_u32 v9, s7, v13')
    A('v_lshrrev_b32 v14, 4, v0'); A('v_lshlrev_b32 v14, 3, v14'); A('v_lshl_add_u32 v14, v11, 5, v14')
    A('s_lshl_b32 s52, s6, 8'); A('v_add_u32 v14, s52, v14')
    A('v_and_b32 v8, 15, v0'); A('v_lshlrev_b32 v8, 4, v8'); A('v_lshrrev_b32 v7, 4, v0'); A('v_lshl_add_u32 v8, v7, 16, v8')
    A('s_lshl_b32 s51, s2, 8'); A(f's_add_u32 s51, s51, {WS_AP}'); A('v_add_u32 v8, s51, v8'); A('v_add_u32 v7, 0x40000, v8')
    A('v_and_b32 v5, 15, v0'); A('v_lshlrev_b32 v5, 4, v5')
    ACC = list(range(24, 32))
    for i in range(8): A(f'v_mov_b32 v{ACC[i]}, 0')
    if 'nopt' not in exp:
        A(f's_cmp_ge_u32 s57, {NFIN}'); A('s_cbranch_scc1 L_nopt')
        A('s_cmp_lg_u32 s3, 4'); A('s_cbranch_scc1 L_nopt')
        A('v_mov_b32 v13, 0'); A('global_load_dword v12, v13, s[38:39]')
        g.label('L_nopt')
    A('s_barrier')
    if 'notail' in exp: A('s_branch L_end')
    g.stamp(10)
    poll(g, lambda: A('global_load_dwordx4 v[16:19], v10, s[42:43] sc1'), chk_sent(g, [16, 17, 18, 19], 20), sleep=opsl)
    g.stamp(11)
    reduce4_hi(g, [16, 17, 18, 19])
    rnd(g, 16, 16)
    A(f'ds_write_b32 v15, v16 offset:{L_OV}')
    A(f'ds_read_b128 v[16:19], v9 offset:{L_OV}')
    A('s_waitcnt lgkmcnt(0)')
    for j in range(4): A(f'v_lshrrev_b32 v{20+j}, 16, v{16+j}')
    for j in range(4): tile_mac(g, ACC, WO + 4*j, f'v{16+j}', f'v{20+j}')
    g.nop(1)
    swap_reduce8(g, ACC)
    row_allreduce(g, ACC[:2], rors=(8,))
    A(f'ds_write_b64 v14, v[{ACC[0]}:{ACC[1]}] offset:{L_AW}')
    last_arriver(g, 3, 'L_h_noap')
    A('s_mov_b64 exec, 0xffff')
    for w in range(4): A(f'ds_read_b128 v[{16+4*w}:{19+4*w}], v5 offset:{L_AW + 256*w}')
    A('s_waitcnt lgkmcnt(0)')
    sum4x4(g, 16)
    A('global_store_dwordx4 v8, v[16:19], s[42:43] sc1')
    A('s_mov_b64 exec, -1')
    g.stamp(12)
    g.label('L_h_noap')
    if 'xstage' in exp: A('s_branch L_end')
    A(f's_cmp_ge_u32 s57, {NMLP}'); A('s_cbranch_scc1 L_end')
    g.label('L_gather_ap')
    A('s_and_b32 s50, s3, 1'); A('s_lshl_b32 s50, s50, 10'); A('s_lshr_b32 s51, s3, 1'); A('s_lshl_b32 s52, s51, 14')
    A('s_add_u32 s52, s52, s50'); A(f's_add_u32 s52, s52, {WS_AP + 4096}')
    A('v_lshlrev_b32 v10, 4, v0'); A('v_add_u32 v11, s52, v10'); A('v_add_u32 v12, 8192, v11')
    A('s_lshl_b32 s51, s51, 11'); A('s_add_u32 s51, s51, s50'); A('v_add_u32 v13, s51, v10')
    multi_poll(g, 'L_ap', 8, lambda i: f'global_load_dwordx4 v[{16+4*i}:{19+4*i}], v{11 + i//4}, s[42:43] offset:{(i%4)*2048 - 4096} sc1', 16, 14,
               [(16*16, apsl), (8*16, apsl // 3), (apth*16, apsl // 8)])
    g.stamp(13)
    for st in (16, 8, 4):
        for i in range(0, st, 2): A(f'v_pk_add_f32 v[{16+i}:{17+i}], v[{16+i}:{17+i}], v[{16+i+st}:{17+i+st}]')
    A(f'ds_write_b128 v13, v[16:19] offset:{L_AS}')
    A('v_lshlrev_b32 v10, 5, v0')
    A('s_waitcnt lgkmcnt(0)')
    A('s_barrier')
    A('s_cmp_lt_u32 s3, 4'); A('s_cbranch_scc1 L_end')
    g.role = 'M'; g.stamp(1); g.role = 'H'
    for p in range(4):
        A(f'ds_read_b128 v[{16+8*p}:{19+8*p}], v10 offset:{L_AS + 2048*p}'); A(f'ds_read_b128 v[{20+8*p}:{23+8*p}], v10 offset:{L_AS + 2048*p + 16}')
    AG = list(range(232, 240)); AU = list(range(240, 248))
    for i in range(8): A(f'v_mov_b32 v{AG[i]}, 0'); A(f'v_mov_b32 v{AU[i]}, 0')
    A('s_waitcnt lgkmcnt(4)')
    for i in range(0, 8, 2): A(f'v_pk_add_f32 v[{16+i}:{17+i}], v[{16+i}:{17+i}], v[{24+i}:{25+i}]')
    A('s_waitcnt lgkmcnt(0)')
    for i in range(0, 8, 2): A(f'v_pk_add_f32 v[{32+i}:{33+i}], v[{32+i}:{33+i}], v[{40+i}:{41+i}]')
    for i in range(0, 8, 2): A(f'v_pk_add_f32 v[{16+i}:{17+i}], v[{16+i}:{17+i}], v[{32+i}:{33+i}]')
    X1 = list(range(16, 24))
    for i in range(8): rnd(g, X1[i], X1[i])
    for i in range(0, 8, 2): A(f'v_pk_mul_f32 v[{16+i}:{17+i}], v[{16+i}:{17+i}], v[{GA[i]}:{GA[i+1]}]')
    for i in range(8): rnd(g, X1[i], X1[i])
    for i in range(0, 8, 2): A(f'v_pk_add_f32 v[{16+i}:{17+i}], v[{16+i}:{17+i}], v[{XF[i]}:{XF[i+1]}]')
    for i in range(8): rnd(g, X1[i], X1[i])
    A(f'ds_write_b128 v10, v[16:19] offset:{L_XF}'); A(f'ds_write_b128 v10, v[20:23] offset:{L_XF + 16}')
    g.role = 'M'; g.stamp(2); g.role = 'H'
    ln_stats(g, X1, MEAN, SD, list(range(32, 40)))
    A(f'v_rcp_f32 v{RSD}, v{SD}'); g.nop(1)
    g.role = 'M'; g.stamp(3); g.role = 'H'
    modulate_n(g, [(24+i, X1[i], CB[i], SB[i], 32+i, 248+i) for i in range(8)], MEAN, SD, RSD)
    for j in range(8): A(f'v_lshrrev_b32 v{32+j}, 16, v{24+j}')
    g.role = 'M'; g.stamp(4); g.role = 'H'
    for j in range(8):
        tile_mac(g, AG, WG + 4*j, f'v{24+j}', f'v{32+j}')
        tile_mac(g, AU, WU + 4*j, f'v{24+j}', f'v{32+j}')
    AD = list(range(24, 32))
    A('v_lshlrev_b32 v10, 5, v0'); A('s_lshl_b32 s50, s6, 11'); A('v_add_u32 v10, s50, v10')
    g.role = 'M'; g.stamp(5); g.role = 'H'
    swap_reduce8(g, AG, AU)
    row_allreduce(g, AG[:2] + AU[:2])
    for r in AG[:2] + AU[:2]: rnd(g, r, r)
    A(f'v_mov_b32 v16, {hex(f2u(0.044715))}')
    for i in range(2): A(f'v_mul_f32 v{18+i}, v{AG[i]}, v{AG[i]}')
    for i in range(2): A(f'v_mul_f32 v{18+i}, v{18+i}, v{AG[i]}')
    for i in range(2): A(f'v_fma_f32 v{18+i}, v{18+i}, v16, v{AG[i]}')
    for i in range(2): A(f'v_mul_f32 v{18+i}, {hex(f2u(-2*0.7978845608028654*1.4426950408889634))}, v{18+i}')
    sigmoid_mul_n(g, [(20+i, AG[i], 18+i, 32+i, 34+i, 36+i) for i in range(2)])
    for i in range(2): rnd(g, 20+i, 20+i)
    for i in range(2): A(f'v_mul_f32 v{20+i}, v{20+i}, v{AU[i]}')
    for i in range(2): rnd(g, 20+i, 20+i)
    for i in range(8): A(f'v_mov_b32 v{AD[i]}, 0')
    g.role = 'M'; g.stamp(6); g.role = 'H'
    for j in range(8): A(f'v_readlane_b32 s{72+j}, v{20 + j%2}, {16*(j//2 % 2) + 32*(j//4)}')
    A('s_lshl_b32 s50, s6, 9'); A('v_add_u32 v11, s50, v6')
    for j in range(8): A(f's_lshr_b32 s{80+j}, s{72+j}, 16')
    for j in range(8): tile_mac(g, AD, WD + 4*j, f's{72+j}', f's{80+j}')
    A('s_lshl_b32 s51, s57, 11'); A(f's_add_u32 s51, s51, {WS_DP}'); A('v_add_u32 v12, s51, v11')
    g.role = 'M'; g.stamp(7); g.role = 'H'
    g.nop(1)
    A(f'ds_write_b128 v10, v[{AD[0]}:{AD[3]}] offset:{L_DW}'); A(f'ds_write_b128 v10, v[{AD[4]}:{AD[7]}] offset:{L_DW + 16}')
    A('s_waitcnt lgkmcnt(0)')
    A('s_barrier')
    g.role = 'M'; g.stamp(8); g.role = 'H'
    A('s_mov_b64 exec, 0xffffffff')
    for w in range(4): A(f'ds_read_b128 v[{16+4*w}:{19+4*w}], v11 offset:{L_DW + 2048*w}')
    A('s_waitcnt lgkmcnt(0)')
    sum4x4(g, 16)
    A('global_store_dwordx4 v12, v[16:19], s[42:43] sc1')
    A('s_mov_b64 exec, -1')
    g.stamp(14)
    A(f's_cmp_ge_u32 s57, {NFIN}'); A('s_cbranch_scc1 L_end')
    A('s_cmp_lg_u32 s3, 4'); A('s_cbranch_scc1 L_end')
    A('v_lshrrev_b32 v10, 3, v0'); A('v_lshlrev_b32 v10, 11, v10'); A('v_and_b32 v11, 7, v0'); A('v_lshl_add_u32 v10, v11, 4, v10')
    A('s_lshl_b32 s50, s57, 7'); A(f's_add_u32 s51, s50, {WS_DP}'); A('v_add_u32 v52, s51, v10')
    for i in range(1, 7): A(f'v_add_u32 v{52+i}, {16384*i}, v52')
    A('v_add_u32 v13, s50, v48')
    A(f'ds_read_b32 v15, v13 offset:{L_XF}')
    A('v_lshrrev_b32 v12, 1, v13')
    multi_poll(g, 'L_dp', 7, lambda i: f'global_load_dwordx4 v[{16+4*i}:{19+4*i}], v{52+i}, s[42:43] sc1', 16, 51, [])
    for i in (0, 2):
        A(f'v_pk_add_f32 v[{16+i}:{17+i}], v[{16+i}:{17+i}], v[{20+i}:{21+i}]'); A(f'v_pk_add_f32 v[{24+i}:{25+i}], v[{24+i}:{25+i}], v[{28+i}:{29+i}]')
        A(f'v_pk_add_f32 v[{32+i}:{33+i}], v[{32+i}:{33+i}], v[{36+i}:{37+i}]')
    for i in (0, 2):
        A(f'v_pk_add_f32 v[{16+i}:{17+i}], v[{16+i}:{17+i}], v[{24+i}:{25+i}]'); A(f'v_pk_add_f32 v[{32+i}:{33+i}], v[{32+i}:{33+i}], v[{40+i}:{41+i}]')
    for i in (0, 2): A(f'v_pk_add_f32 v[{16+i}:{17+i}], v[{16+i}:{17+i}], v[{32+i}:{33+i}]')
    g.nop(2)
    reduce4_hi(g, [16, 17, 18, 19])
    A('s_waitcnt lgkmcnt(0)')
    rnd(g, 16, 16); A(f'v_mul_f32 v16, v{GBR}, v16'); rnd(g, 16, 16); A('v_add_f32 v16, v15, v16')
    A('v_cvt_pk_bf16_f32 v16, v16, v16')
    A('s_mov_b32 exec_lo, 0x00ff00ff'); A('s_mov_b32 exec_hi, 0x00ff00ff')
    A('global_store_short v12, v16, s[38:39]')
    A('s_cmp_lg_u32 s57, 0'); A('s_cbranch_scc1 L_fin_noepoch')
    A('s_mov_b64 exec, 1'); A('v_mov_b32 v13, 0')
    A(f'global_store_dword v13, v{TAG}, s[42:43] sc1')
    g.label('L_fin_noepoch')
    A('s_mov_b64 exec, -1')
    g.stamp(15)
    g.label('L_end'); A('s_endpgm')
    for s in ['.section .rodata,"a"', '.p2align 6', f'.amdhsa_kernel {NAME}_kernel', '  .amdhsa_next_free_vgpr 256',
              '  .amdhsa_next_free_sgpr 102', '  .amdhsa_accum_offset 256', '  .amdhsa_group_segment_fixed_size 0',
              '  .amdhsa_kernarg_size 112', '  .amdhsa_user_sgpr_count 2', '  .amdhsa_user_sgpr_kernarg_segment_ptr 1',
              '  .amdhsa_system_sgpr_workgroup_id_x 1', '.end_amdhsa_kernel']: g.L.append(s)
    return '\n'.join(g.L) + '\n'

if __name__ == '__main__':
    import argparse
    ap = argparse.ArgumentParser()
    ap.add_argument('out'); ap.add_argument('--ts', action='store_true')
    ap.add_argument('--nsb', type=int, default=56); ap.add_argument('--exp', default='')
    ap.add_argument('--depth', type=int, default=8); ap.add_argument('--lead', type=int, default=3); ap.add_argument('--leadv', type=int, default=5)
    ap.add_argument('--header', default='')
    for k, d in (('opsl', 1), ('apth', 4), ('apsl', 8), ('psl', 2), ('sing', 24), ('mlsl', 8)): ap.add_argument('--' + k, type=int, default=d)
    a = ap.parse_args()
    hdr = ''
    if a.header:
        hdr = ''.join(l for l in open(a.header) if l.startswith(';') and '@launch' not in l)
    open(a.out, 'w').write(build(ts=a.ts, nsb=a.nsb, exp=a.exp, depth=a.depth, lead=a.lead, leadv=a.leadv, header=hdr, opsl=a.opsl, apth=a.apth, apsl=a.apsl, psl=a.psl, sing=a.sing, mlsl=a.mlsl))
```

```python
import sys, struct
NAME = 'adaLN_cond__mha_block_cached__glu_gated_geglu__decode'
def f2u(x): return struct.unpack('<I', struct.pack('<f', x))[0]

WS_MOD   = 0x1000
WS_ML    = 0x4000
WS_CNT   = 0x8000
WS_XF    = 0xA000
WS_OP    = 0x10000
WS_AP    = 0x30000
WS_DP    = 0x40000
WS_QX    = 0x60000
WS_TS    = 0xC0000
WS_SCG   = 0x200000
L_CNT  = 0x0000
L_KD   = 0x0040
L_PROG = 0x0060
L_PROGV = 0x0070
L_TAG  = 0x0100
L_MODP = 0x0200
L_HV   = 0x0400
L_QP   = 0x0C00
L_OB   = 0x1400
L_OV   = 0x1C00
L_AW   = 0x1E00
L_MV   = 0x2200
L_Q    = 0x2F00
L_QV   = 0x3100
L_SC   = 0x3400
L_AS   = L_SC + 0x0000
L_DW   = L_SC + 0x2000
L_XF   = L_SC + 0x4000
L_ST   = L_SC + 0x10000
LDS_BYTES = L_ST + 0x10000
MAXROWS = 96
Q_DONE = 0xfffffffe
NMLP = 56
NFIN = 16
SPIN_MAX = 1 << 17
LOG2E = f2u(1.4426950408889634)
NS = 48

class G:
    def __init__(self, ts=False, tsmask=None):
        self.L = []; self.ts = ts; self.lbl = 0; self.tsmask = tsmask; self.role = 'S'; self.ldf = ' sc1'; self.stf = ' sc1'; self.w0only = False
    def A(self, s):
        if s.endswith(' sc1') and 'atomic' not in s:
            if 'load' in s: s = s[:-4] + self.ldf
            else: s = s[:-4] + self.stf
        self.L.append('  ' + s)
        if '_store_dwordx4' in s or '_store_dwordx3' in s: self.L.append('  s_nop 1')
    def label(self, s): self.L.append(s + ':')
    def newlabel(self, p='L'):
        self.lbl += 1; return f'{p}_{self.lbl}'
    def nop(self, n): self.A(f's_nop {n-1}')
    def stamp(self, slot, sreg=None):
        if not self.ts: return
        if self.tsmask is not None and (self.role, slot) not in self.tsmask: return
        if self.tsmask is None and self.role == 'M': return
        A = self.A
        if self.w0only:
            A('s_cmp_lg_u32 s3, 0'); lb = self.newlabel('L_ns'); A(f's_cbranch_scc1 {lb}')
        if sreg is None:
            A('s_memrealtime s[96:97]'); A('s_waitcnt lgkmcnt(0)')
            A('v_mov_b32 v60, s96'); A('v_mov_b32 v61, s97')
        else:
            A(f'v_mov_b32 v60, {sreg}'); A('v_mov_b32 v61, 0')
        A('v_mov_b32 v62, s95')
        A('s_mov_b64 s[98:99], exec'); A('s_mov_b64 exec, 1')
        A(f'global_store_dwordx2 v62, v[60:61], s[42:43] offset:{slot*8}')
        A('s_mov_b64 exec, s[98:99]')
        if self.w0only: self.label(lb)

def dbgt(g, exp, idx, cond):
    if 'dbgt' not in exp: return
    A = g.A; lb = g.newlabel('L_dbgt')
    for c in cond: A(c); A(f's_cbranch_scc1 {lb}')
    A('s_memrealtime s[92:93]'); A('s_waitcnt lgkmcnt(0)'); A('s_sub_u32 s92, s92, s90')
    A('v_mov_b32 v60, s92'); A(f'v_mov_b32 v61, {4*idx}')
    A('s_mov_b64 s[98:99], exec'); A('s_mov_b64 exec, 1'); A('global_store_dword v61, v60, s[40:41]'); A('s_mov_b64 exec, s[98:99]')
    g.label(lb)

def rnd(g, d, s): g.A(f'v_cvt_pk_bf16_f32 v{d}, 0, v{s}')

def swap_reduce8(g, *sets):
    A = g.A
    g.nop(2)
    for r in sets:
        for i in range(4): A(f'v_permlane32_swap_b32 v{r[i]}, v{r[i+4]}')
    for r in sets:
        for i in range(4): A(f'v_add_f32 v{r[i]}, v{r[i]}, v{r[i+4]}')
    if len(sets) == 1: g.nop(1)
    for r in sets:
        for i in range(2): A(f'v_permlane16_swap_b32 v{r[i]}, v{r[i+2]}')
    for r in sets:
        for i in range(2): A(f'v_add_f32 v{r[i]}, v{r[i]}, v{r[i+2]}')

def row_allreduce(g, regs, op='add', rors=(8, 4, 2, 1)):
    for ro in rors:
        if len(regs) < 3: g.nop(3 - len(regs))
        for r in regs: g.A(f'v_{op}_f32_dpp v{r}, v{r}, v{r} row_ror:{ro} row_mask:0xf bank_mask:0xf')

def wave_allreduce(g, r, t, op='add'):
    A = g.A
    row_allreduce(g, [r], op)
    A(f'v_mov_b32 v{t}, v{r}'); g.nop(2)
    A(f'v_permlane16_swap_b32 v{r}, v{t}'); A(f'v_{op}_f32 v{r}, v{r}, v{t}')
    A(f'v_mov_b32 v{t}, v{r}'); g.nop(2)
    A(f'v_permlane32_swap_b32 v{r}, v{t}'); A(f'v_{op}_f32 v{r}, v{r}, v{t}')

def reduce4_hi(g, r):
    A = g.A
    A(f'v_permlane32_swap_b32 v{r[0]}, v{r[2]}'); A(f'v_permlane32_swap_b32 v{r[1]}, v{r[3]}')
    A(f'v_add_f32 v{r[0]}, v{r[0]}, v{r[2]}'); A(f'v_add_f32 v{r[1]}, v{r[1]}, v{r[3]}'); g.nop(2)
    A(f'v_permlane16_swap_b32 v{r[0]}, v{r[1]}'); A(f'v_add_f32 v{r[0]}, v{r[0]}, v{r[1]}'); g.nop(2)
    A(f'v_add_f32_dpp v{r[0]}, v{r[0]}, v{r[0]} row_ror:8 row_mask:0xf bank_mask:0xf')

def tile_mac(g, acc, data, pP, pL):
    for i in range(4):
        g.A(f'v_dot2c_f32_bf16 v{acc[2*i]}, {pL}, v{data+i}')
        g.A(f'v_dot2c_f32_bf16 v{acc[2*i+1]}, {pP}, v{data+i}')

def divide(g, q, a, b, t0, t1):
    A = g.A
    A(f'v_rcp_f32 v{t0}, v{b}'); g.nop(1)
    A(f'v_mul_f32 v{q}, v{a}, v{t0}')
    A(f'v_fma_f32 v{t1}, -v{q}, v{b}, v{a}')
    A(f'v_fma_f32 v{q}, v{t1}, v{t0}, v{q}')

def sigmoid_mul_n(g, items):
    A = g.A
    for d, x, arg, t0, t1, t2 in items: A(f'v_min_f32 v{t2}, 0x42fc0000, v{arg}')
    for d, x, arg, t0, t1, t2 in items: A(f'v_exp_f32 v{t2}, v{t2}')
    if len(items) == 1: g.nop(1)
    for d, x, arg, t0, t1, t2 in items: A(f'v_add_f32 v{t2}, 1.0, v{t2}')
    for d, x, arg, t0, t1, t2 in items: A(f'v_rcp_f32 v{t0}, v{t2}')
    if len(items) == 1: g.nop(1)
    for d, x, arg, t0, t1, t2 in items: A(f'v_mul_f32 v{d}, v{x}, v{t0}')
    for d, x, arg, t0, t1, t2 in items: A(f'v_fma_f32 v{t1}, -v{d}, v{t2}, v{x}')
    for d, x, arg, t0, t1, t2 in items: A(f'v_fma_f32 v{d}, v{t1}, v{t0}, v{d}')

def ln_stats(g, xs, mean_bf, sd, t):
    A = g.A
    A(f'v_pk_add_f32 v[{t[0]}:{t[1]}], v[{xs[0]}:{xs[1]}], v[{xs[2]}:{xs[3]}]')
    A(f'v_pk_add_f32 v[{t[2]}:{t[3]}], v[{xs[4]}:{xs[5]}], v[{xs[6]}:{xs[7]}]')
    A(f'v_pk_add_f32 v[{t[0]}:{t[1]}], v[{t[0]}:{t[1]}], v[{t[2]}:{t[3]}]')
    A(f'v_add_f32 v{t[0]}, v{t[0]}, v{t[1]}')
    wave_allreduce(g, t[0], t[1])
    A(f'v_mul_f32 v{t[0]}, 0x3b000000, v{t[0]}')
    rnd(g, mean_bf, t[0])
    for i in range(4): A(f'v_sub_f32 v{t[2+i]}, v{xs[i]}, v{t[0]}')
    A(f'v_mul_f32 v{t[6]}, v{t[2]}, v{t[2]}'); A(f'v_mul_f32 v{t[7]}, v{t[3]}, v{t[3]}')
    A(f'v_fmac_f32 v{t[6]}, v{t[4]}, v{t[4]}'); A(f'v_fmac_f32 v{t[7]}, v{t[5]}, v{t[5]}')
    for i in range(4): A(f'v_sub_f32 v{t[2+i]}, v{xs[4+i]}, v{t[0]}')
    A(f'v_fmac_f32 v{t[6]}, v{t[2]}, v{t[2]}'); A(f'v_fmac_f32 v{t[7]}, v{t[3]}, v{t[3]}')
    A(f'v_fmac_f32 v{t[6]}, v{t[4]}, v{t[4]}'); A(f'v_fmac_f32 v{t[7]}, v{t[5]}, v{t[5]}')
    A(f'v_add_f32 v{t[2]}, v{t[6]}, v{t[7]}')
    wave_allreduce(g, t[2], t[1])
    A(f'v_mul_f32 v{t[2]}, 0x3b000000, v{t[2]}')
    rnd(g, t[2], t[2])
    A(f'v_add_f32 v{t[2]}, {hex(f2u(1e-5))}, v{t[2]}')
    rnd(g, t[2], t[2])
    A(f'v_sqrt_f32 v{t[0]}, v{t[2]}'); g.nop(1)
    A(f'v_rcp_f32 v{t[1]}, v{t[0]}')
    A(f'v_fma_f32 v{t[3]}, -v{t[0]}, v{t[0]}, v{t[2]}')
    A(f'v_mul_f32 v{t[1]}, 0.5, v{t[1]}')
    A(f'v_fma_f32 v{t[0]}, v{t[3]}, v{t[1]}, v{t[0]}')
    rnd(g, sd, t[0])

def modulate_n(g, items, mean_bf, sd, rcp_sd):
    A = g.A
    for d, x, c, s, t0, t1 in items: A(f'v_sub_f32 v{t0}, v{x}, v{mean_bf}')
    for d, x, c, s, t0, t1 in items: rnd(g, t0, t0)
    for d, x, c, s, t0, t1 in items: A(f'v_mul_f32 v{d}, v{t0}, v{rcp_sd}')
    for d, x, c, s, t0, t1 in items: A(f'v_fma_f32 v{t1}, -v{d}, v{sd}, v{t0}')
    for d, x, c, s, t0, t1 in items: A(f'v_fma_f32 v{d}, v{t1}, v{rcp_sd}, v{d}')
    for d, x, c, s, t0, t1 in items: rnd(g, d, d)
    for d, x, c, s, t0, t1 in items: A(f'v_mul_f32 v{d}, v{d}, v{c}')
    for d, x, c, s, t0, t1 in items: rnd(g, d, d)
    for d, x, c, s, t0, t1 in items: A(f'v_add_f32 v{d}, v{d}, v{s}')
    for d, x, c, s, t0, t1 in items: rnd(g, d, d)

def unpack(g, dst, src, n=4):
    for i in range(n):
        g.A(f'v_lshlrev_b32 v{dst[2*i]}, 16, v{src+i}')
        g.A(f'v_and_b32 v{dst[2*i+1]}, 0xffff0000, v{src+i}')

def to_p(g, regs, M, IL, slog):
    A = g.A
    for r in regs: A(f'v_sub_f32 v{r}, v{r}, v{M}')
    for r in regs: A(f'v_mul_f32 v{r}, {slog}, v{r}')
    for r in regs: A(f'v_exp_f32 v{r}, v{r}')
    for r in regs: A(f'v_mul_f32 v{r}, v{r}, v{IL}')
    for r in regs: rnd(g, r, r)

def srd(g, d, base, nbytes):
    g.A(f's_mov_b32 s{d}, s{base}'); g.A(f's_mov_b32 s{d+1}, s{base+1}')
    g.A(f's_mov_b32 s{d+2}, {hex(nbytes)}'); g.A(f's_mov_b32 s{d+3}, 0x20000')

def poll(g, loads, check, sleep=1):
    A = g.A
    l = g.newlabel('L_poll'); done = g.newlabel('L_poll_done')
    A('s_mov_b64 s[68:69], exec'); A(f's_mov_b32 s70, {SPIN_MAX}')
    g.label(l)
    loads()
    A('s_waitcnt vmcnt(0)')
    check()
    A(f's_cbranch_vccz {done}')
    A('s_mov_b64 exec, vcc')
    A('s_sub_u32 s70, s70, 1'); A('s_cmp_eq_u32 s70, 0'); A(f's_cbranch_scc1 {done}')
    if sleep: A(f's_sleep {sleep}')
    A(f's_branch {l}')
    g.label(done)
    A('s_mov_b64 exec, s[68:69]')

def multi_poll(g, pref, n, load, base, t, ladder):
    A = g.A
    for i in range(n): A(f's_mov_b64 s[{72+2*i}:{73+2*i}], -1')
    A(f's_mov_b32 s70, {SPIN_MAX}')
    g.label(f'{pref}_poll')
    for i in range(n):
        lb = g.newlabel(f'{pref}_skip')
        A(f's_mov_b64 exec, s[{72+2*i}:{73+2*i}]'); A(f's_cbranch_execz {lb}')
        A(load(i))
        g.label(lb)
    A('s_mov_b32 s71, 0')
    A('s_waitcnt vmcnt(0)')
    for i in range(n):
        lb = g.newlabel(f'{pref}_skip')
        r = base + 4*i
        A(f's_mov_b64 exec, s[{72+2*i}:{73+2*i}]'); A(f's_cbranch_execz {lb}')
        A(f'v_max3_u32 v{t}, v{r}, v{r+1}, v{r+2}'); A(f'v_max_u32 v{t}, v{t}, v{r+3}')
        A(f'v_cmp_eq_u32 vcc, -1, v{t}')
        A(f's_mov_b64 s[{72+2*i}:{73+2*i}], vcc'); A('s_bcnt1_i32_b64 s50, vcc'); A('s_add_u32 s71, s71, s50')
        g.label(lb)
    A('s_cmp_eq_u32 s71, 0'); A(f's_cbranch_scc1 {pref}_done')
    A('s_sub_u32 s70, s70, 1'); A('s_cmp_eq_u32 s70, 0'); A(f's_cbranch_scc1 {pref}_done')
    for th, sl in reversed(ladder):
        A(f's_cmp_le_u32 s71, {th}'); A(f's_cbranch_scc1 {pref}_poll')
        if sl: A(f's_sleep {sl}')
    A(f's_branch {pref}_poll')
    g.label(f'{pref}_done')
    A('s_mov_b64 exec, -1')

def chk_tags(g, regs, tag):
    def f():
        g.A(f'v_cmp_ne_u32 vcc, v{regs[0]}, v{tag}')
        for r in regs[1:]:
            g.A(f'v_cmp_ne_u32 s[60:61], v{r}, v{tag}'); g.A('s_or_b64 vcc, vcc, s[60:61]')
    return f
def chk_sent(g, regs, t):
    def f():
        g.A(f'v_max3_u32 v{t}, v{regs[0]}, v{regs[1]}, v{regs[2]}')
        rest = regs[3:]
        while len(rest) >= 2:
            g.A(f'v_max3_u32 v{t}, v{t}, v{rest[0]}, v{rest[1]}'); rest = rest[2:]
        if rest: g.A(f'v_max_u32 v{t}, v{t}, v{rest[0]}')
        g.A(f'v_cmp_eq_u32 vcc, -1, v{t}')
    return f

def last_arriver(g, idx, skip):
    A = g.A
    A('v_mov_b32 v11, 1'); A('v_mov_b32 v12, 0')
    A('s_mov_b64 exec, 1')
    A(f'ds_add_rtn_u32 v13, v12, v11 offset:{L_CNT + 4*idx}')
    A('s_mov_b64 exec, -1')
    A('s_waitcnt lgkmcnt(0)')
    A('v_readfirstlane_b32 s50, v13')
    g.nop(1)
    A('s_cmp_lg_u32 s50, 3'); A(f's_cbranch_scc1 {skip}')

def sum4x4(g, r, sanitize=True):
    A = g.A
    for i in (0, 2):
        A(f'v_pk_add_f32 v[{r+i}:{r+i+1}], v[{r+i}:{r+i+1}], v[{r+4+i}:{r+5+i}]')
        A(f'v_pk_add_f32 v[{r+8+i}:{r+9+i}], v[{r+8+i}:{r+9+i}], v[{r+12+i}:{r+13+i}]')
    for i in (0, 2): A(f'v_pk_add_f32 v[{r+i}:{r+i+1}], v[{r+i}:{r+i+1}], v[{r+8+i}:{r+9+i}]')
    if sanitize:
        for i in range(4): A(f'v_min_u32 v{r+i}, -2, v{r+i}')

def build(ts=False, nsb=56, exp='', depth=8, lead=3, leadv=5, header='', opsl=1, apth=4, apsl=8, psl=2, sing=24, mlsl=8):
    tsmask = None
    if 'tailts' in exp: tsmask = {('S', 0), ('S', 6), ('S', 7)} | {('H', i) for i in (10, 11, 12, 13, 14, 15)}
    if 'prog' in exp: tsmask = {('S', 0), ('S', 3), ('S', 5), ('S', 6)}
    if 'mlpts' in exp: tsmask = {('S', 0), ('S', 6)} | {('H', i) for i in (13, 14, 15)} | {('M', i) for i in range(1, 10)}
    g = G(ts, tsmask); A = g.A
    g.w0only = 'prog' in exp
    if 'ld01' in exp: g.ldf = ' sc0 sc1'
    if 'st01' in exp: g.stf = ' sc0 sc1'
    if 'ldnt' in exp: g.ldf = ' sc1 nt'
    if 'stnt' in exp: g.stf = ' sc1 nt'
    NSB = nsb; NPOOL = (64 - NSB)*8; D = depth
    g.L.append(header + f'; @launch grid=(256,1,1) block=(512,1,1) lds={LDS_BYTES}')
    g.L.append('.amdgcn_target "amdgcn-amd-amdhsa--gfx950"')
    g.L.append('.text'); g.L.append(f'.globl {NAME}_kernel'); g.L.append('.p2align 8')
    g.L.append(f'.type {NAME}_kernel,@function'); g.label(f'{NAME}_kernel')
    A('s_cmp_ge_u32 s2, 256'); A('s_cbranch_scc1 L_end')
    A('s_load_dwordx16 s[16:31], s[0:1], 0')
    A('s_load_dwordx8 s[32:39], s[0:1], 64')
    A('s_load_dwordx4 s[40:43], s[0:1], 96')
    A('v_lshrrev_b32 v1, 6, v0'); A('v_and_b32 v0, 63, v0')
    A('v_readfirstlane_b32 s3, v1')
    A('s_lshr_b32 s4, s2, 3'); A('s_and_b32 s5, s2, 7')
    A('s_lshr_b32 s50, s4, 1'); A('s_mul_i32 s51, s50, 3'); A('s_sub_u32 s52, s5, s51'); A('s_and_b32 s52, s52, 7')
    A('s_and_b32 s53, s4, 1')
    A('s_add_u32 s58, s51, s52'); A('s_lshl_b32 s58, s58, 1'); A('s_add_u32 s58, s58, s53'); A('s_cmp_lt_u32 s52, 3'); A('s_cselect_b32 s58, s58, 255')
    A('s_add_u32 s57, s4, 32'); A('s_cmp_eq_u32 s52, 4'); A('s_cselect_b32 s57, s57, 255'); A('s_cmp_eq_u32 s52, 3'); A('s_cselect_b32 s57, s4, s57')
    A('s_and_b32 s6, s3, 3')
    if ts:
        A('s_lshl_b32 s95, s2, 3'); A('s_add_u32 s95, s95, s3'); A('s_lshl_b32 s95, s95, 7'); A(f's_add_u32 s95, s95, {WS_TS}')
    if 'dbgt' in exp: A('s_memrealtime s[90:91]')
    A('s_cmp_ge_u32 s3, 4'); A('s_cbranch_scc1 L_helper')

    VOFF = 1; VL = 2; VL2 = 3; Q = 4
    AA = list(range(8, 16)); BB = list(range(16, 24)); T = list(range(24, 32)); PA = list(range(32, 40)); PB = list(range(40, 48))
    PL = 48; OM = 54; OL = 55; VQA = 56; VQ = 57; VPA = 58; VN = 59
    NB = NS // 8 - 1; NX = 8*NB
    def slot(i): return 64 + 4*i
    def pslot(t): return 8 + t if t < NX else t - NX
    A('s_lshl_b32 s51, s4, 24')
    A(f's_mul_i32 s44, s5, {NSB*32768}'); A('s_add_u32 s44, s44, s51')
    A('s_lshl_b32 s53, s6, 10'); A('s_add_u32 s44, s44, s53'); A('s_mov_b32 s45, s44')
    A(f'v_lshlrev_b32 v{VOFF}, 4, v0')
    A('s_waitcnt lgkmcnt(0)')
    srd(g, 8, 18, 1 << 29); srd(g, 12, 20, 1 << 29)
    g.stamp(0)
    def ld(sl, sr):
        A(f'buffer_load_dwordx4 v[{slot(sl)}:{slot(sl)+3}], v{VOFF}, s[{sr}:{sr+3}], s44 offen nt')
        A('s_add_u32 s44, s44, 4096')
    def prefetch(sr, first, D):
        for t in range(first, NS):
            A(f's_waitcnt vmcnt({D-1})'); ld(pslot(t), sr)
    for t in range(D): ld(pslot(t), 8)
    A('s_barrier')
    A(f'v_lshrrev_b32 v{VL2}, 4, v0'); A(f'v_lshlrev_b32 v{VL2}, 5, v{VL2}')
    A('s_lshl_b32 s46, s6, 14'); A(f's_add_u32 s46, s46, {L_SC}'); A(f'v_add_u32 v{VL2}, s46, v{VL2}')
    A(f'v_bfe_u32 v{VL}, v0, 1, 3'); A(f'v_lshl_add_u32 v{VL}, v{VL}, 2, v{VL2}')
    A('s_mov_b32 s48, 0xcccccccc'); A('s_mov_b32 s49, 0xcccccccc')
    A(f's_mov_b32 s47, {hex(f2u(128 ** -0.5))}'); A(f's_mov_b32 s52, {hex(LOG2E)}')
    A(f'v_mov_b32 v{OM}, 0xff7fffff'); A(f'v_mov_b32 v{OL}, 0')
    A(f'v_mov_b32 v{VPA}, s6'); A(f'v_lshlrev_b32 v{VPA}, 2, v{VPA}')
    A(f'v_and_b32 v50, 15, v0'); A(f'v_lshlrev_b32 v50, 5, v50')
    A(f'v_mov_b32 v{VQA}, {L_Q + 4*(NB+2)}'); A(f'v_mov_b32 v{VN}, {NB+2}')
    A(f's_mov_b32 s70, {SPIN_MAX*64}')
    prefetch(8, D, D)
    g.stamp(1)
    dbgt(g, exp, 1, ['s_cmp_lg_u32 s2, 100', 's_cmp_lg_u32 s3, 0'])
    if 'xb1' not in exp: A('s_barrier')
    g.stamp(2)
    dbgt(g, exp, 2, ['s_cmp_lg_u32 s2, 100', 's_cmp_lg_u32 s3, 0'])
    A(f'ds_read_b128 v[8:11], v50 offset:{L_HV}'); A(f'ds_read_b128 v[12:15], v50 offset:{L_HV + 16}')
    A('s_waitcnt lgkmcnt(0)')
    for i in range(4): A(f'v_cvt_pk_bf16_f32 v{Q+i}, v{8+2*i}, v{9+2*i}')
    def kdot(a, sl):
        A(f'v_mov_b32 v{a}, 0')
        for i in range(4): A(f'v_dot2c_f32_bf16 v{a}, v{slot(sl)+i}, v{Q+i}')
    def kreduce(a, off=None):
        g.nop(3)
        for j in range(4):
            A(f'v_add_f32_dpp v{T[j]}, v{a[j]}, v{a[j]} row_ror:8 row_mask:0xf bank_mask:0x3')
            A(f'v_add_f32_dpp v{T[j]}, v{a[j+4]}, v{a[j+4]} row_ror:8 row_mask:0xf bank_mask:0xc')
        for j in range(2):
            A(f'v_add_f32_dpp v{T[4+j]}, v{T[j]}, v{T[j]} row_half_mirror row_mask:0xf bank_mask:0x5')
            A(f'v_add_f32_dpp v{T[4+j]}, v{T[j+2]}, v{T[j+2]} row_half_mirror row_mask:0xf bank_mask:0xa')
        g.nop(1)
        A(f'v_add_f32_dpp v{T[6]}, v{T[4]}, v{T[4]} quad_perm:[2,3,0,1] row_mask:0xf bank_mask:0xf')
        A(f'v_add_f32_dpp v{T[7]}, v{T[5]}, v{T[5]} quad_perm:[2,3,0,1] row_mask:0xf bank_mask:0xf')
        A(f'v_cndmask_b32 v{T[6]}, v{T[6]}, v{T[7]}, s[48:49]')
        g.nop(2)
        A(f'v_add_f32_dpp v{T[6]}, v{T[6]}, v{T[6]} quad_perm:[1,0,3,2] row_mask:0xf bank_mask:0xf')
        rnd(g, T[6], T[6]); A(f'v_mul_f32 v{T[6]}, s47, v{T[6]}'); rnd(g, T[6], T[6])
        A(f'ds_write_b32 v{VL}, v{T[6]}' + ('' if off is None else f' offset:{off}'))
        A(f'v_max_f32 v{T[0]}, v{OM}, v{T[6]}')
        A(f'v_sub_f32 v{T[1]}, v{OM}, v{T[0]}'); A(f'v_sub_f32 v{T[2]}, v{T[6]}, v{T[0]}')
        A(f'v_mul_f32 v{T[1]}, s52, v{T[1]}'); A(f'v_mul_f32 v{T[2]}, s52, v{T[2]}')
        A(f'v_exp_f32 v{T[1]}, v{T[1]}'); A(f'v_exp_f32 v{T[2]}, v{T[2]}')
        A(f'v_mov_b32 v{OM}, v{T[0]}')
        if off is None: A(f'v_add_u32 v{VL}, 128, v{VL}')
        else: g.nop(1)
        A(f'v_fma_f32 v{OL}, v{OL}, v{T[1]}, v{T[2]}')
    def qread(): A(f'ds_read_b32 v{VQ}, v{VQA}')
    def qtop(pref, prog):
        g.label(f'{pref}_top')
        A('s_waitcnt lgkmcnt(0)')
        A(f'v_readfirstlane_b32 s50, v{VQ}')
        g.nop(1)
        A(f's_cmp_ge_u32 s50, {hex(Q_DONE)}'); A(f's_cbranch_scc1 {pref}_slow')
        A('s_add_u32 s44, s50, s53')
        if ts and ('kprog' in exp and prog == L_PROG or 'vprog' in exp and prog == L_PROGV):
            A(f'v_readfirstlane_b32 s71, v{VN}'); g.nop(2)
            lb = g.newlabel('L_st')
            A('s_and_b32 s72, s71, 7'); A('s_cmp_lg_u32 s72, 0'); A(f's_cbranch_scc1 {lb}')
            A('s_cmp_lg_u32 s3, 0'); A(f's_cbranch_scc1 {lb}')
            A('s_memrealtime s[96:97]'); A('s_waitcnt lgkmcnt(0)')
            A('v_mov_b32 v60, s96'); A('v_mov_b32 v61, s97'); A('s_add_u32 s72, s95, s71'); A('s_add_u32 s72, s72, 128'); A('v_mov_b32 v62, s72')
            A('s_mov_b64 exec, 1'); A('global_store_dwordx2 v62, v[60:61], s[42:43]'); A('s_mov_b64 exec, -1')
            g.label(lb)
        A(f'v_add_u32 v{VQA}, 4, v{VQA}')
        A(f'ds_write_b32 v{VPA}, v{VN} offset:{prog}'); A(f'v_add_u32 v{VN}, 1, v{VN}')
    def qslow(pref):
        g.label(f'{pref}_slow')
        A(f's_cmp_eq_u32 s50, {hex(Q_DONE)}'); A(f's_cbranch_scc1 {pref}_last')
        A('s_sub_u32 s70, s70, 1'); A('s_cmp_eq_u32 s70, 0'); A(f's_cbranch_scc1 {pref}_last')
        A('s_sleep 1'); qread(); A(f's_branch {pref}_top')
        g.label(f'{pref}_last')
    for j in range(8):
        A('s_waitcnt vmcnt(7)')
        kdot(AA[j], j); ld(j, 8)
        for e in range(NB*j, NB*(j+1)):
            kdot(BB[e % 8], 8 + e)
            if e % 8 == 7: kreduce(BB, off=(e // 8)*128)
    qread(); A(f'v_add_u32 v{VL}, {NB*128}, v{VL}'); kreduce(AA)
    g.stamp(8)
    qtop('L_k', L_PROG)
    for j in range(8):
        A('s_waitcnt vmcnt(7)')
        kdot(AA[j], j); ld(j, 8)
        if j == 6: qread()
    kreduce(AA)
    A('s_branch L_k_top')
    qslow('L_k')
    A('s_mov_b32 s44, s45')
    for j in range(8):
        A('s_waitcnt vmcnt(7)')
        kdot(AA[j], j); ld(pslot(j), 12)
    kreduce(AA)
    A(f'v_mov_b32 v{T[0]}, v{OM}')
    wave_allreduce(g, T[0], T[1], 'max')
    A(f'v_sub_f32 v{T[2]}, v{OM}, v{T[0]}'); A(f'v_mul_f32 v{T[2]}, s52, v{T[2]}'); A(f'v_exp_f32 v{T[2]}, v{T[2]}')
    A(f'ds_read_b32 v{T[3]}, v{VPA} offset:{L_TAG}')
    A('s_lshl_b32 s50, s2, 6'); A('s_lshl_b32 s56, s6, 4'); A('s_add_u32 s50, s50, s56')
    A(f'v_mul_f32 v{T[2]}, v{T[2]}, v{OL}')
    wave_allreduce(g, T[2], T[1])
    A(f'v_mul_f32 v{T[2]}, 0.5, v{T[2]}')
    A(f's_add_u32 s50, s50, {WS_ML}'); A(f'v_mov_b32 v{T[4]}, s50')
    A('s_waitcnt lgkmcnt(0)')
    A(f'v_mov_b32 v{T[1]}, v{T[3]}')
    A(f'ds_write_b32 v{VPA}, v{VN} offset:{L_KD}')
    A('s_mov_b64 exec, 1')
    A(f'global_store_dwordx4 v{T[4]}, v[{T[0]}:{T[3]}], s[42:43] sc1')
    A('s_mov_b64 exec, -1')
    g.stamp(3)
    dbgt(g, exp, 3, ['s_cmp_lg_u32 s2, 100', 's_cmp_lg_u32 s3, 0'])
    prefetch(12, 8, 8)
    ACC = AA
    for i in range(8): A(f'v_mov_b32 v{ACC[i]}, 0')
    A(f'v_mov_b32 v{VQA}, {L_QV + 4*(NB+2)}'); A(f'v_mov_b32 v{VN}, {NB+2}')
    g.stamp(4)
    if 'xb2' not in exp: A('s_barrier')
    g.stamp(5)
    dbgt(g, exp, 4, ['s_cmp_lg_u32 s2, 100', 's_cmp_lg_u32 s3, 0'])
    def pread(P, off):
        A(f'ds_read_b128 v[{P[0]}:{P[3]}], v{VL2} offset:{off}'); A(f'ds_read_b128 v[{P[4]}:{P[7]}], v{VL2} offset:{off+16}')
    def vmac(sl, p):
        A(f'v_lshrrev_b32 v{PL}, 16, v{p}')
        tile_mac(g, ACC, slot(sl), f'v{p}', f'v{PL}')
    pread(PA, NB*128); pread(PB, 0)
    PC = BB
    for j in range(8):
        A('s_waitcnt vmcnt(7) lgkmcnt(0)' if j == 0 else 's_waitcnt vmcnt(7)')
        vmac(j, PA[j]); ld(j, 12)
        for e in range(NB*j, NB*(j+1)):
            cur, nxt = (PB, PC) if (e // 8) % 2 == 0 else (PC, PB)
            if e % 8 == 0:
                A('s_waitcnt lgkmcnt(0)')
                if e // 8 + 1 < NB: pread(nxt, (e // 8 + 1)*128)
            vmac(8 + e, cur[e % 8])
    A(f'v_add_u32 v{VL2}, {(NB+1)*128}, v{VL2}')
    qread(); pread(PA, 0)
    g.stamp(10)
    qtop('L_v', L_PROGV)
    for j in range(8):
        A('s_waitcnt vmcnt(7)')
        vmac(j, PA[j]); ld(j, 12)
        if j == 6: qread()
    A(f'v_add_u32 v{VL2}, 128, v{VL2}')
    pread(PA, 0)
    A('s_branch L_v_top')
    qslow('L_v')
    A('v_lshrrev_b32 v51, 4, v0'); A('v_lshl_add_u32 v50, v51, 3, v50')
    A('s_lshl_b32 s46, s6, 9'); A('v_add_u32 v50, s46, v50')
    A('s_lshl_b32 s46, s2, 9'); A(f's_add_u32 s46, s46, {WS_OP}'); A(f'v_add_u32 v51, s46, v{VOFF}')
    for j in range(8):
        A(f's_waitcnt vmcnt({7-j})')
        vmac(j, PA[j])
    g.stamp(6)
    dbgt(g, exp, 5, ['s_cmp_lg_u32 s2, 100', 's_cmp_lg_u32 s3, 0'])
    g.nop(1)
    swap_reduce8(g, ACC)
    A(f'ds_write_b64 v50, v[{ACC[0]}:{ACC[1]}] offset:{L_OB}')
    A('s_waitcnt lgkmcnt(0)')
    A('s_barrier')
    if 'notail' in exp: A('s_branch L_end')
    A('s_cmp_lg_u32 s3, 0'); A('s_cbranch_scc1 L_s_after_pub')
    A('s_mov_b64 exec, 0xffffffff')
    for w in range(4): A(f'ds_read_b128 v[{8+4*w}:{11+4*w}], v{VOFF} offset:{L_OB + 512*w}')
    A('s_waitcnt lgkmcnt(0)')
    sum4x4(g, 8)
    A('global_store_dwordx4 v51, v[8:11], s[42:43] sc1')
    A('s_mov_b64 exec, -1')
    g.stamp(7)
    g.label('L_s_after_pub')
    if 'xstage' in exp: A('s_branch L_end')
    A(f's_cmp_ge_u32 s57, {NMLP}'); A('s_cbranch_scc1 L_end')
    A('s_branch L_gather_ap')

    g.label('L_helper'); g.role = 'H'
    WQ = 64; WM = 192; CC = 52; X8 = 56; X4 = 46; TAG = 49; MEAN = 40; SD = 41; RSD = 42
    A('v_lshrrev_b32 v1, 2, v0'); A('v_and_b32 v2, 3, v0')
    A('s_lshl_b32 s7, s6, 7')
    A('v_add_u32 v3, s7, v1')
    A('v_lshlrev_b32 v4, 2, v0'); A('s_lshl_b32 s50, s6, 8'); A('v_add_u32 v4, s50, v4')
    A('s_movk_i32 s50, 6144'); A('v_mul_lo_u32 v5, v3, s50'); A('v_lshl_add_u32 v5, v2, 4, v5')
    A('v_lshlrev_b32 v6, 4, v0')
    A('s_lshl_b32 s50, s5, 6'); A('s_lshl_b32 s51, s6, 4'); A('s_add_u32 s50, s50, s51')
    A('v_lshrrev_b32 v7, 4, v0'); A('v_lshl_add_u32 v7, v7, 2, s50')
    A('v_lshlrev_b32 v10, 1, v7')
    A('v_lshlrev_b32 v9, 13, v7'); A('v_and_b32 v11, 15, v0'); A('v_lshl_add_u32 v9, v11, 4, v9')
    A('v_mov_b32 v8, 0')
    A('s_waitcnt lgkmcnt(0)')
    g.stamp(0)
    A(f'global_load_dword v{TAG}, v8, s[42:43]')
    A('s_cmp_ge_u32 s58, 96'); A('s_cbranch_scc1 L_h_noprod1')
    srd(g, 8, 36, 512*3072*2)
    A(f'global_load_dword v{CC}, v4, s[34:35]')
    A('s_lshl_b32 s50, s58, 6')
    for j in range(0 if 'xwm' in exp else 8):
        A(f'buffer_load_dwordx4 v[{WM+4*j}:{WM+4*j+3}], v5, s[8:11], s50 offen' + (' nt' if 'wdef' not in exp else ''))
        if j < 7: A(f's_add_u32 s50, s50, {6144*16}')
    g.label('L_h_noprod1')
    A('s_lshl_b32 s50, s5, 3'); A('s_add_u32 s50, s50, s3'); A('s_cmp_lg_u32 s50, 4'); A('s_cbranch_scc1 L_h_nocinit')
    A('v_and_b32 v11, 1, v0'); A('v_lshlrev_b32 v11, 7, v11'); A(f's_lshl_b32 s50, s4, 8'); A(f's_add_u32 s50, s50, {WS_CNT}'); A('v_add_u32 v11, s50, v11')
    A('s_mov_b64 exec, 3')
    A('global_store_dword v11, v8, s[42:43] sc1')
    A('s_mov_b64 exec, -1')
    g.label('L_h_nocinit')
    A(f'global_load_dwordx4 v[{X8}:{X8+3}], v6, s[16:17]')
    A(f'global_load_dwordx2 v[{X4}:{X4+1}], v10, s[16:17]')
    srd(g, 12, 22, 512*4096*2)
    A('s_lshl_b32 s50, s4, 8')
    for j in range(0 if 'xwq' in exp else 4):
        A(f'buffer_load_dwordx4 v[{WQ+4*j}:{WQ+4*j+3}], v9, s[12:15], s50 offen nt')
        if j < 3: A('s_add_u32 s50, s50, 8192')
    A('s_cmp_lg_u32 s3, 4'); A('s_cbranch_scc1 L_h_nozero')
    A('v_lshlrev_b32 v10, 2, v0')
    A(f'ds_write_b32 v10, v8 offset:{L_CNT}')
    A('s_lshl_b32 s51, s4, 24'); A(f's_mul_i32 s50, s5, {NSB*32768}'); A('s_add_u32 s50, s50, s51')
    A('v_lshlrev_b32 v11, 15, v0'); A('v_add_u32 v11, s50, v11'); A('v_mov_b32 v12, -1')
    A(f'v_cmp_gt_u32 vcc, {NSB}, v0'); g.nop(2); A('v_cndmask_b32 v11, v12, v11, vcc')
    for q in (L_Q, L_QV):
        A(f'ds_write_b32 v10, v11 offset:{q}'); A(f'ds_write_b32 v10, v12 offset:{q + 256}')
    A('s_waitcnt lgkmcnt(0)')
    g.label('L_h_nozero')
    A('s_barrier')
    A('s_cmp_ge_u32 s58, 96'); A('s_cbranch_scc1 L_h_w1')
    A('s_waitcnt vmcnt(14)'); A('s_branch L_h_w2')
    g.label('L_h_w1')
    A('s_waitcnt vmcnt(4)')
    g.label('L_h_w2')
    A('s_mov_b32 s50, 0x9e3779b1')
    A(f'v_mul_lo_u32 v{TAG}, v{TAG}, s50'); A(f'v_add_u32 v{TAG}, 0x7f4a7c15, v{TAG}')
    A('v_mov_b32 v10, s6'); A('v_lshlrev_b32 v10, 2, v10'); A(f'ds_write_b32 v10, v{TAG} offset:{L_TAG}')
    g.stamp(1)
    A('s_cmp_ge_u32 s58, 96'); A('s_cbranch_scc1 L_h_noprod2')
    CV = list(range(16, 24)); ACC = list(range(24, 32))
    unpack(g, [32, 33], CC, 1)
    for i in range(2): A(f'v_mul_f32 v{80+i}, {hex(f2u(-1.4426950408889634))}, v{32+i}')
    sigmoid_mul_n(g, [(88+i, 32+i, 80+i, 96+i, 104+i, 112+i) for i in range(2)])
    for i in range(2): rnd(g, 88+i, 88+i)
    A('v_and_b32 v10, 7, v0'); A('v_lshlrev_b32 v10, 6, v10'); A('v_lshrrev_b32 v11, 3, v0'); A('v_lshl_add_u32 v10, v11, 2, v10')
    A('s_lshl_b32 s50, s6, 9'); A('v_add_u32 v10, s50, v10')
    A(f'ds_write_b32 v10, v88 offset:{L_QP}'); A(f'ds_write_b32 v10, v89 offset:{L_QP + 32}')
    A('v_lshl_add_u32 v10, v1, 5, s50')
    A(f'ds_read_b128 v[16:19], v10 offset:{L_QP}'); A(f'ds_read_b128 v[20:23], v10 offset:{L_QP + 16}')
    A('s_waitcnt vmcnt(0) lgkmcnt(0)' if 'xwq' in exp else 's_waitcnt vmcnt(6) lgkmcnt(0)')
    for i in range(8): A(f'v_mov_b32 v{ACC[i]}, 0'); A(f'v_lshrrev_b32 v{80+i}, 16, v{CV[i]}')
    for j in range(8): tile_mac(g, ACC, WM + 4*j, f'v{CV[j]}', f'v{80+j}')
    A('v_lshrrev_b32 v10, 4, v0'); A('v_lshlrev_b32 v10, 3, v10'); A('v_lshl_add_u32 v10, v2, 5, v10')
    A('v_add_u32 v10, s7, v10')
    swap_reduce8(g, ACC)
    row_allreduce(g, ACC[:2], rors=(8, 4))
    A(f'ds_write_b64 v10, v[{ACC[0]}:{ACC[1]}] offset:{L_MODP}')
    last_arriver(g, 0, 'L_h_noprod2')
    A('v_and_b32 v11, 7, v0'); A('v_lshlrev_b32 v11, 4, v11')
    for w in range(4): A(f'ds_read_b128 v[{16+4*w}:{19+4*w}], v11 offset:{L_MODP + 128*w}')
    A('s_lshl_b32 s50, s58, 7'); A(f's_add_u32 s50, s50, {WS_MOD}'); A('v_add_u32 v10, s50, v11')
    A('s_mov_b64 exec, 0xff')
    A('s_waitcnt lgkmcnt(0)')
    sum4x4(g, 16, False)
    A('v_cvt_pk_bf16_f32 v16, v16, v17'); A('v_cvt_pk_bf16_f32 v18, v18, v19'); A(f'v_mov_b32 v17, v{TAG}'); A(f'v_mov_b32 v19, v{TAG}')
    A('global_store_dwordx4 v10, v[16:19], s[42:43] sc1')
    A('s_mov_b64 exec, -1')
    g.stamp(2)
    g.label('L_h_noprod2')
    A('s_waitcnt vmcnt(4)')
    XS = list(range(16, 24))
    unpack(g, XS, X8)
    ln_stats(g, XS, MEAN, SD, list(range(32, 40)))
    A(f'v_rcp_f32 v{RSD}, v{SD}')
    A(f's_mov_b32 s50, {WS_MOD}')
    A('v_lshlrev_b32 v10, 2, v7'); A('v_add_u32 v10, s50, v10')
    unpack(g, [16, 17, 18, 19], X4, 2)
    def lds_():
        A('global_load_dwordx4 v[24:27], v10, s[42:43] sc1'); A('global_load_dwordx4 v[28:31], v10, s[42:43] offset:2048 sc1')
    poll(g, lds_, chk_tags(g, [25, 27, 29, 31], TAG), sleep=psl)
    g.stamp(3)
    for k, src in enumerate((24, 26)):
        A(f'v_lshlrev_b32 v{20+2*k}, 16, v{src}'); A(f'v_and_b32 v{21+2*k}, 0xffff0000, v{src}')
    for k, src in enumerate((28, 30)):
        A(f'v_lshlrev_b32 v{32+2*k}, 16, v{src}'); A(f'v_and_b32 v{33+2*k}, 0xffff0000, v{src}')
    for i in range(4): A(f'v_add_f32 v{32+i}, 1.0, v{32+i}')
    for i in range(4): rnd(g, 32+i, 32+i)
    modulate_n(g, [(36+i, 16+i, 32+i, 20+i, 80+i, 84+i) for i in range(4)], MEAN, SD, RSD)
    ACC = list(range(24, 32))
    for i in range(8): A(f'v_mov_b32 v{ACC[i]}, 0')
    for j in range(4): A(f'v_lshrrev_b32 v{80+j}, 16, v{36+j}')
    for j in range(4): tile_mac(g, ACC, WQ + 4*j, f'v{36+j}', f'v{80+j}')
    A('v_and_b32 v10, 15, v0'); A('v_lshlrev_b32 v10, 5, v10'); A('v_lshrrev_b32 v11, 4, v0'); A('v_lshl_add_u32 v10, v11, 3, v10')
    A('s_lshl_b32 s50, s6, 9'); A('v_add_u32 v10, s50, v10')
    swap_reduce8(g, ACC)
    A(f'ds_write_b64 v10, v[{ACC[0]}:{ACC[1]}] offset:{L_QP}')
    A('v_lshlrev_b32 v10, 3, v0')
    last_arriver(g, 1, 'L_h_noqpub')
    for w in range(4): A(f'ds_read_b64 v[{16+2*w}:{17+2*w}], v10 offset:{L_QP + 512*w}')
    A('s_lshl_b32 s50, s2, 10'); A(f's_add_u32 s50, s50, {WS_QX}'); A('v_add_u32 v10, s50, v6')
    A('s_waitcnt lgkmcnt(0)')
    A('v_pk_add_f32 v[16:17], v[16:17], v[18:19]'); A('v_pk_add_f32 v[20:21], v[20:21], v[22:23]'); A('v_pk_add_f32 v[16:17], v[16:17], v[20:21]')
    A(f'v_mov_b32 v19, v{TAG}'); A('v_mov_b32 v18, v17'); A(f'v_mov_b32 v17, v{TAG}')
    A('global_store_dwordx4 v10, v[16:19], s[42:43] sc1')
    g.label('L_h_noqpub')
    A('s_lshl_b32 s50, s4, 13'); A('s_lshl_b32 s51, s6, 8'); A('s_add_u32 s50, s50, s51'); A(f's_add_u32 s50, s50, {WS_QX}')
    A('v_lshrrev_b32 v10, 3, v0'); A('v_lshlrev_b32 v10, 10, v10'); A('v_and_b32 v11, 7, v0'); A('v_lshl_add_u32 v10, v11, 5, v10')
    A('v_add_u32 v10, s50, v10')
    A('v_lshlrev_b32 v48, 4, v11'); A('v_bfe_u32 v13, v0, 5, 1'); A('v_lshl_add_u32 v48, v13, 3, v48')
    A('v_bfe_u32 v13, v0, 4, 1'); A('v_lshl_add_u32 v48, v13, 2, v48'); A('v_add_u32 v12, s7, v48')
    def lds_():
        A('global_load_dwordx4 v[24:27], v10, s[42:43] sc1'); A('global_load_dwordx4 v[28:31], v10, s[42:43] offset:16 sc1')
    poll(g, lds_, chk_tags(g, [25, 27, 29, 31], TAG), sleep=psl)
    reduce4_hi(g, [24, 26, 28, 30])
    A(f'ds_write_b32 v12, v24 offset:{L_HV}')
    A('s_waitcnt lgkmcnt(0)')
    g.stamp(4)
    if 'xb1' not in exp: A('s_barrier')
    if 'xclr' in exp: A('s_branch L_h_noclear')
    A('s_cmp_lg_u32 s3, 7'); A('s_cbranch_scc1 L_h_noclear')
    for i in range(4): A(f'v_mov_b32 v{16+i}, -1')
    A('s_lshl_b32 s51, s2, 9'); A(f's_add_u32 s51, s51, {WS_OP}'); A('v_add_u32 v10, s51, v6')
    A('v_and_b32 v11, 15, v0'); A('v_lshlrev_b32 v11, 4, v11'); A('v_lshrrev_b32 v12, 4, v0'); A('v_lshl_add_u32 v11, v12, 16, v11')
    A('s_lshl_b32 s51, s2, 8'); A(f's_add_u32 s51, s51, {WS_AP}'); A('v_add_u32 v11, s51, v11'); A('v_add_u32 v12, 0x40000, v11')
    A('s_mov_b64 exec, 0xffffffff')
    A('global_store_dwordx4 v10, v[16:19], s[42:43] sc1')
    A('s_mov_b64 exec, 0xffff')
    A('global_store_dwordx4 v11, v[16:19], s[42:43] sc1')
    A('s_mov_b64 exec, -1')
    A(f's_cmp_ge_u32 s57, {NMLP}'); A('s_cbranch_scc1 L_h_noclear')
    A('s_lshl_b32 s51, s57, 11'); A(f's_add_u32 s51, s51, {WS_DP}'); A('v_add_u32 v10, s51, v6')
    A('global_store_dwordx4 v10, v[16:19], s[42:43] sc1')
    A('global_store_dwordx4 v10, v[16:19], s[42:43] offset:1024 sc1')
    g.label('L_h_noclear')
    WO = 64; WG = 80; WU = 112; WD = 144; E = 192
    srd(g, 8, 24, 4096*512*2)
    A('v_lshrrev_b32 v10, 3, v0'); A('v_lshlrev_b32 v10, 2, v10')
    A('s_lshl_b32 s50, s4, 7'); A('s_lshl_b32 s51, s6, 5'); A('s_add_u32 s50, s50, s51')
    A('v_add_u32 v10, s50, v10'); A('v_lshlrev_b32 v10, 10, v10')
    A('v_and_b32 v11, 7, v0'); A('v_lshl_add_u32 v10, v11, 4, v10')
    A('s_lshl_b32 s50, s5, 7')
    for j in range(0 if 'xwo' in exp else 4):
        A(f'buffer_load_dwordx4 v[{WO+4*j}:{WO+4*j+3}], v10, s[8:11], s50 offen offset:{1024*j} nt')
    A(f's_cmp_ge_u32 s57, {NMLP}'); A('s_cbranch_scc1 L_h_nomlpw')
    srd(g, 8, 28, 512*1792*2); srd(g, 12, 30, 512*1792*2)
    A('s_movk_i32 s50, 3584'); A('v_mul_lo_u32 v10, v3, s50'); A('v_lshl_add_u32 v10, v2, 4, v10')
    A('s_lshl_b32 s50, s57, 6')
    for j in range(0 if 'xgu' in exp else 8):
        A(f'buffer_load_dwordx4 v[{WG+4*j}:{WG+4*j+3}], v10, s[8:11], s50 offen' + (' nt' if 'wdef' not in exp else ''))
        A(f'buffer_load_dwordx4 v[{WU+4*j}:{WU+4*j+3}], v10, s[12:15], s50 offen' + (' nt' if 'wdef' not in exp else ''))
        if j < 7: A(f's_add_u32 s50, s50, {3584*16}')
    srd(g, 8, 32, 1792*512*2)
    A('s_lshl_b32 s50, s57, 5'); A('s_lshl_b32 s51, s6, 3'); A('s_add_u32 s50, s50, s51'); A('s_lshl_b32 s50, s50, 10')
    for j in range(0 if 'xwd' in exp else 8):
        if j == 4: A('s_add_u32 s50, s50, 4096')
        A(f'buffer_load_dwordx4 v[{WD+4*j}:{WD+4*j+3}], v6, s[8:11], s50 offen offset:{1024*(j%4)} nt')
    A('v_lshlrev_b32 v10, 6, v3'); A('v_lshl_add_u32 v10, v2, 4, v10'); A(f'v_add_u32 v10, {L_ST}, v10')
    A('s_waitcnt vmcnt(0)' if 'xwd' in exp else 's_waitcnt vmcnt(8)')
    for j in range(8):
        A(f'ds_write_b128 v10, v[{WG+4*j}:{WG+4*j+3}] offset:{1024*j}'); A(f'ds_write_b128 v10, v[{WU+4*j}:{WU+4*j+3}] offset:{32768 + 1024*j}')
    A('v_mov_b32 v11, 1'); A('v_mov_b32 v12, 0')
    A('v_lshlrev_b32 v10, 9, v0'); A('s_lshl_b32 s50, s6, 4'); A(f's_add_u32 s50, s50, {L_ST}'); A('v_add_u32 v10, s50, v10')
    A('s_waitcnt lgkmcnt(0)')
    A('s_mov_b64 exec, 1')
    A(f'ds_add_u32 v12, v11 offset:{L_CNT + 16}')
    A('s_mov_b64 exec, -1')
    A(f's_mov_b32 s70, {SPIN_MAX*16}')
    g.label('L_st_spin')
    A(f'ds_read_b32 v13, v12 offset:{L_CNT + 16}')
    A('s_waitcnt lgkmcnt(0)')
    A('v_readfirstlane_b32 s50, v13')
    A('s_sub_u32 s70, s70, 1'); A('s_cmp_eq_u32 s70, 0'); A('s_cbranch_scc1 L_st_done')
    A('s_cmp_ge_u32 s50, 4'); A('s_cbranch_scc1 L_st_done')
    A('s_sleep 8'); A('s_branch L_st_spin')
    g.label('L_st_done')
    for j in range(8):
        A(f'ds_read_b128 v[{WG+4*j}:{WG+4*j+3}], v10 offset:{64*j}'); A(f'ds_read_b128 v[{WU+4*j}:{WU+4*j+3}], v10 offset:{32768 + 64*j}')
        if j % 4 == 3: A('s_waitcnt lgkmcnt(0)')
    A('s_cmp_lg_u32 s3, 6'); A('s_cbranch_scc1 L_h_nomlpw')
    A(f's_mov_b32 s51, {WS_MOD + 4096}')
    A('v_lshlrev_b32 v10, 5, v0'); A('v_add_u32 v10, s51, v10'); A('v_add_u32 v11, 4096, v10')
    A('v_and_b32 v12, 15, v0'); A('v_lshlrev_b32 v12, 3, v12'); A('s_and_b32 s50, s57, 15'); A('s_lshl_b32 s50, s50, 7')
    A('s_add_u32 s50, s50, s51'); A(f's_add_u32 s50, s50, {1280*8 - 4096}'); A('v_add_u32 v12, s50, v12')
    def lds_():
        A('global_load_dwordx4 v[16:19], v10, s[42:43] sc1'); A('global_load_dwordx4 v[20:23], v10, s[42:43] offset:16 sc1')
        A('global_load_dwordx4 v[24:27], v10, s[42:43] offset:2048 sc1'); A('global_load_dwordx4 v[28:31], v10, s[42:43] offset:2064 sc1')
        A('global_load_dwordx4 v[32:35], v11, s[42:43] sc1'); A('global_load_dwordx4 v[36:39], v11, s[42:43] offset:16 sc1')
        A('global_load_dwordx2 v[44:45], v12, s[42:43] sc1')
    poll(g, lds_, chk_tags(g, [45] + list(range(17, 40, 2)), TAG), sleep=32)
    for k in range(3):
        b = 16 + 8*k
        A(f'v_mov_b32 v{b+1}, v{b+2}'); A(f'v_mov_b32 v{b+2}, v{b+4}'); A(f'v_mov_b32 v{b+3}, v{b+6}')
        A(f'ds_write_b128 v6, v[{b}:{b+3}] offset:{L_MV + 1024*k}')
    A('v_and_b32 v12, 15, v0'); A('v_lshlrev_b32 v12, 2, v12')
    A(f'ds_write_b32 v12, v44 offset:{L_MV + 3072}')
    g.label('L_h_nomlpw')
    A('s_waitcnt vmcnt(0) lgkmcnt(0)')
    g.stamp(5)
    A('v_mov_b32 v12, s6'); A('v_lshlrev_b32 v12, 2, v12')
    A('s_lshl_b32 s59, s4, 24'); A(f's_add_u32 s59, s59, {NSB*8*32768}')
    A('v_mov_b32 v17, 0')
    def read_prog(off, dst):
        A(f'ds_read_b128 v[20:23], v17 offset:{off}')
        A('s_waitcnt lgkmcnt(0)')
        A('v_max3_u32 v20, v20, v21, v22'); A('v_max_u32 v20, v20, v23'); g.nop(1)
        A(f'v_readfirstlane_b32 {dst}, v20')
    A('s_cmp_lg_u32 s3, 4'); A('s_cbranch_scc1 L_nosched')
    A(f's_lshl_b32 s50, s4, 8'); A(f's_add_u32 s50, s50, {WS_CNT}'); A('v_mov_b32 v16, s50')
    A(f's_mov_b32 s52, {NSB}'); A('s_mov_b32 s53, 0')
    A(f's_mov_b32 s70, {SPIN_MAX*16}')
    g.label('L_sch_wait')
    read_prog(L_PROG, 's50')
    A('s_sub_u32 s70, s70, 1'); A('s_cmp_eq_u32 s70, 0'); A('s_cbranch_scc1 L_sch_done')
    A(f's_add_u32 s50, s50, {lead}'); A('s_cmp_ge_u32 s50, s52'); A('s_cbranch_scc1 L_sch_claim')
    A('s_sub_u32 s50, s52, s50'); A('s_cmp_gt_u32 s50, 4'); A('s_cbranch_scc1 L_sch_long')
    A('s_sleep 2'); A('s_branch L_sch_wait')
    g.label('L_sch_long')
    A('s_sleep 32'); A('s_branch L_sch_wait')
    g.label('L_sch_claim')
    A(f's_cmp_ge_u32 s52, {MAXROWS - 2}'); A('s_cbranch_scc1 L_sch_done')
    A(f's_cmp_lt_u32 s53, {NPOOL - sing}'); A('s_cselect_b32 s54, 2, 1')
    A('v_mov_b32 v18, s54')
    A('s_mov_b64 exec, 1')
    A('global_atomic_add v19, v16, v18, s[42:43] sc0 sc1')
    A('s_mov_b64 exec, -1')
    A('s_lshl_b32 s55, s52, 2'); A('v_mov_b32 v21, s55')
    A('s_waitcnt vmcnt(0)')
    A('v_readfirstlane_b32 s53, v19')
    g.label('L_sch_put')
    A(f's_cmp_ge_u32 s53, {NPOOL}'); A('s_cbranch_scc1 L_sch_done')
    A('s_lshl_b32 s55, s53, 15'); A('s_add_u32 s55, s55, s59'); A('v_mov_b32 v20, s55')
    A(f'ds_write_b32 v21, v20 offset:{L_Q}')
    A('v_add_u32 v21, 4, v21')
    A('s_add_u32 s52, s52, 1'); A('s_add_u32 s53, s53, 1')
    A('s_sub_u32 s54, s54, 1'); A('s_cmp_lg_u32 s54, 0'); A('s_cbranch_scc1 L_sch_put')
    A('s_branch L_sch_wait')
    g.label('L_sch_done')
    A('s_lshl_b32 s55, s52, 2'); A('v_mov_b32 v21, s55'); A('v_mov_b32 v20, -2')
    A(f'ds_write_b32 v21, v20 offset:{L_Q}')
    g.label('L_nosched')
    A('s_lshl_b32 s50, s4, 9'); A(f's_add_u32 s50, s50, {WS_ML}')
    A('v_and_b32 v11, 31, v0'); A('v_lshlrev_b32 v11, 4, v11'); A('v_add_u32 v11, s50, v11')
    A('s_lshl_b32 s50, s6, 14'); A(f's_add_u32 s50, s50, {L_SC}'); A('v_add_u32 v10, s50, v6')
    A(f's_mov_b32 s51, {hex(LOG2E)}')
    A(f's_mov_b32 s70, {SPIN_MAX*16}')
    g.label('L_kd_spin')
    A(f'ds_read_b32 v13, v12 offset:{L_KD}')
    A('s_waitcnt lgkmcnt(0)')
    A('v_readfirstlane_b32 s52, v13')
    A('s_sub_u32 s70, s70, 1'); A('s_cmp_eq_u32 s70, 0'); A('s_cbranch_scc1 L_kd_done')
    A('s_cmp_lg_u32 s52, 0'); A('s_cbranch_scc1 L_kd_done')
    A('s_sleep 8'); A('s_branch L_kd_spin')
    g.label('L_kd_done')
    g.stamp(6)
    NP = MAXROWS // 8
    for i in range(NP): A(f'ds_read_b128 v[{E+4*i}:{E+4*i+3}], v10 offset:{1024*i}')
    poll(g, lambda: A('global_load_dwordx4 v[28:31], v11, s[42:43] sc1'), chk_tags(g, [29, 31], TAG), sleep=mlsl)
    g.stamp(8)
    M = 22; IL = 23
    A('v_mov_b32 v22, v28')
    row_allreduce(g, [22], 'max')
    A('v_mov_b32 v23, v22'); g.nop(2); A('v_permlane16_swap_b32 v22, v23'); A('v_max_f32 v22, v22, v23')
    A('v_sub_f32 v20, v28, v22'); A('v_mul_f32 v20, s51, v20'); A('v_exp_f32 v20, v20'); g.nop(1)
    A('v_mul_f32 v20, v20, v30')
    row_allreduce(g, [20])
    A('v_mov_b32 v23, v20'); g.nop(2); A('v_permlane16_swap_b32 v20, v23'); A('v_add_f32 v20, v20, v23')
    A('v_mov_b32 v16, 1.0')
    divide(g, 23, 16, 20, 21, 24)
    A('s_waitcnt lgkmcnt(0)')
    for pc in range(NSB // 8):
        to_p(g, list(range(E + 4*pc, E + 4*pc + 4)), M, IL, 's51')
        A(f'ds_write_b128 v10, v[{E+4*pc}:{E+4*pc+3}] offset:{1024*pc}')
    if NSB % 8:
        pc = NSB // 8
        for i in range(4): A(f'v_mov_b32 v{32+i}, v{E+4*pc+i}')
        to_p(g, [32, 33, 34, 35], M, IL, 's51')
        A(f's_mov_b64 exec, {hex((1 << (8*(NSB % 8))) - 1)}' if NSB % 8 <= 4 and (1 << (8*(NSB % 8))) - 1 < (1 << 32) else f's_mov_b32 exec_hi, {hex((1 << (8*(NSB % 8) - 32)) - 1)}')
        A(f'ds_write_b128 v10, v[32:35] offset:{1024*pc}')
        A('s_mov_b64 exec, -1')
    A('s_waitcnt lgkmcnt(0)')
    g.stamp(9)
    if 'xb2' not in exp: A('s_barrier')
    A('v_lshrrev_b32 v11, 3, v0'); A('v_lshlrev_b32 v11, 2, v11')
    for pc in range(NSB // 8, NP): A(f'ds_read_b32 v{24 + pc - NSB//8}, v11 offset:{L_Q + 32*pc}')
    A('s_lshl_b32 s53, s4, 16'); A(f's_add_u32 s53, s53, {WS_SCG}')
    A('s_lshl_b32 s54, s6, 6'); A('s_add_u32 s54, s54, s53')
    A('v_and_b32 v12, 6, v0'); A('v_lshlrev_b32 v12, 3, v12'); A('v_add_u32 v12, s54, v12')
    A('s_mov_b32 s62, 0x55555555'); A('s_mov_b32 s63, 0x55555555')
    A('s_waitcnt lgkmcnt(0)')
    for pc in range(NSB // 8, NP):
        i0 = E + 4*pc; qv = 24 + pc - NSB//8
        A(f's_cmp_le_u32 s52, {8*pc}'); A('s_cbranch_scc1 L_exp_done')
        A(f'v_lshrrev_b32 v16, 16, v{i0}'); A(f'v_or_b32 v16, v16, v{i0+1}')
        A(f'v_lshrrev_b32 v17, 16, v{i0+2}'); A(f'v_or_b32 v17, v17, v{i0+3}')
        A(f'v_subrev_u32 v13, s59, v{qv}'); A('v_lshrrev_b32 v13, 7, v13'); A('v_add_u32 v13, v13, v12')
        A('v_mov_b32_dpp v18, v16 quad_perm:[1,1,3,3] row_mask:0xf bank_mask:0xf')
        A('v_mov_b32_dpp v19, v17 quad_perm:[1,1,3,3] row_mask:0xf bank_mask:0xf')
        A(f'v_cmp_gt_u32 vcc, -2, v{qv}')
        if pc == NSB // 8 and NSB % 8:
            msk = ((1 << 64) - 1) ^ ((1 << (8*(NSB % 8))) - 1)
            A(f's_mov_b32 s60, {hex(msk & 0xffffffff)}'); A(f's_mov_b32 s61, {hex(msk >> 32)}'); A('s_and_b64 vcc, vcc, s[60:61]')
        A('s_and_b64 exec, vcc, s[62:63]')
        lbx = g.newlabel('L_expz'); A(f's_cbranch_execz {lbx}')
        if 'xexp' not in exp: A('global_store_dwordx4 v13, v[16:19], s[42:43] sc1')
        g.label(lbx)
        A('s_mov_b64 exec, -1')
        g.nop(1)
    g.label('L_exp_done')
    A('s_waitcnt vmcnt(0)')
    last_arriver(g, 2, 'L_noxf')
    A('s_lshl_b32 s50, s2, 4'); A(f's_add_u32 s50, s50, {WS_XF}'); A('v_mov_b32 v13, s50')
    for i in range(4): A(f'v_mov_b32 v{16+i}, v{TAG}')
    A('s_mov_b64 exec, 1')
    A('global_store_dwordx4 v13, v[16:19], s[42:43] sc1')
    A('s_mov_b64 exec, -1')
    g.label('L_noxf')
    A('s_cmp_lg_u32 s3, 6'); A('s_cbranch_scc1 L_noxfall')
    A(f's_cmp_ge_u32 s57, {NMLP}'); A('s_cbranch_scc1 L_noxfall')
    A(f'v_add_u32 v13, {WS_XF}, v6')
    A('s_sleep 127'); A('s_sleep 127')
    def lds_():
        for i in range(4): A(f'global_load_dword v{16+i}, v13, s[42:43] offset:{1024*i} sc1')
    poll(g, lds_, chk_tags(g, [16, 17, 18, 19], TAG), sleep=127)
    g.label('L_noxfall')
    A('s_cmp_lg_u32 s3, 4'); A('s_cbranch_scc1 L_noschedv')
    A('s_lshl_b32 s50, s4, 7'); A(f's_add_u32 s50, s50, {WS_XF}'); A('v_and_b32 v13, 7, v0'); A('v_lshlrev_b32 v13, 4, v13'); A('v_add_u32 v13, s50, v13')
    A('s_sleep 100')
    poll(g, lambda: A('global_load_dword v16, v13, s[42:43] sc1'), chk_tags(g, [16], TAG), sleep=64)
    A(f's_lshl_b32 s50, s4, 8'); A(f's_add_u32 s50, s50, {WS_CNT + 128}'); A('v_mov_b32 v16, s50')
    A(f's_mov_b32 s52, {NSB}'); A('s_mov_b32 s56, -1'); A('s_mov_b32 s62, 0'); A('s_mov_b32 s63, 0')
    A('v_mov_b32 v17, 0')
    A('v_add_u32 v24, s53, v6')
    A('v_bfe_u32 v25, v0, 2, 2'); A('v_lshlrev_b32 v25, 14, v25'); A('v_lshrrev_b32 v26, 4, v0'); A('v_lshl_add_u32 v25, v26, 7, v25')
    A('v_lshl_add_u32 v25, v2, 5, v25'); A(f'v_add_u32 v25, {L_SC}, v25')
    A(f's_mov_b32 s70, {SPIN_MAX*16}')
    def read_progv():
        A(f'ds_read_b128 v[32:35], v17 offset:{L_PROGV}')
        A('s_waitcnt lgkmcnt(0)')
        A('v_max3_u32 v32, v32, v33, v34'); A('v_max_u32 v32, v32, v35'); g.nop(1)
        A('v_readfirstlane_b32 s64, v32')
    g.label('L_sv_top')
    read_progv()
    A('s_sub_u32 s70, s70, 1'); A('s_cmp_eq_u32 s70, 0'); A('s_cbranch_scc1 L_sv_done')
    A(f's_add_u32 s64, s64, {leadv}')
    A('s_mov_b32 s65, 0')
    A('s_cmp_lg_u32 s62, 0'); A('s_cbranch_scc1 L_sv_noclaim')
    A('s_cmp_lt_u32 s64, s52'); A('s_cbranch_scc1 L_sv_noclaim')
    A(f's_cmp_ge_u32 s52, {MAXROWS - 2}'); A('s_cbranch_scc1 L_sv_full')
    A(f's_cmp_lt_u32 s63, {NPOOL - sing}'); A('s_cselect_b32 s65, 2, 1')
    A('v_mov_b32 v18, s65')
    A('s_mov_b64 exec, 1')
    A('global_atomic_add v19, v16, v18, s[42:43] sc0 sc1')
    A('s_mov_b64 exec, -1')
    A('s_branch L_sv_pend')
    g.label('L_sv_full')
    A('s_mov_b32 s62, 1')
    g.label('L_sv_noclaim')
    A(f's_cmp_lt_u32 s56, {NPOOL}'); A('s_cbranch_scc1 L_sv_pend')
    A('s_cmp_lg_u32 s62, 0'); A('s_cbranch_scc1 L_sv_done')
    A('s_sub_u32 s64, s52, s64'); A('s_cmp_gt_u32 s64, 4'); A('s_cbranch_scc1 L_sv_long')
    A('s_sleep 2'); A('s_branch L_sv_top')
    g.label('L_sv_long')
    A('s_sleep 32'); A('s_branch L_sv_top')
    g.label('L_sv_pend')
    A(f's_cmp_ge_u32 s56, {NPOOL}'); A('s_cbranch_scc1 L_sv_nofetch')
    A('s_lshl_b32 s66, s56, 8'); A('v_add_u32 v26, s66, v24')
    A('s_cmp_eq_u32 s54, 2'); A('s_cselect_b32 s66, -1, 0xffff'); A('s_mov_b32 s67, 0')
    A('s_mov_b64 exec, s[66:67]')
    if 'xfet' not in exp: A('global_load_dwordx4 v[28:31], v26, s[42:43] sc1')
    A('s_lshl_b32 s66, s55, 7'); A('v_add_u32 v26, s66, v25')
    if 'xfet' not in exp: A('s_waitcnt vmcnt(0)')
    unpack(g, list(range(32, 40)), 28)
    to_p(g, list(range(32, 40)), M, IL, 's51')
    A('ds_write_b128 v26, v[32:35]'); A('ds_write_b128 v26, v[36:39] offset:16')
    A('v_lshrrev_b32 v26, 4, v0'); A('v_add_u32 v27, s56, v26'); A('v_lshlrev_b32 v27, 15, v27'); A('v_add_u32 v27, s59, v27')
    A('v_add_u32 v26, s55, v26'); A('v_lshlrev_b32 v26, 2, v26')
    A('s_waitcnt lgkmcnt(0)')
    A(f'ds_write_b32 v26, v27 offset:{L_QV}')
    A('s_mov_b64 exec, -1')
    A('s_mov_b32 s56, -1')
    g.label('L_sv_nofetch')
    A('s_cmp_eq_u32 s65, 0'); A('s_cbranch_scc1 L_sv_top')
    A('s_waitcnt vmcnt(0)')
    A('v_readfirstlane_b32 s56, v19')
    A('s_mov_b32 s55, s52')
    A(f's_cmp_ge_u32 s56, {NPOOL}'); A('s_cbranch_scc1 L_sv_done')
    A(f's_sub_u32 s54, {NPOOL}, s56'); A('s_min_u32 s54, s54, s65')
    A('s_add_u32 s52, s52, s54'); A('s_add_u32 s63, s56, s54')
    A('s_branch L_sv_top')
    g.label('L_sv_done')
    A('s_lshl_b32 s55, s52, 2'); A('v_mov_b32 v26, s55'); A('v_mov_b32 v27, -2')
    A(f'ds_write_b32 v26, v27 offset:{L_QV}')
    g.label('L_noschedv')
    GA = list(range(192, 200)); SB = list(range(200, 208)); CB = list(range(208, 216)); XF = list(range(216, 224)); GBR = 224
    for k in range(3): A(f'ds_read_b128 v[{16+4*k}:{19+4*k}], v6 offset:{L_MV + 1024*k}')
    A('v_lshrrev_b32 v13, 3, v48'); A('v_lshlrev_b32 v13, 2, v13')
    A(f'ds_read_b32 v28, v13 offset:{L_MV + 3072}')
    unpack(g, XF, X8)
    A('s_waitcnt lgkmcnt(0)')
    unpack(g, GA, 16); unpack(g, SB, 20); unpack(g, CB, 24)
    for i in range(8): A(f'v_add_f32 v{CB[i]}, 1.0, v{CB[i]}')
    for i in range(8): rnd(g, CB[i], CB[i])
    A('v_and_b32 v13, 16, v0'); A('v_cmp_eq_u32 vcc, 0, v13')
    A('v_lshlrev_b32 v13, 16, v28'); A('v_and_b32 v14, 0xffff0000, v28')
    A(f'v_cndmask_b32 v{GBR}, v14, v13, vcc')
    A('s_lshl_b32 s50, s4, 12'); A('s_add_u32 s50, s50, s7'); A(f's_add_u32 s50, s50, {WS_OP}')
    A('v_lshrrev_b32 v10, 3, v0'); A('v_lshlrev_b32 v13, 4, v10'); A('v_lshlrev_b32 v10, 9, v10'); A('v_and_b32 v11, 7, v0'); A('v_lshl_add_u32 v10, v11, 4, v10')
    A('v_add_u32 v10, s50, v10')
    A('v_add_u32 v15, s7, v48')
    A('v_add_u32 v9, s7, v13')
    A('v_lshrrev_b32 v14, 4, v0'); A('v_lshlrev_b32 v14, 3, v14'); A('v_lshl_add_u32 v14, v11, 5, v14')
    A('s_lshl_b32 s52, s6, 8'); A('v_add_u32 v14, s52, v14')
    A('v_and_b32 v8, 15, v0'); A('v_lshlrev_b32 v8, 4, v8'); A('v_lshrrev_b32 v7, 4, v0'); A('v_lshl_add_u32 v8, v7, 16, v8')
    A('s_lshl_b32 s51, s2, 8'); A(f's_add_u32 s51, s51, {WS_AP}'); A('v_add_u32 v8, s51, v8'); A('v_add_u32 v7, 0x40000, v8')
    A('v_and_b32 v5, 15, v0'); A('v_lshlrev_b32 v5, 4, v5')
    ACC = list(range(24, 32))
    for i in range(8): A(f'v_mov_b32 v{ACC[i]}, 0')
    if 'nopt' not in exp:
        A(f's_cmp_ge_u32 s57, {NFIN}'); A('s_cbranch_scc1 L_nopt')
        A('s_cmp_lg_u32 s3, 4'); A('s_cbranch_scc1 L_nopt')
        A('v_mov_b32 v13, 0'); A('global_load_dword v12, v13, s[38:39]')
        g.label('L_nopt')
    A('s_barrier')
    if 'notail' in exp: A('s_branch L_end')
    g.stamp(10)
    poll(g, lambda: A('global_load_dwordx4 v[16:19], v10, s[42:43] sc1'), chk_sent(g, [16, 17, 18, 19], 20), sleep=opsl)
    g.stamp(11)
    reduce4_hi(g, [16, 17, 18, 19])
    rnd(g, 16, 16)
    A(f'ds_write_b32 v15, v16 offset:{L_OV}')
    A(f'ds_read_b128 v[16:19], v9 offset:{L_OV}')
    A('s_waitcnt lgkmcnt(0)')
    for j in range(4): A(f'v_lshrrev_b32 v{20+j}, 16, v{16+j}')
    for j in range(4): tile_mac(g, ACC, WO + 4*j, f'v{16+j}', f'v{20+j}')
    g.nop(1)
    swap_reduce8(g, ACC)
    row_allreduce(g, ACC[:2], rors=(8,))
    A(f'ds_write_b64 v14, v[{ACC[0]}:{ACC[1]}] offset:{L_AW}')
    last_arriver(g, 3, 'L_h_noap')
    A('s_mov_b64 exec, 0xffff')
    for w in range(4): A(f'ds_read_b128 v[{16+4*w}:{19+4*w}], v5 offset:{L_AW + 256*w}')
    A('s_waitcnt lgkmcnt(0)')
    sum4x4(g, 16)
    A('global_store_dwordx4 v8, v[16:19], s[42:43] sc1')
    A('s_mov_b64 exec, -1')
    g.stamp(12)
    g.label('L_h_noap')
    if 'xstage' in exp: A('s_branch L_end')
    A(f's_cmp_ge_u32 s57, {NMLP}'); A('s_cbranch_scc1 L_end')
    g.label('L_gather_ap')
    A('s_and_b32 s50, s3, 1'); A('s_lshl_b32 s50, s50, 10'); A('s_lshr_b32 s51, s3, 1'); A('s_lshl_b32 s52, s51, 14')
    A('s_add_u32 s52, s52, s50'); A(f's_add_u32 s52, s52, {WS_AP + 4096}')
    A('v_lshlrev_b32 v10, 4, v0'); A('v_add_u32 v11, s52, v10'); A('v_add_u32 v12, 8192, v11')
    A('s_lshl_b32 s51, s51, 11'); A('s_add_u32 s51, s51, s50'); A('v_add_u32 v13, s51, v10')
    multi_poll(g, 'L_ap', 8, lambda i: f'global_load_dwordx4 v[{16+4*i}:{19+4*i}], v{11 + i//4}, s[42:43] offset:{(i%4)*2048 - 4096} sc1', 16, 14,
               [(16*16, apsl), (8*16, apsl // 3), (apth*16, apsl // 8)])
    g.stamp(13)
    dbgt(g, exp, 6, ['s_cmp_lg_u32 s57, 0', 's_cmp_lg_u32 s3, 4'])
    for st in (16, 8, 4):
        for i in range(0, st, 2): A(f'v_pk_add_f32 v[{16+i}:{17+i}], v[{16+i}:{17+i}], v[{16+i+st}:{17+i+st}]')
    A(f'ds_write_b128 v13, v[16:19] offset:{L_AS}')
    A('v_lshlrev_b32 v10, 5, v0')
    A('s_waitcnt lgkmcnt(0)')
    A('s_barrier')
    A('s_cmp_lt_u32 s3, 4'); A('s_cbranch_scc1 L_end')
    g.role = 'M'; g.stamp(1); g.role = 'H'
    for p in range(4):
        A(f'ds_read_b128 v[{16+8*p}:{19+8*p}], v10 offset:{L_AS + 2048*p}'); A(f'ds_read_b128 v[{20+8*p}:{23+8*p}], v10 offset:{L_AS + 2048*p + 16}')
    AG = list(range(232, 240)); AU = list(range(240, 248))
    for i in range(8): A(f'v_mov_b32 v{AG[i]}, 0'); A(f'v_mov_b32 v{AU[i]}, 0')
    A('s_waitcnt lgkmcnt(4)')
    for i in range(0, 8, 2): A(f'v_pk_add_f32 v[{16+i}:{17+i}], v[{16+i}:{17+i}], v[{24+i}:{25+i}]')
    A('s_waitcnt lgkmcnt(0)')
    for i in range(0, 8, 2): A(f'v_pk_add_f32 v[{32+i}:{33+i}], v[{32+i}:{33+i}], v[{40+i}:{41+i}]')
    for i in range(0, 8, 2): A(f'v_pk_add_f32 v[{16+i}:{17+i}], v[{16+i}:{17+i}], v[{32+i}:{33+i}]')
    X1 = list(range(16, 24))
    for i in range(8): rnd(g, X1[i], X1[i])
    for i in range(0, 8, 2): A(f'v_pk_mul_f32 v[{16+i}:{17+i}], v[{16+i}:{17+i}], v[{GA[i]}:{GA[i+1]}]')
    for i in range(8): rnd(g, X1[i], X1[i])
    for i in range(0, 8, 2): A(f'v_pk_add_f32 v[{16+i}:{17+i}], v[{16+i}:{17+i}], v[{XF[i]}:{XF[i+1]}]')
    for i in range(8): rnd(g, X1[i], X1[i])
    A(f'ds_write_b128 v10, v[16:19] offset:{L_XF}'); A(f'ds_write_b128 v10, v[20:23] offset:{L_XF + 16}')
    g.role = 'M'; g.stamp(2); g.role = 'H'
    ln_stats(g, X1, MEAN, SD, list(range(32, 40)))
    A(f'v_rcp_f32 v{RSD}, v{SD}'); g.nop(1)
    g.role = 'M'; g.stamp(3); g.role = 'H'
    modulate_n(g, [(24+i, X1[i], CB[i], SB[i], 32+i, 248+i) for i in range(8)], MEAN, SD, RSD)
    for j in range(8): A(f'v_lshrrev_b32 v{32+j}, 16, v{24+j}')
    g.role = 'M'; g.stamp(4); g.role = 'H'
    for j in range(8):
        tile_mac(g, AG, WG + 4*j, f'v{24+j}', f'v{32+j}')
        tile_mac(g, AU, WU + 4*j, f'v{24+j}', f'v{32+j}')
    AD = list(range(24, 32))
    A('v_lshlrev_b32 v10, 5, v0'); A('s_lshl_b32 s50, s6, 11'); A('v_add_u32 v10, s50, v10')
    g.role = 'M'; g.stamp(5); g.role = 'H'
    swap_reduce8(g, AG, AU)
    row_allreduce(g, AG[:2] + AU[:2])
    for r in AG[:2] + AU[:2]: rnd(g, r, r)
    A(f'v_mov_b32 v16, {hex(f2u(0.044715))}')
    for i in range(2): A(f'v_mul_f32 v{18+i}, v{AG[i]}, v{AG[i]}')
    for i in range(2): A(f'v_mul_f32 v{18+i}, v{18+i}, v{AG[i]}')
    for i in range(2): A(f'v_fma_f32 v{18+i}, v{18+i}, v16, v{AG[i]}')
    for i in range(2): A(f'v_mul_f32 v{18+i}, {hex(f2u(-2*0.7978845608028654*1.4426950408889634))}, v{18+i}')
    sigmoid_mul_n(g, [(20+i, AG[i], 18+i, 32+i, 34+i, 36+i) for i in range(2)])
    for i in range(2): rnd(g, 20+i, 20+i)
    for i in range(2): A(f'v_mul_f32 v{20+i}, v{20+i}, v{AU[i]}')
    for i in range(2): rnd(g, 20+i, 20+i)
    for i in range(8): A(f'v_mov_b32 v{AD[i]}, 0')
    g.role = 'M'; g.stamp(6); g.role = 'H'
    for j in range(8): A(f'v_readlane_b32 s{72+j}, v{20 + j%2}, {16*(j//2 % 2) + 32*(j//4)}')
    A('s_lshl_b32 s50, s6, 9'); A('v_add_u32 v11, s50, v6')
    for j in range(8): A(f's_lshr_b32 s{80+j}, s{72+j}, 16')
    for j in range(8): tile_mac(g, AD, WD + 4*j, f's{72+j}', f's{80+j}')
    A('s_lshl_b32 s51, s57, 11'); A(f's_add_u32 s51, s51, {WS_DP}'); A('v_add_u32 v12, s51, v11')
    g.role = 'M'; g.stamp(7); g.role = 'H'
    g.nop(1)
    A(f'ds_write_b128 v10, v[{AD[0]}:{AD[3]}] offset:{L_DW}'); A(f'ds_write_b128 v10, v[{AD[4]}:{AD[7]}] offset:{L_DW + 16}')
    A('s_waitcnt lgkmcnt(0)')
    A('s_barrier')
    g.role = 'M'; g.stamp(8); g.role = 'H'
    A('s_mov_b64 exec, 0xffffffff')
    for w in range(4): A(f'ds_read_b128 v[{16+4*w}:{19+4*w}], v11 offset:{L_DW + 2048*w}')
    A('s_waitcnt lgkmcnt(0)')
    sum4x4(g, 16)
    A('global_store_dwordx4 v12, v[16:19], s[42:43] sc1')
    A('s_mov_b64 exec, -1')
    g.stamp(14)
    A(f's_cmp_ge_u32 s57, {NFIN}'); A('s_cbranch_scc1 L_end')
    A('s_cmp_lg_u32 s3, 4'); A('s_cbranch_scc1 L_end')
    A('v_lshrrev_b32 v10, 3, v0'); A('v_lshlrev_b32 v10, 11, v10'); A('v_and_b32 v11, 7, v0'); A('v_lshl_add_u32 v10, v11, 4, v10')
    A('s_lshl_b32 s50, s57, 7'); A(f's_add_u32 s51, s50, {WS_DP}'); A('v_add_u32 v52, s51, v10')
    for i in range(1, 7): A(f'v_add_u32 v{52+i}, {16384*i}, v52')
    A('v_add_u32 v13, s50, v48')
    A(f'ds_read_b32 v15, v13 offset:{L_XF}')
    A('v_lshrrev_b32 v12, 1, v13')
    multi_poll(g, 'L_dp', 7, lambda i: f'global_load_dwordx4 v[{16+4*i}:{19+4*i}], v{52+i}, s[42:43] sc1', 16, 51, [])
    for i in (0, 2):
        A(f'v_pk_add_f32 v[{16+i}:{17+i}], v[{16+i}:{17+i}], v[{20+i}:{21+i}]'); A(f'v_pk_add_f32 v[{24+i}:{25+i}], v[{24+i}:{25+i}], v[{28+i}:{29+i}]')
        A(f'v_pk_add_f32 v[{32+i}:{33+i}], v[{32+i}:{33+i}], v[{36+i}:{37+i}]')
    for i in (0, 2):
        A(f'v_pk_add_f32 v[{16+i}:{17+i}], v[{16+i}:{17+i}], v[{24+i}:{25+i}]'); A(f'v_pk_add_f32 v[{32+i}:{33+i}], v[{32+i}:{33+i}], v[{40+i}:{41+i}]')
    for i in (0, 2): A(f'v_pk_add_f32 v[{16+i}:{17+i}], v[{16+i}:{17+i}], v[{32+i}:{33+i}]')
    g.nop(2)
    reduce4_hi(g, [16, 17, 18, 19])
    A('s_waitcnt lgkmcnt(0)')
    rnd(g, 16, 16); A(f'v_mul_f32 v16, v{GBR}, v16'); rnd(g, 16, 16); A('v_add_f32 v16, v15, v16')
    A('v_cvt_pk_bf16_f32 v16, v16, v16')
    A('s_mov_b32 exec_lo, 0x00ff00ff'); A('s_mov_b32 exec_hi, 0x00ff00ff')
    A('global_store_short v12, v16, s[38:39]')
    A('s_cmp_lg_u32 s57, 0'); A('s_cbranch_scc1 L_fin_noepoch')
    A('s_mov_b64 exec, 1'); A('v_mov_b32 v13, 0')
    A(f'global_store_dword v13, v{TAG}, s[42:43] sc1')
    g.label('L_fin_noepoch')
    A('s_mov_b64 exec, -1')
    g.stamp(15)
    dbgt(g, exp, 0, ['s_cmp_lg_u32 s57, 0'])
    g.label('L_end'); A('s_endpgm')
    for s in ['.section .rodata,"a"', '.p2align 6', f'.amdhsa_kernel {NAME}_kernel', '  .amdhsa_next_free_vgpr 256',
              '  .amdhsa_next_free_sgpr 102', '  .amdhsa_accum_offset 256', '  .amdhsa_group_segment_fixed_size 0',
              '  .amdhsa_kernarg_size 112', '  .amdhsa_user_sgpr_count 2', '  .amdhsa_user_sgpr_kernarg_segment_ptr 1',
              '  .amdhsa_system_sgpr_workgroup_id_x 1', '.end_amdhsa_kernel']: g.L.append(s)
    return '\n'.join(g.L) + '\n'

if __name__ == '__main__':
    import argparse
    ap = argparse.ArgumentParser()
    ap.add_argument('out'); ap.add_argument('--ts', action='store_true')
    ap.add_argument('--nsb', type=int, default=56); ap.add_argument('--exp', default='')
    ap.add_argument('--depth', type=int, default=8); ap.add_argument('--lead', type=int, default=3); ap.add_argument('--leadv', type=int, default=5)
    ap.add_argument('--header', default='')
    for k, d in (('opsl', 1), ('apth', 4), ('apsl', 8), ('psl', 2), ('sing', 24), ('mlsl', 8)): ap.add_argument('--' + k, type=int, default=d)
    a = ap.parse_args()
    hdr = ''
    if a.header:
        hdr = ''.join(l for l in open(a.header) if l.startswith(';') and '@launch' not in l)
    open(a.out, 'w').write(build(ts=a.ts, nsb=a.nsb, exp=a.exp, depth=a.depth, lead=a.lead, leadv=a.leadv, header=hdr, opsl=a.opsl, apth=a.apth, apsl=a.apsl, psl=a.psl, sing=a.sing, mlsl=a.mlsl))
```

```python
import sys, struct
NAME = 'adaLN_cond__mha_block_cached__glu_gated_geglu__decode'
def f2u(x): return struct.unpack('<I', struct.pack('<f', x))[0]

WS_MOD   = 0x1000
WS_ML    = 0x4000
WS_CNT   = 0x8000
WS_XF    = 0xA000
WS_OP    = 0x10000
WS_AP    = 0x30000
WS_DP    = 0x40000
WS_QX    = 0x60000
WS_TS    = 0xC0000
WS_SCG   = 0x200000
L_CNT  = 0x0000
L_KD   = 0x0040
L_PROG = 0x0060
L_PROGV = 0x0070
L_ND   = 0x0080
L_ROLE = 0x0084
L_TAG  = 0x0100
L_MODP = 0x0200
L_HV   = 0x0400
L_QP   = 0x0C00
L_OB   = 0x1400
L_OV   = 0x1C00
L_AW   = 0x1E00
L_MV   = 0x2200
L_Q    = 0x2F00
L_QV   = 0x3100
L_SC   = 0x3400
L_AS   = L_SC + 0x0000
L_DW   = L_SC + 0x2000
L_XF   = L_SC + 0x4000
L_DS   = L_SC + 0x8000
L_ST   = L_SC + 0x10000
ST_SZ  = 512*64 + 64*16
LDS_BYTES = L_ST + 2*ST_SZ
MAXROWS = 96
Q_DONE = 0xfffffffe
NMLP = 56
NFIN = 16
SPIN_MAX = 1 << 17
LOG2E = f2u(1.4426950408889634)
NS = 48

class G:
    def __init__(self, ts=False, tsmask=None):
        self.L = []; self.ts = ts; self.lbl = 0; self.tsmask = tsmask; self.role = 'S'; self.ldf = ' sc1'; self.stf = ' sc1'; self.w0only = False
    def A(self, s):
        if s.endswith(' sc1') and 'atomic' not in s:
            if 'load' in s: s = s[:-4] + self.ldf
            else: s = s[:-4] + self.stf
        self.L.append('  ' + s)
        if '_store_dwordx4' in s or '_store_dwordx3' in s: self.L.append('  s_nop 1')
    def label(self, s): self.L.append(s + ':')
    def newlabel(self, p='L'):
        self.lbl += 1; return f'{p}_{self.lbl}'
    def nop(self, n): self.A(f's_nop {n-1}')
    def stamp(self, slot, sreg=None):
        if not self.ts: return
        if self.tsmask is not None and (self.role, slot) not in self.tsmask: return
        if self.tsmask is None and self.role == 'M': return
        A = self.A
        if self.w0only:
            A('s_cmp_lg_u32 s3, 0'); lb = self.newlabel('L_ns'); A(f's_cbranch_scc1 {lb}')
        if sreg is None:
            A('s_memrealtime s[96:97]'); A('s_waitcnt lgkmcnt(0)')
            A('v_mov_b32 v60, s96'); A('v_mov_b32 v61, s97')
        else:
            A(f'v_mov_b32 v60, {sreg}'); A('v_mov_b32 v61, 0')
        A('v_mov_b32 v62, s95')
        A('s_mov_b64 s[98:99], exec'); A('s_mov_b64 exec, 1')
        A(f'global_store_dwordx2 v62, v[60:61], s[42:43] offset:{slot*8}')
        A('s_mov_b64 exec, s[98:99]')
        if self.w0only: self.label(lb)

def rnd(g, d, s): g.A(f'v_cvt_pk_bf16_f32 v{d}, 0, v{s}')

def swap_reduce8(g, *sets):
    A = g.A
    g.nop(2)
    for r in sets:
        for i in range(4): A(f'v_permlane32_swap_b32 v{r[i]}, v{r[i+4]}')
    for r in sets:
        for i in range(4): A(f'v_add_f32 v{r[i]}, v{r[i]}, v{r[i+4]}')
    if len(sets) == 1: g.nop(1)
    for r in sets:
        for i in range(2): A(f'v_permlane16_swap_b32 v{r[i]}, v{r[i+2]}')
    for r in sets:
        for i in range(2): A(f'v_add_f32 v{r[i]}, v{r[i]}, v{r[i+2]}')

def row_allreduce(g, regs, op='add', rors=(8, 4, 2, 1)):
    for ro in rors:
        if len(regs) < 3: g.nop(3 - len(regs))
        for r in regs: g.A(f'v_{op}_f32_dpp v{r}, v{r}, v{r} row_ror:{ro} row_mask:0xf bank_mask:0xf')

def wave_allreduce(g, r, t, op='add'):
    A = g.A
    row_allreduce(g, [r], op)
    A(f'v_mov_b32 v{t}, v{r}'); g.nop(2)
    A(f'v_permlane16_swap_b32 v{r}, v{t}'); A(f'v_{op}_f32 v{r}, v{r}, v{t}')
    A(f'v_mov_b32 v{t}, v{r}'); g.nop(2)
    A(f'v_permlane32_swap_b32 v{r}, v{t}'); A(f'v_{op}_f32 v{r}, v{r}, v{t}')

def reduce4_hi(g, r):
    A = g.A
    A(f'v_permlane32_swap_b32 v{r[0]}, v{r[2]}'); A(f'v_permlane32_swap_b32 v{r[1]}, v{r[3]}')
    A(f'v_add_f32 v{r[0]}, v{r[0]}, v{r[2]}'); A(f'v_add_f32 v{r[1]}, v{r[1]}, v{r[3]}'); g.nop(2)
    A(f'v_permlane16_swap_b32 v{r[0]}, v{r[1]}'); A(f'v_add_f32 v{r[0]}, v{r[0]}, v{r[1]}'); g.nop(2)
    A(f'v_add_f32_dpp v{r[0]}, v{r[0]}, v{r[0]} row_ror:8 row_mask:0xf bank_mask:0xf')

def tile_mac(g, acc, data, pP, pL):
    for i in range(4):
        g.A(f'v_dot2c_f32_bf16 v{acc[2*i]}, {pL}, v{data+i}')
        g.A(f'v_dot2c_f32_bf16 v{acc[2*i+1]}, {pP}, v{data+i}')

def divide(g, q, a, b, t0, t1):
    A = g.A
    A(f'v_rcp_f32 v{t0}, v{b}'); g.nop(1)
    A(f'v_mul_f32 v{q}, v{a}, v{t0}')
    A(f'v_fma_f32 v{t1}, -v{q}, v{b}, v{a}')
    A(f'v_fma_f32 v{q}, v{t1}, v{t0}, v{q}')

def sigmoid_mul_n(g, items):
    A = g.A
    for d, x, arg, t0, t1, t2 in items: A(f'v_min_f32 v{t2}, 0x42fc0000, v{arg}')
    for d, x, arg, t0, t1, t2 in items: A(f'v_exp_f32 v{t2}, v{t2}')
    if len(items) == 1: g.nop(1)
    for d, x, arg, t0, t1, t2 in items: A(f'v_add_f32 v{t2}, 1.0, v{t2}')
    for d, x, arg, t0, t1, t2 in items: A(f'v_rcp_f32 v{t0}, v{t2}')
    if len(items) == 1: g.nop(1)
    for d, x, arg, t0, t1, t2 in items: A(f'v_mul_f32 v{d}, v{x}, v{t0}')
    for d, x, arg, t0, t1, t2 in items: A(f'v_fma_f32 v{t1}, -v{d}, v{t2}, v{x}')
    for d, x, arg, t0, t1, t2 in items: A(f'v_fma_f32 v{d}, v{t1}, v{t0}, v{d}')

def ln_stats(g, xs, mean_bf, sd, t):
    A = g.A
    A(f'v_pk_add_f32 v[{t[0]}:{t[1]}], v[{xs[0]}:{xs[1]}], v[{xs[2]}:{xs[3]}]')
    A(f'v_pk_add_f32 v[{t[2]}:{t[3]}], v[{xs[4]}:{xs[5]}], v[{xs[6]}:{xs[7]}]')
    A(f'v_pk_add_f32 v[{t[0]}:{t[1]}], v[{t[0]}:{t[1]}], v[{t[2]}:{t[3]}]')
    A(f'v_add_f32 v{t[0]}, v{t[0]}, v{t[1]}')
    wave_allreduce(g, t[0], t[1])
    A(f'v_mul_f32 v{t[0]}, 0x3b000000, v{t[0]}')
    rnd(g, mean_bf, t[0])
    for i in range(4): A(f'v_sub_f32 v{t[2+i]}, v{xs[i]}, v{t[0]}')
    A(f'v_mul_f32 v{t[6]}, v{t[2]}, v{t[2]}'); A(f'v_mul_f32 v{t[7]}, v{t[3]}, v{t[3]}')
    A(f'v_fmac_f32 v{t[6]}, v{t[4]}, v{t[4]}'); A(f'v_fmac_f32 v{t[7]}, v{t[5]}, v{t[5]}')
    for i in range(4): A(f'v_sub_f32 v{t[2+i]}, v{xs[4+i]}, v{t[0]}')
    A(f'v_fmac_f32 v{t[6]}, v{t[2]}, v{t[2]}'); A(f'v_fmac_f32 v{t[7]}, v{t[3]}, v{t[3]}')
    A(f'v_fmac_f32 v{t[6]}, v{t[4]}, v{t[4]}'); A(f'v_fmac_f32 v{t[7]}, v{t[5]}, v{t[5]}')
    A(f'v_add_f32 v{t[2]}, v{t[6]}, v{t[7]}')
    wave_allreduce(g, t[2], t[1])
    A(f'v_mul_f32 v{t[2]}, 0x3b000000, v{t[2]}')
    rnd(g, t[2], t[2])
    A(f'v_add_f32 v{t[2]}, {hex(f2u(1e-5))}, v{t[2]}')
    rnd(g, t[2], t[2])
    A(f'v_sqrt_f32 v{t[0]}, v{t[2]}'); g.nop(1)
    A(f'v_rcp_f32 v{t[1]}, v{t[0]}')
    A(f'v_fma_f32 v{t[3]}, -v{t[0]}, v{t[0]}, v{t[2]}')
    A(f'v_mul_f32 v{t[1]}, 0.5, v{t[1]}')
    A(f'v_fma_f32 v{t[0]}, v{t[3]}, v{t[1]}, v{t[0]}')
    rnd(g, sd, t[0])

def modulate_n(g, items, mean_bf, sd, rcp_sd):
    A = g.A
    for d, x, c, s, t0, t1 in items: A(f'v_sub_f32 v{t0}, v{x}, v{mean_bf}')
    for d, x, c, s, t0, t1 in items: rnd(g, t0, t0)
    for d, x, c, s, t0, t1 in items: A(f'v_mul_f32 v{d}, v{t0}, v{rcp_sd}')
    for d, x, c, s, t0, t1 in items: A(f'v_fma_f32 v{t1}, -v{d}, v{sd}, v{t0}')
    for d, x, c, s, t0, t1 in items: A(f'v_fma_f32 v{d}, v{t1}, v{rcp_sd}, v{d}')
    for d, x, c, s, t0, t1 in items: rnd(g, d, d)
    for d, x, c, s, t0, t1 in items: A(f'v_mul_f32 v{d}, v{d}, v{c}')
    for d, x, c, s, t0, t1 in items: rnd(g, d, d)
    for d, x, c, s, t0, t1 in items: A(f'v_add_f32 v{d}, v{d}, v{s}')
    for d, x, c, s, t0, t1 in items: rnd(g, d, d)

def unpack(g, dst, src, n=4):
    for i in range(n):
        g.A(f'v_lshlrev_b32 v{dst[2*i]}, 16, v{src+i}')
        g.A(f'v_and_b32 v{dst[2*i+1]}, 0xffff0000, v{src+i}')

def to_p(g, regs, M, IL, slog):
    A = g.A
    for r in regs: A(f'v_sub_f32 v{r}, v{r}, v{M}')
    for r in regs: A(f'v_mul_f32 v{r}, {slog}, v{r}')
    for r in regs: A(f'v_exp_f32 v{r}, v{r}')
    for r in regs: A(f'v_mul_f32 v{r}, v{r}, v{IL}')
    for r in regs: rnd(g, r, r)

def srd(g, d, base, nbytes):
    g.A(f's_mov_b32 s{d}, s{base}'); g.A(f's_mov_b32 s{d+1}, s{base+1}')
    g.A(f's_mov_b32 s{d+2}, {hex(nbytes)}'); g.A(f's_mov_b32 s{d+3}, 0x20000')

def poll(g, loads, check, sleep=1):
    A = g.A
    l = g.newlabel('L_poll'); done = g.newlabel('L_poll_done')
    A('s_mov_b64 s[68:69], exec'); A(f's_mov_b32 s70, {SPIN_MAX}')
    g.label(l)
    loads()
    A('s_waitcnt vmcnt(0)')
    check()
    A(f's_cbranch_vccz {done}')
    A('s_mov_b64 exec, vcc')
    A('s_sub_u32 s70, s70, 1'); A('s_cmp_eq_u32 s70, 0'); A(f's_cbranch_scc1 {done}')
    if sleep: A(f's_sleep {sleep}')
    A(f's_branch {l}')
    g.label(done)
    A('s_mov_b64 exec, s[68:69]')

def multi_poll(g, pref, n, load, base, t, ladder):
    A = g.A
    for i in range(n): A(f's_mov_b64 s[{72+2*i}:{73+2*i}], -1')
    A(f's_mov_b32 s70, {SPIN_MAX}')
    g.label(f'{pref}_poll')
    for i in range(n):
        lb = g.newlabel(f'{pref}_skip')
        A(f's_mov_b64 exec, s[{72+2*i}:{73+2*i}]'); A(f's_cbranch_execz {lb}')
        A(load(i))
        g.label(lb)
    A('s_mov_b32 s71, 0')
    A('s_waitcnt vmcnt(0)')
    for i in range(n):
        lb = g.newlabel(f'{pref}_skip')
        r = base + 4*i
        A(f's_mov_b64 exec, s[{72+2*i}:{73+2*i}]'); A(f's_cbranch_execz {lb}')
        A(f'v_max3_u32 v{t}, v{r}, v{r+1}, v{r+2}'); A(f'v_max_u32 v{t}, v{t}, v{r+3}')
        A(f'v_cmp_eq_u32 vcc, -1, v{t}')
        A(f's_mov_b64 s[{72+2*i}:{73+2*i}], vcc'); A('s_bcnt1_i32_b64 s50, vcc'); A('s_add_u32 s71, s71, s50')
        g.label(lb)
    A('s_cmp_eq_u32 s71, 0'); A(f's_cbranch_scc1 {pref}_done')
    A('s_sub_u32 s70, s70, 1'); A('s_cmp_eq_u32 s70, 0'); A(f's_cbranch_scc1 {pref}_done')
    for th, sl in reversed(ladder):
        A(f's_cmp_le_u32 s71, {th}'); A(f's_cbranch_scc1 {pref}_poll')
        if sl: A(f's_sleep {sl}')
    A(f's_branch {pref}_poll')
    g.label(f'{pref}_done')
    A('s_mov_b64 exec, -1')

def chk_tags(g, regs, tag):
    def f():
        g.A(f'v_cmp_ne_u32 vcc, v{regs[0]}, v{tag}')
        for r in regs[1:]:
            g.A(f'v_cmp_ne_u32 s[60:61], v{r}, v{tag}'); g.A('s_or_b64 vcc, vcc, s[60:61]')
    return f
def chk_sent(g, regs, t):
    def f():
        g.A(f'v_max3_u32 v{t}, v{regs[0]}, v{regs[1]}, v{regs[2]}')
        rest = regs[3:]
        while len(rest) >= 2:
            g.A(f'v_max3_u32 v{t}, v{t}, v{rest[0]}, v{rest[1]}'); rest = rest[2:]
        if rest: g.A(f'v_max_u32 v{t}, v{t}, v{rest[0]}')
        g.A(f'v_cmp_eq_u32 vcc, -1, v{t}')
    return f

def last_arriver(g, idx, skip):
    A = g.A
    A('v_mov_b32 v11, 1'); A('v_mov_b32 v12, 0')
    A('s_mov_b64 exec, 1')
    A(f'ds_add_rtn_u32 v13, v12, v11 offset:{L_CNT + 4*idx}')
    A('s_mov_b64 exec, -1')
    A('s_waitcnt lgkmcnt(0)')
    A('v_readfirstlane_b32 s50, v13')
    g.nop(1)
    A('s_cmp_lg_u32 s50, 3'); A(f's_cbranch_scc1 {skip}')

def sum4x4(g, r, sanitize=True):
    A = g.A
    for i in (0, 2):
        A(f'v_pk_add_f32 v[{r+i}:{r+i+1}], v[{r+i}:{r+i+1}], v[{r+4+i}:{r+5+i}]')
        A(f'v_pk_add_f32 v[{r+8+i}:{r+9+i}], v[{r+8+i}:{r+9+i}], v[{r+12+i}:{r+13+i}]')
    for i in (0, 2): A(f'v_pk_add_f32 v[{r+i}:{r+i+1}], v[{r+i}:{r+i+1}], v[{r+8+i}:{r+9+i}]')
    if sanitize:
        for i in range(4): A(f'v_min_u32 v{r+i}, -2, v{r+i}')

def build(ts=False, nsb=56, exp='', depth=8, lead=3, leadv=5, header='', opsl=1, apth=4, apsl=8, psl=2, sing=24, mlsl=8, tlead=1, pace=5):
    tsmask = None
    if 'tailts' in exp: tsmask = {('S', 0), ('S', 6), ('S', 7)} | {('H', i) for i in (10, 11, 12, 13, 14, 15)}
    if 'prog' in exp: tsmask = {('S', 0), ('S', 3), ('S', 5), ('S', 6)}
    if 'mlpts' in exp: tsmask = {('S', 0), ('S', 6)} | {('H', i) for i in (13, 14, 15)} | {('M', i) for i in range(1, 10)}
    g = G(ts, tsmask); A = g.A
    g.w0only = 'prog' in exp
    if 'ld01' in exp: g.ldf = ' sc0 sc1'
    if 'st01' in exp: g.stf = ' sc0 sc1'
    if 'ldnt' in exp: g.ldf = ' sc1 nt'
    if 'stnt' in exp: g.stf = ' sc1 nt'
    NSB = nsb; NPOOL = (64 - NSB)*8; D = depth
    g.L.append(header + f'; @launch grid=(256,1,1) block=(512,1,1) lds={LDS_BYTES}')
    g.L.append('.amdgcn_target "amdgcn-amd-amdhsa--gfx950"')
    g.L.append('.text'); g.L.append(f'.globl {NAME}_kernel'); g.L.append('.p2align 8')
    g.L.append(f'.type {NAME}_kernel,@function'); g.label(f'{NAME}_kernel')
    A('s_cmp_ge_u32 s2, 256'); A('s_cbranch_scc1 L_end')
    A('s_load_dwordx16 s[16:31], s[0:1], 0')
    A('s_load_dwordx8 s[32:39], s[0:1], 64')
    A('s_load_dwordx4 s[40:43], s[0:1], 96')
    A('v_lshrrev_b32 v1, 6, v0'); A('v_and_b32 v0, 63, v0')
    A('v_readfirstlane_b32 s3, v1')
    A('s_lshr_b32 s4, s2, 3'); A('s_and_b32 s5, s2, 7')
    A('s_lshr_b32 s50, s4, 1'); A('s_mul_i32 s51, s50, 3'); A('s_sub_u32 s52, s5, s51'); A('s_and_b32 s52, s52, 7')
    A('s_and_b32 s53, s4, 1')
    A('s_add_u32 s58, s51, s52'); A('s_lshl_b32 s58, s58, 1'); A('s_add_u32 s58, s58, s53'); A('s_cmp_lt_u32 s52, 3'); A('s_cselect_b32 s58, s58, 255')
    A('s_and_b32 s6, s3, 3')
    if ts:
        A('s_lshl_b32 s95, s2, 3'); A('s_add_u32 s95, s95, s3'); A('s_lshl_b32 s95, s95, 7'); A(f's_add_u32 s95, s95, {WS_TS}')
    A('s_cmp_ge_u32 s3, 4'); A('s_cbranch_scc1 L_helper')

    VOFF = 1; VL = 2; VL2 = 3; Q = 4
    AA = list(range(8, 16)); BB = list(range(16, 24)); T = list(range(24, 32)); PA = list(range(32, 40)); PB = list(range(40, 48))
    PL = 48; OM = 54; OL = 55; VQA = 56; VQ = 57; VPA = 58; VN = 59
    NB = NS // 8 - 1; NX = 8*NB
    def slot(i): return 64 + 4*i
    def pslot(t): return 8 + t if t < NX else t - NX
    A('s_lshl_b32 s51, s4, 24')
    A(f's_mul_i32 s44, s5, {NSB*32768}'); A('s_add_u32 s44, s44, s51')
    A('s_lshl_b32 s53, s6, 10'); A('s_add_u32 s44, s44, s53'); A('s_mov_b32 s45, s44')
    A(f'v_lshlrev_b32 v{VOFF}, 4, v0')
    A('s_waitcnt lgkmcnt(0)')
    srd(g, 8, 18, 1 << 29); srd(g, 12, 20, 1 << 29)
    g.stamp(0)
    def ld(sl, sr):
        A(f'buffer_load_dwordx4 v[{slot(sl)}:{slot(sl)+3}], v{VOFF}, s[{sr}:{sr+3}], s44 offen nt')
        A('s_add_u32 s44, s44, 4096')
    def prefetch(sr, first, D):
        for t in range(first, NS):
            A(f's_waitcnt vmcnt({D-1})'); ld(pslot(t), sr)
    for t in range(D): ld(pslot(t), 8)
    A('s_barrier')
    A(f'v_lshrrev_b32 v{VL2}, 4, v0'); A(f'v_lshlrev_b32 v{VL2}, 5, v{VL2}')
    A('s_lshl_b32 s46, s6, 14'); A(f's_add_u32 s46, s46, {L_SC}'); A(f'v_add_u32 v{VL2}, s46, v{VL2}')
    A(f'v_bfe_u32 v{VL}, v0, 1, 3'); A(f'v_lshl_add_u32 v{VL}, v{VL}, 2, v{VL2}')
    A('s_mov_b32 s48, 0xcccccccc'); A('s_mov_b32 s49, 0xcccccccc')
    A(f's_mov_b32 s47, {hex(f2u(128 ** -0.5))}'); A(f's_mov_b32 s52, {hex(LOG2E)}')
    A(f'v_mov_b32 v{OM}, 0xff7fffff'); A(f'v_mov_b32 v{OL}, 0')
    A(f'v_mov_b32 v{VPA}, s6'); A(f'v_lshlrev_b32 v{VPA}, 2, v{VPA}')
    A(f'v_and_b32 v50, 15, v0'); A(f'v_lshlrev_b32 v50, 5, v50')
    A(f'v_mov_b32 v{VQA}, {L_Q + 4*(NB+2)}'); A(f'v_mov_b32 v{VN}, {NB+2}')
    A(f's_mov_b32 s70, {SPIN_MAX*64}')
    prefetch(8, D, D)
    g.stamp(1)
    if 'xb1' not in exp: A('s_barrier')
    g.stamp(2)
    A(f'ds_read_b128 v[8:11], v50 offset:{L_HV}'); A(f'ds_read_b128 v[12:15], v50 offset:{L_HV + 16}')
    A('s_waitcnt lgkmcnt(0)')
    for i in range(4): A(f'v_cvt_pk_bf16_f32 v{Q+i}, v{8+2*i}, v{9+2*i}')
    def kdot(a, sl):
        A(f'v_mov_b32 v{a}, 0')
        for i in range(4): A(f'v_dot2c_f32_bf16 v{a}, v{slot(sl)+i}, v{Q+i}')
    def kreduce(a, off=None):
        g.nop(3)
        for j in range(4):
            A(f'v_add_f32_dpp v{T[j]}, v{a[j]}, v{a[j]} row_ror:8 row_mask:0xf bank_mask:0x3')
            A(f'v_add_f32_dpp v{T[j]}, v{a[j+4]}, v{a[j+4]} row_ror:8 row_mask:0xf bank_mask:0xc')
        for j in range(2):
            A(f'v_add_f32_dpp v{T[4+j]}, v{T[j]}, v{T[j]} row_half_mirror row_mask:0xf bank_mask:0x5')
            A(f'v_add_f32_dpp v{T[4+j]}, v{T[j+2]}, v{T[j+2]} row_half_mirror row_mask:0xf bank_mask:0xa')
        g.nop(1)
        A(f'v_add_f32_dpp v{T[6]}, v{T[4]}, v{T[4]} quad_perm:[2,3,0,1] row_mask:0xf bank_mask:0xf')
        A(f'v_add_f32_dpp v{T[7]}, v{T[5]}, v{T[5]} quad_perm:[2,3,0,1] row_mask:0xf bank_mask:0xf')
        A(f'v_cndmask_b32 v{T[6]}, v{T[6]}, v{T[7]}, s[48:49]')
        g.nop(2)
        A(f'v_add_f32_dpp v{T[6]}, v{T[6]}, v{T[6]} quad_perm:[1,0,3,2] row_mask:0xf bank_mask:0xf')
        rnd(g, T[6], T[6]); A(f'v_mul_f32 v{T[6]}, s47, v{T[6]}'); rnd(g, T[6], T[6])
        A(f'ds_write_b32 v{VL}, v{T[6]}' + ('' if off is None else f' offset:{off}'))
        A(f'v_max_f32 v{T[0]}, v{OM}, v{T[6]}')
        A(f'v_sub_f32 v{T[1]}, v{OM}, v{T[0]}'); A(f'v_sub_f32 v{T[2]}, v{T[6]}, v{T[0]}')
        A(f'v_mul_f32 v{T[1]}, s52, v{T[1]}'); A(f'v_mul_f32 v{T[2]}, s52, v{T[2]}')
        A(f'v_exp_f32 v{T[1]}, v{T[1]}'); A(f'v_exp_f32 v{T[2]}, v{T[2]}')
        A(f'v_mov_b32 v{OM}, v{T[0]}')
        if off is None: A(f'v_add_u32 v{VL}, 128, v{VL}')
        else: g.nop(1)
        A(f'v_fma_f32 v{OL}, v{OL}, v{T[1]}, v{T[2]}')
    def qread(): A(f'ds_read_b32 v{VQ}, v{VQA}')
    def qtop(pref, prog):
        g.label(f'{pref}_top')
        A('s_waitcnt lgkmcnt(0)')
        A(f'v_readfirstlane_b32 s50, v{VQ}')
        g.nop(1)
        A(f's_cmp_ge_u32 s50, {hex(Q_DONE)}'); A(f's_cbranch_scc1 {pref}_slow')
        A('s_add_u32 s44, s50, s53')
        if ts and ('kprog' in exp and prog == L_PROG or 'vprog' in exp and prog == L_PROGV):
            A(f'v_readfirstlane_b32 s71, v{VN}'); g.nop(2)
            lb = g.newlabel('L_st')
            A('s_and_b32 s72, s71, 7'); A('s_cmp_lg_u32 s72, 0'); A(f's_cbranch_scc1 {lb}')
            A('s_cmp_lg_u32 s3, 0'); A(f's_cbranch_scc1 {lb}')
            A('s_memrealtime s[96:97]'); A('s_waitcnt lgkmcnt(0)')
            A('v_mov_b32 v60, s96'); A('v_mov_b32 v61, s97'); A('s_add_u32 s72, s95, s71'); A('s_add_u32 s72, s72, 128'); A('v_mov_b32 v62, s72')
            A('s_mov_b64 exec, 1'); A('global_store_dwordx2 v62, v[60:61], s[42:43]'); A('s_mov_b64 exec, -1')
            g.label(lb)
        A(f'v_add_u32 v{VQA}, 4, v{VQA}')
        A(f'ds_write_b32 v{VPA}, v{VN} offset:{prog}'); A(f'v_add_u32 v{VN}, 1, v{VN}')
    def qslow(pref):
        g.label(f'{pref}_slow')
        A(f's_cmp_eq_u32 s50, {hex(Q_DONE)}'); A(f's_cbranch_scc1 {pref}_last')
        A('s_sub_u32 s70, s70, 1'); A('s_cmp_eq_u32 s70, 0'); A(f's_cbranch_scc1 {pref}_last')
        A('s_sleep 1'); qread(); A(f's_branch {pref}_top')
        g.label(f'{pref}_last')
    for j in range(8):
        A('s_waitcnt vmcnt(7)')
        kdot(AA[j], j); ld(j, 8)
        for e in range(NB*j, NB*(j+1)):
            kdot(BB[e % 8], 8 + e)
            if e % 8 == 7: kreduce(BB, off=(e // 8)*128)
    qread(); A(f'v_add_u32 v{VL}, {NB*128}, v{VL}'); kreduce(AA)
    g.stamp(8)
    qtop('L_k', L_PROG)
    for j in range(8):
        A('s_waitcnt vmcnt(7)')
        kdot(AA[j], j); ld(j, 8)
        if j == 6: qread()
    kreduce(AA)
    A('s_branch L_k_top')
    qslow('L_k')
    A('s_mov_b32 s44, s45')
    for j in range(8):
        A('s_waitcnt vmcnt(7)')
        kdot(AA[j], j); ld(pslot(j), 12)
    kreduce(AA)
    A(f'v_mov_b32 v{T[0]}, v{OM}')
    wave_allreduce(g, T[0], T[1], 'max')
    A(f'v_sub_f32 v{T[2]}, v{OM}, v{T[0]}'); A(f'v_mul_f32 v{T[2]}, s52, v{T[2]}'); A(f'v_exp_f32 v{T[2]}, v{T[2]}')
    A(f'ds_read_b32 v{T[3]}, v{VPA} offset:{L_TAG}')
    A('s_lshl_b32 s50, s2, 6'); A('s_lshl_b32 s56, s6, 4'); A('s_add_u32 s50, s50, s56')
    A(f'v_mul_f32 v{T[2]}, v{T[2]}, v{OL}')
    wave_allreduce(g, T[2], T[1])
    A(f'v_mul_f32 v{T[2]}, 0.5, v{T[2]}')
    A(f's_add_u32 s50, s50, {WS_ML}'); A(f'v_mov_b32 v{T[4]}, s50')
    A('s_waitcnt lgkmcnt(0)')
    A(f'v_mov_b32 v{T[1]}, v{T[3]}')
    A(f'ds_write_b32 v{VPA}, v{VN} offset:{L_KD}')
    A('s_mov_b64 exec, 1')
    A(f'global_store_dwordx4 v{T[4]}, v[{T[0]}:{T[3]}], s[42:43] sc1')
    A('s_mov_b64 exec, -1')
    g.stamp(3)
    prefetch(12, 8, 8)
    ACC = AA
    for i in range(8): A(f'v_mov_b32 v{ACC[i]}, 0')
    A(f'v_mov_b32 v{VQA}, {L_QV + 4*(NB+2)}'); A(f'v_mov_b32 v{VN}, {NB+2}')
    g.stamp(4)
    if 'xb2' not in exp: A('s_barrier')
    g.stamp(5)
    def pread(P, off):
        A(f'ds_read_b128 v[{P[0]}:{P[3]}], v{VL2} offset:{off}'); A(f'ds_read_b128 v[{P[4]}:{P[7]}], v{VL2} offset:{off+16}')
    def vmac(sl, p):
        A(f'v_lshrrev_b32 v{PL}, 16, v{p}')
        tile_mac(g, ACC, slot(sl), f'v{p}', f'v{PL}')
    pread(PA, NB*128); pread(PB, 0)
    PC = BB
    for j in range(8):
        A('s_waitcnt vmcnt(7) lgkmcnt(0)' if j == 0 else 's_waitcnt vmcnt(7)')
        vmac(j, PA[j]); ld(j, 12)
        for e in range(NB*j, NB*(j+1)):
            cur, nxt = (PB, PC) if (e // 8) % 2 == 0 else (PC, PB)
            if e % 8 == 0:
                A('s_waitcnt lgkmcnt(0)')
                if e // 8 + 1 < NB: pread(nxt, (e // 8 + 1)*128)
            vmac(8 + e, cur[e % 8])
    A(f'v_add_u32 v{VL2}, {(NB+1)*128}, v{VL2}')
    qread(); pread(PA, 0)
    g.stamp(10)
    qtop('L_v', L_PROGV)
    for j in range(8):
        A('s_waitcnt vmcnt(7)')
        vmac(j, PA[j]); ld(j, 12)
        if j == 6: qread()
    A(f'v_add_u32 v{VL2}, 128, v{VL2}')
    pread(PA, 0)
    A('s_branch L_v_top')
    qslow('L_v')
    A('v_lshrrev_b32 v51, 4, v0'); A('v_lshl_add_u32 v50, v51, 3, v50')
    A('s_lshl_b32 s46, s6, 9'); A('v_add_u32 v50, s46, v50')
    A('s_lshl_b32 s46, s2, 9'); A(f's_add_u32 s46, s46, {WS_OP}'); A(f'v_add_u32 v51, s46, v{VOFF}')
    for j in range(8):
        A(f's_waitcnt vmcnt({7-j})')
        vmac(j, PA[j])
    g.stamp(6)
    g.nop(1)
    swap_reduce8(g, ACC)
    A(f'ds_write_b64 v50, v[{ACC[0]}:{ACC[1]}] offset:{L_OB}')
    A('s_waitcnt lgkmcnt(0)')
    A('s_barrier')
    if 'notail' in exp: A('s_branch L_end')
    A('v_mov_b32 v52, 0'); A(f'ds_read_b32 v53, v52 offset:{L_ROLE}')
    A('s_cmp_lg_u32 s3, 0'); A('s_cbranch_scc1 L_s_after_pub')
    A('s_mov_b64 exec, 0xffffffff')
    for w in range(4): A(f'ds_read_b128 v[{8+4*w}:{11+4*w}], v{VOFF} offset:{L_OB + 512*w}')
    A('s_waitcnt lgkmcnt(0)')
    sum4x4(g, 8)
    A('global_store_dwordx4 v51, v[8:11], s[42:43] sc1')
    A('s_mov_b64 exec, -1')
    g.stamp(7)
    g.label('L_s_after_pub')
    if 'xstage' in exp: A('s_branch L_end')
    A('s_waitcnt lgkmcnt(0)'); A('v_readfirstlane_b32 s57, v53'); g.nop(1)
    A(f's_cmp_ge_u32 s57, {NMLP}'); A('s_cbranch_scc1 L_end')
    SW = 64
    srd(g, 8, 28, 512*1792*2); srd(g, 12, 30, 512*1792*2); srd(g, 64, 32, 1792*512*2)
    A('v_lshrrev_b32 v52, 2, v0'); A('s_lshl_b32 s50, s6, 7'); A('v_add_u32 v52, s50, v52')
    A('v_and_b32 v53, 3, v0'); A('v_lshlrev_b32 v53, 4, v53')
    A('s_movk_i32 s50, 3584'); A('v_mad_u32_u24 v54, v52, s50, v53')
    A('v_lshrrev_b32 v55, 3, v52'); A('v_lshl_add_u32 v53, v55, 4, v53'); A('v_lshl_add_u32 v52, v52, 6, v53'); A(f'v_add_u32 v52, {L_ST}, v52')
    A(f'v_add_u32 v53, {ST_SZ}, v52')
    A('s_lshl_b32 s50, s6, 13'); A(f's_add_u32 s50, s50, {L_DS}'); A(f'v_add_u32 v55, s50, v{VOFF}')
    A('v_mov_b32 v11, 1'); A('v_mov_b32 v12, 0')
    A('s_lshl_b32 s50, s57, 6')
    A('s_lshl_b32 s51, s57, 5'); A('s_lshl_b32 s52, s6, 3'); A('s_add_u32 s51, s51, s52'); A('s_lshl_b32 s51, s51, 10')
    ops = []
    for j in range(8):
        ops.append((f'buffer_load_dwordx4 v[{SW+8*j}:{SW+8*j+3}], v54, s[8:11], s50 offen nt', f'ds_write_b128 v52, v[{SW+8*j}:{SW+8*j+3}] offset:{1056*j}', None))
        ops.append((f'buffer_load_dwordx4 v[{SW+8*j+4}:{SW+8*j+7}], v54, s[12:15], s50 offen nt', f'ds_write_b128 v53, v[{SW+8*j+4}:{SW+8*j+7}] offset:{1056*j}', f's_add_u32 s50, s50, {3584*16}'))
    for j in range(8):
        ops.append((f'buffer_load_dwordx4 v[{SW+64+4*j}:{SW+67+4*j}], v{VOFF}, s[64:67], s51 offen offset:{1024*(j%4)} nt', f'ds_write_b128 v55, v[{SW+64+4*j}:{SW+67+4*j}] offset:{1024*j}', 's_add_u32 s51, s51, 4096' if j == 3 else None))
    n = len(ops); PD = min(pace, n)
    for i in range(n + PD):
        if i >= PD:
            A(f's_waitcnt vmcnt({min(PD - 1, n - 1 - (i - PD))})'); A(ops[i - PD][1])
            if (i - PD) % 8 == 7: A('s_waitcnt lgkmcnt(0)')
        if i < n:
            A(ops[i][0])
            if ops[i][2]: A(ops[i][2])
    A('s_mov_b64 exec, 1')
    A(f'ds_add_u32 v12, v11 offset:{L_CNT + 16}')
    A('s_mov_b64 exec, -1')
    def stage_wait(pref):
        A(f's_mov_b32 s70, {SPIN_MAX*16}')
        g.label(f'{pref}_spin')
        A(f'ds_read_b32 v13, v12 offset:{L_CNT + 16}')
        A('s_waitcnt lgkmcnt(0)')
        A('v_readfirstlane_b32 s50, v13')
        A('s_sub_u32 s70, s70, 1'); A('s_cmp_eq_u32 s70, 0'); A(f's_cbranch_scc1 {pref}_done')
        A('s_cmp_ge_u32 s50, 5'); A(f's_cbranch_scc1 {pref}_done')
        A('s_sleep 1'); A(f's_branch {pref}_spin')
        g.label(f'{pref}_done')
    stage_wait('L_sst')
    A('s_branch L_gather_ap')

    g.label('L_helper'); g.role = 'H'
    WQ = 64; WM = 192; CC = 52; X8 = 56; X4 = 46; TAG = 49; MEAN = 40; SD = 41; RSD = 42
    A('v_lshrrev_b32 v1, 2, v0'); A('v_and_b32 v2, 3, v0')
    A('s_lshl_b32 s7, s6, 7')
    A('v_add_u32 v3, s7, v1')
    A('v_lshlrev_b32 v4, 2, v0'); A('s_lshl_b32 s50, s6, 8'); A('v_add_u32 v4, s50, v4')
    A('s_movk_i32 s50, 6144'); A('v_mul_lo_u32 v5, v3, s50'); A('v_lshl_add_u32 v5, v2, 4, v5')
    A('v_lshlrev_b32 v6, 4, v0')
    A('s_lshl_b32 s50, s5, 6'); A('s_lshl_b32 s51, s6, 4'); A('s_add_u32 s50, s50, s51')
    A('v_lshrrev_b32 v7, 4, v0'); A('v_lshl_add_u32 v7, v7, 2, s50')
    A('v_lshlrev_b32 v10, 1, v7')
    A('v_lshlrev_b32 v9, 13, v7'); A('v_and_b32 v11, 15, v0'); A('v_lshl_add_u32 v9, v11, 4, v9')
    A('v_mov_b32 v8, 0')
    A('s_waitcnt lgkmcnt(0)')
    g.stamp(0)
    A(f'global_load_dword v{TAG}, v8, s[42:43]')
    A('s_cmp_ge_u32 s58, 96'); A('s_cbranch_scc1 L_h_noprod1')
    srd(g, 8, 36, 512*3072*2)
    A(f'global_load_dword v{CC}, v4, s[34:35]')
    A('s_lshl_b32 s50, s58, 6')
    for j in range(0 if 'xwm' in exp else 8):
        A(f'buffer_load_dwordx4 v[{WM+4*j}:{WM+4*j+3}], v5, s[8:11], s50 offen' + (' nt' if 'wdef' not in exp else ''))
        if j < 7: A(f's_add_u32 s50, s50, {6144*16}')
    g.label('L_h_noprod1')
    A('s_lshl_b32 s50, s5, 3'); A('s_add_u32 s50, s50, s3'); A('s_cmp_lg_u32 s50, 4'); A('s_cbranch_scc1 L_h_nocinit')
    A('v_and_b32 v11, 1, v0'); A('v_lshlrev_b32 v11, 7, v11'); A(f's_lshl_b32 s50, s4, 8'); A(f's_add_u32 s50, s50, {WS_CNT}'); A('v_add_u32 v11, s50, v11')
    A('s_mov_b64 exec, 3')
    A('global_store_dword v11, v8, s[42:43] sc1')
    A('s_mov_b64 exec, -1')
    g.label('L_h_nocinit')
    A(f'global_load_dwordx4 v[{X8}:{X8+3}], v6, s[16:17]')
    A(f'global_load_dwordx2 v[{X4}:{X4+1}], v10, s[16:17]')
    srd(g, 12, 22, 512*4096*2)
    A('s_lshl_b32 s50, s4, 8')
    for j in range(0 if 'xwq' in exp else 4):
        A(f'buffer_load_dwordx4 v[{WQ+4*j}:{WQ+4*j+3}], v9, s[12:15], s50 offen nt')
        if j < 3: A('s_add_u32 s50, s50, 8192')
    A('s_cmp_lg_u32 s3, 4'); A('s_cbranch_scc1 L_h_nozero')
    A('v_lshlrev_b32 v10, 2, v0')
    A(f'ds_write_b32 v10, v8 offset:{L_CNT}')
    A('s_lshl_b32 s51, s4, 24'); A(f's_mul_i32 s50, s5, {NSB*32768}'); A('s_add_u32 s50, s50, s51')
    A('v_lshlrev_b32 v11, 15, v0'); A('v_add_u32 v11, s50, v11'); A('v_mov_b32 v12, -1')
    A(f'v_cmp_gt_u32 vcc, {NSB}, v0'); g.nop(2); A('v_cndmask_b32 v11, v12, v11, vcc')
    for q in (L_Q, L_QV):
        A(f'ds_write_b32 v10, v11 offset:{q}'); A(f'ds_write_b32 v10, v12 offset:{q + 256}')
    A('s_waitcnt lgkmcnt(0)')
    g.label('L_h_nozero')
    A('s_barrier')
    A('s_cmp_ge_u32 s58, 96'); A('s_cbranch_scc1 L_h_w1')
    A('s_waitcnt vmcnt(14)'); A('s_branch L_h_w2')
    g.label('L_h_w1')
    A('s_waitcnt vmcnt(4)')
    g.label('L_h_w2')
    A('s_mov_b32 s50, 0x9e3779b1')
    A(f'v_mul_lo_u32 v{TAG}, v{TAG}, s50'); A(f'v_add_u32 v{TAG}, 0x7f4a7c15, v{TAG}')
    A('v_mov_b32 v10, s6'); A('v_lshlrev_b32 v10, 2, v10'); A(f'ds_write_b32 v10, v{TAG} offset:{L_TAG}')
    g.stamp(1)
    A('s_cmp_ge_u32 s58, 96'); A('s_cbranch_scc1 L_h_noprod2')
    CV = list(range(16, 24)); ACC = list(range(24, 32))
    unpack(g, [32, 33], CC, 1)
    for i in range(2): A(f'v_mul_f32 v{80+i}, {hex(f2u(-1.4426950408889634))}, v{32+i}')
    sigmoid_mul_n(g, [(88+i, 32+i, 80+i, 96+i, 104+i, 112+i) for i in range(2)])
    for i in range(2): rnd(g, 88+i, 88+i)
    A('v_and_b32 v10, 7, v0'); A('v_lshlrev_b32 v10, 6, v10'); A('v_lshrrev_b32 v11, 3, v0'); A('v_lshl_add_u32 v10, v11, 2, v10')
    A('s_lshl_b32 s50, s6, 9'); A('v_add_u32 v10, s50, v10')
    A(f'ds_write_b32 v10, v88 offset:{L_QP}'); A(f'ds_write_b32 v10, v89 offset:{L_QP + 32}')
    A('v_lshl_add_u32 v10, v1, 5, s50')
    A(f'ds_read_b128 v[16:19], v10 offset:{L_QP}'); A(f'ds_read_b128 v[20:23], v10 offset:{L_QP + 16}')
    A('s_waitcnt vmcnt(0) lgkmcnt(0)' if 'xwq' in exp else 's_waitcnt vmcnt(6) lgkmcnt(0)')
    for i in range(8): A(f'v_mov_b32 v{ACC[i]}, 0'); A(f'v_lshrrev_b32 v{80+i}, 16, v{CV[i]}')
    for j in range(8): tile_mac(g, ACC, WM + 4*j, f'v{CV[j]}', f'v{80+j}')
    A('v_lshrrev_b32 v10, 4, v0'); A('v_lshlrev_b32 v10, 3, v10'); A('v_lshl_add_u32 v10, v2, 5, v10')
    A('v_add_u32 v10, s7, v10')
    swap_reduce8(g, ACC)
    row_allreduce(g, ACC[:2], rors=(8, 4))
    A(f'ds_write_b64 v10, v[{ACC[0]}:{ACC[1]}] offset:{L_MODP}')
    last_arriver(g, 0, 'L_h_noprod2')
    A('v_and_b32 v11, 7, v0'); A('v_lshlrev_b32 v11, 4, v11')
    for w in range(4): A(f'ds_read_b128 v[{16+4*w}:{19+4*w}], v11 offset:{L_MODP + 128*w}')
    A('s_lshl_b32 s50, s58, 7'); A(f's_add_u32 s50, s50, {WS_MOD}'); A('v_add_u32 v10, s50, v11')
    A('s_mov_b64 exec, 0xff')
    A('s_waitcnt lgkmcnt(0)')
    sum4x4(g, 16, False)
    A('v_cvt_pk_bf16_f32 v16, v16, v17'); A('v_cvt_pk_bf16_f32 v18, v18, v19'); A(f'v_mov_b32 v17, v{TAG}'); A(f'v_mov_b32 v19, v{TAG}')
    A('global_store_dwordx4 v10, v[16:19], s[42:43] sc1')
    A('s_mov_b64 exec, -1')
    g.stamp(2)
    g.label('L_h_noprod2')
    A('s_waitcnt vmcnt(4)')
    XS = list(range(16, 24))
    unpack(g, XS, X8)
    ln_stats(g, XS, MEAN, SD, list(range(32, 40)))
    A(f'v_rcp_f32 v{RSD}, v{SD}')
    A(f's_mov_b32 s50, {WS_MOD}')
    A('v_lshlrev_b32 v10, 2, v7'); A('v_add_u32 v10, s50, v10')
    unpack(g, [16, 17, 18, 19], X4, 2)
    def lds_():
        A('global_load_dwordx4 v[24:27], v10, s[42:43] sc1'); A('global_load_dwordx4 v[28:31], v10, s[42:43] offset:2048 sc1')
    poll(g, lds_, chk_tags(g, [25, 27, 29, 31], TAG), sleep=psl)
    g.stamp(3)
    for k, src in enumerate((24, 26)):
        A(f'v_lshlrev_b32 v{20+2*k}, 16, v{src}'); A(f'v_and_b32 v{21+2*k}, 0xffff0000, v{src}')
    for k, src in enumerate((28, 30)):
        A(f'v_lshlrev_b32 v{32+2*k}, 16, v{src}'); A(f'v_and_b32 v{33+2*k}, 0xffff0000, v{src}')
    for i in range(4): A(f'v_add_f32 v{32+i}, 1.0, v{32+i}')
    for i in range(4): rnd(g, 32+i, 32+i)
    modulate_n(g, [(36+i, 16+i, 32+i, 20+i, 80+i, 84+i) for i in range(4)], MEAN, SD, RSD)
    ACC = list(range(24, 32))
    for i in range(8): A(f'v_mov_b32 v{ACC[i]}, 0')
    for j in range(4): A(f'v_lshrrev_b32 v{80+j}, 16, v{36+j}')
    for j in range(4): tile_mac(g, ACC, WQ + 4*j, f'v{36+j}', f'v{80+j}')
    A('v_and_b32 v10, 15, v0'); A('v_lshlrev_b32 v10, 5, v10'); A('v_lshrrev_b32 v11, 4, v0'); A('v_lshl_add_u32 v10, v11, 3, v10')
    A('s_lshl_b32 s50, s6, 9'); A('v_add_u32 v10, s50, v10')
    swap_reduce8(g, ACC)
    A(f'ds_write_b64 v10, v[{ACC[0]}:{ACC[1]}] offset:{L_QP}')
    A('v_lshlrev_b32 v10, 3, v0')
    last_arriver(g, 1, 'L_h_noqpub')
    for w in range(4): A(f'ds_read_b64 v[{16+2*w}:{17+2*w}], v10 offset:{L_QP + 512*w}')
    A('s_lshl_b32 s50, s2, 10'); A(f's_add_u32 s50, s50, {WS_QX}'); A('v_add_u32 v10, s50, v6')
    A('s_waitcnt lgkmcnt(0)')
    A('v_pk_add_f32 v[16:17], v[16:17], v[18:19]'); A('v_pk_add_f32 v[20:21], v[20:21], v[22:23]'); A('v_pk_add_f32 v[16:17], v[16:17], v[20:21]')
    A(f'v_mov_b32 v19, v{TAG}'); A('v_mov_b32 v18, v17'); A(f'v_mov_b32 v17, v{TAG}')
    A('global_store_dwordx4 v10, v[16:19], s[42:43] sc1')
    g.label('L_h_noqpub')
    A('s_lshl_b32 s50, s4, 13'); A('s_lshl_b32 s51, s6, 8'); A('s_add_u32 s50, s50, s51'); A(f's_add_u32 s50, s50, {WS_QX}')
    A('v_lshrrev_b32 v10, 3, v0'); A('v_lshlrev_b32 v10, 10, v10'); A('v_and_b32 v11, 7, v0'); A('v_lshl_add_u32 v10, v11, 5, v10')
    A('v_add_u32 v10, s50, v10')
    A('v_lshlrev_b32 v48, 4, v11'); A('v_bfe_u32 v13, v0, 5, 1'); A('v_lshl_add_u32 v48, v13, 3, v48')
    A('v_bfe_u32 v13, v0, 4, 1'); A('v_lshl_add_u32 v48, v13, 2, v48'); A('v_add_u32 v12, s7, v48')
    def lds_():
        A('global_load_dwordx4 v[24:27], v10, s[42:43] sc1'); A('global_load_dwordx4 v[28:31], v10, s[42:43] offset:16 sc1')
    poll(g, lds_, chk_tags(g, [25, 27, 29, 31], TAG), sleep=psl)
    reduce4_hi(g, [24, 26, 28, 30])
    A(f'ds_write_b32 v12, v24 offset:{L_HV}')
    A('s_waitcnt lgkmcnt(0)')
    g.stamp(4)
    if 'xb1' not in exp: A('s_barrier')
    if 'xclr' in exp: A('s_branch L_h_noclear')
    A('s_cmp_lg_u32 s3, 7'); A('s_cbranch_scc1 L_h_noclear')
    for i in range(4): A(f'v_mov_b32 v{16+i}, -1')
    A('s_lshl_b32 s51, s2, 9'); A(f's_add_u32 s51, s51, {WS_OP}'); A('v_add_u32 v10, s51, v6')
    A('v_and_b32 v11, 15, v0'); A('v_lshlrev_b32 v11, 4, v11'); A('v_lshrrev_b32 v12, 4, v0'); A('v_lshl_add_u32 v11, v12, 16, v11')
    A('s_lshl_b32 s51, s2, 8'); A(f's_add_u32 s51, s51, {WS_AP}'); A('v_add_u32 v11, s51, v11'); A('v_add_u32 v12, 0x40000, v11')
    A('s_mov_b64 exec, 0xffffffff')
    A('global_store_dwordx4 v10, v[16:19], s[42:43] sc1')
    A('s_mov_b64 exec, 0xffff')
    A('global_store_dwordx4 v11, v[16:19], s[42:43] sc1')
    A('s_mov_b64 exec, -1')
    A(f's_cmp_ge_u32 s2, {NMLP}'); A('s_cbranch_scc1 L_h_noclear')
    A('s_lshl_b32 s51, s2, 11'); A(f's_add_u32 s51, s51, {WS_DP}'); A('v_add_u32 v10, s51, v6')
    A('global_store_dwordx4 v10, v[16:19], s[42:43] sc1')
    A('global_store_dwordx4 v10, v[16:19], s[42:43] offset:1024 sc1')
    g.label('L_h_noclear')
    WO = 64; WG = 80; WU = 112; WD = 144; E = 192
    srd(g, 8, 24, 4096*512*2)
    A('v_lshrrev_b32 v10, 3, v0'); A('v_lshlrev_b32 v10, 2, v10')
    A('s_lshl_b32 s50, s4, 7'); A('s_lshl_b32 s51, s6, 5'); A('s_add_u32 s50, s50, s51')
    A('v_add_u32 v10, s50, v10'); A('v_lshlrev_b32 v10, 10, v10')
    A('v_and_b32 v11, 7, v0'); A('v_lshl_add_u32 v10, v11, 4, v10')
    A('s_lshl_b32 s50, s5, 7')
    for j in range(0 if 'xwo' in exp else 4):
        A(f'buffer_load_dwordx4 v[{WO+4*j}:{WO+4*j+3}], v10, s[8:11], s50 offen offset:{1024*j} nt')
    A('s_waitcnt vmcnt(0) lgkmcnt(0)')
    g.stamp(5)
    A('v_mov_b32 v12, s6'); A('v_lshlrev_b32 v12, 2, v12')
    A('s_lshl_b32 s59, s4, 24'); A(f's_add_u32 s59, s59, {NSB*8*32768}')
    A('v_mov_b32 v17, 0')
    def read_prog(off, dst):
        A(f'ds_read_b128 v[20:23], v17 offset:{off}')
        A('s_waitcnt lgkmcnt(0)')
        A('v_max3_u32 v20, v20, v21, v22'); A('v_max_u32 v20, v20, v23'); g.nop(1)
        A(f'v_readfirstlane_b32 {dst}, v20')
    A('s_cmp_lg_u32 s3, 4'); A('s_cbranch_scc1 L_nosched')
    A(f's_lshl_b32 s50, s4, 8'); A(f's_add_u32 s50, s50, {WS_CNT}'); A('v_mov_b32 v16, s50')
    A(f's_mov_b32 s52, {NSB}'); A('s_mov_b32 s53, 0')
    A(f's_mov_b32 s70, {SPIN_MAX*16}')
    g.label('L_sch_wait')
    read_prog(L_PROG, 's50')
    A('s_sub_u32 s70, s70, 1'); A('s_cmp_eq_u32 s70, 0'); A('s_cbranch_scc1 L_sch_done')
    A(f's_add_u32 s50, s50, {lead}'); A('s_cmp_ge_u32 s50, s52'); A('s_cbranch_scc1 L_sch_claim')
    A('s_sub_u32 s50, s52, s50'); A('s_cmp_gt_u32 s50, 4'); A('s_cbranch_scc1 L_sch_long')
    A('s_sleep 2'); A('s_branch L_sch_wait')
    g.label('L_sch_long')
    A('s_sleep 32'); A('s_branch L_sch_wait')
    g.label('L_sch_claim')
    A(f's_cmp_ge_u32 s52, {MAXROWS - 2}'); A('s_cbranch_scc1 L_sch_done')
    A(f's_cmp_lt_u32 s53, {NPOOL - sing}'); A('s_cselect_b32 s54, 2, 1')
    A('v_mov_b32 v18, s54')
    A('s_mov_b64 exec, 1')
    A('global_atomic_add v19, v16, v18, s[42:43] sc0 sc1')
    A('s_mov_b64 exec, -1')
    A('s_lshl_b32 s55, s52, 2'); A('v_mov_b32 v21, s55')
    A('s_waitcnt vmcnt(0)')
    A('v_readfirstlane_b32 s53, v19')
    g.label('L_sch_put')
    A(f's_cmp_ge_u32 s53, {NPOOL}'); A('s_cbranch_scc1 L_sch_done')
    A('s_lshl_b32 s55, s53, 15'); A('s_add_u32 s55, s55, s59'); A('v_mov_b32 v20, s55')
    A(f'ds_write_b32 v21, v20 offset:{L_Q}')
    A('v_add_u32 v21, 4, v21')
    A('s_add_u32 s52, s52, 1'); A('s_add_u32 s53, s53, 1')
    A('s_sub_u32 s54, s54, 1'); A('s_cmp_lg_u32 s54, 0'); A('s_cbranch_scc1 L_sch_put')
    A('s_branch L_sch_wait')
    g.label('L_sch_done')
    A('s_lshl_b32 s55, s52, 2'); A('v_mov_b32 v21, s55'); A('v_mov_b32 v20, -2')
    A(f'ds_write_b32 v21, v20 offset:{L_Q}')
    g.label('L_nosched')
    A('s_lshl_b32 s50, s4, 9'); A(f's_add_u32 s50, s50, {WS_ML}')
    A('v_and_b32 v11, 31, v0'); A('v_lshlrev_b32 v11, 4, v11'); A('v_add_u32 v11, s50, v11')
    A('s_lshl_b32 s50, s6, 14'); A(f's_add_u32 s50, s50, {L_SC}'); A('v_add_u32 v10, s50, v6')
    A(f's_mov_b32 s51, {hex(LOG2E)}')
    A(f's_mov_b32 s70, {SPIN_MAX*16}')
    g.label('L_kd_spin')
    A(f'ds_read_b32 v13, v12 offset:{L_KD}')
    A('s_waitcnt lgkmcnt(0)')
    A('v_readfirstlane_b32 s52, v13')
    A('s_sub_u32 s70, s70, 1'); A('s_cmp_eq_u32 s70, 0'); A('s_cbranch_scc1 L_kd_done')
    A('s_cmp_lg_u32 s52, 0'); A('s_cbranch_scc1 L_kd_done')
    A('s_sleep 8'); A('s_branch L_kd_spin')
    g.label('L_kd_done')
    g.stamp(6)
    NP = MAXROWS // 8
    for i in range(NP): A(f'ds_read_b128 v[{E+4*i}:{E+4*i+3}], v10 offset:{1024*i}')
    poll(g, lambda: A('global_load_dwordx4 v[28:31], v11, s[42:43] sc1'), chk_tags(g, [29, 31], TAG), sleep=mlsl)
    g.stamp(8)
    M = 22; IL = 23
    A('v_mov_b32 v22, v28')
    row_allreduce(g, [22], 'max')
    A('v_mov_b32 v23, v22'); g.nop(2); A('v_permlane16_swap_b32 v22, v23'); A('v_max_f32 v22, v22, v23')
    A('v_sub_f32 v20, v28, v22'); A('v_mul_f32 v20, s51, v20'); A('v_exp_f32 v20, v20'); g.nop(1)
    A('v_mul_f32 v20, v20, v30')
    row_allreduce(g, [20])
    A('v_mov_b32 v23, v20'); g.nop(2); A('v_permlane16_swap_b32 v20, v23'); A('v_add_f32 v20, v20, v23')
    A('v_mov_b32 v16, 1.0')
    divide(g, 23, 16, 20, 21, 24)
    A('s_waitcnt lgkmcnt(0)')
    for pc in range(NSB // 8):
        to_p(g, list(range(E + 4*pc, E + 4*pc + 4)), M, IL, 's51')
        A(f'ds_write_b128 v10, v[{E+4*pc}:{E+4*pc+3}] offset:{1024*pc}')
    if NSB % 8:
        pc = NSB // 8
        for i in range(4): A(f'v_mov_b32 v{32+i}, v{E+4*pc+i}')
        to_p(g, [32, 33, 34, 35], M, IL, 's51')
        A(f's_mov_b64 exec, {hex((1 << (8*(NSB % 8))) - 1)}' if NSB % 8 <= 4 and (1 << (8*(NSB % 8))) - 1 < (1 << 32) else f's_mov_b32 exec_hi, {hex((1 << (8*(NSB % 8) - 32)) - 1)}')
        A(f'ds_write_b128 v10, v[32:35] offset:{1024*pc}')
        A('s_mov_b64 exec, -1')
    A('s_waitcnt lgkmcnt(0)')
    g.stamp(9)
    if 'xb2' not in exp: A('s_barrier')
    A('v_lshrrev_b32 v11, 3, v0'); A('v_lshlrev_b32 v11, 2, v11')
    for pc in range(NSB // 8, NP): A(f'ds_read_b32 v{24 + pc - NSB//8}, v11 offset:{L_Q + 32*pc}')
    A('s_lshl_b32 s53, s4, 16'); A(f's_add_u32 s53, s53, {WS_SCG}')
    A('s_lshl_b32 s54, s6, 6'); A('s_add_u32 s54, s54, s53')
    A('v_and_b32 v12, 6, v0'); A('v_lshlrev_b32 v12, 3, v12'); A('v_add_u32 v12, s54, v12')
    A('s_mov_b32 s62, 0x55555555'); A('s_mov_b32 s63, 0x55555555')
    A('s_waitcnt lgkmcnt(0)')
    for pc in range(NSB // 8, NP):
        i0 = E + 4*pc; qv = 24 + pc - NSB//8
        A(f's_cmp_le_u32 s52, {8*pc}'); A('s_cbranch_scc1 L_exp_done')
        A(f'v_lshrrev_b32 v16, 16, v{i0}'); A(f'v_or_b32 v16, v16, v{i0+1}')
        A(f'v_lshrrev_b32 v17, 16, v{i0+2}'); A(f'v_or_b32 v17, v17, v{i0+3}')
        A(f'v_subrev_u32 v13, s59, v{qv}'); A('v_lshrrev_b32 v13, 7, v13'); A('v_add_u32 v13, v13, v12')
        A('v_mov_b32_dpp v18, v16 quad_perm:[1,1,3,3] row_mask:0xf bank_mask:0xf')
        A('v_mov_b32_dpp v19, v17 quad_perm:[1,1,3,3] row_mask:0xf bank_mask:0xf')
        A(f'v_cmp_gt_u32 vcc, -2, v{qv}')
        if pc == NSB // 8 and NSB % 8:
            msk = ((1 << 64) - 1) ^ ((1 << (8*(NSB % 8))) - 1)
            A(f's_mov_b32 s60, {hex(msk & 0xffffffff)}'); A(f's_mov_b32 s61, {hex(msk >> 32)}'); A('s_and_b64 vcc, vcc, s[60:61]')
        A('s_and_b64 exec, vcc, s[62:63]')
        lbx = g.newlabel('L_expz'); A(f's_cbranch_execz {lbx}')
        if 'xexp' not in exp: A('global_store_dwordx4 v13, v[16:19], s[42:43] sc1')
        g.label(lbx)
        A('s_mov_b64 exec, -1')
        g.nop(1)
    g.label('L_exp_done')
    A('s_waitcnt vmcnt(0)')
    last_arriver(g, 2, 'L_noxf')
    A('s_lshl_b32 s50, s2, 4'); A(f's_add_u32 s50, s50, {WS_XF}'); A('v_mov_b32 v13, s50')
    for i in range(4): A(f'v_mov_b32 v{16+i}, v{TAG}')
    A('s_mov_b64 exec, 1')
    A('global_store_dwordx4 v13, v[16:19], s[42:43] sc1')
    A('s_mov_b64 exec, -1')
    g.label('L_noxf')
    A('s_cmp_lg_u32 s3, 4'); A('s_cbranch_scc1 L_noschedv')
    A('s_lshl_b32 s50, s4, 7'); A(f's_add_u32 s50, s50, {WS_XF}'); A('v_and_b32 v13, 7, v0'); A('v_lshlrev_b32 v13, 4, v13'); A('v_add_u32 v13, s50, v13')
    A('s_sleep 100')
    poll(g, lambda: A('global_load_dword v16, v13, s[42:43] sc1'), chk_tags(g, [16], TAG), sleep=64)
    A(f's_lshl_b32 s50, s4, 8'); A(f's_add_u32 s50, s50, {WS_CNT + 128}'); A('v_mov_b32 v16, s50')
    A(f's_mov_b32 s52, {NSB}'); A('s_mov_b32 s56, -1'); A('s_mov_b32 s62, 0'); A('s_mov_b32 s63, 0')
    A('v_mov_b32 v17, 0')
    A('v_add_u32 v24, s53, v6')
    A('v_bfe_u32 v25, v0, 2, 2'); A('v_lshlrev_b32 v25, 14, v25'); A('v_lshrrev_b32 v26, 4, v0'); A('v_lshl_add_u32 v25, v26, 7, v25')
    A('v_lshl_add_u32 v25, v2, 5, v25'); A(f'v_add_u32 v25, {L_SC}, v25')
    A(f's_mov_b32 s70, {SPIN_MAX*16}')
    def read_progv():
        A(f'ds_read_b128 v[32:35], v17 offset:{L_PROGV}')
        A('s_waitcnt lgkmcnt(0)')
        A('v_max3_u32 v32, v32, v33, v34'); A('v_max_u32 v32, v32, v35'); g.nop(1)
        A('v_readfirstlane_b32 s64, v32')
    g.label('L_sv_top')
    read_progv()
    A('s_sub_u32 s70, s70, 1'); A('s_cmp_eq_u32 s70, 0'); A('s_cbranch_scc1 L_sv_done')
    A(f's_add_u32 s64, s64, {leadv}')
    A('s_mov_b32 s65, 0')
    A('s_cmp_lg_u32 s62, 0'); A('s_cbranch_scc1 L_sv_noclaim')
    A('s_cmp_lt_u32 s64, s52'); A('s_cbranch_scc1 L_sv_noclaim')
    A(f's_cmp_ge_u32 s52, {MAXROWS - 2}'); A('s_cbranch_scc1 L_sv_full')
    A(f's_cmp_lt_u32 s63, {NPOOL - sing}'); A('s_cselect_b32 s65, 2, 1')
    A('v_mov_b32 v18, s65')
    A('s_mov_b64 exec, 1')
    A('global_atomic_add v19, v16, v18, s[42:43] sc0 sc1')
    A('s_mov_b64 exec, -1')
    A('s_branch L_sv_pend')
    g.label('L_sv_full')
    A('s_mov_b32 s62, 1')
    g.label('L_sv_noclaim')
    A(f's_cmp_lt_u32 s56, {NPOOL}'); A('s_cbranch_scc1 L_sv_pend')
    A('s_cmp_lg_u32 s62, 0'); A('s_cbranch_scc1 L_sv_done')
    A('s_sub_u32 s64, s52, s64'); A('s_cmp_gt_u32 s64, 4'); A('s_cbranch_scc1 L_sv_long')
    A('s_sleep 2'); A('s_branch L_sv_top')
    g.label('L_sv_long')
    A('s_sleep 32'); A('s_branch L_sv_top')
    g.label('L_sv_pend')
    A(f's_cmp_ge_u32 s56, {NPOOL}'); A('s_cbranch_scc1 L_sv_nofetch')
    A('s_lshl_b32 s66, s56, 8'); A('v_add_u32 v26, s66, v24')
    A('s_cmp_eq_u32 s54, 2'); A('s_cselect_b32 s66, -1, 0xffff'); A('s_mov_b32 s67, 0')
    A('s_mov_b64 exec, s[66:67]')
    if 'xfet' not in exp: A('global_load_dwordx4 v[28:31], v26, s[42:43] sc1')
    A('s_lshl_b32 s66, s55, 7'); A('v_add_u32 v26, s66, v25')
    if 'xfet' not in exp: A('s_waitcnt vmcnt(0)')
    unpack(g, list(range(32, 40)), 28)
    to_p(g, list(range(32, 40)), M, IL, 's51')
    A('ds_write_b128 v26, v[32:35]'); A('ds_write_b128 v26, v[36:39] offset:16')
    A('v_lshrrev_b32 v26, 4, v0'); A('v_add_u32 v27, s56, v26'); A('v_lshlrev_b32 v27, 15, v27'); A('v_add_u32 v27, s59, v27')
    A('v_add_u32 v26, s55, v26'); A('v_lshlrev_b32 v26, 2, v26')
    A('s_waitcnt lgkmcnt(0)')
    A(f'ds_write_b32 v26, v27 offset:{L_QV}')
    A('s_mov_b64 exec, -1')
    A('s_mov_b32 s56, -1')
    g.label('L_sv_nofetch')
    A('s_cmp_eq_u32 s65, 0'); A('s_cbranch_scc1 L_sv_top')
    A('s_waitcnt vmcnt(0)')
    A('v_readfirstlane_b32 s56, v19')
    A('s_mov_b32 s55, s52')
    A(f's_cmp_ge_u32 s56, {NPOOL}'); A('s_cbranch_scc1 L_sv_done')
    A(f's_sub_u32 s54, {NPOOL}, s56'); A('s_min_u32 s54, s54, s65')
    A('s_add_u32 s52, s52, s54'); A('s_add_u32 s63, s56, s54')
    A('s_branch L_sv_top')
    g.label('L_sv_done')
    A('s_lshl_b32 s55, s52, 2'); A('v_mov_b32 v26, s55'); A('v_mov_b32 v27, -2')
    A(f'ds_write_b32 v26, v27 offset:{L_QV}')
    A('v_mov_b32 v27, s52'); A(f'ds_write_b32 v17, v27 offset:{L_ND}')
    g.label('L_noschedv')
    A('s_cmp_lg_u32 s3, 7'); A('s_cbranch_scc1 L_noticket')
    A('v_mov_b32 v17, 0'); A('v_mov_b32 v18, 1')
    A(f's_mov_b32 s70, {SPIN_MAX*16}')
    g.label('L_tk_wait')
    A(f'ds_read_b128 v[32:35], v17 offset:{L_PROGV}'); A(f'ds_read_b32 v36, v17 offset:{L_ND}')
    A('s_waitcnt lgkmcnt(0)')
    A('v_max3_u32 v32, v32, v33, v34'); A('v_max_u32 v32, v32, v35')
    A('v_readfirstlane_b32 s51, v36'); A('v_readfirstlane_b32 s50, v32')
    A('s_sub_u32 s70, s70, 1'); A('s_cmp_eq_u32 s70, 0'); A('s_cbranch_scc1 L_tk_go')
    A('s_cmp_eq_u32 s51, 0'); A('s_cbranch_scc1 L_tk_long')
    A(f's_add_u32 s50, s50, {tlead}'); A('s_cmp_ge_u32 s50, s51'); A('s_cbranch_scc1 L_tk_go')
    A('s_sleep 2'); A('s_branch L_tk_wait')
    g.label('L_tk_long')
    A('s_sleep 24'); A('s_branch L_tk_wait')
    g.label('L_tk_go')
    A('s_mov_b64 exec, 1')
    A('global_atomic_add v19, v17, v18, s[40:41] sc0 sc1')
    A('s_waitcnt vmcnt(0)')
    A(f'ds_write_b32 v17, v19 offset:{L_ROLE}')
    A('s_mov_b64 exec, -1')
    A('v_readfirstlane_b32 s57, v19')
    A('s_waitcnt lgkmcnt(0)')
    g.label('L_noticket')
    GA = list(range(192, 200)); SB = list(range(200, 208)); CB = list(range(208, 216)); XF = list(range(216, 224)); GBR = 224
    unpack(g, XF, X8)
    A('s_lshl_b32 s50, s4, 12'); A('s_add_u32 s50, s50, s7'); A(f's_add_u32 s50, s50, {WS_OP}')
    A('v_lshrrev_b32 v10, 3, v0'); A('v_lshlrev_b32 v13, 4, v10'); A('v_lshlrev_b32 v10, 9, v10'); A('v_and_b32 v11, 7, v0'); A('v_lshl_add_u32 v10, v11, 4, v10')
    A('v_add_u32 v10, s50, v10')
    A('v_add_u32 v15, s7, v48')
    A('v_add_u32 v9, s7, v13')
    A('v_lshrrev_b32 v14, 4, v0'); A('v_lshlrev_b32 v14, 3, v14'); A('v_lshl_add_u32 v14, v11, 5, v14')
    A('s_lshl_b32 s52, s6, 8'); A('v_add_u32 v14, s52, v14')
    A('v_and_b32 v8, 15, v0'); A('v_lshlrev_b32 v8, 4, v8'); A('v_lshrrev_b32 v7, 4, v0'); A('v_lshl_add_u32 v8, v7, 16, v8')
    A('s_lshl_b32 s51, s2, 8'); A(f's_add_u32 s51, s51, {WS_AP}'); A('v_add_u32 v8, s51, v8'); A('v_add_u32 v7, 0x40000, v8')
    A('v_and_b32 v5, 15, v0'); A('v_lshlrev_b32 v5, 4, v5')
    ACC = list(range(24, 32))
    for i in range(8): A(f'v_mov_b32 v{ACC[i]}, 0')
    A('s_barrier')
    if 'notail' in exp: A('s_branch L_end')
    g.stamp(10)
    A('v_mov_b32 v12, 0'); A(f'ds_read_b32 v50, v12 offset:{L_ROLE}')
    A('s_cmp_lg_u32 s3, 7'); A('s_cbranch_scc1 L_tk_end')
    A(f's_cmp_ge_u32 s57, {NMLP}'); A('s_cbranch_scc1 L_tk_end')
    A('v_lshlrev_b32 v228, 5, v0'); A(f'v_add_u32 v228, {WS_MOD + 4096}, v228'); A('v_add_u32 v229, 4096, v228')
    A('v_and_b32 v230, 15, v0'); A('v_lshlrev_b32 v231, 3, v230'); A('s_and_b32 s50, s57, 15'); A('s_lshl_b32 s50, s50, 7')
    A(f's_add_u32 s50, s50, {WS_MOD + 1280*8}'); A('v_add_u32 v231, s50, v231')
    A(f'v_add_u32 v51, {WS_XF}, v6')
    def lds_():
        A('global_load_dwordx4 v[144:147], v228, s[42:43] sc1'); A('global_load_dwordx4 v[148:151], v228, s[42:43] offset:16 sc1')
        A('global_load_dwordx4 v[152:155], v228, s[42:43] offset:2048 sc1'); A('global_load_dwordx4 v[156:159], v228, s[42:43] offset:2064 sc1')
        A('global_load_dwordx4 v[160:163], v229, s[42:43] sc1'); A('global_load_dwordx4 v[164:167], v229, s[42:43] offset:16 sc1')
        A('global_load_dwordx2 v[172:173], v231, s[42:43] sc1')
        for i in range(4): A(f'global_load_dword v{168+i}, v51, s[42:43] offset:{1024*i} sc1')
    poll(g, lds_, chk_tags(g, [173, 168, 169, 170, 171] + list(range(145, 168, 2)), TAG), sleep=8)
    for k in range(3):
        b = 144 + 8*k
        A(f'v_mov_b32 v{b+1}, v{b+2}'); A(f'v_mov_b32 v{b+2}, v{b+4}'); A(f'v_mov_b32 v{b+3}, v{b+6}')
        A(f'ds_write_b128 v6, v[{b}:{b+3}] offset:{L_MV + 1024*k}')
    A('v_lshlrev_b32 v230, 2, v230')
    A(f'ds_write_b32 v230, v172 offset:{L_MV + 3072}')
    A('v_mov_b32 v51, 1'); A('s_mov_b64 exec, 1'); A(f'ds_add_u32 v12, v51 offset:{L_CNT + 16}'); A('s_mov_b64 exec, -1')
    g.label('L_tk_end')
    poll(g, lambda: A('global_load_dwordx4 v[16:19], v10, s[42:43] sc1'), chk_sent(g, [16, 17, 18, 19], 20), sleep=opsl)
    g.stamp(11)
    reduce4_hi(g, [16, 17, 18, 19])
    rnd(g, 16, 16)
    A(f'ds_write_b32 v15, v16 offset:{L_OV}')
    A(f'ds_read_b128 v[16:19], v9 offset:{L_OV}')
    A('s_waitcnt lgkmcnt(0)')
    for j in range(4): A(f'v_lshrrev_b32 v{20+j}, 16, v{16+j}')
    for j in range(4): tile_mac(g, ACC, WO + 4*j, f'v{16+j}', f'v{20+j}')
    g.nop(1)
    swap_reduce8(g, ACC)
    row_allreduce(g, ACC[:2], rors=(8,))
    A(f'ds_write_b64 v14, v[{ACC[0]}:{ACC[1]}] offset:{L_AW}')
    last_arriver(g, 3, 'L_h_noap')
    A('s_mov_b64 exec, 0xffff')
    for w in range(4): A(f'ds_read_b128 v[{16+4*w}:{19+4*w}], v5 offset:{L_AW + 256*w}')
    A('s_waitcnt lgkmcnt(0)')
    sum4x4(g, 16)
    A('global_store_dwordx4 v8, v[16:19], s[42:43] sc1')
    A('s_mov_b64 exec, -1')
    g.stamp(12)
    g.label('L_h_noap')
    if 'xstage' in exp: A('s_branch L_end')
    A('v_readfirstlane_b32 s57, v50'); g.nop(1)
    A(f's_cmp_ge_u32 s57, {NMLP}'); A('s_cbranch_scc1 L_end')
    A('s_movk_i32 s50, 528'); A('v_mul_lo_u32 v10, v0, s50'); A('s_lshl_b32 s50, s6, 4'); A(f's_add_u32 s50, s50, {L_ST}'); A('v_add_u32 v10, s50, v10')
    A(f'v_add_u32 v11, {ST_SZ}, v10')
    A('s_lshl_b32 s50, s6, 13'); A(f's_add_u32 s50, s50, {L_DS}'); A('v_add_u32 v14, s50, v6')
    A('v_mov_b32 v12, 0')
    stage_wait('L_hst')
    for j in range(8):
        A(f'ds_read_b128 v[{WG+4*j}:{WG+4*j+3}], v10 offset:{64*j}'); A(f'ds_read_b128 v[{WU+4*j}:{WU+4*j+3}], v11 offset:{64*j}')
        A(f'ds_read_b128 v[{WD+4*j}:{WD+4*j+3}], v14 offset:{1024*j}')
        if j % 4 == 3: A('s_waitcnt lgkmcnt(0)')
    for k in range(3): A(f'ds_read_b128 v[{16+4*k}:{19+4*k}], v6 offset:{L_MV + 1024*k}')
    A('v_lshrrev_b32 v13, 3, v48'); A('v_lshlrev_b32 v13, 2, v13')
    A(f'ds_read_b32 v28, v13 offset:{L_MV + 3072}')
    A('s_waitcnt lgkmcnt(0)')
    unpack(g, GA, 16); unpack(g, SB, 20); unpack(g, CB, 24)
    for i in range(8): A(f'v_add_f32 v{CB[i]}, 1.0, v{CB[i]}')
    for i in range(8): rnd(g, CB[i], CB[i])
    A('v_and_b32 v13, 16, v0'); A('v_cmp_eq_u32 vcc, 0, v13')
    A('v_lshlrev_b32 v13, 16, v28'); A('v_and_b32 v14, 0xffff0000, v28')
    A(f'v_cndmask_b32 v{GBR}, v14, v13, vcc')
    g.label('L_gather_ap')
    A('s_and_b32 s50, s3, 1'); A('s_lshl_b32 s50, s50, 10'); A('s_lshr_b32 s51, s3, 1'); A('s_lshl_b32 s52, s51, 14')
    A('s_add_u32 s52, s52, s50'); A(f's_add_u32 s52, s52, {WS_AP + 4096}')
    A('v_lshlrev_b32 v10, 4, v0'); A('v_add_u32 v11, s52, v10'); A('v_add_u32 v12, 8192, v11')
    A('s_lshl_b32 s51, s51, 11'); A('s_add_u32 s51, s51, s50'); A('v_add_u32 v13, s51, v10')
    multi_poll(g, 'L_ap', 8, lambda i: f'global_load_dwordx4 v[{16+4*i}:{19+4*i}], v{11 + i//4}, s[42:43] offset:{(i%4)*2048 - 4096} sc1', 16, 14,
               [(16*16, apsl), (8*16, apsl // 3), (apth*16, apsl // 8)])
    g.stamp(13)
    for st in (16, 8, 4):
        for i in range(0, st, 2): A(f'v_pk_add_f32 v[{16+i}:{17+i}], v[{16+i}:{17+i}], v[{16+i+st}:{17+i+st}]')
    A(f'ds_write_b128 v13, v[16:19] offset:{L_AS}')
    A('v_lshlrev_b32 v10, 5, v0')
    A('s_waitcnt lgkmcnt(0)')
    A('s_barrier')
    A('s_cmp_lt_u32 s3, 4'); A('s_cbranch_scc1 L_end')
    g.role = 'M'; g.stamp(1); g.role = 'H'
    for p in range(4):
        A(f'ds_read_b128 v[{16+8*p}:{19+8*p}], v10 offset:{L_AS + 2048*p}'); A(f'ds_read_b128 v[{20+8*p}:{23+8*p}], v10 offset:{L_AS + 2048*p + 16}')
    AG = list(range(232, 240)); AU = list(range(240, 248))
    for i in range(8): A(f'v_mov_b32 v{AG[i]}, 0'); A(f'v_mov_b32 v{AU[i]}, 0')
    A('s_waitcnt lgkmcnt(4)')
    for i in range(0, 8, 2): A(f'v_pk_add_f32 v[{16+i}:{17+i}], v[{16+i}:{17+i}], v[{24+i}:{25+i}]')
    A('s_waitcnt lgkmcnt(0)')
    for i in range(0, 8, 2): A(f'v_pk_add_f32 v[{32+i}:{33+i}], v[{32+i}:{33+i}], v[{40+i}:{41+i}]')
    for i in range(0, 8, 2): A(f'v_pk_add_f32 v[{16+i}:{17+i}], v[{16+i}:{17+i}], v[{32+i}:{33+i}]')
    X1 = list(range(16, 24))
    for i in range(8): rnd(g, X1[i], X1[i])
    for i in range(0, 8, 2): A(f'v_pk_mul_f32 v[{16+i}:{17+i}], v[{16+i}:{17+i}], v[{GA[i]}:{GA[i+1]}]')
    for i in range(8): rnd(g, X1[i], X1[i])
    for i in range(0, 8, 2): A(f'v_pk_add_f32 v[{16+i}:{17+i}], v[{16+i}:{17+i}], v[{XF[i]}:{XF[i+1]}]')
    for i in range(8): rnd(g, X1[i], X1[i])
    A(f'ds_write_b128 v10, v[16:19] offset:{L_XF}'); A(f'ds_write_b128 v10, v[20:23] offset:{L_XF + 16}')
    g.role = 'M'; g.stamp(2); g.role = 'H'
    ln_stats(g, X1, MEAN, SD, list(range(32, 40)))
    A(f'v_rcp_f32 v{RSD}, v{SD}'); g.nop(1)
    g.role = 'M'; g.stamp(3); g.role = 'H'
    modulate_n(g, [(24+i, X1[i], CB[i], SB[i], 32+i, 248+i) for i in range(8)], MEAN, SD, RSD)
    for j in range(8): A(f'v_lshrrev_b32 v{32+j}, 16, v{24+j}')
    g.role = 'M'; g.stamp(4); g.role = 'H'
    for j in range(8):
        tile_mac(g, AG, WG + 4*j, f'v{24+j}', f'v{32+j}')
        tile_mac(g, AU, WU + 4*j, f'v{24+j}', f'v{32+j}')
    AD = list(range(24, 32))
    A('v_lshlrev_b32 v10, 5, v0'); A('s_lshl_b32 s50, s6, 11'); A('v_add_u32 v10, s50, v10')
    g.role = 'M'; g.stamp(5); g.role = 'H'
    swap_reduce8(g, AG, AU)
    row_allreduce(g, AG[:2] + AU[:2])
    for r in AG[:2] + AU[:2]: rnd(g, r, r)
    A(f'v_mov_b32 v16, {hex(f2u(0.044715))}')
    for i in range(2): A(f'v_mul_f32 v{18+i}, v{AG[i]}, v{AG[i]}')
    for i in range(2): A(f'v_mul_f32 v{18+i}, v{18+i}, v{AG[i]}')
    for i in range(2): A(f'v_fma_f32 v{18+i}, v{18+i}, v16, v{AG[i]}')
    for i in range(2): A(f'v_mul_f32 v{18+i}, {hex(f2u(-2*0.7978845608028654*1.4426950408889634))}, v{18+i}')
    sigmoid_mul_n(g, [(20+i, AG[i], 18+i, 32+i, 34+i, 36+i) for i in range(2)])
    for i in range(2): rnd(g, 20+i, 20+i)
    for i in range(2): A(f'v_mul_f32 v{20+i}, v{20+i}, v{AU[i]}')
    for i in range(2): rnd(g, 20+i, 20+i)
    for i in range(8): A(f'v_mov_b32 v{AD[i]}, 0')
    g.role = 'M'; g.stamp(6); g.role = 'H'
    for j in range(8): A(f'v_readlane_b32 s{72+j}, v{20 + j%2}, {16*(j//2 % 2) + 32*(j//4)}')
    A('s_lshl_b32 s50, s6, 9'); A('v_add_u32 v11, s50, v6')
    for j in range(8): A(f's_lshr_b32 s{80+j}, s{72+j}, 16')
    for j in range(8): tile_mac(g, AD, WD + 4*j, f's{72+j}', f's{80+j}')
    A('s_lshl_b32 s51, s57, 11'); A(f's_add_u32 s51, s51, {WS_DP}'); A('v_add_u32 v12, s51, v11')
    g.role = 'M'; g.stamp(7); g.role = 'H'
    g.nop(1)
    A(f'ds_write_b128 v10, v[{AD[0]}:{AD[3]}] offset:{L_DW}'); A(f'ds_write_b128 v10, v[{AD[4]}:{AD[7]}] offset:{L_DW + 16}')
    A('s_waitcnt lgkmcnt(0)')
    A('s_barrier')
    g.role = 'M'; g.stamp(8); g.role = 'H'
    A('s_mov_b64 exec, 0xffffffff')
    for w in range(4): A(f'ds_read_b128 v[{16+4*w}:{19+4*w}], v11 offset:{L_DW + 2048*w}')
    A('s_waitcnt lgkmcnt(0)')
    sum4x4(g, 16)
    A('global_store_dwordx4 v12, v[16:19], s[42:43] sc1')
    A('s_mov_b64 exec, -1')
    g.stamp(14)
    A(f's_cmp_ge_u32 s57, {NFIN}'); A('s_cbranch_scc1 L_end')
    A('s_cmp_lg_u32 s3, 4'); A('s_cbranch_scc1 L_end')
    A('v_lshrrev_b32 v10, 3, v0'); A('v_lshlrev_b32 v10, 11, v10'); A('v_and_b32 v11, 7, v0'); A('v_lshl_add_u32 v10, v11, 4, v10')
    A('s_lshl_b32 s50, s57, 7'); A(f's_add_u32 s51, s50, {WS_DP}'); A('v_add_u32 v52, s51, v10')
    for i in range(1, 7): A(f'v_add_u32 v{52+i}, {16384*i}, v52')
    A('v_add_u32 v13, s50, v48')
    A(f'ds_read_b32 v15, v13 offset:{L_XF}')
    A('v_lshrrev_b32 v12, 1, v13')
    multi_poll(g, 'L_dp', 7, lambda i: f'global_load_dwordx4 v[{16+4*i}:{19+4*i}], v{52+i}, s[42:43] sc1', 16, 51, [])
    for i in (0, 2):
        A(f'v_pk_add_f32 v[{16+i}:{17+i}], v[{16+i}:{17+i}], v[{20+i}:{21+i}]'); A(f'v_pk_add_f32 v[{24+i}:{25+i}], v[{24+i}:{25+i}], v[{28+i}:{29+i}]')
        A(f'v_pk_add_f32 v[{32+i}:{33+i}], v[{32+i}:{33+i}], v[{36+i}:{37+i}]')
    for i in (0, 2):
        A(f'v_pk_add_f32 v[{16+i}:{17+i}], v[{16+i}:{17+i}], v[{24+i}:{25+i}]'); A(f'v_pk_add_f32 v[{32+i}:{33+i}], v[{32+i}:{33+i}], v[{40+i}:{41+i}]')
    for i in (0, 2): A(f'v_pk_add_f32 v[{16+i}:{17+i}], v[{16+i}:{17+i}], v[{32+i}:{33+i}]')
    g.nop(2)
    reduce4_hi(g, [16, 17, 18, 19])
    A('s_waitcnt lgkmcnt(0)')
    rnd(g, 16, 16); A(f'v_mul_f32 v16, v{GBR}, v16'); rnd(g, 16, 16); A('v_add_f32 v16, v15, v16')
    A('v_cvt_pk_bf16_f32 v16, v16, v16')
    A('s_mov_b32 exec_lo, 0x00ff00ff'); A('s_mov_b32 exec_hi, 0x00ff00ff')
    A('global_store_short v12, v16, s[38:39]')
    A('s_cmp_lg_u32 s57, 0'); A('s_cbranch_scc1 L_fin_noepoch')
    A('s_mov_b64 exec, 1'); A('v_mov_b32 v13, 0')
    A(f'global_store_dword v13, v{TAG}, s[42:43] sc1')
    g.label('L_fin_noepoch')
    A('s_mov_b64 exec, -1')
    g.stamp(15)
    g.label('L_end'); A('s_endpgm')
    for s in ['.section .rodata,"a"', '.p2align 6', f'.amdhsa_kernel {NAME}_kernel', '  .amdhsa_next_free_vgpr 256',
              '  .amdhsa_next_free_sgpr 102', '  .amdhsa_accum_offset 256', '  .amdhsa_group_segment_fixed_size 0',
              '  .amdhsa_kernarg_size 112', '  .amdhsa_user_sgpr_count 2', '  .amdhsa_user_sgpr_kernarg_segment_ptr 1',
              '  .amdhsa_system_sgpr_workgroup_id_x 1', '.end_amdhsa_kernel']: g.L.append(s)
    return '\n'.join(g.L) + '\n'

if __name__ == '__main__':
    import argparse
    ap = argparse.ArgumentParser()
    ap.add_argument('out'); ap.add_argument('--ts', action='store_true')
    ap.add_argument('--nsb', type=int, default=56); ap.add_argument('--exp', default='')
    ap.add_argument('--depth', type=int, default=8); ap.add_argument('--lead', type=int, default=3); ap.add_argument('--leadv', type=int, default=5)
    ap.add_argument('--header', default='')
    for k, d in (('opsl', 1), ('apth', 4), ('apsl', 8), ('psl', 2), ('sing', 24), ('mlsl', 8), ('tlead', 1), ('pace', 5)): ap.add_argument('--' + k, type=int, default=d)
    a = ap.parse_args()
    hdr = ''
    if a.header:
        hdr = ''.join(l for l in open(a.header) if l.startswith(';') and '@launch' not in l)
    open(a.out, 'w').write(build(ts=a.ts, nsb=a.nsb, exp=a.exp, depth=a.depth, lead=a.lead, leadv=a.leadv, header=hdr, opsl=a.opsl, apth=a.apth, apsl=a.apsl, psl=a.psl, sing=a.sing, mlsl=a.mlsl, tlead=a.tlead, pace=a.pace))
```

```python
import sys, struct
NAME = 'adaLN_cond__mha_block_cached__glu_gated_geglu__decode'
def f2u(x): return struct.unpack('<I', struct.pack('<f', x))[0]

WS_MOD   = 0x1000
WS_ML    = 0x4000
WS_CNT   = 0x8000
WS_XF    = 0xA000
WS_OP    = 0x10000
WS_AP    = 0x30000
WS_DP    = 0x40000
WS_QX    = 0x60000
WS_TS    = 0xC0000
WS_SCG   = 0x200000
L_CNT  = 0x0000
L_KD   = 0x0040
L_PROG = 0x0060
L_PROGV = 0x0070
L_ND   = 0x0080
L_ROLE = 0x0084
L_TAG  = 0x0100
L_MODP = 0x0200
L_HV   = 0x0400
L_QP   = 0x0C00
L_OB   = 0x1400
L_OV   = 0x1C00
L_AW   = 0x1E00
L_MV   = 0x2200
L_Q    = 0x2F00
L_QV   = 0x3100
L_SC   = 0x3400
L_AS   = L_SC + 0x0000
L_DW   = L_SC + 0x2000
L_XF   = L_SC + 0x4000
L_DS   = L_SC + 0x8000
L_ST   = L_SC + 0x10000
ST_SZ  = 512*64 + 64*16
LDS_BYTES = L_ST + 2*ST_SZ
MAXROWS = 96
Q_DONE = 0xfffffffe
NMLP = 56
NFIN = 16
SPIN_MAX = 1 << 17
LOG2E = f2u(1.4426950408889634)
NS = 48

class G:
    def __init__(self, ts=False, tsmask=None):
        self.L = []; self.ts = ts; self.lbl = 0; self.tsmask = tsmask; self.role = 'S'; self.ldf = ' sc1'; self.stf = ' sc1'; self.w0only = False
    def A(self, s):
        if s.endswith(' sc1') and 'atomic' not in s:
            if 'load' in s: s = s[:-4] + self.ldf
            else: s = s[:-4] + self.stf
        self.L.append('  ' + s)
        if '_store_dwordx4' in s or '_store_dwordx3' in s: self.L.append('  s_nop 1')
    def label(self, s): self.L.append(s + ':')
    def newlabel(self, p='L'):
        self.lbl += 1; return f'{p}_{self.lbl}'
    def nop(self, n): self.A(f's_nop {n-1}')
    def stamp(self, slot, sreg=None):
        if not self.ts: return
        if self.tsmask is not None and (self.role, slot) not in self.tsmask: return
        if self.tsmask is None and self.role in 'MX': return
        A = self.A
        if self.w0only:
            A('s_cmp_lg_u32 s3, 0'); lb = self.newlabel('L_ns'); A(f's_cbranch_scc1 {lb}')
        if sreg is None:
            A('s_memrealtime s[96:97]'); A('s_waitcnt lgkmcnt(0)')
            A('v_mov_b32 v60, s96'); A('v_mov_b32 v61, s97')
        else:
            A(f'v_mov_b32 v60, {sreg}'); A('v_mov_b32 v61, 0')
        A('v_mov_b32 v62, s95')
        A('s_mov_b64 s[98:99], exec'); A('s_mov_b64 exec, 1')
        A(f'global_store_dwordx2 v62, v[60:61], s[42:43] offset:{slot*8}')
        A('s_mov_b64 exec, s[98:99]')
        if self.w0only: self.label(lb)

def rnd(g, d, s): g.A(f'v_cvt_pk_bf16_f32 v{d}, 0, v{s}')

def swap_reduce8(g, *sets):
    A = g.A
    g.nop(2)
    for r in sets:
        for i in range(4): A(f'v_permlane32_swap_b32 v{r[i]}, v{r[i+4]}')
    for r in sets:
        for i in range(4): A(f'v_add_f32 v{r[i]}, v{r[i]}, v{r[i+4]}')
    if len(sets) == 1: g.nop(1)
    for r in sets:
        for i in range(2): A(f'v_permlane16_swap_b32 v{r[i]}, v{r[i+2]}')
    for r in sets:
        for i in range(2): A(f'v_add_f32 v{r[i]}, v{r[i]}, v{r[i+2]}')

def row_allreduce(g, regs, op='add', rors=(8, 4, 2, 1)):
    for ro in rors:
        if len(regs) < 3: g.nop(3 - len(regs))
        for r in regs: g.A(f'v_{op}_f32_dpp v{r}, v{r}, v{r} row_ror:{ro} row_mask:0xf bank_mask:0xf')

def wave_allreduce(g, r, t, op='add'):
    A = g.A
    row_allreduce(g, [r], op)
    A(f'v_mov_b32 v{t}, v{r}'); g.nop(2)
    A(f'v_permlane16_swap_b32 v{r}, v{t}'); A(f'v_{op}_f32 v{r}, v{r}, v{t}')
    A(f'v_mov_b32 v{t}, v{r}'); g.nop(2)
    A(f'v_permlane32_swap_b32 v{r}, v{t}'); A(f'v_{op}_f32 v{r}, v{r}, v{t}')

def reduce4_hi(g, r):
    A = g.A
    A(f'v_permlane32_swap_b32 v{r[0]}, v{r[2]}'); A(f'v_permlane32_swap_b32 v{r[1]}, v{r[3]}')
    A(f'v_add_f32 v{r[0]}, v{r[0]}, v{r[2]}'); A(f'v_add_f32 v{r[1]}, v{r[1]}, v{r[3]}'); g.nop(2)
    A(f'v_permlane16_swap_b32 v{r[0]}, v{r[1]}'); A(f'v_add_f32 v{r[0]}, v{r[0]}, v{r[1]}'); g.nop(2)
    A(f'v_add_f32_dpp v{r[0]}, v{r[0]}, v{r[0]} row_ror:8 row_mask:0xf bank_mask:0xf')

def tile_mac(g, acc, data, pP, pL):
    for i in range(4):
        g.A(f'v_dot2c_f32_bf16 v{acc[2*i]}, {pL}, v{data+i}')
        g.A(f'v_dot2c_f32_bf16 v{acc[2*i+1]}, {pP}, v{data+i}')

def divide(g, q, a, b, t0, t1):
    A = g.A
    A(f'v_rcp_f32 v{t0}, v{b}'); g.nop(1)
    A(f'v_mul_f32 v{q}, v{a}, v{t0}')
    A(f'v_fma_f32 v{t1}, -v{q}, v{b}, v{a}')
    A(f'v_fma_f32 v{q}, v{t1}, v{t0}, v{q}')

def sigmoid_mul_n(g, items):
    A = g.A
    for d, x, arg, t0, t1, t2 in items: A(f'v_min_f32 v{t2}, 0x42fc0000, v{arg}')
    for d, x, arg, t0, t1, t2 in items: A(f'v_exp_f32 v{t2}, v{t2}')
    if len(items) == 1: g.nop(1)
    for d, x, arg, t0, t1, t2 in items: A(f'v_add_f32 v{t2}, 1.0, v{t2}')
    for d, x, arg, t0, t1, t2 in items: A(f'v_rcp_f32 v{t0}, v{t2}')
    if len(items) == 1: g.nop(1)
    for d, x, arg, t0, t1, t2 in items: A(f'v_mul_f32 v{d}, v{x}, v{t0}')
    for d, x, arg, t0, t1, t2 in items: A(f'v_fma_f32 v{t1}, -v{d}, v{t2}, v{x}')
    for d, x, arg, t0, t1, t2 in items: A(f'v_fma_f32 v{d}, v{t1}, v{t0}, v{d}')

def ln_stats(g, xs, mean_bf, sd, t):
    A = g.A
    A(f'v_pk_add_f32 v[{t[0]}:{t[1]}], v[{xs[0]}:{xs[1]}], v[{xs[2]}:{xs[3]}]')
    A(f'v_pk_add_f32 v[{t[2]}:{t[3]}], v[{xs[4]}:{xs[5]}], v[{xs[6]}:{xs[7]}]')
    A(f'v_pk_add_f32 v[{t[0]}:{t[1]}], v[{t[0]}:{t[1]}], v[{t[2]}:{t[3]}]')
    A(f'v_add_f32 v{t[0]}, v{t[0]}, v{t[1]}')
    wave_allreduce(g, t[0], t[1])
    A(f'v_mul_f32 v{t[0]}, 0x3b000000, v{t[0]}')
    rnd(g, mean_bf, t[0])
    for i in range(4): A(f'v_sub_f32 v{t[2+i]}, v{xs[i]}, v{t[0]}')
    A(f'v_mul_f32 v{t[6]}, v{t[2]}, v{t[2]}'); A(f'v_mul_f32 v{t[7]}, v{t[3]}, v{t[3]}')
    A(f'v_fmac_f32 v{t[6]}, v{t[4]}, v{t[4]}'); A(f'v_fmac_f32 v{t[7]}, v{t[5]}, v{t[5]}')
    for i in range(4): A(f'v_sub_f32 v{t[2+i]}, v{xs[4+i]}, v{t[0]}')
    A(f'v_fmac_f32 v{t[6]}, v{t[2]}, v{t[2]}'); A(f'v_fmac_f32 v{t[7]}, v{t[3]}, v{t[3]}')
    A(f'v_fmac_f32 v{t[6]}, v{t[4]}, v{t[4]}'); A(f'v_fmac_f32 v{t[7]}, v{t[5]}, v{t[5]}')
    A(f'v_add_f32 v{t[2]}, v{t[6]}, v{t[7]}')
    wave_allreduce(g, t[2], t[1])
    A(f'v_mul_f32 v{t[2]}, 0x3b000000, v{t[2]}')
    rnd(g, t[2], t[2])
    A(f'v_add_f32 v{t[2]}, {hex(f2u(1e-5))}, v{t[2]}')
    rnd(g, t[2], t[2])
    A(f'v_sqrt_f32 v{t[0]}, v{t[2]}'); g.nop(1)
    A(f'v_rcp_f32 v{t[1]}, v{t[0]}')
    A(f'v_fma_f32 v{t[3]}, -v{t[0]}, v{t[0]}, v{t[2]}')
    A(f'v_mul_f32 v{t[1]}, 0.5, v{t[1]}')
    A(f'v_fma_f32 v{t[0]}, v{t[3]}, v{t[1]}, v{t[0]}')
    rnd(g, sd, t[0])

def modulate_n(g, items, mean_bf, sd, rcp_sd):
    A = g.A
    for d, x, c, s, t0, t1 in items: A(f'v_sub_f32 v{t0}, v{x}, v{mean_bf}')
    for d, x, c, s, t0, t1 in items: rnd(g, t0, t0)
    for d, x, c, s, t0, t1 in items: A(f'v_mul_f32 v{d}, v{t0}, v{rcp_sd}')
    for d, x, c, s, t0, t1 in items: A(f'v_fma_f32 v{t1}, -v{d}, v{sd}, v{t0}')
    for d, x, c, s, t0, t1 in items: A(f'v_fma_f32 v{d}, v{t1}, v{rcp_sd}, v{d}')
    for d, x, c, s, t0, t1 in items: rnd(g, d, d)
    for d, x, c, s, t0, t1 in items: A(f'v_mul_f32 v{d}, v{d}, v{c}')
    for d, x, c, s, t0, t1 in items: rnd(g, d, d)
    for d, x, c, s, t0, t1 in items: A(f'v_add_f32 v{d}, v{d}, v{s}')
    for d, x, c, s, t0, t1 in items: rnd(g, d, d)

def unpack(g, dst, src, n=4):
    for i in range(n):
        g.A(f'v_lshlrev_b32 v{dst[2*i]}, 16, v{src+i}')
        g.A(f'v_and_b32 v{dst[2*i+1]}, 0xffff0000, v{src+i}')

def to_p(g, regs, M, IL, slog):
    A = g.A
    for r in regs: A(f'v_sub_f32 v{r}, v{r}, v{M}')
    for r in regs: A(f'v_mul_f32 v{r}, {slog}, v{r}')
    for r in regs: A(f'v_exp_f32 v{r}, v{r}')
    for r in regs: A(f'v_mul_f32 v{r}, v{r}, v{IL}')
    for r in regs: rnd(g, r, r)

def srd(g, d, base, nbytes):
    g.A(f's_mov_b32 s{d}, s{base}'); g.A(f's_mov_b32 s{d+1}, s{base+1}')
    g.A(f's_mov_b32 s{d+2}, {hex(nbytes)}'); g.A(f's_mov_b32 s{d+3}, 0x20000')

def poll(g, loads, check, sleep=1):
    A = g.A
    l = g.newlabel('L_poll'); done = g.newlabel('L_poll_done')
    A('s_mov_b64 s[68:69], exec'); A(f's_mov_b32 s70, {SPIN_MAX}')
    g.label(l)
    loads()
    A('s_waitcnt vmcnt(0)')
    check()
    A(f's_cbranch_vccz {done}')
    A('s_mov_b64 exec, vcc')
    A('s_sub_u32 s70, s70, 1'); A('s_cmp_eq_u32 s70, 0'); A(f's_cbranch_scc1 {done}')
    if sleep: A(f's_sleep {sleep}')
    A(f's_branch {l}')
    g.label(done)
    A('s_mov_b64 exec, s[68:69]')

def multi_poll(g, pref, n, load, base, t, ladder):
    A = g.A
    for i in range(n): A(f's_mov_b64 s[{72+2*i}:{73+2*i}], -1')
    A(f's_mov_b32 s70, {SPIN_MAX}')
    g.label(f'{pref}_poll')
    for i in range(n):
        lb = g.newlabel(f'{pref}_skip')
        A(f's_mov_b64 exec, s[{72+2*i}:{73+2*i}]'); A(f's_cbranch_execz {lb}')
        A(load(i))
        g.label(lb)
    A('s_mov_b32 s71, 0')
    A('s_waitcnt vmcnt(0)')
    for i in range(n):
        lb = g.newlabel(f'{pref}_skip')
        r = base + 4*i
        A(f's_mov_b64 exec, s[{72+2*i}:{73+2*i}]'); A(f's_cbranch_execz {lb}')
        A(f'v_max3_u32 v{t}, v{r}, v{r+1}, v{r+2}'); A(f'v_max_u32 v{t}, v{t}, v{r+3}')
        A(f'v_cmp_eq_u32 vcc, -1, v{t}')
        A(f's_mov_b64 s[{72+2*i}:{73+2*i}], vcc'); A('s_bcnt1_i32_b64 s50, vcc'); A('s_add_u32 s71, s71, s50')
        g.label(lb)
    A('s_cmp_eq_u32 s71, 0'); A(f's_cbranch_scc1 {pref}_done')
    A('s_sub_u32 s70, s70, 1'); A('s_cmp_eq_u32 s70, 0'); A(f's_cbranch_scc1 {pref}_done')
    for th, sl in reversed(ladder):
        A(f's_cmp_le_u32 s71, {th}'); A(f's_cbranch_scc1 {pref}_poll')
        if sl: A(f's_sleep {sl}')
    A(f's_branch {pref}_poll')
    g.label(f'{pref}_done')
    A('s_mov_b64 exec, -1')

def chk_tags(g, regs, tag):
    def f():
        g.A(f'v_cmp_ne_u32 vcc, v{regs[0]}, v{tag}')
        for r in regs[1:]:
            g.A(f'v_cmp_ne_u32 s[60:61], v{r}, v{tag}'); g.A('s_or_b64 vcc, vcc, s[60:61]')
    return f
def chk_sent(g, regs, t):
    def f():
        g.A(f'v_max3_u32 v{t}, v{regs[0]}, v{regs[1]}, v{regs[2]}')
        rest = regs[3:]
        while len(rest) >= 2:
            g.A(f'v_max3_u32 v{t}, v{t}, v{rest[0]}, v{rest[1]}'); rest = rest[2:]
        if rest: g.A(f'v_max_u32 v{t}, v{t}, v{rest[0]}')
        g.A(f'v_cmp_eq_u32 vcc, -1, v{t}')
    return f

def last_arriver(g, idx, skip):
    A = g.A
    A('v_mov_b32 v11, 1'); A('v_mov_b32 v12, 0')
    A('s_mov_b64 exec, 1')
    A(f'ds_add_rtn_u32 v13, v12, v11 offset:{L_CNT + 4*idx}')
    A('s_mov_b64 exec, -1')
    A('s_waitcnt lgkmcnt(0)')
    A('v_readfirstlane_b32 s50, v13')
    g.nop(1)
    A('s_cmp_lg_u32 s50, 3'); A(f's_cbranch_scc1 {skip}')

def sum4x4(g, r, sanitize=True):
    A = g.A
    for i in (0, 2):
        A(f'v_pk_add_f32 v[{r+i}:{r+i+1}], v[{r+i}:{r+i+1}], v[{r+4+i}:{r+5+i}]')
        A(f'v_pk_add_f32 v[{r+8+i}:{r+9+i}], v[{r+8+i}:{r+9+i}], v[{r+12+i}:{r+13+i}]')
    for i in (0, 2): A(f'v_pk_add_f32 v[{r+i}:{r+i+1}], v[{r+i}:{r+i+1}], v[{r+8+i}:{r+9+i}]')
    if sanitize:
        for i in range(4): A(f'v_min_u32 v{r+i}, -2, v{r+i}')

def build(ts=False, nsb=60, exp='', depth=6, lead=3, leadv=5, header='', opsl=1, apth=4, apsl=8, psl=2, sing=24, mlsl=8, tlead=1, pace=5, wl=0, tw=0, dm=6, single=2):
    tsmask = None
    if 'tailts' in exp: tsmask = {('S', 0), ('S', 6), ('S', 7), ('S', 9), ('S', 13), ('X', 9)} | {('H', i) for i in (10, 11, 12, 13, 14, 15)}
    if 'prog' in exp: tsmask = {('S', 0), ('S', 3), ('S', 5), ('S', 6)}
    if 'spin' in exp: tsmask = {('S', 0), ('S', 11), ('S', 12), ('S', 14), ('S', 15)}
    if 'mlpts' in exp: tsmask = {('S', 0), ('S', 6)} | {('H', i) for i in (13, 14, 15)} | {('M', i) for i in range(1, 10)}
    g = G(ts, tsmask); A = g.A
    g.w0only = 'prog' in exp
    if 'ld01' in exp: g.ldf = ' sc0 sc1'
    if 'st01' in exp: g.stf = ' sc0 sc1'
    if 'ldnt' in exp: g.ldf = ' sc1 nt'
    if 'stnt' in exp: g.stf = ' sc1 nt'
    NSB = nsb; NCL = 64 - NSB; D = depth
    g.L.append(header + f'; @launch grid=(256,1,1) block=(512,1,1) lds={LDS_BYTES}')
    g.L.append('.amdgcn_target "amdgcn-amd-amdhsa--gfx950"')
    g.L.append('.text'); g.L.append(f'.globl {NAME}_kernel'); g.L.append('.p2align 8')
    g.L.append(f'.type {NAME}_kernel,@function'); g.label(f'{NAME}_kernel')
    A('s_cmp_ge_u32 s2, 256'); A('s_cbranch_scc1 L_end')
    A('s_load_dwordx16 s[16:31], s[0:1], 0')
    A('s_load_dwordx8 s[32:39], s[0:1], 64')
    A('s_load_dwordx4 s[40:43], s[0:1], 96')
    A('v_lshrrev_b32 v1, 6, v0'); A('v_and_b32 v0, 63, v0')
    A('v_readfirstlane_b32 s3, v1')
    A('s_lshr_b32 s4, s2, 3'); A('s_and_b32 s5, s2, 7')
    A('s_lshr_b32 s50, s4, 1'); A('s_mul_i32 s51, s50, 3'); A('s_sub_u32 s52, s5, s51'); A('s_and_b32 s52, s52, 7')
    A('s_and_b32 s53, s4, 1')
    A('s_add_u32 s58, s51, s52'); A('s_lshl_b32 s58, s58, 1'); A('s_add_u32 s58, s58, s53'); A('s_cmp_lt_u32 s52, 3'); A('s_cselect_b32 s58, s58, 255')
    A('s_and_b32 s6, s3, 3')
    if ts:
        A('s_lshl_b32 s95, s2, 3'); A('s_add_u32 s95, s95, s3'); A('s_lshl_b32 s95, s95, 7'); A(f's_add_u32 s95, s95, {WS_TS}')
    A('s_cmp_ge_u32 s3, 4'); A('s_cbranch_scc1 L_helper')

    VOFF = 1; VL = 2; VL2 = 3; Q = 4
    AA = list(range(8, 16)); BB = list(range(16, 24)); T = list(range(24, 32)); PA = list(range(32, 40)); PB = list(range(40, 48))
    PL = 48; OM = 54; OL = 55; VQA = 56; VQ = 57; VPA = 58; VN = 59
    NB = NS // 8 - 1; NX = 8*NB
    def slot(i): return 64 + 4*i
    def pslot(t): return 8 + t if t < NX else t - NX
    A('s_lshl_b32 s44, s2, 21')
    A('s_lshl_b32 s53, s6, 10'); A('s_add_u32 s44, s44, s53'); A('s_mov_b32 s45, s44')
    A(f'v_lshlrev_b32 v{VOFF}, 4, v0')
    A('s_waitcnt lgkmcnt(0)')
    srd(g, 8, 18, 1 << 29); srd(g, 12, 20, 1 << 29)
    g.stamp(0)
    def ld(sl, sr):
        A(f'buffer_load_dwordx4 v[{slot(sl)}:{slot(sl)+3}], v{VOFF}, s[{sr}:{sr+3}], s44 offen nt')
        A('s_add_u32 s44, s44, 4096')
    def prefetch(sr, first, D):
        for t in range(first, NS):
            A(f's_waitcnt vmcnt({D-1})'); ld(pslot(t), sr)
    for t in range(D): ld(pslot(t), 8)
    A('s_barrier')
    A(f'v_lshrrev_b32 v{VL2}, 4, v0'); A(f'v_lshlrev_b32 v{VL2}, 5, v{VL2}')
    A('s_lshl_b32 s46, s6, 14'); A(f's_add_u32 s46, s46, {L_SC}'); A(f'v_add_u32 v{VL2}, s46, v{VL2}')
    A(f'v_bfe_u32 v{VL}, v0, 1, 3'); A(f'v_lshl_add_u32 v{VL}, v{VL}, 2, v{VL2}')
    A('s_mov_b32 s48, 0xcccccccc'); A('s_mov_b32 s49, 0xcccccccc')
    A(f's_mov_b32 s47, {hex(f2u(128 ** -0.5))}'); A(f's_mov_b32 s52, {hex(LOG2E)}')
    A(f'v_mov_b32 v{OM}, 0xff7fffff'); A(f'v_mov_b32 v{OL}, 0')
    A(f'v_mov_b32 v{VPA}, s6'); A(f'v_lshlrev_b32 v{VPA}, 2, v{VPA}')
    A(f'v_and_b32 v50, 15, v0'); A(f'v_lshlrev_b32 v50, 5, v50')
    A(f'v_mov_b32 v{VQA}, {L_Q + 4*(NB+2)}'); A(f'v_mov_b32 v{VN}, {NB+2}')
    A(f's_mov_b32 s70, {SPIN_MAX*64}')
    prefetch(8, D, D)
    g.stamp(1)
    if 'xb1' not in exp: A('s_barrier')
    g.stamp(2)
    A(f'ds_read_b128 v[8:11], v50 offset:{L_HV}'); A(f'ds_read_b128 v[12:15], v50 offset:{L_HV + 16}')
    A('s_waitcnt lgkmcnt(0)')
    for i in range(4): A(f'v_cvt_pk_bf16_f32 v{Q+i}, v{8+2*i}, v{9+2*i}')
    def kdot(a, sl):
        A(f'v_mov_b32 v{a}, 0')
        for i in range(4): A(f'v_dot2c_f32_bf16 v{a}, v{slot(sl)+i}, v{Q+i}')
    def kreduce(a, off=None):
        g.nop(3)
        for j in range(4):
            A(f'v_add_f32_dpp v{T[j]}, v{a[j]}, v{a[j]} row_ror:8 row_mask:0xf bank_mask:0x3')
            A(f'v_add_f32_dpp v{T[j]}, v{a[j+4]}, v{a[j+4]} row_ror:8 row_mask:0xf bank_mask:0xc')
        for j in range(2):
            A(f'v_add_f32_dpp v{T[4+j]}, v{T[j]}, v{T[j]} row_half_mirror row_mask:0xf bank_mask:0x5')
            A(f'v_add_f32_dpp v{T[4+j]}, v{T[j+2]}, v{T[j+2]} row_half_mirror row_mask:0xf bank_mask:0xa')
        g.nop(1)
        A(f'v_add_f32_dpp v{T[6]}, v{T[4]}, v{T[4]} quad_perm:[2,3,0,1] row_mask:0xf bank_mask:0xf')
        A(f'v_add_f32_dpp v{T[7]}, v{T[5]}, v{T[5]} quad_perm:[2,3,0,1] row_mask:0xf bank_mask:0xf')
        A(f'v_cndmask_b32 v{T[6]}, v{T[6]}, v{T[7]}, s[48:49]')
        g.nop(2)
        A(f'v_add_f32_dpp v{T[6]}, v{T[6]}, v{T[6]} quad_perm:[1,0,3,2] row_mask:0xf bank_mask:0xf')
        rnd(g, T[6], T[6]); A(f'v_mul_f32 v{T[6]}, s47, v{T[6]}'); rnd(g, T[6], T[6])
        A(f'ds_write_b32 v{VL}, v{T[6]}' + ('' if off is None else f' offset:{off}'))
        A(f'v_max_f32 v{T[0]}, v{OM}, v{T[6]}')
        A(f'v_sub_f32 v{T[1]}, v{OM}, v{T[0]}'); A(f'v_sub_f32 v{T[2]}, v{T[6]}, v{T[0]}')
        A(f'v_mul_f32 v{T[1]}, s52, v{T[1]}'); A(f'v_mul_f32 v{T[2]}, s52, v{T[2]}')
        A(f'v_exp_f32 v{T[1]}, v{T[1]}'); A(f'v_exp_f32 v{T[2]}, v{T[2]}')
        A(f'v_mov_b32 v{OM}, v{T[0]}')
        if off is None: A(f'v_add_u32 v{VL}, 128, v{VL}')
        else: g.nop(1)
        A(f'v_fma_f32 v{OL}, v{OL}, v{T[1]}, v{T[2]}')
    def qread(): A(f'ds_read_b32 v{VQ}, v{VQA}')
    def qtop(pref, prog):
        g.label(f'{pref}_top')
        A('s_waitcnt lgkmcnt(0)')
        A(f'v_readfirstlane_b32 s50, v{VQ}')
        g.nop(1)
        A(f's_cmp_ge_u32 s50, {hex(Q_DONE)}'); A(f's_cbranch_scc1 {pref}_slow')
        A('s_add_u32 s44, s50, s53')
        if ts and ('kprog' in exp and prog == L_PROG or 'vprog' in exp and prog == L_PROGV):
            A(f'v_readfirstlane_b32 s71, v{VN}'); g.nop(2)
            lb = g.newlabel('L_st')
            A('s_and_b32 s72, s71, 7'); A('s_cmp_lg_u32 s72, 0'); A(f's_cbranch_scc1 {lb}')
            A('s_cmp_lg_u32 s3, 0'); A(f's_cbranch_scc1 {lb}')
            A('s_memrealtime s[96:97]'); A('s_waitcnt lgkmcnt(0)')
            A('v_mov_b32 v60, s96'); A('v_mov_b32 v61, s97'); A('s_add_u32 s72, s95, s71'); A('s_add_u32 s72, s72, 128'); A('v_mov_b32 v62, s72')
            A('s_mov_b64 exec, 1'); A('global_store_dwordx2 v62, v[60:61], s[42:43]'); A('s_mov_b64 exec, -1')
            g.label(lb)
        A(f'v_add_u32 v{VQA}, 4, v{VQA}')
        A(f'ds_write_b32 v{VPA}, v{VN} offset:{prog}'); A(f'v_add_u32 v{VN}, 1, v{VN}')
    def qslow(pref):
        g.label(f'{pref}_slow')
        A(f's_cmp_eq_u32 s50, {hex(Q_DONE)}'); A(f's_cbranch_scc1 {pref}_last')
        A('s_sub_u32 s70, s70, 1'); A('s_cmp_eq_u32 s70, 0'); A(f's_cbranch_scc1 {pref}_last')
        A('s_sleep 1'); qread(); A(f's_branch {pref}_top')
        g.label(f'{pref}_last')
    for j in range(8):
        A(f's_waitcnt vmcnt({dm-1})')
        kdot(AA[j], j); ld(j, 8)
        for e in range(NB*j, NB*(j+1)):
            kdot(BB[e % 8], 8 + e)
            if e % 8 == 7: kreduce(BB, off=(e // 8)*128)
    qread(); A(f'v_add_u32 v{VL}, {NB*128}, v{VL}'); kreduce(AA)
    g.stamp(8)
    qtop('L_k', L_PROG)
    for j in range(8):
        A(f's_waitcnt vmcnt({dm-1})')
        kdot(AA[j], j); ld(j, 8)
        if j == 6: qread()
    kreduce(AA)
    A('s_branch L_k_top')
    qslow('L_k')
    A('s_mov_b32 s44, s45')
    for j in range(8):
        A(f's_waitcnt vmcnt({dm-1})')
        kdot(AA[j], j); ld(pslot(j), 12)
    kreduce(AA)
    A(f'v_mov_b32 v{T[0]}, v{OM}')
    wave_allreduce(g, T[0], T[1], 'max')
    A(f'v_sub_f32 v{T[2]}, v{OM}, v{T[0]}'); A(f'v_mul_f32 v{T[2]}, s52, v{T[2]}'); A(f'v_exp_f32 v{T[2]}, v{T[2]}')
    A(f'ds_read_b32 v{T[3]}, v{VPA} offset:{L_TAG}')
    A('s_lshl_b32 s50, s2, 6'); A('s_lshl_b32 s56, s6, 4'); A('s_add_u32 s50, s50, s56')
    A(f'v_mul_f32 v{T[2]}, v{T[2]}, v{OL}')
    wave_allreduce(g, T[2], T[1])
    A(f'v_mul_f32 v{T[2]}, 0.5, v{T[2]}')
    A(f's_add_u32 s50, s50, {WS_ML}'); A(f'v_mov_b32 v{T[4]}, s50')
    A('s_waitcnt lgkmcnt(0)')
    A(f'v_mov_b32 v{T[1]}, v{T[3]}')
    A(f'ds_write_b32 v{VPA}, v{VN} offset:{L_KD}')
    A('s_mov_b64 exec, 1')
    A(f'global_store_dwordx4 v{T[4]}, v[{T[0]}:{T[3]}], s[42:43] sc1')
    A('s_mov_b64 exec, -1')
    g.stamp(3)
    if 'spin' in exp:
        g.stamp(11, 's70'); A(f'v_readfirstlane_b32 s71, v{VN}'); g.nop(4); g.stamp(14, 's71')
    prefetch(12, 8, dm)
    ACC = AA
    for i in range(8): A(f'v_mov_b32 v{ACC[i]}, 0')
    A(f'v_mov_b32 v{VQA}, {L_QV + 4*(NB+2)}'); A(f'v_mov_b32 v{VN}, {NB+2}')
    g.stamp(4)
    if 'xb2' not in exp: A('s_barrier')
    g.stamp(5)
    def pread(P, off):
        A(f'ds_read_b128 v[{P[0]}:{P[3]}], v{VL2} offset:{off}'); A(f'ds_read_b128 v[{P[4]}:{P[7]}], v{VL2} offset:{off+16}')
    def vmac(sl, p):
        A(f'v_lshrrev_b32 v{PL}, 16, v{p}')
        tile_mac(g, ACC, slot(sl), f'v{p}', f'v{PL}')
    pread(PA, NB*128); pread(PB, 0)
    PC = BB
    for j in range(8):
        A(f's_waitcnt vmcnt({dm-1}) lgkmcnt(0)' if j == 0 else f's_waitcnt vmcnt({dm-1})')
        vmac(j, PA[j]); ld(j, 12)
        for e in range(NB*j, NB*(j+1)):
            cur, nxt = (PB, PC) if (e // 8) % 2 == 0 else (PC, PB)
            if e % 8 == 0:
                A('s_waitcnt lgkmcnt(0)')
                if e // 8 + 1 < NB: pread(nxt, (e // 8 + 1)*128)
            vmac(8 + e, cur[e % 8])
    A(f'v_add_u32 v{VL2}, {(NB+1)*128}, v{VL2}')
    qread(); pread(PA, 0)
    g.stamp(10)
    qtop('L_v', L_PROGV)
    for j in range(8):
        A(f's_waitcnt vmcnt({dm-1})')
        vmac(j, PA[j]); ld(j, 12)
        if j == 6: qread()
    A(f'v_add_u32 v{VL2}, 128, v{VL2}')
    pread(PA, 0)
    A('s_branch L_v_top')
    qslow('L_v')
    A('v_lshrrev_b32 v51, 4, v0'); A('v_lshl_add_u32 v50, v51, 3, v50')
    A('s_lshl_b32 s46, s6, 9'); A('v_add_u32 v50, s46, v50')
    A('s_lshl_b32 s46, s2, 9'); A(f's_add_u32 s46, s46, {WS_OP}'); A(f'v_add_u32 v51, s46, v{VOFF}')
    for j in range(8):
        A(f's_waitcnt vmcnt({7-j})')
        vmac(j, PA[j])
    g.stamp(6)
    if 'spin' in exp:
        g.stamp(12, 's70'); A(f'v_readfirstlane_b32 s71, v{VN}'); g.nop(4); g.stamp(15, 's71')
    g.nop(1)
    swap_reduce8(g, ACC)
    A(f'ds_write_b64 v50, v[{ACC[0]}:{ACC[1]}] offset:{L_OB}')
    A('s_waitcnt lgkmcnt(0)')
    A('s_barrier')
    if 'notail' in exp: A('s_branch L_end')
    A('v_mov_b32 v52, 0'); A(f'ds_read_b32 v53, v52 offset:{L_ROLE}')
    A('s_cmp_lg_u32 s3, 0'); A('s_cbranch_scc1 L_s_after_pub')
    A('s_mov_b64 exec, 0xffffffff')
    for w in range(4): A(f'ds_read_b128 v[{8+4*w}:{11+4*w}], v{VOFF} offset:{L_OB + 512*w}')
    A('s_waitcnt lgkmcnt(0)')
    sum4x4(g, 8)
    A('global_store_dwordx4 v51, v[8:11], s[42:43] sc1')
    A('s_mov_b64 exec, -1')
    g.stamp(7)
    g.label('L_s_after_pub')
    if 'xstage' in exp: A('s_branch L_end')
    A('s_waitcnt lgkmcnt(0)'); A('v_readfirstlane_b32 s57, v53'); g.nop(1)
    A(f's_cmp_ge_u32 s57, {NMLP}'); A('s_cbranch_scc1 L_end')
    SW = 64
    srd(g, 8, 28, 512*1792*2); srd(g, 12, 30, 512*1792*2); srd(g, 64, 32, 1792*512*2)
    A('v_lshrrev_b32 v52, 2, v0'); A('s_lshl_b32 s50, s6, 7'); A('v_add_u32 v52, s50, v52')
    A('v_and_b32 v53, 3, v0'); A('v_lshlrev_b32 v53, 4, v53')
    A('s_movk_i32 s50, 3584'); A('v_mad_u32_u24 v54, v52, s50, v53')
    A('v_lshrrev_b32 v55, 3, v52'); A('v_lshl_add_u32 v53, v55, 4, v53'); A('v_lshl_add_u32 v52, v52, 6, v53'); A(f'v_add_u32 v52, {L_ST}, v52')
    A(f'v_add_u32 v53, {ST_SZ}, v52')
    A('s_lshl_b32 s50, s6, 13'); A(f's_add_u32 s50, s50, {L_DS}'); A(f'v_add_u32 v55, s50, v{VOFF}')
    A('v_mov_b32 v11, 1'); A('v_mov_b32 v12, 0')
    A('s_lshl_b32 s50, s57, 6')
    A('s_lshl_b32 s51, s57, 5'); A('s_lshl_b32 s52, s6, 3'); A('s_add_u32 s51, s51, s52'); A('s_lshl_b32 s51, s51, 10')
    ops = []
    for j in range(8):
        ops.append((f'buffer_load_dwordx4 v[{SW+8*j}:{SW+8*j+3}], v54, s[8:11], s50 offen nt', f'ds_write_b128 v52, v[{SW+8*j}:{SW+8*j+3}] offset:{1056*j}', None))
        ops.append((f'buffer_load_dwordx4 v[{SW+8*j+4}:{SW+8*j+7}], v54, s[12:15], s50 offen nt', f'ds_write_b128 v53, v[{SW+8*j+4}:{SW+8*j+7}] offset:{1056*j}', f's_add_u32 s50, s50, {3584*16}'))
    for j in range(8):
        ops.append((f'buffer_load_dwordx4 v[{SW+64+4*j}:{SW+67+4*j}], v{VOFF}, s[64:67], s51 offen offset:{1024*(j%4)} nt', f'ds_write_b128 v55, v[{SW+64+4*j}:{SW+67+4*j}] offset:{1024*j}', 's_add_u32 s51, s51, 4096' if j == 3 else None))
    n = len(ops); PD = min(pace, n)
    for i in range(n + PD):
        if i >= PD:
            A(f's_waitcnt vmcnt({min(PD - 1, n - 1 - (i - PD))})'); A(ops[i - PD][1])
            if (i - PD) % 8 == 7: A('s_waitcnt lgkmcnt(0)')
        if i < n:
            A(ops[i][0])
            if ops[i][2]: A(ops[i][2])
    A('s_mov_b64 exec, 1')
    A(f'ds_add_u32 v12, v11 offset:{L_CNT + 16}')
    A('s_mov_b64 exec, -1')
    def stage_wait(pref):
        A(f's_mov_b32 s70, {SPIN_MAX*16}')
        g.label(f'{pref}_spin')
        A(f'ds_read_b32 v13, v12 offset:{L_CNT + 16}')
        A('s_waitcnt lgkmcnt(0)')
        A('v_readfirstlane_b32 s50, v13')
        A('s_sub_u32 s70, s70, 1'); A('s_cmp_eq_u32 s70, 0'); A(f's_cbranch_scc1 {pref}_done')
        A('s_cmp_ge_u32 s50, 5'); A(f's_cbranch_scc1 {pref}_done')
        A('s_sleep 1'); A(f's_branch {pref}_spin')
        g.label(f'{pref}_done')
    g.stamp(9)
    stage_wait('L_sst')
    A('s_branch L_gather_ap')

    g.label('L_helper'); g.role = 'H'
    WQ = 64; WM = 192; CC = 52; X8 = 56; X4 = 46; TAG = 49; MEAN = 40; SD = 41; RSD = 42
    A('v_lshrrev_b32 v1, 2, v0'); A('v_and_b32 v2, 3, v0')
    A('s_lshl_b32 s7, s6, 7')
    A('v_add_u32 v3, s7, v1')
    A('v_lshlrev_b32 v4, 2, v0'); A('s_lshl_b32 s50, s6, 8'); A('v_add_u32 v4, s50, v4')
    A('s_movk_i32 s50, 6144'); A('v_mul_lo_u32 v5, v3, s50'); A('v_lshl_add_u32 v5, v2, 4, v5')
    A('v_lshlrev_b32 v6, 4, v0')
    A('s_lshl_b32 s50, s5, 6'); A('s_lshl_b32 s51, s6, 4'); A('s_add_u32 s50, s50, s51')
    A('v_lshrrev_b32 v7, 4, v0'); A('v_lshl_add_u32 v7, v7, 2, s50')
    A('v_lshlrev_b32 v10, 1, v7')
    A('v_lshlrev_b32 v9, 13, v7'); A('v_and_b32 v11, 15, v0'); A('v_lshl_add_u32 v9, v11, 4, v9')
    A('v_mov_b32 v8, 0')
    A('s_waitcnt lgkmcnt(0)')
    g.stamp(0)
    A(f'global_load_dword v{TAG}, v8, s[42:43]')
    A('s_cmp_ge_u32 s58, 96'); A('s_cbranch_scc1 L_h_noprod1')
    srd(g, 8, 36, 512*3072*2)
    A(f'global_load_dword v{CC}, v4, s[34:35]')
    A('s_lshl_b32 s50, s58, 6')
    for j in range(0 if 'xwm' in exp else 8):
        A(f'buffer_load_dwordx4 v[{WM+4*j}:{WM+4*j+3}], v5, s[8:11], s50 offen' + (' nt' if 'wdef' not in exp else ''))
        if j < 7: A(f's_add_u32 s50, s50, {6144*16}')
    g.label('L_h_noprod1')
    A('s_lshl_b32 s50, s5, 3'); A('s_add_u32 s50, s50, s3'); A('s_cmp_lg_u32 s50, 4'); A('s_cbranch_scc1 L_h_nocinit')
    A('v_bfe_u32 v11, v0, 3, 1'); A('v_lshlrev_b32 v11, 7, v11'); A('v_and_b32 v12, 7, v0'); A('v_lshl_add_u32 v11, v12, 2, v11')
    A(f's_lshl_b32 s50, s4, 8'); A(f's_add_u32 s50, s50, {WS_CNT}'); A('v_add_u32 v11, s50, v11')
    A('s_mov_b64 exec, 0xffff')
    A('global_store_dword v11, v8, s[42:43] sc1')
    A('s_mov_b64 exec, -1')
    g.label('L_h_nocinit')
    A(f'global_load_dwordx4 v[{X8}:{X8+3}], v6, s[16:17]')
    A(f'global_load_dwordx2 v[{X4}:{X4+1}], v10, s[16:17]')
    srd(g, 12, 22, 512*4096*2)
    A('s_lshl_b32 s50, s4, 8')
    for j in range(0 if 'xwq' in exp else 4):
        A(f'buffer_load_dwordx4 v[{WQ+4*j}:{WQ+4*j+3}], v9, s[12:15], s50 offen nt')
        if j < 3: A('s_add_u32 s50, s50, 8192')
    A('s_cmp_lg_u32 s3, 4'); A('s_cbranch_scc1 L_h_nozero')
    A('v_lshlrev_b32 v10, 2, v0')
    A(f'ds_write_b32 v10, v8 offset:{L_CNT}')
    A('s_lshl_b32 s50, s2, 21')
    A('v_lshlrev_b32 v11, 15, v0'); A('v_add_u32 v11, s50, v11'); A('v_mov_b32 v12, -1')
    A(f'v_cmp_gt_u32 vcc, {NSB}, v0'); g.nop(2); A('v_cndmask_b32 v11, v12, v11, vcc')
    for q in (L_Q, L_QV):
        A(f'ds_write_b32 v10, v11 offset:{q}'); A(f'ds_write_b32 v10, v12 offset:{q + 256}')
    A('s_waitcnt lgkmcnt(0)')
    g.label('L_h_nozero')
    A('s_barrier')
    A('s_cmp_ge_u32 s58, 96'); A('s_cbranch_scc1 L_h_w1')
    A('s_waitcnt vmcnt(14)'); A('s_branch L_h_w2')
    g.label('L_h_w1')
    A('s_waitcnt vmcnt(4)')
    g.label('L_h_w2')
    A('s_mov_b32 s50, 0x9e3779b1')
    A(f'v_mul_lo_u32 v{TAG}, v{TAG}, s50'); A(f'v_add_u32 v{TAG}, 0x7f4a7c15, v{TAG}')
    A('v_mov_b32 v10, s6'); A('v_lshlrev_b32 v10, 2, v10'); A(f'ds_write_b32 v10, v{TAG} offset:{L_TAG}')
    g.stamp(1)
    A('s_cmp_ge_u32 s58, 96'); A('s_cbranch_scc1 L_h_noprod2')
    CV = list(range(16, 24)); ACC = list(range(24, 32))
    unpack(g, [32, 33], CC, 1)
    for i in range(2): A(f'v_mul_f32 v{80+i}, {hex(f2u(-1.4426950408889634))}, v{32+i}')
    sigmoid_mul_n(g, [(88+i, 32+i, 80+i, 96+i, 104+i, 112+i) for i in range(2)])
    for i in range(2): rnd(g, 88+i, 88+i)
    A('v_and_b32 v10, 7, v0'); A('v_lshlrev_b32 v10, 6, v10'); A('v_lshrrev_b32 v11, 3, v0'); A('v_lshl_add_u32 v10, v11, 2, v10')
    A('s_lshl_b32 s50, s6, 9'); A('v_add_u32 v10, s50, v10')
    A(f'ds_write_b32 v10, v88 offset:{L_QP}'); A(f'ds_write_b32 v10, v89 offset:{L_QP + 32}')
    A('v_lshl_add_u32 v10, v1, 5, s50')
    A(f'ds_read_b128 v[16:19], v10 offset:{L_QP}'); A(f'ds_read_b128 v[20:23], v10 offset:{L_QP + 16}')
    A('s_waitcnt vmcnt(0) lgkmcnt(0)' if 'xwq' in exp else 's_waitcnt vmcnt(6) lgkmcnt(0)')
    for i in range(8): A(f'v_mov_b32 v{ACC[i]}, 0'); A(f'v_lshrrev_b32 v{80+i}, 16, v{CV[i]}')
    for j in range(8): tile_mac(g, ACC, WM + 4*j, f'v{CV[j]}', f'v{80+j}')
    A('v_lshrrev_b32 v10, 4, v0'); A('v_lshlrev_b32 v10, 3, v10'); A('v_lshl_add_u32 v10, v2, 5, v10')
    A('v_add_u32 v10, s7, v10')
    swap_reduce8(g, ACC)
    row_allreduce(g, ACC[:2], rors=(8, 4))
    A(f'ds_write_b64 v10, v[{ACC[0]}:{ACC[1]}] offset:{L_MODP}')
    last_arriver(g, 0, 'L_h_noprod2')
    A('v_and_b32 v11, 7, v0'); A('v_lshlrev_b32 v11, 4, v11')
    for w in range(4): A(f'ds_read_b128 v[{16+4*w}:{19+4*w}], v11 offset:{L_MODP + 128*w}')
    A('s_lshl_b32 s50, s58, 7'); A(f's_add_u32 s50, s50, {WS_MOD}'); A('v_add_u32 v10, s50, v11')
    A('s_mov_b64 exec, 0xff')
    A('s_waitcnt lgkmcnt(0)')
    sum4x4(g, 16, False)
    A('v_cvt_pk_bf16_f32 v16, v16, v17'); A('v_cvt_pk_bf16_f32 v18, v18, v19'); A(f'v_mov_b32 v17, v{TAG}'); A(f'v_mov_b32 v19, v{TAG}')
    A('global_store_dwordx4 v10, v[16:19], s[42:43] sc1')
    A('s_mov_b64 exec, -1')
    g.stamp(2)
    g.label('L_h_noprod2')
    A('s_waitcnt vmcnt(4)')
    XS = list(range(16, 24))
    unpack(g, XS, X8)
    ln_stats(g, XS, MEAN, SD, list(range(32, 40)))
    A(f'v_rcp_f32 v{RSD}, v{SD}')
    A(f's_mov_b32 s50, {WS_MOD}')
    A('v_lshlrev_b32 v10, 2, v7'); A('v_add_u32 v10, s50, v10')
    unpack(g, [16, 17, 18, 19], X4, 2)
    def lds_():
        A('global_load_dwordx4 v[24:27], v10, s[42:43] sc1'); A('global_load_dwordx4 v[28:31], v10, s[42:43] offset:2048 sc1')
    poll(g, lds_, chk_tags(g, [25, 27, 29, 31], TAG), sleep=psl)
    g.stamp(3)
    for k, src in enumerate((24, 26)):
        A(f'v_lshlrev_b32 v{20+2*k}, 16, v{src}'); A(f'v_and_b32 v{21+2*k}, 0xffff0000, v{src}')
    for k, src in enumerate((28, 30)):
        A(f'v_lshlrev_b32 v{32+2*k}, 16, v{src}'); A(f'v_and_b32 v{33+2*k}, 0xffff0000, v{src}')
    for i in range(4): A(f'v_add_f32 v{32+i}, 1.0, v{32+i}')
    for i in range(4): rnd(g, 32+i, 32+i)
    modulate_n(g, [(36+i, 16+i, 32+i, 20+i, 80+i, 84+i) for i in range(4)], MEAN, SD, RSD)
    ACC = list(range(24, 32))
    for i in range(8): A(f'v_mov_b32 v{ACC[i]}, 0')
    for j in range(4): A(f'v_lshrrev_b32 v{80+j}, 16, v{36+j}')
    for j in range(4): tile_mac(g, ACC, WQ + 4*j, f'v{36+j}', f'v{80+j}')
    A('v_and_b32 v10, 15, v0'); A('v_lshlrev_b32 v10, 5, v10'); A('v_lshrrev_b32 v11, 4, v0'); A('v_lshl_add_u32 v10, v11, 3, v10')
    A('s_lshl_b32 s50, s6, 9'); A('v_add_u32 v10, s50, v10')
    swap_reduce8(g, ACC)
    A(f'ds_write_b64 v10, v[{ACC[0]}:{ACC[1]}] offset:{L_QP}')
    A('v_lshlrev_b32 v10, 3, v0')
    last_arriver(g, 1, 'L_h_noqpub')
    for w in range(4): A(f'ds_read_b64 v[{16+2*w}:{17+2*w}], v10 offset:{L_QP + 512*w}')
    A('s_lshl_b32 s50, s2, 10'); A(f's_add_u32 s50, s50, {WS_QX}'); A('v_add_u32 v10, s50, v6')
    A('s_waitcnt lgkmcnt(0)')
    A('v_pk_add_f32 v[16:17], v[16:17], v[18:19]'); A('v_pk_add_f32 v[20:21], v[20:21], v[22:23]'); A('v_pk_add_f32 v[16:17], v[16:17], v[20:21]')
    A(f'v_mov_b32 v19, v{TAG}'); A('v_mov_b32 v18, v17'); A(f'v_mov_b32 v17, v{TAG}')
    A('global_store_dwordx4 v10, v[16:19], s[42:43] sc1')
    g.label('L_h_noqpub')
    A('s_lshl_b32 s50, s4, 13'); A('s_lshl_b32 s51, s6, 8'); A('s_add_u32 s50, s50, s51'); A(f's_add_u32 s50, s50, {WS_QX}')
    A('v_lshrrev_b32 v10, 3, v0'); A('v_lshlrev_b32 v10, 10, v10'); A('v_and_b32 v11, 7, v0'); A('v_lshl_add_u32 v10, v11, 5, v10')
    A('v_add_u32 v10, s50, v10')
    A('v_lshlrev_b32 v48, 4, v11'); A('v_bfe_u32 v13, v0, 5, 1'); A('v_lshl_add_u32 v48, v13, 3, v48')
    A('v_bfe_u32 v13, v0, 4, 1'); A('v_lshl_add_u32 v48, v13, 2, v48'); A('v_add_u32 v12, s7, v48')
    def lds_():
        A('global_load_dwordx4 v[24:27], v10, s[42:43] sc1'); A('global_load_dwordx4 v[28:31], v10, s[42:43] offset:16 sc1')
    poll(g, lds_, chk_tags(g, [25, 27, 29, 31], TAG), sleep=psl)
    reduce4_hi(g, [24, 26, 28, 30])
    A(f'ds_write_b32 v12, v24 offset:{L_HV}')
    A('s_waitcnt lgkmcnt(0)')
    g.stamp(4)
    if 'xb1' not in exp: A('s_barrier')
    if 'xclr' in exp: A('s_branch L_h_noclear')
    A('s_cmp_lg_u32 s3, 7'); A('s_cbranch_scc1 L_h_noclear')
    for i in range(4): A(f'v_mov_b32 v{16+i}, -1')
    A('s_lshl_b32 s51, s2, 9'); A(f's_add_u32 s51, s51, {WS_OP}'); A('v_add_u32 v10, s51, v6')
    A('v_and_b32 v11, 15, v0'); A('v_lshlrev_b32 v11, 4, v11'); A('v_lshrrev_b32 v12, 4, v0'); A('v_lshl_add_u32 v11, v12, 16, v11')
    A('s_lshl_b32 s51, s2, 8'); A(f's_add_u32 s51, s51, {WS_AP}'); A('v_add_u32 v11, s51, v11'); A('v_add_u32 v12, 0x40000, v11')
    A('s_mov_b64 exec, 0xffffffff')
    A('global_store_dwordx4 v10, v[16:19], s[42:43] sc1')
    A('s_mov_b64 exec, 0xffff')
    A('global_store_dwordx4 v11, v[16:19], s[42:43] sc1')
    A('s_mov_b64 exec, -1')
    A(f's_cmp_ge_u32 s2, {NMLP}'); A('s_cbranch_scc1 L_h_noclear')
    A('s_lshl_b32 s51, s2, 11'); A(f's_add_u32 s51, s51, {WS_DP}'); A('v_add_u32 v10, s51, v6')
    A('global_store_dwordx4 v10, v[16:19], s[42:43] sc1')
    A('global_store_dwordx4 v10, v[16:19], s[42:43] offset:1024 sc1')
    g.label('L_h_noclear')
    WO = 64; WG = 80; WU = 112; WD = 144; E = 192
    if not wl:
        srd(g, 8, 24, 4096*512*2)
        A('v_lshrrev_b32 v10, 3, v0'); A('v_lshlrev_b32 v10, 2, v10')
        A('s_lshl_b32 s50, s4, 7'); A('s_lshl_b32 s51, s6, 5'); A('s_add_u32 s50, s50, s51')
        A('v_add_u32 v10, s50, v10'); A('v_lshlrev_b32 v10, 10, v10')
        A('v_and_b32 v11, 7, v0'); A('v_lshl_add_u32 v10, v11, 4, v10')
        A('s_lshl_b32 s50, s5, 7')
        for j in range(0 if 'xwo' in exp else 4):
            A(f'buffer_load_dwordx4 v[{WO+4*j}:{WO+4*j+3}], v10, s[8:11], s50 offen offset:{1024*j} nt')
    A('s_waitcnt vmcnt(0) lgkmcnt(0)')
    g.stamp(5)
    A('v_mov_b32 v12, s6'); A('v_lshlrev_b32 v12, 2, v12')
    A('s_lshl_b32 s59, s4, 24')
    A('v_mov_b32 v17, 0')
    def read_prog(off, dst):
        A(f'ds_read_b128 v[20:23], v17 offset:{off}')
        A('s_waitcnt lgkmcnt(0)')
        A('v_max3_u32 v20, v20, v21, v22'); A('v_max_u32 v20, v20, v23'); g.nop(1)
        A(f'v_readfirstlane_b32 {dst}, v20')
    A('s_cmp_lg_u32 s3, 4'); A('s_cbranch_scc1 L_nosched')
    def claim_setup(off):
        A(f's_lshl_b32 s50, s4, 8'); A(f's_add_u32 s50, s50, {WS_CNT + off}'); A('v_lshl_add_u32 v16, v0, 2, s50')
        A('s_mov_b32 s66, s5'); A('s_mov_b32 s67, 0'); A(f's_mov_b32 s88, {2 if NCL > single else 1}'); A('s_mov_b32 s90, 0')
    def claim_issue():
        l1 = g.newlabel('L_ci'); l2 = g.newlabel('L_ci')
        A('s_cmp_lg_u32 s90, 0'); A(f's_cbranch_scc1 {l1}')
        A('v_mov_b32 v18, s88')
        A('s_lshl_b32 s60, 1, s66'); A('s_mov_b32 s61, 0'); A('s_mov_b64 exec, s[60:61]')
        A('global_atomic_add v19, v16, v18, s[42:43] sc0 sc1')
        A(f's_branch {l2}')
        g.label(l1)
        A('s_mov_b64 exec, 0xff')
        A('global_load_dword v15, v16, s[42:43] sc1')
        g.label(l2)
        A('s_mov_b64 exec, -1')
    def claim_result(dst, ok, retry, done):
        A('s_cmp_lg_u32 s90, 0'); A(f's_cbranch_scc1 {ok}_snap')
        A(f'v_readlane_b32 {dst}, v19, s66')
        A('s_lshl_b32 s61, 1, s66')
        A(f's_cmp_lt_u32 {dst}, {NCL}'); A(f's_cbranch_scc0 {ok}_miss')
        A(f's_sub_u32 s54, {NCL}, {dst}'); A('s_min_u32 s54, s54, s88')
        A(f's_add_u32 s60, {dst}, s54'); A(f's_cmp_lt_u32 s60, {max(NCL - single, 0)}'); A('s_cselect_b32 s88, s88, 1')
        A('s_cmp_lg_u32 s66, s5'); A('s_cselect_b32 s90, 1, 0')
        A(f's_cmp_ge_u32 s60, {NCL}'); A('s_cselect_b32 s90, 1, s90'); A('s_cselect_b32 s61, s61, 0'); A('s_or_b32 s67, s67, s61')
        A('s_lshl_b32 s60, s66, 6'); A(f's_add_u32 {dst}, {dst}, s60'); A(f's_add_u32 {dst}, {dst}, {NSB}')
        A(f's_branch {ok}')
        g.label(f'{ok}_miss')
        A('s_or_b32 s67, s67, s61'); A('s_mov_b32 s88, 1'); A('s_mov_b32 s90, 1')
        A(f's_branch {retry}')
        g.label(f'{ok}_snap')
        A(f'v_cmp_gt_u32 vcc, {NCL}, v15')
        A('s_mov_b32 s90, 0'); A('s_mov_b32 s88, 1')
        A('s_andn2_b32 s60, vcc_lo, s67'); A('s_and_b32 s60, s60, 0xff'); A(f's_cbranch_scc0 {done}')
        A('s_lshl_b32 s61, s60, 8'); A('s_or_b32 s60, s60, s61'); A('s_lshr_b32 s60, s60, s5'); A('s_ff1_i32_b32 s60, s60')
        A('s_add_u32 s66, s60, s5'); A('s_and_b32 s66, s66, 7')
        A(f's_branch {retry}')
    claim_setup(0)
    A(f's_mov_b32 s52, {NSB}')
    A(f's_mov_b32 s70, {SPIN_MAX*16}')
    g.label('L_sch_wait')
    read_prog(L_PROG, 's50')
    A('s_sub_u32 s70, s70, 1'); A('s_cmp_eq_u32 s70, 0'); A('s_cbranch_scc1 L_sch_done')
    A(f's_add_u32 s50, s50, {lead}'); A('s_cmp_ge_u32 s50, s52'); A('s_cbranch_scc1 L_sch_claim')
    A('s_sub_u32 s50, s52, s50'); A('s_cmp_gt_u32 s50, 4'); A('s_cbranch_scc1 L_sch_long')
    A('s_sleep 2'); A('s_branch L_sch_wait')
    g.label('L_sch_long')
    A('s_sleep 32'); A('s_branch L_sch_wait')
    g.label('L_sch_claim')
    A(f's_cmp_ge_u32 s52, {MAXROWS - 2}'); A('s_cbranch_scc1 L_sch_done')
    claim_issue()
    A('s_lshl_b32 s55, s52, 2'); A('v_mov_b32 v21, s55')
    A('s_waitcnt vmcnt(0)')
    claim_result('s53', 'L_sch_put', 'L_sch_claim', 'L_sch_done')
    g.label('L_sch_put')
    A('s_lshl_b32 s55, s53, 15'); A('s_add_u32 s55, s55, s59'); A('v_mov_b32 v20, s55')
    A(f'ds_write_b32 v21, v20 offset:{L_Q}')
    A('v_add_u32 v21, 4, v21'); A('s_add_u32 s52, s52, 1'); A('s_add_u32 s53, s53, 1')
    A('s_sub_u32 s54, s54, 1'); A('s_cmp_lg_u32 s54, 0'); A('s_cbranch_scc1 L_sch_put')
    A('s_branch L_sch_wait')
    g.label('L_sch_done')
    A('s_lshl_b32 s55, s52, 2'); A('v_mov_b32 v21, s55'); A('v_mov_b32 v20, -2')
    A(f'ds_write_b32 v21, v20 offset:{L_Q}')
    g.label('L_nosched')
    A('s_lshl_b32 s50, s4, 9'); A(f's_add_u32 s50, s50, {WS_ML}')
    A('v_and_b32 v11, 31, v0'); A('v_lshlrev_b32 v11, 4, v11'); A('v_add_u32 v11, s50, v11')
    A('s_lshl_b32 s50, s6, 14'); A(f's_add_u32 s50, s50, {L_SC}'); A('v_add_u32 v10, s50, v6')
    A(f's_mov_b32 s51, {hex(LOG2E)}')
    A(f's_mov_b32 s70, {SPIN_MAX*16}')
    g.label('L_kd_spin')
    A(f'ds_read_b32 v13, v12 offset:{L_KD}')
    A('s_waitcnt lgkmcnt(0)')
    A('v_readfirstlane_b32 s52, v13')
    A('s_sub_u32 s70, s70, 1'); A('s_cmp_eq_u32 s70, 0'); A('s_cbranch_scc1 L_kd_done')
    A('s_cmp_lg_u32 s52, 0'); A('s_cbranch_scc1 L_kd_done')
    A('s_sleep 8'); A('s_branch L_kd_spin')
    g.label('L_kd_done')
    g.stamp(6)
    NP = MAXROWS // 8
    for i in range(NP): A(f'ds_read_b128 v[{E+4*i}:{E+4*i+3}], v10 offset:{1024*i}')
    poll(g, lambda: A('global_load_dwordx4 v[28:31], v11, s[42:43] sc1'), chk_tags(g, [29, 31], TAG), sleep=mlsl)
    g.stamp(8)
    M = 22; IL = 23
    A('v_mov_b32 v22, v28')
    row_allreduce(g, [22], 'max')
    A('v_mov_b32 v23, v22'); g.nop(2); A('v_permlane16_swap_b32 v22, v23'); A('v_max_f32 v22, v22, v23')
    A('v_sub_f32 v20, v28, v22'); A('v_mul_f32 v20, s51, v20'); A('v_exp_f32 v20, v20'); g.nop(1)
    A('v_mul_f32 v20, v20, v30')
    row_allreduce(g, [20])
    A('v_mov_b32 v23, v20'); g.nop(2); A('v_permlane16_swap_b32 v20, v23'); A('v_add_f32 v20, v20, v23')
    A('v_mov_b32 v16, 1.0')
    divide(g, 23, 16, 20, 21, 24)
    A('s_waitcnt lgkmcnt(0)')
    for pc in range(NSB // 8):
        to_p(g, list(range(E + 4*pc, E + 4*pc + 4)), M, IL, 's51')
        A(f'ds_write_b128 v10, v[{E+4*pc}:{E+4*pc+3}] offset:{1024*pc}')
    if NSB % 8:
        pc = NSB // 8
        for i in range(4): A(f'v_mov_b32 v{32+i}, v{E+4*pc+i}')
        to_p(g, [32, 33, 34, 35], M, IL, 's51')
        A(f's_mov_b64 exec, {hex((1 << (8*(NSB % 8))) - 1)}' if NSB % 8 <= 4 and (1 << (8*(NSB % 8))) - 1 < (1 << 32) else f's_mov_b32 exec_hi, {hex((1 << (8*(NSB % 8) - 32)) - 1)}')
        A(f'ds_write_b128 v10, v[32:35] offset:{1024*pc}')
        A('s_mov_b64 exec, -1')
    A('s_waitcnt lgkmcnt(0)')
    g.stamp(9)
    if 'xb2' not in exp: A('s_barrier')
    A('v_lshrrev_b32 v11, 3, v0'); A('v_lshlrev_b32 v11, 2, v11')
    for pc in range(NSB // 8, NP): A(f'ds_read_b32 v{24 + pc - NSB//8}, v11 offset:{L_Q + 32*pc}')
    A('s_lshl_b32 s53, s4, 17'); A(f's_add_u32 s53, s53, {WS_SCG}')
    A('s_lshl_b32 s54, s6, 6'); A('s_add_u32 s54, s54, s53')
    A('v_and_b32 v12, 6, v0'); A('v_lshlrev_b32 v12, 3, v12'); A('v_add_u32 v12, s54, v12')
    A('s_mov_b32 s62, 0x55555555'); A('s_mov_b32 s63, 0x55555555')
    A('s_waitcnt lgkmcnt(0)')
    for pc in range(NSB // 8, NP):
        i0 = E + 4*pc; qv = 24 + pc - NSB//8
        A(f's_cmp_le_u32 s52, {8*pc}'); A('s_cbranch_scc1 L_exp_done')
        A(f'v_lshrrev_b32 v16, 16, v{i0}'); A(f'v_or_b32 v16, v16, v{i0+1}')
        A(f'v_lshrrev_b32 v17, 16, v{i0+2}'); A(f'v_or_b32 v17, v17, v{i0+3}')
        A(f'v_subrev_u32 v13, s59, v{qv}'); A('v_lshrrev_b32 v13, 7, v13'); A('v_add_u32 v13, v13, v12')
        A('v_mov_b32_dpp v18, v16 quad_perm:[1,1,3,3] row_mask:0xf bank_mask:0xf')
        A('v_mov_b32_dpp v19, v17 quad_perm:[1,1,3,3] row_mask:0xf bank_mask:0xf')
        A(f'v_cmp_gt_u32 vcc, -2, v{qv}')
        if pc == NSB // 8 and NSB % 8:
            msk = ((1 << 64) - 1) ^ ((1 << (8*(NSB % 8))) - 1)
            A(f's_mov_b32 s60, {hex(msk & 0xffffffff)}'); A(f's_mov_b32 s61, {hex(msk >> 32)}'); A('s_and_b64 vcc, vcc, s[60:61]')
        A('s_and_b64 exec, vcc, s[62:63]')
        lbx = g.newlabel('L_expz'); A(f's_cbranch_execz {lbx}')
        if 'xexp' not in exp: A('global_store_dwordx4 v13, v[16:19], s[42:43] sc1')
        g.label(lbx)
        A('s_mov_b64 exec, -1')
        to_p(g, list(range(i0, i0 + 4)), M, IL, 's51')
        A(f'ds_write_b128 v10, v[{i0}:{i0+3}] offset:{1024*pc}')
        g.nop(1)
    g.label('L_exp_done')
    A('s_waitcnt vmcnt(0)')
    last_arriver(g, 2, 'L_noxf')
    A('s_lshl_b32 s50, s2, 4'); A(f's_add_u32 s50, s50, {WS_XF}'); A('v_mov_b32 v13, s50')
    for i in range(4): A(f'v_mov_b32 v{16+i}, v{TAG}')
    A('s_mov_b64 exec, 1')
    A('global_store_dwordx4 v13, v[16:19], s[42:43] sc1')
    A('s_mov_b64 exec, -1')
    g.label('L_noxf')
    A('s_cmp_lg_u32 s3, 4'); A('s_cbranch_scc1 L_noschedv')
    A('s_lshl_b32 s50, s4, 7'); A(f's_add_u32 s50, s50, {WS_XF}'); A('v_and_b32 v13, 7, v0'); A('v_lshlrev_b32 v13, 4, v13'); A('v_add_u32 v13, s50, v13')
    A('s_sleep 100')
    poll(g, lambda: A('global_load_dword v16, v13, s[42:43] sc1'), chk_tags(g, [16], TAG), sleep=64)
    A('v_mov_b32 v12, 0'); A(f's_mov_b32 s70, {SPIN_MAX*16}')
    g.label('L_xw_spin')
    A(f'ds_read_b32 v13, v12 offset:{L_CNT + 8}')
    A('s_waitcnt lgkmcnt(0)')
    A('v_readfirstlane_b32 s50, v13')
    A('s_sub_u32 s70, s70, 1'); A('s_cmp_eq_u32 s70, 0'); A('s_cbranch_scc1 L_xw_done')
    A('s_cmp_ge_u32 s50, 4'); A('s_cbranch_scc1 L_xw_done')
    A('s_sleep 8'); A('s_branch L_xw_spin')
    g.label('L_xw_done')
    claim_setup(128)
    A(f's_mov_b32 s52, {NSB}'); A('s_mov_b32 s56, -1'); A('s_mov_b32 s62, 0')
    A('v_mov_b32 v17, 0')
    A('v_add_u32 v24, s53, v6')
    A('v_bfe_u32 v25, v0, 2, 2'); A('v_lshlrev_b32 v25, 14, v25'); A('v_lshrrev_b32 v26, 4, v0'); A('v_lshl_add_u32 v25, v26, 7, v25')
    A('v_lshl_add_u32 v25, v2, 5, v25'); A(f'v_add_u32 v25, {L_SC}, v25')
    A(f's_mov_b32 s70, {SPIN_MAX*16}')
    g.label('L_sv_top')
    A(f'ds_read_b128 v[32:35], v17 offset:{L_PROGV}')
    A('s_waitcnt lgkmcnt(0)')
    A('v_max3_u32 v32, v32, v33, v34'); A('v_max_u32 v32, v32, v35'); g.nop(1)
    A('v_readfirstlane_b32 s64, v32')
    A('s_sub_u32 s70, s70, 1'); A('s_cmp_eq_u32 s70, 0'); A('s_cbranch_scc1 L_sv_done')
    A(f's_add_u32 s64, s64, {leadv}')
    A('s_mov_b32 s65, 0')
    A('s_cmp_lg_u32 s62, 0'); A('s_cbranch_scc1 L_sv_noclaim')
    A('s_cmp_lt_u32 s64, s52'); A('s_cbranch_scc1 L_sv_noclaim')
    A(f's_cmp_ge_u32 s52, {MAXROWS - 2}'); A('s_cbranch_scc1 L_sv_full')
    A('s_mov_b32 s65, 1')
    claim_issue()
    A('s_branch L_sv_pend')
    g.label('L_sv_full')
    A('s_mov_b32 s62, 1')
    g.label('L_sv_noclaim')
    A('s_cmp_lg_u32 s56, -1'); A('s_cbranch_scc1 L_sv_pend')
    A('s_cmp_lg_u32 s62, 0'); A('s_cbranch_scc1 L_sv_done')
    A('s_sub_u32 s64, s52, s64'); A('s_cmp_gt_u32 s64, 4'); A('s_cbranch_scc1 L_sv_long')
    A('s_sleep 2'); A('s_branch L_sv_top')
    g.label('L_sv_long')
    A('s_sleep 32'); A('s_branch L_sv_top')
    g.label('L_sv_pend')
    A('s_cmp_eq_u32 s56, -1'); A('s_cbranch_scc1 L_sv_nofetch')
    A('s_lshl_b32 s60, s56, 8'); A('v_add_u32 v26, s60, v24')
    A('s_cmp_eq_u32 s89, 2'); A('s_cselect_b32 s60, -1, 0xffff'); A('s_mov_b32 s61, 0'); A('s_mov_b64 exec, s[60:61]')
    A('global_load_dwordx4 v[28:31], v26, s[42:43] sc1')
    A('s_lshl_b32 s60, s55, 7'); A('v_add_u32 v26, s60, v25')
    A('s_waitcnt vmcnt(0)')
    unpack(g, list(range(32, 40)), 28)
    to_p(g, list(range(32, 40)), M, IL, 's51')
    A('ds_write_b128 v26, v[32:35]'); A('ds_write_b128 v26, v[36:39] offset:16')
    A('v_lshrrev_b32 v26, 4, v0'); A('v_add_u32 v27, s56, v26'); A('v_lshlrev_b32 v27, 15, v27'); A('v_add_u32 v27, s59, v27')
    A('v_add_u32 v26, s55, v26'); A('v_lshlrev_b32 v26, 2, v26')
    A(f'ds_write_b32 v26, v27 offset:{L_QV}')
    A('s_mov_b64 exec, -1')
    A('s_mov_b32 s56, -1')
    g.label('L_sv_nofetch')
    A('s_cmp_eq_u32 s65, 0'); A('s_cbranch_scc1 L_sv_top')
    A('s_waitcnt vmcnt(0)')
    claim_result('s63', 'L_sv_got', 'L_sv_top', 'L_sv_done')
    g.label('L_sv_got')
    A('s_mov_b32 s56, s63'); A('s_mov_b32 s55, s52'); A('s_add_u32 s52, s52, s54'); A('s_mov_b32 s89, s54')
    A('v_and_b32 v26, 1, v0'); A('v_add_u32 v27, s56, v26'); A('v_lshlrev_b32 v27, 15, v27'); A('v_add_u32 v27, s59, v27')
    A('v_add_u32 v26, s55, v26'); A('v_lshlrev_b32 v26, 2, v26')
    A(f'ds_read_b32 v28, v26 offset:{L_Q}')
    A('s_lshl_b32 s60, 1, s54'); A('s_sub_u32 s60, s60, 1'); A('s_mov_b32 s61, 0')
    A('s_waitcnt lgkmcnt(0)')
    A('s_mov_b64 exec, s[60:61]')
    A('v_cmp_ne_u32 vcc, v28, v27')
    A('s_cbranch_vccnz L_sv_other')
    A(f'ds_write_b32 v26, v27 offset:{L_QV}')
    A('s_mov_b32 s56, -1')
    g.label('L_sv_other')
    A('s_mov_b64 exec, -1')
    A('s_branch L_sv_top')
    g.label('L_sv_done')
    A('s_lshl_b32 s55, s52, 2'); A('v_mov_b32 v26, s55'); A('v_mov_b32 v27, -2')
    A(f'ds_write_b32 v26, v27 offset:{L_QV}')
    A('v_mov_b32 v27, s52'); A(f'ds_write_b32 v17, v27 offset:{L_ND}')
    g.label('L_noschedv')
    def near_end(pref, lead_):
        A('v_mov_b32 v17, 0')
        A(f's_mov_b32 s70, {SPIN_MAX*16}')
        g.label(f'{pref}_wait')
        A(f'ds_read_b128 v[32:35], v17 offset:{L_PROGV}'); A(f'ds_read_b32 v36, v17 offset:{L_ND}')
        A('s_waitcnt lgkmcnt(0)')
        A('v_max3_u32 v32, v32, v33, v34'); A('v_max_u32 v32, v32, v35')
        A('v_readfirstlane_b32 s51, v36'); A('v_readfirstlane_b32 s50, v32')
        A('s_sub_u32 s70, s70, 1'); A('s_cmp_eq_u32 s70, 0'); A(f's_cbranch_scc1 {pref}_go')
        A('s_cmp_eq_u32 s51, 0'); A(f's_cbranch_scc1 {pref}_long')
        A(f's_add_u32 s50, s50, {lead_}'); A('s_cmp_ge_u32 s50, s51'); A(f's_cbranch_scc1 {pref}_go')
        A('s_sleep 2'); A(f's_branch {pref}_wait')
        g.label(f'{pref}_long')
        A('s_sleep 24'); A(f's_branch {pref}_wait')
        g.label(f'{pref}_go')
    if wl:
        near_end('L_wo', wl)
        srd(g, 8, 24, 4096*512*2)
        A('v_lshrrev_b32 v10, 3, v0'); A('v_lshlrev_b32 v10, 2, v10')
        A('s_lshl_b32 s50, s4, 7'); A('s_lshl_b32 s51, s6, 5'); A('s_add_u32 s50, s50, s51')
        A('v_add_u32 v10, s50, v10'); A('v_lshlrev_b32 v10, 10, v10')
        A('v_and_b32 v11, 7, v0'); A('v_lshl_add_u32 v10, v11, 4, v10')
        A('s_lshl_b32 s50, s5, 7')
        for j in range(0 if 'xwo' in exp else 4):
            A(f'buffer_load_dwordx4 v[{WO+4*j}:{WO+4*j+3}], v10, s[8:11], s50 offen offset:{1024*j} nt')
    if tw:
        A('s_cmp_lg_u32 s3, 5'); A('s_cbranch_scc1 L_notw')
        near_end('L_tw', tw)
        A('v_lshlrev_b32 v16, 16, v0')
        for k, (base, nb) in enumerate(((28, 512*1792*2), (30, 512*1792*2), (32, 1792*512*2))):
            srd(g, 8 + 4*(k % 2), base, nb)
            A(f'buffer_load_dword v{18+k}, v16, s[{8 + 4*(k%2)}:{11 + 4*(k%2)}], 0 offen nt')
        g.label('L_notw')
    A('s_cmp_lg_u32 s3, 7'); A('s_cbranch_scc1 L_noticket')
    A('v_mov_b32 v18, 1')
    near_end('L_tk', tlead)
    A('s_mov_b64 exec, 1')
    A('global_atomic_add v19, v17, v18, s[40:41] sc0 sc1')
    A('s_waitcnt vmcnt(0)')
    A(f'ds_write_b32 v17, v19 offset:{L_ROLE}')
    A('s_mov_b64 exec, -1')
    A('v_readfirstlane_b32 s57, v19')
    A('s_waitcnt lgkmcnt(0)')
    g.label('L_noticket')
    GA = list(range(192, 200)); SB = list(range(200, 208)); CB = list(range(208, 216)); XF = list(range(216, 224)); GBR = 224
    unpack(g, XF, X8)
    A('s_lshl_b32 s50, s4, 12'); A('s_add_u32 s50, s50, s7'); A(f's_add_u32 s50, s50, {WS_OP}')
    A('v_lshrrev_b32 v10, 3, v0'); A('v_lshlrev_b32 v13, 4, v10'); A('v_lshlrev_b32 v10, 9, v10'); A('v_and_b32 v11, 7, v0'); A('v_lshl_add_u32 v10, v11, 4, v10')
    A('v_add_u32 v10, s50, v10')
    A('v_add_u32 v15, s7, v48')
    A('v_add_u32 v9, s7, v13')
    A('v_lshrrev_b32 v14, 4, v0'); A('v_lshlrev_b32 v14, 3, v14'); A('v_lshl_add_u32 v14, v11, 5, v14')
    A('s_lshl_b32 s52, s6, 8'); A('v_add_u32 v14, s52, v14')
    A('v_and_b32 v8, 15, v0'); A('v_lshlrev_b32 v8, 4, v8'); A('v_lshrrev_b32 v7, 4, v0'); A('v_lshl_add_u32 v8, v7, 16, v8')
    A('s_lshl_b32 s51, s2, 8'); A(f's_add_u32 s51, s51, {WS_AP}'); A('v_add_u32 v8, s51, v8'); A('v_add_u32 v7, 0x40000, v8')
    A('v_and_b32 v5, 15, v0'); A('v_lshlrev_b32 v5, 4, v5')
    ACC = list(range(24, 32))
    for i in range(8): A(f'v_mov_b32 v{ACC[i]}, 0')
    A('s_barrier')
    if 'notail' in exp: A('s_branch L_end')
    g.stamp(10)
    A('v_mov_b32 v12, 0'); A(f'ds_read_b32 v50, v12 offset:{L_ROLE}')
    A('s_cmp_lg_u32 s3, 7'); A('s_cbranch_scc1 L_tk_end')
    A(f's_cmp_ge_u32 s57, {NMLP}'); A('s_cbranch_scc1 L_tk_end')
    A('v_lshlrev_b32 v228, 5, v0'); A(f'v_add_u32 v228, {WS_MOD + 4096}, v228'); A('v_add_u32 v229, 4096, v228')
    A('v_and_b32 v230, 15, v0'); A('v_lshlrev_b32 v231, 3, v230'); A('s_and_b32 s50, s57, 15'); A('s_lshl_b32 s50, s50, 7')
    A(f's_add_u32 s50, s50, {WS_MOD + 1280*8}'); A('v_add_u32 v231, s50, v231')
    A(f'v_add_u32 v51, {WS_XF}, v6')
    def lds_():
        A('global_load_dwordx4 v[144:147], v228, s[42:43] sc1'); A('global_load_dwordx4 v[148:151], v228, s[42:43] offset:16 sc1')
        A('global_load_dwordx4 v[152:155], v228, s[42:43] offset:2048 sc1'); A('global_load_dwordx4 v[156:159], v228, s[42:43] offset:2064 sc1')
        A('global_load_dwordx4 v[160:163], v229, s[42:43] sc1'); A('global_load_dwordx4 v[164:167], v229, s[42:43] offset:16 sc1')
        A('global_load_dwordx2 v[172:173], v231, s[42:43] sc1')
        for i in range(4): A(f'global_load_dword v{168+i}, v51, s[42:43] offset:{1024*i} sc1')
    poll(g, lds_, chk_tags(g, [173, 168, 169, 170, 171] + list(range(145, 168, 2)), TAG), sleep=8)
    for k in range(3):
        b = 144 + 8*k
        A(f'v_mov_b32 v{b+1}, v{b+2}'); A(f'v_mov_b32 v{b+2}, v{b+4}'); A(f'v_mov_b32 v{b+3}, v{b+6}')
        A(f'ds_write_b128 v6, v[{b}:{b+3}] offset:{L_MV + 1024*k}')
    A('v_lshlrev_b32 v230, 2, v230')
    A(f'ds_write_b32 v230, v172 offset:{L_MV + 3072}')
    A('v_mov_b32 v51, 1'); A('s_mov_b64 exec, 1'); A(f'ds_add_u32 v12, v51 offset:{L_CNT + 16}'); A('s_mov_b64 exec, -1')
    g.label('L_tk_end')
    poll(g, lambda: A('global_load_dwordx4 v[16:19], v10, s[42:43] sc1'), chk_sent(g, [16, 17, 18, 19], 20), sleep=opsl)
    g.stamp(11)
    reduce4_hi(g, [16, 17, 18, 19])
    rnd(g, 16, 16)
    A(f'ds_write_b32 v15, v16 offset:{L_OV}')
    A(f'ds_read_b128 v[16:19], v9 offset:{L_OV}')
    A('s_waitcnt lgkmcnt(0)')
    for j in range(4): A(f'v_lshrrev_b32 v{20+j}, 16, v{16+j}')
    for j in range(4): tile_mac(g, ACC, WO + 4*j, f'v{16+j}', f'v{20+j}')
    g.nop(1)
    swap_reduce8(g, ACC)
    row_allreduce(g, ACC[:2], rors=(8,))
    A(f'ds_write_b64 v14, v[{ACC[0]}:{ACC[1]}] offset:{L_AW}')
    last_arriver(g, 3, 'L_h_noap')
    A('s_mov_b64 exec, 0xffff')
    for w in range(4): A(f'ds_read_b128 v[{16+4*w}:{19+4*w}], v5 offset:{L_AW + 256*w}')
    A('s_waitcnt lgkmcnt(0)')
    sum4x4(g, 16)
    A('global_store_dwordx4 v8, v[16:19], s[42:43] sc1')
    A('s_mov_b64 exec, -1')
    g.stamp(12)
    g.label('L_h_noap')
    if 'xstage' in exp: A('s_branch L_end')
    A('v_readfirstlane_b32 s57, v50'); g.nop(1)
    A(f's_cmp_ge_u32 s57, {NMLP}'); A('s_cbranch_scc1 L_end')
    A('s_movk_i32 s50, 528'); A('v_mul_lo_u32 v10, v0, s50'); A('s_lshl_b32 s50, s6, 4'); A(f's_add_u32 s50, s50, {L_ST}'); A('v_add_u32 v10, s50, v10')
    A(f'v_add_u32 v11, {ST_SZ}, v10')
    A('s_lshl_b32 s50, s6, 13'); A(f's_add_u32 s50, s50, {L_DS}'); A('v_add_u32 v14, s50, v6')
    A('v_mov_b32 v12, 0')
    stage_wait('L_hst')
    for j in range(8):
        A(f'ds_read_b128 v[{WG+4*j}:{WG+4*j+3}], v10 offset:{64*j}'); A(f'ds_read_b128 v[{WU+4*j}:{WU+4*j+3}], v11 offset:{64*j}')
        A(f'ds_read_b128 v[{WD+4*j}:{WD+4*j+3}], v14 offset:{1024*j}')
        if j % 4 == 3: A('s_waitcnt lgkmcnt(0)')
    for k in range(3): A(f'ds_read_b128 v[{16+4*k}:{19+4*k}], v6 offset:{L_MV + 1024*k}')
    A('v_lshrrev_b32 v13, 3, v48'); A('v_lshlrev_b32 v13, 2, v13')
    A(f'ds_read_b32 v28, v13 offset:{L_MV + 3072}')
    A('s_waitcnt lgkmcnt(0)')
    unpack(g, GA, 16); unpack(g, SB, 20); unpack(g, CB, 24)
    for i in range(8): A(f'v_add_f32 v{CB[i]}, 1.0, v{CB[i]}')
    for i in range(8): rnd(g, CB[i], CB[i])
    A('v_and_b32 v13, 16, v0'); A('v_cmp_eq_u32 vcc, 0, v13')
    A('v_lshlrev_b32 v13, 16, v28'); A('v_and_b32 v14, 0xffff0000, v28')
    A(f'v_cndmask_b32 v{GBR}, v14, v13, vcc')
    g.role = 'X'; g.stamp(9); g.role = 'H'
    g.label('L_gather_ap')
    A('s_and_b32 s50, s3, 1'); A('s_lshl_b32 s50, s50, 10'); A('s_lshr_b32 s51, s3, 1'); A('s_lshl_b32 s52, s51, 14')
    A('s_add_u32 s52, s52, s50'); A(f's_add_u32 s52, s52, {WS_AP + 4096}')
    A('v_lshlrev_b32 v10, 4, v0'); A('v_add_u32 v11, s52, v10'); A('v_add_u32 v12, 8192, v11')
    A('s_lshl_b32 s51, s51, 11'); A('s_add_u32 s51, s51, s50'); A('v_add_u32 v13, s51, v10')
    multi_poll(g, 'L_ap', 8, lambda i: f'global_load_dwordx4 v[{16+4*i}:{19+4*i}], v{11 + i//4}, s[42:43] offset:{(i%4)*2048 - 4096} sc1', 16, 14,
               [(16*16, apsl), (8*16, apsl // 3), (apth*16, apsl // 8)])
    g.stamp(13)
    for st in (16, 8, 4):
        for i in range(0, st, 2): A(f'v_pk_add_f32 v[{16+i}:{17+i}], v[{16+i}:{17+i}], v[{16+i+st}:{17+i+st}]')
    A(f'ds_write_b128 v13, v[16:19] offset:{L_AS}')
    A('v_lshlrev_b32 v10, 5, v0')
    A('s_waitcnt lgkmcnt(0)')
    A('s_barrier')
    A('s_cmp_lt_u32 s3, 4'); A('s_cbranch_scc1 L_end')
    g.role = 'M'; g.stamp(1); g.role = 'H'
    for p in range(4):
        A(f'ds_read_b128 v[{16+8*p}:{19+8*p}], v10 offset:{L_AS + 2048*p}'); A(f'ds_read_b128 v[{20+8*p}:{23+8*p}], v10 offset:{L_AS + 2048*p + 16}')
    AG = list(range(232, 240)); AU = list(range(240, 248))
    for i in range(8): A(f'v_mov_b32 v{AG[i]}, 0'); A(f'v_mov_b32 v{AU[i]}, 0')
    A('s_waitcnt lgkmcnt(4)')
    for i in range(0, 8, 2): A(f'v_pk_add_f32 v[{16+i}:{17+i}], v[{16+i}:{17+i}], v[{24+i}:{25+i}]')
    A('s_waitcnt lgkmcnt(0)')
    for i in range(0, 8, 2): A(f'v_pk_add_f32 v[{32+i}:{33+i}], v[{32+i}:{33+i}], v[{40+i}:{41+i}]')
    for i in range(0, 8, 2): A(f'v_pk_add_f32 v[{16+i}:{17+i}], v[{16+i}:{17+i}], v[{32+i}:{33+i}]')
    X1 = list(range(16, 24))
    for i in range(8): rnd(g, X1[i], X1[i])
    for i in range(0, 8, 2): A(f'v_pk_mul_f32 v[{16+i}:{17+i}], v[{16+i}:{17+i}], v[{GA[i]}:{GA[i+1]}]')
    for i in range(8): rnd(g, X1[i], X1[i])
    for i in range(0, 8, 2): A(f'v_pk_add_f32 v[{16+i}:{17+i}], v[{16+i}:{17+i}], v[{XF[i]}:{XF[i+1]}]')
    for i in range(8): rnd(g, X1[i], X1[i])
    A(f'ds_write_b128 v10, v[16:19] offset:{L_XF}'); A(f'ds_write_b128 v10, v[20:23] offset:{L_XF + 16}')
    g.role = 'M'; g.stamp(2); g.role = 'H'
    ln_stats(g, X1, MEAN, SD, list(range(32, 40)))
    A(f'v_rcp_f32 v{RSD}, v{SD}'); g.nop(1)
    g.role = 'M'; g.stamp(3); g.role = 'H'
    modulate_n(g, [(24+i, X1[i], CB[i], SB[i], 32+i, 248+i) for i in range(8)], MEAN, SD, RSD)
    for j in range(8): A(f'v_lshrrev_b32 v{32+j}, 16, v{24+j}')
    g.role = 'M'; g.stamp(4); g.role = 'H'
    for j in range(8):
        tile_mac(g, AG, WG + 4*j, f'v{24+j}', f'v{32+j}')
        tile_mac(g, AU, WU + 4*j, f'v{24+j}', f'v{32+j}')
    AD = list(range(24, 32))
    A('v_lshlrev_b32 v10, 5, v0'); A('s_lshl_b32 s50, s6, 11'); A('v_add_u32 v10, s50, v10')
    g.role = 'M'; g.stamp(5); g.role = 'H'
    swap_reduce8(g, AG, AU)
    row_allreduce(g, AG[:2] + AU[:2])
    for r in AG[:2] + AU[:2]: rnd(g, r, r)
    A(f'v_mov_b32 v16, {hex(f2u(0.044715))}')
    for i in range(2): A(f'v_mul_f32 v{18+i}, v{AG[i]}, v{AG[i]}')
    for i in range(2): A(f'v_mul_f32 v{18+i}, v{18+i}, v{AG[i]}')
    for i in range(2): A(f'v_fma_f32 v{18+i}, v{18+i}, v16, v{AG[i]}')
    for i in range(2): A(f'v_mul_f32 v{18+i}, {hex(f2u(-2*0.7978845608028654*1.4426950408889634))}, v{18+i}')
    sigmoid_mul_n(g, [(20+i, AG[i], 18+i, 32+i, 34+i, 36+i) for i in range(2)])
    for i in range(2): rnd(g, 20+i, 20+i)
    for i in range(2): A(f'v_mul_f32 v{20+i}, v{20+i}, v{AU[i]}')
    for i in range(2): rnd(g, 20+i, 20+i)
    for i in range(8): A(f'v_mov_b32 v{AD[i]}, 0')
    g.role = 'M'; g.stamp(6); g.role = 'H'
    for j in range(8): A(f'v_readlane_b32 s{72+j}, v{20 + j%2}, {16*(j//2 % 2) + 32*(j//4)}')
    A('s_lshl_b32 s50, s6, 9'); A('v_add_u32 v11, s50, v6')
    for j in range(8): A(f's_lshr_b32 s{80+j}, s{72+j}, 16')
    for j in range(8): tile_mac(g, AD, WD + 4*j, f's{72+j}', f's{80+j}')
    A('s_lshl_b32 s51, s57, 11'); A(f's_add_u32 s51, s51, {WS_DP}'); A('v_add_u32 v12, s51, v11')
    g.role = 'M'; g.stamp(7); g.role = 'H'
    g.nop(1)
    A(f'ds_write_b128 v10, v[{AD[0]}:{AD[3]}] offset:{L_DW}'); A(f'ds_write_b128 v10, v[{AD[4]}:{AD[7]}] offset:{L_DW + 16}')
    A('s_waitcnt lgkmcnt(0)')
    A('s_barrier')
    g.role = 'M'; g.stamp(8); g.role = 'H'
    A('s_mov_b64 exec, 0xffffffff')
    for w in range(4): A(f'ds_read_b128 v[{16+4*w}:{19+4*w}], v11 offset:{L_DW + 2048*w}')
    A('s_waitcnt lgkmcnt(0)')
    sum4x4(g, 16)
    A('global_store_dwordx4 v12, v[16:19], s[42:43] sc1')
    A('s_mov_b64 exec, -1')
    g.stamp(14)
    A(f's_cmp_ge_u32 s57, {NFIN}'); A('s_cbranch_scc1 L_end')
    A('s_cmp_lg_u32 s3, 4'); A('s_cbranch_scc1 L_end')
    A('v_lshrrev_b32 v10, 3, v0'); A('v_lshlrev_b32 v10, 11, v10'); A('v_and_b32 v11, 7, v0'); A('v_lshl_add_u32 v10, v11, 4, v10')
    A('s_lshl_b32 s50, s57, 7'); A(f's_add_u32 s51, s50, {WS_DP}'); A('v_add_u32 v52, s51, v10')
    for i in range(1, 7): A(f'v_add_u32 v{52+i}, {16384*i}, v52')
    A('v_add_u32 v13, s50, v48')
    A(f'ds_read_b32 v15, v13 offset:{L_XF}')
    A('v_lshrrev_b32 v12, 1, v13')
    multi_poll(g, 'L_dp', 7, lambda i: f'global_load_dwordx4 v[{16+4*i}:{19+4*i}], v{52+i}, s[42:43] sc1', 16, 51, [])
    for i in (0, 2):
        A(f'v_pk_add_f32 v[{16+i}:{17+i}], v[{16+i}:{17+i}], v[{20+i}:{21+i}]'); A(f'v_pk_add_f32 v[{24+i}:{25+i}], v[{24+i}:{25+i}], v[{28+i}:{29+i}]')
        A(f'v_pk_add_f32 v[{32+i}:{33+i}], v[{32+i}:{33+i}], v[{36+i}:{37+i}]')
    for i in (0, 2):
        A(f'v_pk_add_f32 v[{16+i}:{17+i}], v[{16+i}:{17+i}], v[{24+i}:{25+i}]'); A(f'v_pk_add_f32 v[{32+i}:{33+i}], v[{32+i}:{33+i}], v[{40+i}:{41+i}]')
    for i in (0, 2): A(f'v_pk_add_f32 v[{16+i}:{17+i}], v[{16+i}:{17+i}], v[{32+i}:{33+i}]')
    g.nop(2)
    reduce4_hi(g, [16, 17, 18, 19])
    A('s_waitcnt lgkmcnt(0)')
    rnd(g, 16, 16); A(f'v_mul_f32 v16, v{GBR}, v16'); rnd(g, 16, 16); A('v_add_f32 v16, v15, v16')
    A('v_cvt_pk_bf16_f32 v16, v16, v16')
    A('s_mov_b32 exec_lo, 0x00ff00ff'); A('s_mov_b32 exec_hi, 0x00ff00ff')
    A('global_store_short v12, v16, s[38:39]')
    A('s_cmp_lg_u32 s57, 0'); A('s_cbranch_scc1 L_fin_noepoch')
    A('s_mov_b64 exec, 1'); A('v_mov_b32 v13, 0')
    A(f'global_store_dword v13, v{TAG}, s[42:43] sc1')
    g.label('L_fin_noepoch')
    A('s_mov_b64 exec, -1')
    g.stamp(15)
    g.label('L_end'); A('s_endpgm')
    for s in ['.section .rodata,"a"', '.p2align 6', f'.amdhsa_kernel {NAME}_kernel', '  .amdhsa_next_free_vgpr 256',
              '  .amdhsa_next_free_sgpr 102', '  .amdhsa_accum_offset 256', '  .amdhsa_group_segment_fixed_size 0',
              '  .amdhsa_kernarg_size 112', '  .amdhsa_user_sgpr_count 2', '  .amdhsa_user_sgpr_kernarg_segment_ptr 1',
              '  .amdhsa_system_sgpr_workgroup_id_x 1', '.end_amdhsa_kernel']: g.L.append(s)
    return '\n'.join(g.L) + '\n'

if __name__ == '__main__':
    import argparse
    ap = argparse.ArgumentParser()
    ap.add_argument('out'); ap.add_argument('--ts', action='store_true')
    ap.add_argument('--nsb', type=int, default=60); ap.add_argument('--exp', default='')
    ap.add_argument('--depth', type=int, default=6); ap.add_argument('--lead', type=int, default=3); ap.add_argument('--leadv', type=int, default=5)
    ap.add_argument('--header', default='')
    for k, d in (('opsl', 1), ('apth', 4), ('apsl', 8), ('psl', 2), ('sing', 24), ('mlsl', 8), ('tlead', 1), ('pace', 5), ('wl', 0), ('tw', 0), ('dm', 6), ('single', 2)): ap.add_argument('--' + k, type=int, default=d)
    a = ap.parse_args()
    hdr = ''
    if a.header:
        hdr = ''.join(l for l in open(a.header) if l.startswith(';') and '@launch' not in l)
    open(a.out, 'w').write(build(ts=a.ts, nsb=a.nsb, exp=a.exp, depth=a.depth, lead=a.lead, leadv=a.leadv, header=hdr, opsl=a.opsl, apth=a.apth, apsl=a.apsl, psl=a.psl, sing=a.sing, mlsl=a.mlsl, tlead=a.tlead, pace=a.pace, wl=a.wl, tw=a.tw, dm=a.dm, single=a.single))
```

```python
import sys, struct
NAME = 'adaLN_cond__mha_block_cached__glu_gated_geglu__decode'
def f2u(x): return struct.unpack('<I', struct.pack('<f', x))[0]

WS_MOD   = 0x1000
WS_ML    = 0x4000
WS_CNT   = 0x8000
WS_XF    = 0xA000
WS_OP    = 0x10000
WS_AP    = 0x30000
WS_DP    = 0x40000
WS_QX    = 0x60000
WS_TS    = 0xC0000
WS_SCG   = 0x200000
L_CNT  = 0x0000
L_KD   = 0x0040
L_PROG = 0x0060
L_PROGV = 0x0070
L_ND   = 0x0080
L_ROLE = 0x0084
L_TAG  = 0x0100
L_MODP = 0x0200
L_HV   = 0x0400
L_QP   = 0x0C00
L_OB   = 0x1400
L_OV   = 0x1C00
L_AW   = 0x1E00
L_MV   = 0x2200
L_Q    = 0x2F00
L_QV   = 0x3100
L_SC   = 0x3400
L_AS   = L_SC + 0x0000
L_DW   = L_SC + 0x2000
L_XF   = L_SC + 0x4000
L_DS   = L_SC + 0x8000
L_ST   = L_SC + 0x10000
ST_SZ  = 512*64 + 64*16
LDS_BYTES = L_ST + 2*ST_SZ
MAXROWS = 96
Q_DONE = 0xfffffffe
NMLP = 56
NFIN = 16
SPIN_MAX = 1 << 17
LOG2E = f2u(1.4426950408889634)
NS = 48

class G:
    def __init__(self, ts=False, tsmask=None):
        self.L = []; self.ts = ts; self.lbl = 0; self.tsmask = tsmask; self.role = 'S'; self.ldf = ' sc1'; self.stf = ' sc1'; self.w0only = False
    def A(self, s):
        if s.endswith(' sc1') and 'atomic' not in s:
            if 'load' in s: s = s[:-4] + self.ldf
            else: s = s[:-4] + self.stf
        self.L.append('  ' + s)
        if '_store_dwordx4' in s or '_store_dwordx3' in s: self.L.append('  s_nop 1')
    def label(self, s): self.L.append(s + ':')
    def newlabel(self, p='L'):
        self.lbl += 1; return f'{p}_{self.lbl}'
    def nop(self, n): self.A(f's_nop {n-1}')
    def stamp(self, slot, sreg=None):
        if not self.ts: return
        if self.tsmask is not None and (self.role, slot) not in self.tsmask: return
        if self.tsmask is None and self.role in 'MX': return
        A = self.A
        if self.w0only:
            A('s_cmp_lg_u32 s3, 0'); lb = self.newlabel('L_ns'); A(f's_cbranch_scc1 {lb}')
        if sreg is None:
            A('s_memrealtime s[96:97]'); A('s_waitcnt lgkmcnt(0)')
            A('v_mov_b32 v60, s96'); A('v_mov_b32 v61, s97')
        else:
            A(f'v_mov_b32 v60, {sreg}'); A('v_mov_b32 v61, 0')
        A('v_mov_b32 v62, s95')
        A('s_mov_b64 s[98:99], exec'); A('s_mov_b64 exec, 1')
        A(f'global_store_dwordx2 v62, v[60:61], s[42:43] offset:{slot*8}')
        A('s_mov_b64 exec, s[98:99]')
        if self.w0only: self.label(lb)

def rnd(g, d, s): g.A(f'v_cvt_pk_bf16_f32 v{d}, 0, v{s}')

def swap_reduce8(g, *sets):
    A = g.A
    g.nop(2)
    for r in sets:
        for i in range(4): A(f'v_permlane32_swap_b32 v{r[i]}, v{r[i+4]}')
    for r in sets:
        for i in range(4): A(f'v_add_f32 v{r[i]}, v{r[i]}, v{r[i+4]}')
    if len(sets) == 1: g.nop(1)
    for r in sets:
        for i in range(2): A(f'v_permlane16_swap_b32 v{r[i]}, v{r[i+2]}')
    for r in sets:
        for i in range(2): A(f'v_add_f32 v{r[i]}, v{r[i]}, v{r[i+2]}')

def row_allreduce(g, regs, op='add', rors=(8, 4, 2, 1)):
    for ro in rors:
        if len(regs) < 3: g.nop(3 - len(regs))
        for r in regs: g.A(f'v_{op}_f32_dpp v{r}, v{r}, v{r} row_ror:{ro} row_mask:0xf bank_mask:0xf')

def wave_allreduce(g, r, t, op='add'):
    A = g.A
    row_allreduce(g, [r], op)
    A(f'v_mov_b32 v{t}, v{r}'); g.nop(2)
    A(f'v_permlane16_swap_b32 v{r}, v{t}'); A(f'v_{op}_f32 v{r}, v{r}, v{t}')
    A(f'v_mov_b32 v{t}, v{r}'); g.nop(2)
    A(f'v_permlane32_swap_b32 v{r}, v{t}'); A(f'v_{op}_f32 v{r}, v{r}, v{t}')

def reduce4_hi(g, r):
    A = g.A
    A(f'v_permlane32_swap_b32 v{r[0]}, v{r[2]}'); A(f'v_permlane32_swap_b32 v{r[1]}, v{r[3]}')
    A(f'v_add_f32 v{r[0]}, v{r[0]}, v{r[2]}'); A(f'v_add_f32 v{r[1]}, v{r[1]}, v{r[3]}'); g.nop(2)
    A(f'v_permlane16_swap_b32 v{r[0]}, v{r[1]}'); A(f'v_add_f32 v{r[0]}, v{r[0]}, v{r[1]}'); g.nop(2)
    A(f'v_add_f32_dpp v{r[0]}, v{r[0]}, v{r[0]} row_ror:8 row_mask:0xf bank_mask:0xf')

def tile_mac(g, acc, data, pP, pL):
    for i in range(4):
        g.A(f'v_dot2c_f32_bf16 v{acc[2*i]}, {pL}, v{data+i}')
        g.A(f'v_dot2c_f32_bf16 v{acc[2*i+1]}, {pP}, v{data+i}')

def divide(g, q, a, b, t0, t1):
    A = g.A
    A(f'v_rcp_f32 v{t0}, v{b}'); g.nop(1)
    A(f'v_mul_f32 v{q}, v{a}, v{t0}')
    A(f'v_fma_f32 v{t1}, -v{q}, v{b}, v{a}')
    A(f'v_fma_f32 v{q}, v{t1}, v{t0}, v{q}')

def sigmoid_mul_n(g, items):
    A = g.A
    for d, x, arg, t0, t1, t2 in items: A(f'v_min_f32 v{t2}, 0x42fc0000, v{arg}')
    for d, x, arg, t0, t1, t2 in items: A(f'v_exp_f32 v{t2}, v{t2}')
    if len(items) == 1: g.nop(1)
    for d, x, arg, t0, t1, t2 in items: A(f'v_add_f32 v{t2}, 1.0, v{t2}')
    for d, x, arg, t0, t1, t2 in items: A(f'v_rcp_f32 v{t0}, v{t2}')
    if len(items) == 1: g.nop(1)
    for d, x, arg, t0, t1, t2 in items: A(f'v_mul_f32 v{d}, v{x}, v{t0}')
    for d, x, arg, t0, t1, t2 in items: A(f'v_fma_f32 v{t1}, -v{d}, v{t2}, v{x}')
    for d, x, arg, t0, t1, t2 in items: A(f'v_fma_f32 v{d}, v{t1}, v{t0}, v{d}')

def ln_stats(g, xs, mean_bf, sd, t):
    A = g.A
    A(f'v_pk_add_f32 v[{t[0]}:{t[1]}], v[{xs[0]}:{xs[1]}], v[{xs[2]}:{xs[3]}]')
    A(f'v_pk_add_f32 v[{t[2]}:{t[3]}], v[{xs[4]}:{xs[5]}], v[{xs[6]}:{xs[7]}]')
    A(f'v_pk_add_f32 v[{t[0]}:{t[1]}], v[{t[0]}:{t[1]}], v[{t[2]}:{t[3]}]')
    A(f'v_add_f32 v{t[0]}, v{t[0]}, v{t[1]}')
    wave_allreduce(g, t[0], t[1])
    A(f'v_mul_f32 v{t[0]}, 0x3b000000, v{t[0]}')
    rnd(g, mean_bf, t[0])
    for i in range(4): A(f'v_sub_f32 v{t[2+i]}, v{xs[i]}, v{t[0]}')
    A(f'v_mul_f32 v{t[6]}, v{t[2]}, v{t[2]}'); A(f'v_mul_f32 v{t[7]}, v{t[3]}, v{t[3]}')
    A(f'v_fmac_f32 v{t[6]}, v{t[4]}, v{t[4]}'); A(f'v_fmac_f32 v{t[7]}, v{t[5]}, v{t[5]}')
    for i in range(4): A(f'v_sub_f32 v{t[2+i]}, v{xs[4+i]}, v{t[0]}')
    A(f'v_fmac_f32 v{t[6]}, v{t[2]}, v{t[2]}'); A(f'v_fmac_f32 v{t[7]}, v{t[3]}, v{t[3]}')
    A(f'v_fmac_f32 v{t[6]}, v{t[4]}, v{t[4]}'); A(f'v_fmac_f32 v{t[7]}, v{t[5]}, v{t[5]}')
    A(f'v_add_f32 v{t[2]}, v{t[6]}, v{t[7]}')
    wave_allreduce(g, t[2], t[1])
    A(f'v_mul_f32 v{t[2]}, 0x3b000000, v{t[2]}')
    rnd(g, t[2], t[2])
    A(f'v_add_f32 v{t[2]}, {hex(f2u(1e-5))}, v{t[2]}')
    rnd(g, t[2], t[2])
    A(f'v_sqrt_f32 v{t[0]}, v{t[2]}'); g.nop(1)
    A(f'v_rcp_f32 v{t[1]}, v{t[0]}')
    A(f'v_fma_f32 v{t[3]}, -v{t[0]}, v{t[0]}, v{t[2]}')
    A(f'v_mul_f32 v{t[1]}, 0.5, v{t[1]}')
    A(f'v_fma_f32 v{t[0]}, v{t[3]}, v{t[1]}, v{t[0]}')
    rnd(g, sd, t[0])

def modulate_n(g, items, mean_bf, sd, rcp_sd):
    A = g.A
    for d, x, c, s, t0, t1 in items: A(f'v_sub_f32 v{t0}, v{x}, v{mean_bf}')
    for d, x, c, s, t0, t1 in items: rnd(g, t0, t0)
    for d, x, c, s, t0, t1 in items: A(f'v_mul_f32 v{d}, v{t0}, v{rcp_sd}')
    for d, x, c, s, t0, t1 in items: A(f'v_fma_f32 v{t1}, -v{d}, v{sd}, v{t0}')
    for d, x, c, s, t0, t1 in items: A(f'v_fma_f32 v{d}, v{t1}, v{rcp_sd}, v{d}')
    for d, x, c, s, t0, t1 in items: rnd(g, d, d)
    for d, x, c, s, t0, t1 in items: A(f'v_mul_f32 v{d}, v{d}, v{c}')
    for d, x, c, s, t0, t1 in items: rnd(g, d, d)
    for d, x, c, s, t0, t1 in items: A(f'v_add_f32 v{d}, v{d}, v{s}')
    for d, x, c, s, t0, t1 in items: rnd(g, d, d)

def unpack(g, dst, src, n=4):
    for i in range(n):
        g.A(f'v_lshlrev_b32 v{dst[2*i]}, 16, v{src+i}')
        g.A(f'v_and_b32 v{dst[2*i+1]}, 0xffff0000, v{src+i}')

def to_p(g, regs, M, IL, slog):
    A = g.A
    for r in regs: A(f'v_sub_f32 v{r}, v{r}, v{M}')
    for r in regs: A(f'v_mul_f32 v{r}, {slog}, v{r}')
    for r in regs: A(f'v_exp_f32 v{r}, v{r}')
    for r in regs: A(f'v_mul_f32 v{r}, v{r}, v{IL}')
    for r in regs: rnd(g, r, r)

def srd(g, d, base, nbytes):
    g.A(f's_mov_b32 s{d}, s{base}'); g.A(f's_mov_b32 s{d+1}, s{base+1}')
    g.A(f's_mov_b32 s{d+2}, {hex(nbytes)}'); g.A(f's_mov_b32 s{d+3}, 0x20000')

def poll(g, loads, check, sleep=1):
    A = g.A
    l = g.newlabel('L_poll'); done = g.newlabel('L_poll_done')
    A('s_mov_b64 s[68:69], exec'); A(f's_mov_b32 s70, {SPIN_MAX}')
    g.label(l)
    loads()
    A('s_waitcnt vmcnt(0)')
    check()
    A(f's_cbranch_vccz {done}')
    A('s_mov_b64 exec, vcc')
    A('s_sub_u32 s70, s70, 1'); A('s_cmp_eq_u32 s70, 0'); A(f's_cbranch_scc1 {done}')
    if sleep: A(f's_sleep {sleep}')
    A(f's_branch {l}')
    g.label(done)
    A('s_mov_b64 exec, s[68:69]')

def multi_poll(g, pref, n, load, base, t, ladder):
    A = g.A
    for i in range(n): A(f's_mov_b64 s[{72+2*i}:{73+2*i}], -1')
    A(f's_mov_b32 s70, {SPIN_MAX}')
    g.label(f'{pref}_poll')
    for i in range(n):
        lb = g.newlabel(f'{pref}_skip')
        A(f's_mov_b64 exec, s[{72+2*i}:{73+2*i}]'); A(f's_cbranch_execz {lb}')
        A(load(i))
        g.label(lb)
    A('s_mov_b32 s71, 0')
    A('s_waitcnt vmcnt(0)')
    for i in range(n):
        lb = g.newlabel(f'{pref}_skip')
        r = base + 4*i
        A(f's_mov_b64 exec, s[{72+2*i}:{73+2*i}]'); A(f's_cbranch_execz {lb}')
        A(f'v_max3_u32 v{t}, v{r}, v{r+1}, v{r+2}'); A(f'v_max_u32 v{t}, v{t}, v{r+3}')
        A(f'v_cmp_eq_u32 vcc, -1, v{t}')
        A(f's_mov_b64 s[{72+2*i}:{73+2*i}], vcc'); A('s_bcnt1_i32_b64 s50, vcc'); A('s_add_u32 s71, s71, s50')
        g.label(lb)
    A('s_cmp_eq_u32 s71, 0'); A(f's_cbranch_scc1 {pref}_done')
    A('s_sub_u32 s70, s70, 1'); A('s_cmp_eq_u32 s70, 0'); A(f's_cbranch_scc1 {pref}_done')
    for th, sl in reversed(ladder):
        A(f's_cmp_le_u32 s71, {th}'); A(f's_cbranch_scc1 {pref}_poll')
        if sl: A(f's_sleep {sl}')
    A(f's_branch {pref}_poll')
    g.label(f'{pref}_done')
    A('s_mov_b64 exec, -1')

def chk_tags(g, regs, tag):
    def f():
        g.A(f'v_cmp_ne_u32 vcc, v{regs[0]}, v{tag}')
        for r in regs[1:]:
            g.A(f'v_cmp_ne_u32 s[60:61], v{r}, v{tag}'); g.A('s_or_b64 vcc, vcc, s[60:61]')
    return f
def chk_sent(g, regs, t):
    def f():
        g.A(f'v_max3_u32 v{t}, v{regs[0]}, v{regs[1]}, v{regs[2]}')
        rest = regs[3:]
        while len(rest) >= 2:
            g.A(f'v_max3_u32 v{t}, v{t}, v{rest[0]}, v{rest[1]}'); rest = rest[2:]
        if rest: g.A(f'v_max_u32 v{t}, v{t}, v{rest[0]}')
        g.A(f'v_cmp_eq_u32 vcc, -1, v{t}')
    return f

def last_arriver(g, idx, skip):
    A = g.A
    A('v_mov_b32 v11, 1'); A('v_mov_b32 v12, 0')
    A('s_mov_b64 exec, 1')
    A(f'ds_add_rtn_u32 v13, v12, v11 offset:{L_CNT + 4*idx}')
    A('s_mov_b64 exec, -1')
    A('s_waitcnt lgkmcnt(0)')
    A('v_readfirstlane_b32 s50, v13')
    g.nop(1)
    A('s_cmp_lg_u32 s50, 3'); A(f's_cbranch_scc1 {skip}')

def sum4x4(g, r, sanitize=True):
    A = g.A
    for i in (0, 2):
        A(f'v_pk_add_f32 v[{r+i}:{r+i+1}], v[{r+i}:{r+i+1}], v[{r+4+i}:{r+5+i}]')
        A(f'v_pk_add_f32 v[{r+8+i}:{r+9+i}], v[{r+8+i}:{r+9+i}], v[{r+12+i}:{r+13+i}]')
    for i in (0, 2): A(f'v_pk_add_f32 v[{r+i}:{r+i+1}], v[{r+i}:{r+i+1}], v[{r+8+i}:{r+9+i}]')
    if sanitize:
        for i in range(4): A(f'v_min_u32 v{r+i}, -2, v{r+i}')

def build(ts=False, nsb=60, exp='', depth=6, lead=3, leadv=5, header='', opsl=1, apth=4, apsl=8, psl=2, sing=24, mlsl=8, tlead=1, pace=5, wl=0, tw=0, dm=6, single=2, nt2=58, dm2=8, lown=5):
    tsmask = None
    if 'tailts' in exp: tsmask = {('S', 0), ('S', 6), ('S', 7), ('S', 9), ('S', 13), ('X', 9)} | {('H', i) for i in (10, 11, 12, 13, 14, 15)}
    if 'prog' in exp: tsmask = {('S', 0), ('S', 3), ('S', 5), ('S', 6)}
    if 'spin' in exp: tsmask = {('S', 0), ('S', 11), ('S', 12), ('S', 14), ('S', 15)}
    if 'mlpts' in exp: tsmask = {('S', 0), ('S', 6)} | {('H', i) for i in (13, 14, 15)} | {('M', i) for i in range(1, 10)}
    g = G(ts, tsmask); A = g.A
    g.w0only = 'prog' in exp
    if 'ld01' in exp: g.ldf = ' sc0 sc1'
    if 'st01' in exp: g.stf = ' sc0 sc1'
    if 'ldnt' in exp: g.ldf = ' sc1 nt'
    if 'stnt' in exp: g.stf = ' sc1 nt'
    NSB = nsb; NCL = 64 - NSB; D = depth
    g.L.append(header + f'; @launch grid=(256,1,1) block=(512,1,1) lds={LDS_BYTES}')
    g.L.append('.amdgcn_target "amdgcn-amd-amdhsa--gfx950"')
    g.L.append('.text'); g.L.append(f'.globl {NAME}_kernel'); g.L.append('.p2align 8')
    g.L.append(f'.type {NAME}_kernel,@function'); g.label(f'{NAME}_kernel')
    A('s_cmp_ge_u32 s2, 256'); A('s_cbranch_scc1 L_end')
    A('s_load_dwordx16 s[16:31], s[0:1], 0')
    A('s_load_dwordx8 s[32:39], s[0:1], 64')
    A('s_load_dwordx4 s[40:43], s[0:1], 96')
    A('v_lshrrev_b32 v1, 6, v0'); A('v_and_b32 v0, 63, v0')
    A('v_readfirstlane_b32 s3, v1')
    A('s_lshr_b32 s4, s2, 3'); A('s_and_b32 s5, s2, 7')
    A('s_lshr_b32 s50, s4, 1'); A('s_mul_i32 s51, s50, 3'); A('s_sub_u32 s52, s5, s51'); A('s_and_b32 s52, s52, 7')
    A('s_and_b32 s53, s4, 1')
    A('s_add_u32 s58, s51, s52'); A('s_lshl_b32 s58, s58, 1'); A('s_add_u32 s58, s58, s53'); A('s_cmp_lt_u32 s52, 3'); A('s_cselect_b32 s58, s58, 255')
    A('s_and_b32 s6, s3, 3')
    if ts:
        A('s_lshl_b32 s95, s2, 3'); A('s_add_u32 s95, s95, s3'); A('s_lshl_b32 s95, s95, 7'); A(f's_add_u32 s95, s95, {WS_TS}')
    A('s_cmp_ge_u32 s3, 4'); A('s_cbranch_scc1 L_helper')

    VOFF = 1; VL = 2; VL2 = 3; Q = 4
    AA = list(range(8, 16)); BB = list(range(16, 24)); T = list(range(24, 32)); PA = list(range(32, 40)); PB = list(range(40, 48))
    PL = 48; OM = 54; OL = 55; VQA = 56; VQ = 57; VPA = 58; VN = 59
    NB = NS // 8 - 1; NX = 8*NB
    def slot(i): return 64 + 4*i
    def pslot(t): return 8 + t if t < NX else t - NX
    A('s_lshl_b32 s44, s2, 21')
    A('s_lshl_b32 s53, s6, 10'); A('s_add_u32 s44, s44, s53'); A('s_mov_b32 s45, s44')
    A(f'v_lshlrev_b32 v{VOFF}, 4, v0')
    A('s_waitcnt lgkmcnt(0)')
    srd(g, 8, 18, 1 << 29); srd(g, 12, 20, 1 << 29)
    g.stamp(0)
    def ld(sl, sr):
        A(f'buffer_load_dwordx4 v[{slot(sl)}:{slot(sl)+3}], v{VOFF}, s[{sr}:{sr+3}], s44 offen nt')
        A('s_add_u32 s44, s44, 4096')
    def prefetch(sr, first, D):
        for t in range(first, NS):
            A(f's_waitcnt vmcnt({D-1})'); ld(pslot(t), sr)
    for t in range(D): ld(pslot(t), 8)
    A('s_barrier')
    A(f'v_lshrrev_b32 v{VL2}, 4, v0'); A(f'v_lshlrev_b32 v{VL2}, 5, v{VL2}')
    A('s_lshl_b32 s46, s6, 14'); A(f's_add_u32 s46, s46, {L_SC}'); A(f'v_add_u32 v{VL2}, s46, v{VL2}')
    A(f'v_bfe_u32 v{VL}, v0, 1, 3'); A(f'v_lshl_add_u32 v{VL}, v{VL}, 2, v{VL2}')
    A('s_mov_b32 s48, 0xcccccccc'); A('s_mov_b32 s49, 0xcccccccc')
    A(f's_mov_b32 s47, {hex(f2u(128 ** -0.5))}'); A(f's_mov_b32 s52, {hex(LOG2E)}')
    A(f'v_mov_b32 v{OM}, 0xff7fffff'); A(f'v_mov_b32 v{OL}, 0')
    A(f'v_mov_b32 v{VPA}, s6'); A(f'v_lshlrev_b32 v{VPA}, 2, v{VPA}')
    A(f'v_and_b32 v50, 15, v0'); A(f'v_lshlrev_b32 v50, 5, v50')
    A(f'v_mov_b32 v{VQA}, {L_Q + 4*(NB+2)}'); A(f'v_mov_b32 v{VN}, {NB+2}')
    A(f's_mov_b32 s70, {SPIN_MAX*64}')
    prefetch(8, D, D)
    g.stamp(1)
    if 'xb1' not in exp: A('s_barrier')
    g.stamp(2)
    A(f'ds_read_b128 v[8:11], v50 offset:{L_HV}'); A(f'ds_read_b128 v[12:15], v50 offset:{L_HV + 16}')
    A('s_waitcnt lgkmcnt(0)')
    for i in range(4): A(f'v_cvt_pk_bf16_f32 v{Q+i}, v{8+2*i}, v{9+2*i}')
    def kdot(a, sl):
        A(f'v_mov_b32 v{a}, 0')
        for i in range(4): A(f'v_dot2c_f32_bf16 v{a}, v{slot(sl)+i}, v{Q+i}')
    def kreduce(a, off=None):
        g.nop(3)
        for j in range(4):
            A(f'v_add_f32_dpp v{T[j]}, v{a[j]}, v{a[j]} row_ror:8 row_mask:0xf bank_mask:0x3')
            A(f'v_add_f32_dpp v{T[j]}, v{a[j+4]}, v{a[j+4]} row_ror:8 row_mask:0xf bank_mask:0xc')
        for j in range(2):
            A(f'v_add_f32_dpp v{T[4+j]}, v{T[j]}, v{T[j]} row_half_mirror row_mask:0xf bank_mask:0x5')
            A(f'v_add_f32_dpp v{T[4+j]}, v{T[j+2]}, v{T[j+2]} row_half_mirror row_mask:0xf bank_mask:0xa')
        g.nop(1)
        A(f'v_add_f32_dpp v{T[6]}, v{T[4]}, v{T[4]} quad_perm:[2,3,0,1] row_mask:0xf bank_mask:0xf')
        A(f'v_add_f32_dpp v{T[7]}, v{T[5]}, v{T[5]} quad_perm:[2,3,0,1] row_mask:0xf bank_mask:0xf')
        A(f'v_cndmask_b32 v{T[6]}, v{T[6]}, v{T[7]}, s[48:49]')
        g.nop(2)
        A(f'v_add_f32_dpp v{T[6]}, v{T[6]}, v{T[6]} quad_perm:[1,0,3,2] row_mask:0xf bank_mask:0xf')
        rnd(g, T[6], T[6]); A(f'v_mul_f32 v{T[6]}, s47, v{T[6]}'); rnd(g, T[6], T[6])
        A(f'ds_write_b32 v{VL}, v{T[6]}' + ('' if off is None else f' offset:{off}'))
        A(f'v_max_f32 v{T[0]}, v{OM}, v{T[6]}')
        A(f'v_sub_f32 v{T[1]}, v{OM}, v{T[0]}'); A(f'v_sub_f32 v{T[2]}, v{T[6]}, v{T[0]}')
        A(f'v_mul_f32 v{T[1]}, s52, v{T[1]}'); A(f'v_mul_f32 v{T[2]}, s52, v{T[2]}')
        A(f'v_exp_f32 v{T[1]}, v{T[1]}'); A(f'v_exp_f32 v{T[2]}, v{T[2]}')
        A(f'v_mov_b32 v{OM}, v{T[0]}')
        if off is None: A(f'v_add_u32 v{VL}, 128, v{VL}')
        else: g.nop(1)
        A(f'v_fma_f32 v{OL}, v{OL}, v{T[1]}, v{T[2]}')
    def qread(): A(f'ds_read_b32 v{VQ}, v{VQA}')
    def qtop(pref, prog):
        g.label(f'{pref}_top')
        A('s_waitcnt lgkmcnt(0)')
        A(f'v_readfirstlane_b32 s50, v{VQ}')
        g.nop(1)
        A(f's_cmp_ge_u32 s50, {hex(Q_DONE)}'); A(f's_cbranch_scc1 {pref}_slow')
        A('s_add_u32 s44, s50, s53')
        if ts and ('kprog' in exp and prog == L_PROG or 'vprog' in exp and prog == L_PROGV):
            A(f'v_readfirstlane_b32 s71, v{VN}'); g.nop(2)
            lb = g.newlabel('L_st')
            A('s_and_b32 s72, s71, 7'); A('s_cmp_lg_u32 s72, 0'); A(f's_cbranch_scc1 {lb}')
            A('s_cmp_lg_u32 s3, 0'); A(f's_cbranch_scc1 {lb}')
            A('s_memrealtime s[96:97]'); A('s_waitcnt lgkmcnt(0)')
            A('v_mov_b32 v60, s96'); A('v_mov_b32 v61, s97'); A('s_add_u32 s72, s95, s71'); A('s_add_u32 s72, s72, 128'); A('v_mov_b32 v62, s72')
            A('s_mov_b64 exec, 1'); A('global_store_dwordx2 v62, v[60:61], s[42:43]'); A('s_mov_b64 exec, -1')
            g.label(lb)
        A(f'v_add_u32 v{VQA}, 4, v{VQA}')
        A(f'ds_write_b32 v{VPA}, v{VN} offset:{prog}'); A(f'v_add_u32 v{VN}, 1, v{VN}')
    def qslow(pref):
        g.label(f'{pref}_slow')
        A(f's_cmp_eq_u32 s50, {hex(Q_DONE)}'); A(f's_cbranch_scc1 {pref}_last')
        A('s_sub_u32 s70, s70, 1'); A('s_cmp_eq_u32 s70, 0'); A(f's_cbranch_scc1 {pref}_last')
        A('s_sleep 1'); qread(); A(f's_branch {pref}_top')
        g.label(f'{pref}_last')
    for j in range(8):
        A(f's_waitcnt vmcnt({dm-1})')
        kdot(AA[j], j); ld(j, 8)
        for e in range(NB*j, NB*(j+1)):
            kdot(BB[e % 8], 8 + e)
            if e % 8 == 7: kreduce(BB, off=(e // 8)*128)
    qread(); A(f'v_add_u32 v{VL}, {NB*128}, v{VL}'); kreduce(AA)
    g.stamp(8)
    qtop('L_k', L_PROG)
    for j in range(8):
        A(f's_waitcnt vmcnt({dm-1})')
        kdot(AA[j], j); ld(j, 8)
        if j == 6: qread()
    kreduce(AA)
    A('s_branch L_k_top')
    qslow('L_k')
    A('s_mov_b32 s44, s45')
    for j in range(8):
        A(f's_waitcnt vmcnt({dm-1})')
        kdot(AA[j], j); ld(pslot(j), 12)
    kreduce(AA)
    A(f'v_mov_b32 v{T[0]}, v{OM}')
    wave_allreduce(g, T[0], T[1], 'max')
    A(f'v_sub_f32 v{T[2]}, v{OM}, v{T[0]}'); A(f'v_mul_f32 v{T[2]}, s52, v{T[2]}'); A(f'v_exp_f32 v{T[2]}, v{T[2]}')
    A(f'ds_read_b32 v{T[3]}, v{VPA} offset:{L_TAG}')
    A('s_lshl_b32 s50, s2, 6'); A('s_lshl_b32 s56, s6, 4'); A('s_add_u32 s50, s50, s56')
    A(f'v_mul_f32 v{T[2]}, v{T[2]}, v{OL}')
    wave_allreduce(g, T[2], T[1])
    A(f'v_mul_f32 v{T[2]}, 0.5, v{T[2]}')
    A(f's_add_u32 s50, s50, {WS_ML}'); A(f'v_mov_b32 v{T[4]}, s50')
    A('s_waitcnt lgkmcnt(0)')
    A(f'v_mov_b32 v{T[1]}, v{T[3]}')
    A(f'ds_write_b32 v{VPA}, v{VN} offset:{L_KD}')
    A('s_mov_b64 exec, 1')
    A(f'global_store_dwordx4 v{T[4]}, v[{T[0]}:{T[3]}], s[42:43] sc1')
    A('s_mov_b64 exec, -1')
    g.stamp(3)
    if 'spin' in exp:
        g.stamp(11, 's70'); A(f'v_readfirstlane_b32 s71, v{VN}'); g.nop(4); g.stamp(14, 's71')
    prefetch(12, 8, dm)
    ACC = AA
    for i in range(8): A(f'v_mov_b32 v{ACC[i]}, 0')
    A(f'v_mov_b32 v{VQA}, {L_QV + 4*(NB+2)}'); A(f'v_mov_b32 v{VN}, {NB+2}')
    g.stamp(4)
    if 'xb2' not in exp: A('s_barrier')
    g.stamp(5)
    def pread(P, off):
        A(f'ds_read_b128 v[{P[0]}:{P[3]}], v{VL2} offset:{off}'); A(f'ds_read_b128 v[{P[4]}:{P[7]}], v{VL2} offset:{off+16}')
    def vmac(sl, p):
        A(f'v_lshrrev_b32 v{PL}, 16, v{p}')
        tile_mac(g, ACC, slot(sl), f'v{p}', f'v{PL}')
    pread(PA, NB*128); pread(PB, 0)
    PC = BB
    for j in range(8):
        A(f's_waitcnt vmcnt({dm-1}) lgkmcnt(0)' if j == 0 else f's_waitcnt vmcnt({dm-1})')
        vmac(j, PA[j]); ld(j, 12)
        for e in range(NB*j, NB*(j+1)):
            cur, nxt = (PB, PC) if (e // 8) % 2 == 0 else (PC, PB)
            if e % 8 == 0:
                A('s_waitcnt lgkmcnt(0)')
                if e // 8 + 1 < NB: pread(nxt, (e // 8 + 1)*128)
            vmac(8 + e, cur[e % 8])
    A(f'v_add_u32 v{VL2}, {(NB+1)*128}, v{VL2}')
    qread(); pread(PA, 0)
    g.stamp(10)
    def vbody(d):
        for j in range(8):
            A(f's_waitcnt vmcnt({d-1})')
            vmac(j, PA[j]); ld(j, 12)
            if j == 6: qread()
        A(f'v_add_u32 v{VL2}, 128, v{VL2}')
        pread(PA, 0)
    A(f's_mov_b32 s71, {NB+2}')
    qtop('L_v', L_PROGV)
    if nt2:
        A('s_add_u32 s71, s71, 1'); A(f's_cmp_gt_u32 s71, {nt2}'); A('s_cbranch_scc1 L_w_body')
    vbody(dm)
    A('s_branch L_v_top')
    if nt2:
        qtop('L_w', L_PROGV)
        g.label('L_w_body')
        vbody(dm2)
        A('s_branch L_w_top')
        g.label('L_w_slow')
        A(f's_cmp_eq_u32 s50, {hex(Q_DONE)}'); A('s_cbranch_scc1 L_v_last')
        A('s_sub_u32 s70, s70, 1'); A('s_cmp_eq_u32 s70, 0'); A('s_cbranch_scc1 L_v_last')
        A('s_sleep 1'); qread(); A('s_branch L_w_top')
    qslow('L_v')
    A('v_lshrrev_b32 v51, 4, v0'); A('v_lshl_add_u32 v50, v51, 3, v50')
    A('s_lshl_b32 s46, s6, 9'); A('v_add_u32 v50, s46, v50')
    A('s_lshl_b32 s46, s2, 9'); A(f's_add_u32 s46, s46, {WS_OP}'); A(f'v_add_u32 v51, s46, v{VOFF}')
    for j in range(8):
        A(f's_waitcnt vmcnt({7-j})')
        vmac(j, PA[j])
    g.stamp(6)
    if 'spin' in exp:
        g.stamp(12, 's70'); A(f'v_readfirstlane_b32 s71, v{VN}'); g.nop(4); g.stamp(15, 's71')
    g.nop(1)
    swap_reduce8(g, ACC)
    A(f'ds_write_b64 v50, v[{ACC[0]}:{ACC[1]}] offset:{L_OB}')
    A('s_waitcnt lgkmcnt(0)')
    A('s_barrier')
    if 'notail' in exp: A('s_branch L_end')
    A('v_mov_b32 v52, 0'); A(f'ds_read_b32 v53, v52 offset:{L_ROLE}')
    A('s_cmp_lg_u32 s3, 0'); A('s_cbranch_scc1 L_s_after_pub')
    A('s_mov_b64 exec, 0xffffffff')
    for w in range(4): A(f'ds_read_b128 v[{8+4*w}:{11+4*w}], v{VOFF} offset:{L_OB + 512*w}')
    A('s_waitcnt lgkmcnt(0)')
    sum4x4(g, 8)
    A('global_store_dwordx4 v51, v[8:11], s[42:43] sc1')
    A('s_mov_b64 exec, -1')
    g.stamp(7)
    g.label('L_s_after_pub')
    if 'xstage' in exp: A('s_branch L_end')
    A('s_waitcnt lgkmcnt(0)'); A('v_readfirstlane_b32 s57, v53'); g.nop(1)
    A(f's_cmp_ge_u32 s57, {NMLP}'); A('s_cbranch_scc1 L_end')
    SW = 64
    srd(g, 8, 28, 512*1792*2); srd(g, 12, 30, 512*1792*2); srd(g, 64, 32, 1792*512*2)
    A('v_lshrrev_b32 v52, 2, v0'); A('s_lshl_b32 s50, s6, 7'); A('v_add_u32 v52, s50, v52')
    A('v_and_b32 v53, 3, v0'); A('v_lshlrev_b32 v53, 4, v53')
    A('s_movk_i32 s50, 3584'); A('v_mad_u32_u24 v54, v52, s50, v53')
    A('v_lshrrev_b32 v55, 3, v52'); A('v_lshl_add_u32 v53, v55, 4, v53'); A('v_lshl_add_u32 v52, v52, 6, v53'); A(f'v_add_u32 v52, {L_ST}, v52')
    A(f'v_add_u32 v53, {ST_SZ}, v52')
    A('s_lshl_b32 s50, s6, 13'); A(f's_add_u32 s50, s50, {L_DS}'); A(f'v_add_u32 v55, s50, v{VOFF}')
    A('v_mov_b32 v11, 1'); A('v_mov_b32 v12, 0')
    A('s_lshl_b32 s50, s57, 6')
    A('s_lshl_b32 s51, s57, 5'); A('s_lshl_b32 s52, s6, 3'); A('s_add_u32 s51, s51, s52'); A('s_lshl_b32 s51, s51, 10')
    ops = []
    for j in range(8):
        ops.append((f'buffer_load_dwordx4 v[{SW+8*j}:{SW+8*j+3}], v54, s[8:11], s50 offen nt', f'ds_write_b128 v52, v[{SW+8*j}:{SW+8*j+3}] offset:{1056*j}', None))
        ops.append((f'buffer_load_dwordx4 v[{SW+8*j+4}:{SW+8*j+7}], v54, s[12:15], s50 offen nt', f'ds_write_b128 v53, v[{SW+8*j+4}:{SW+8*j+7}] offset:{1056*j}', f's_add_u32 s50, s50, {3584*16}'))
    for j in range(8):
        ops.append((f'buffer_load_dwordx4 v[{SW+64+4*j}:{SW+67+4*j}], v{VOFF}, s[64:67], s51 offen offset:{1024*(j%4)} nt', f'ds_write_b128 v55, v[{SW+64+4*j}:{SW+67+4*j}] offset:{1024*j}', 's_add_u32 s51, s51, 4096' if j == 3 else None))
    n = len(ops); PD = min(pace, n)
    for i in range(n + PD):
        if i >= PD:
            A(f's_waitcnt vmcnt({min(PD - 1, n - 1 - (i - PD))})'); A(ops[i - PD][1])
            if (i - PD) % 8 == 7: A('s_waitcnt lgkmcnt(0)')
        if i < n:
            A(ops[i][0])
            if ops[i][2]: A(ops[i][2])
    A('s_mov_b64 exec, 1')
    A(f'ds_add_u32 v12, v11 offset:{L_CNT + 16}')
    A('s_mov_b64 exec, -1')
    def stage_wait(pref):
        A(f's_mov_b32 s70, {SPIN_MAX*16}')
        g.label(f'{pref}_spin')
        A(f'ds_read_b32 v13, v12 offset:{L_CNT + 16}')
        A('s_waitcnt lgkmcnt(0)')
        A('v_readfirstlane_b32 s50, v13')
        A('s_sub_u32 s70, s70, 1'); A('s_cmp_eq_u32 s70, 0'); A(f's_cbranch_scc1 {pref}_done')
        A('s_cmp_ge_u32 s50, 5'); A(f's_cbranch_scc1 {pref}_done')
        A('s_sleep 1'); A(f's_branch {pref}_spin')
        g.label(f'{pref}_done')
    g.stamp(9)
    stage_wait('L_sst')
    A('s_branch L_gather_ap')

    g.label('L_helper'); g.role = 'H'
    WQ = 64; WM = 192; CC = 52; X8 = 56; X4 = 46; TAG = 49; MEAN = 40; SD = 41; RSD = 42
    A('v_lshrrev_b32 v1, 2, v0'); A('v_and_b32 v2, 3, v0')
    A('s_lshl_b32 s7, s6, 7')
    A('v_add_u32 v3, s7, v1')
    A('v_lshlrev_b32 v4, 2, v0'); A('s_lshl_b32 s50, s6, 8'); A('v_add_u32 v4, s50, v4')
    A('s_movk_i32 s50, 6144'); A('v_mul_lo_u32 v5, v3, s50'); A('v_lshl_add_u32 v5, v2, 4, v5')
    A('v_lshlrev_b32 v6, 4, v0')
    A('s_lshl_b32 s50, s5, 6'); A('s_lshl_b32 s51, s6, 4'); A('s_add_u32 s50, s50, s51')
    A('v_lshrrev_b32 v7, 4, v0'); A('v_lshl_add_u32 v7, v7, 2, s50')
    A('v_lshlrev_b32 v10, 1, v7')
    A('v_lshlrev_b32 v9, 13, v7'); A('v_and_b32 v11, 15, v0'); A('v_lshl_add_u32 v9, v11, 4, v9')
    A('v_mov_b32 v8, 0')
    A('s_waitcnt lgkmcnt(0)')
    g.stamp(0)
    A(f'global_load_dword v{TAG}, v8, s[42:43]')
    A('s_cmp_ge_u32 s58, 96'); A('s_cbranch_scc1 L_h_noprod1')
    srd(g, 8, 36, 512*3072*2)
    A(f'global_load_dword v{CC}, v4, s[34:35]')
    A('s_lshl_b32 s50, s58, 6')
    for j in range(0 if 'xwm' in exp else 8):
        A(f'buffer_load_dwordx4 v[{WM+4*j}:{WM+4*j+3}], v5, s[8:11], s50 offen' + (' nt' if 'wdef' not in exp else ''))
        if j < 7: A(f's_add_u32 s50, s50, {6144*16}')
    g.label('L_h_noprod1')
    A('s_lshl_b32 s50, s5, 3'); A('s_add_u32 s50, s50, s3'); A('s_cmp_lg_u32 s50, 4'); A('s_cbranch_scc1 L_h_nocinit')
    A('v_bfe_u32 v11, v0, 3, 1'); A('v_lshlrev_b32 v11, 7, v11'); A('v_and_b32 v12, 7, v0'); A('v_lshl_add_u32 v11, v12, 2, v11')
    A(f's_lshl_b32 s50, s4, 8'); A(f's_add_u32 s50, s50, {WS_CNT}'); A('v_add_u32 v11, s50, v11')
    A('s_mov_b64 exec, 0xffff')
    A('global_store_dword v11, v8, s[42:43] sc1')
    A('s_mov_b64 exec, -1')
    g.label('L_h_nocinit')
    A(f'global_load_dwordx4 v[{X8}:{X8+3}], v6, s[16:17]')
    A(f'global_load_dwordx2 v[{X4}:{X4+1}], v10, s[16:17]')
    srd(g, 12, 22, 512*4096*2)
    A('s_lshl_b32 s50, s4, 8')
    for j in range(0 if 'xwq' in exp else 4):
        A(f'buffer_load_dwordx4 v[{WQ+4*j}:{WQ+4*j+3}], v9, s[12:15], s50 offen nt')
        if j < 3: A('s_add_u32 s50, s50, 8192')
    A('s_cmp_lg_u32 s3, 4'); A('s_cbranch_scc1 L_h_nozero')
    A('v_lshlrev_b32 v10, 2, v0')
    A(f'ds_write_b32 v10, v8 offset:{L_CNT}')
    A('s_lshl_b32 s50, s2, 21')
    A('v_lshlrev_b32 v11, 15, v0'); A('v_add_u32 v11, s50, v11'); A('v_mov_b32 v12, -1')
    A(f'v_cmp_gt_u32 vcc, {NSB}, v0'); g.nop(2); A('v_cndmask_b32 v11, v12, v11, vcc')
    for q in (L_Q, L_QV):
        A(f'ds_write_b32 v10, v11 offset:{q}'); A(f'ds_write_b32 v10, v12 offset:{q + 256}')
    A('s_waitcnt lgkmcnt(0)')
    g.label('L_h_nozero')
    A('s_barrier')
    A('s_cmp_ge_u32 s58, 96'); A('s_cbranch_scc1 L_h_w1')
    A('s_waitcnt vmcnt(14)'); A('s_branch L_h_w2')
    g.label('L_h_w1')
    A('s_waitcnt vmcnt(4)')
    g.label('L_h_w2')
    A('s_mov_b32 s50, 0x9e3779b1')
    A(f'v_mul_lo_u32 v{TAG}, v{TAG}, s50'); A(f'v_add_u32 v{TAG}, 0x7f4a7c15, v{TAG}')
    A('v_mov_b32 v10, s6'); A('v_lshlrev_b32 v10, 2, v10'); A(f'ds_write_b32 v10, v{TAG} offset:{L_TAG}')
    g.stamp(1)
    A('s_cmp_ge_u32 s58, 96'); A('s_cbranch_scc1 L_h_noprod2')
    CV = list(range(16, 24)); ACC = list(range(24, 32))
    unpack(g, [32, 33], CC, 1)
    for i in range(2): A(f'v_mul_f32 v{80+i}, {hex(f2u(-1.4426950408889634))}, v{32+i}')
    sigmoid_mul_n(g, [(88+i, 32+i, 80+i, 96+i, 104+i, 112+i) for i in range(2)])
    for i in range(2): rnd(g, 88+i, 88+i)
    A('v_and_b32 v10, 7, v0'); A('v_lshlrev_b32 v10, 6, v10'); A('v_lshrrev_b32 v11, 3, v0'); A('v_lshl_add_u32 v10, v11, 2, v10')
    A('s_lshl_b32 s50, s6, 9'); A('v_add_u32 v10, s50, v10')
    A(f'ds_write_b32 v10, v88 offset:{L_QP}'); A(f'ds_write_b32 v10, v89 offset:{L_QP + 32}')
    A('v_lshl_add_u32 v10, v1, 5, s50')
    A(f'ds_read_b128 v[16:19], v10 offset:{L_QP}'); A(f'ds_read_b128 v[20:23], v10 offset:{L_QP + 16}')
    A('s_waitcnt vmcnt(0) lgkmcnt(0)' if 'xwq' in exp else 's_waitcnt vmcnt(6) lgkmcnt(0)')
    for i in range(8): A(f'v_mov_b32 v{ACC[i]}, 0'); A(f'v_lshrrev_b32 v{80+i}, 16, v{CV[i]}')
    for j in range(8): tile_mac(g, ACC, WM + 4*j, f'v{CV[j]}', f'v{80+j}')
    A('v_lshrrev_b32 v10, 4, v0'); A('v_lshlrev_b32 v10, 3, v10'); A('v_lshl_add_u32 v10, v2, 5, v10')
    A('v_add_u32 v10, s7, v10')
    swap_reduce8(g, ACC)
    row_allreduce(g, ACC[:2], rors=(8, 4))
    A(f'ds_write_b64 v10, v[{ACC[0]}:{ACC[1]}] offset:{L_MODP}')
    last_arriver(g, 0, 'L_h_noprod2')
    A('v_and_b32 v11, 7, v0'); A('v_lshlrev_b32 v11, 4, v11')
    for w in range(4): A(f'ds_read_b128 v[{16+4*w}:{19+4*w}], v11 offset:{L_MODP + 128*w}')
    A('s_lshl_b32 s50, s58, 7'); A(f's_add_u32 s50, s50, {WS_MOD}'); A('v_add_u32 v10, s50, v11')
    A('s_mov_b64 exec, 0xff')
    A('s_waitcnt lgkmcnt(0)')
    sum4x4(g, 16, False)
    A('v_cvt_pk_bf16_f32 v16, v16, v17'); A('v_cvt_pk_bf16_f32 v18, v18, v19'); A(f'v_mov_b32 v17, v{TAG}'); A(f'v_mov_b32 v19, v{TAG}')
    A('global_store_dwordx4 v10, v[16:19], s[42:43] sc1')
    A('s_mov_b64 exec, -1')
    g.stamp(2)
    g.label('L_h_noprod2')
    A('s_waitcnt vmcnt(4)')
    XS = list(range(16, 24))
    unpack(g, XS, X8)
    ln_stats(g, XS, MEAN, SD, list(range(32, 40)))
    A(f'v_rcp_f32 v{RSD}, v{SD}')
    A(f's_mov_b32 s50, {WS_MOD}')
    A('v_lshlrev_b32 v10, 2, v7'); A('v_add_u32 v10, s50, v10')
    unpack(g, [16, 17, 18, 19], X4, 2)
    def lds_():
        A('global_load_dwordx4 v[24:27], v10, s[42:43] sc1'); A('global_load_dwordx4 v[28:31], v10, s[42:43] offset:2048 sc1')
    poll(g, lds_, chk_tags(g, [25, 27, 29, 31], TAG), sleep=psl)
    g.stamp(3)
    for k, src in enumerate((24, 26)):
        A(f'v_lshlrev_b32 v{20+2*k}, 16, v{src}'); A(f'v_and_b32 v{21+2*k}, 0xffff0000, v{src}')
    for k, src in enumerate((28, 30)):
        A(f'v_lshlrev_b32 v{32+2*k}, 16, v{src}'); A(f'v_and_b32 v{33+2*k}, 0xffff0000, v{src}')
    for i in range(4): A(f'v_add_f32 v{32+i}, 1.0, v{32+i}')
    for i in range(4): rnd(g, 32+i, 32+i)
    modulate_n(g, [(36+i, 16+i, 32+i, 20+i, 80+i, 84+i) for i in range(4)], MEAN, SD, RSD)
    ACC = list(range(24, 32))
    for i in range(8): A(f'v_mov_b32 v{ACC[i]}, 0')
    for j in range(4): A(f'v_lshrrev_b32 v{80+j}, 16, v{36+j}')
    for j in range(4): tile_mac(g, ACC, WQ + 4*j, f'v{36+j}', f'v{80+j}')
    A('v_and_b32 v10, 15, v0'); A('v_lshlrev_b32 v10, 5, v10'); A('v_lshrrev_b32 v11, 4, v0'); A('v_lshl_add_u32 v10, v11, 3, v10')
    A('s_lshl_b32 s50, s6, 9'); A('v_add_u32 v10, s50, v10')
    swap_reduce8(g, ACC)
    A(f'ds_write_b64 v10, v[{ACC[0]}:{ACC[1]}] offset:{L_QP}')
    A('v_lshlrev_b32 v10, 3, v0')
    last_arriver(g, 1, 'L_h_noqpub')
    for w in range(4): A(f'ds_read_b64 v[{16+2*w}:{17+2*w}], v10 offset:{L_QP + 512*w}')
    A('s_lshl_b32 s50, s2, 10'); A(f's_add_u32 s50, s50, {WS_QX}'); A('v_add_u32 v10, s50, v6')
    A('s_waitcnt lgkmcnt(0)')
    A('v_pk_add_f32 v[16:17], v[16:17], v[18:19]'); A('v_pk_add_f32 v[20:21], v[20:21], v[22:23]'); A('v_pk_add_f32 v[16:17], v[16:17], v[20:21]')
    A(f'v_mov_b32 v19, v{TAG}'); A('v_mov_b32 v18, v17'); A(f'v_mov_b32 v17, v{TAG}')
    A('global_store_dwordx4 v10, v[16:19], s[42:43] sc1')
    g.label('L_h_noqpub')
    A('s_lshl_b32 s50, s4, 13'); A('s_lshl_b32 s51, s6, 8'); A('s_add_u32 s50, s50, s51'); A(f's_add_u32 s50, s50, {WS_QX}')
    A('v_lshrrev_b32 v10, 3, v0'); A('v_lshlrev_b32 v10, 10, v10'); A('v_and_b32 v11, 7, v0'); A('v_lshl_add_u32 v10, v11, 5, v10')
    A('v_add_u32 v10, s50, v10')
    A('v_lshlrev_b32 v48, 4, v11'); A('v_bfe_u32 v13, v0, 5, 1'); A('v_lshl_add_u32 v48, v13, 3, v48')
    A('v_bfe_u32 v13, v0, 4, 1'); A('v_lshl_add_u32 v48, v13, 2, v48'); A('v_add_u32 v12, s7, v48')
    def lds_():
        A('global_load_dwordx4 v[24:27], v10, s[42:43] sc1'); A('global_load_dwordx4 v[28:31], v10, s[42:43] offset:16 sc1')
    poll(g, lds_, chk_tags(g, [25, 27, 29, 31], TAG), sleep=psl)
    reduce4_hi(g, [24, 26, 28, 30])
    A(f'ds_write_b32 v12, v24 offset:{L_HV}')
    A('s_waitcnt lgkmcnt(0)')
    g.stamp(4)
    if 'xb1' not in exp: A('s_barrier')
    if 'xclr' in exp: A('s_branch L_h_noclear')
    A('s_cmp_lg_u32 s3, 7'); A('s_cbranch_scc1 L_h_noclear')
    for i in range(4): A(f'v_mov_b32 v{16+i}, -1')
    A('s_lshl_b32 s51, s2, 9'); A(f's_add_u32 s51, s51, {WS_OP}'); A('v_add_u32 v10, s51, v6')
    A('v_and_b32 v11, 15, v0'); A('v_lshlrev_b32 v11, 4, v11'); A('v_lshrrev_b32 v12, 4, v0'); A('v_lshl_add_u32 v11, v12, 16, v11')
    A('s_lshl_b32 s51, s2, 8'); A(f's_add_u32 s51, s51, {WS_AP}'); A('v_add_u32 v11, s51, v11'); A('v_add_u32 v12, 0x40000, v11')
    A('s_mov_b64 exec, 0xffffffff')
    A('global_store_dwordx4 v10, v[16:19], s[42:43] sc1')
    A('s_mov_b64 exec, 0xffff')
    A('global_store_dwordx4 v11, v[16:19], s[42:43] sc1')
    A('s_mov_b64 exec, -1')
    A(f's_cmp_ge_u32 s2, {NMLP}'); A('s_cbranch_scc1 L_h_noclear')
    A('s_lshl_b32 s51, s2, 11'); A(f's_add_u32 s51, s51, {WS_DP}'); A('v_add_u32 v10, s51, v6')
    A('global_store_dwordx4 v10, v[16:19], s[42:43] sc1')
    A('global_store_dwordx4 v10, v[16:19], s[42:43] offset:1024 sc1')
    g.label('L_h_noclear')
    WO = 64; WG = 80; WU = 112; WD = 144; E = 192
    if not wl:
        srd(g, 8, 24, 4096*512*2)
        A('v_lshrrev_b32 v10, 3, v0'); A('v_lshlrev_b32 v10, 2, v10')
        A('s_lshl_b32 s50, s4, 7'); A('s_lshl_b32 s51, s6, 5'); A('s_add_u32 s50, s50, s51')
        A('v_add_u32 v10, s50, v10'); A('v_lshlrev_b32 v10, 10, v10')
        A('v_and_b32 v11, 7, v0'); A('v_lshl_add_u32 v10, v11, 4, v10')
        A('s_lshl_b32 s50, s5, 7')
        for j in range(0 if 'xwo' in exp else 4):
            A(f'buffer_load_dwordx4 v[{WO+4*j}:{WO+4*j+3}], v10, s[8:11], s50 offen offset:{1024*j} nt')
    A('s_waitcnt vmcnt(0) lgkmcnt(0)')
    g.stamp(5)
    A('v_mov_b32 v12, s6'); A('v_lshlrev_b32 v12, 2, v12')
    A('s_lshl_b32 s59, s4, 24')
    A('v_mov_b32 v17, 0')
    def read_prog(off, dst):
        A(f'ds_read_b128 v[20:23], v17 offset:{off}')
        A('s_waitcnt lgkmcnt(0)')
        A('v_max3_u32 v20, v20, v21, v22'); A('v_max_u32 v20, v20, v23'); g.nop(1)
        A(f'v_readfirstlane_b32 {dst}, v20')
    A('s_cmp_lg_u32 s3, 4'); A('s_cbranch_scc1 L_nosched')
    def claim_setup(off):
        A(f's_lshl_b32 s50, s4, 8'); A(f's_add_u32 s50, s50, {WS_CNT + off}'); A('v_lshl_add_u32 v16, v0, 2, s50')
        A('s_mov_b32 s66, s5'); A('s_mov_b32 s67, 0'); A(f's_mov_b32 s88, {2 if NCL > single else 1}'); A('s_mov_b32 s90, 0')
    def claim_issue():
        l1 = g.newlabel('L_ci'); l2 = g.newlabel('L_ci')
        A('s_cmp_lg_u32 s90, 0'); A(f's_cbranch_scc1 {l1}')
        A('v_mov_b32 v18, s88')
        A('s_lshl_b32 s60, 1, s66'); A('s_mov_b32 s61, 0'); A('s_mov_b64 exec, s[60:61]')
        A('global_atomic_add v19, v16, v18, s[42:43] sc0 sc1')
        A(f's_branch {l2}')
        g.label(l1)
        A('s_mov_b64 exec, 0xff')
        A('global_load_dword v15, v16, s[42:43] sc1')
        g.label(l2)
        A('s_mov_b64 exec, -1')
    def claim_result(dst, ok, retry, done):
        A('s_cmp_lg_u32 s90, 0'); A(f's_cbranch_scc1 {ok}_snap')
        A(f'v_readlane_b32 {dst}, v19, s66')
        A('s_lshl_b32 s61, 1, s66')
        A(f's_cmp_lt_u32 {dst}, {NCL}'); A(f's_cbranch_scc0 {ok}_miss')
        A(f's_sub_u32 s54, {NCL}, {dst}'); A('s_min_u32 s54, s54, s88')
        A(f's_add_u32 s60, {dst}, s54'); A(f's_cmp_lt_u32 s60, {max(NCL - single, 0)}'); A('s_cselect_b32 s88, s88, 1')
        A('s_cmp_lg_u32 s66, s5'); A('s_cselect_b32 s90, 1, 0')
        A(f's_cmp_ge_u32 s60, {NCL}'); A('s_cselect_b32 s90, 1, s90'); A('s_cselect_b32 s61, s61, 0'); A('s_or_b32 s67, s67, s61')
        A('s_lshl_b32 s60, s66, 6'); A(f's_add_u32 {dst}, {dst}, s60'); A(f's_add_u32 {dst}, {dst}, {NSB}')
        A(f's_branch {ok}')
        g.label(f'{ok}_miss')
        A('s_or_b32 s67, s67, s61'); A('s_mov_b32 s88, 1'); A('s_mov_b32 s90, 1')
        A(f's_branch {retry}')
        g.label(f'{ok}_snap')
        A(f'v_cmp_gt_u32 vcc, {NCL}, v15')
        A('s_mov_b32 s90, 0'); A('s_mov_b32 s88, 1')
        A('s_andn2_b32 s60, vcc_lo, s67'); A('s_and_b32 s60, s60, 0xff'); A(f's_cbranch_scc0 {done}')
        A('s_lshl_b32 s61, s60, 8'); A('s_or_b32 s60, s60, s61'); A('s_lshr_b32 s60, s60, s5'); A('s_ff1_i32_b32 s60, s60')
        A('s_add_u32 s66, s60, s5'); A('s_and_b32 s66, s66, 7')
        A(f's_branch {retry}')
    claim_setup(0)
    A(f's_mov_b32 s52, {NSB}')
    A(f's_mov_b32 s70, {SPIN_MAX*16}')
    g.label('L_sch_wait')
    read_prog(L_PROG, 's50')
    A('s_sub_u32 s70, s70, 1'); A('s_cmp_eq_u32 s70, 0'); A('s_cbranch_scc1 L_sch_done')
    A('s_cmp_eq_u32 s67, 0'); A(f's_cselect_b32 s55, {lown}, {lead}'); A('s_add_u32 s50, s50, s55')
    A('s_cmp_ge_u32 s50, s52'); A('s_cbranch_scc1 L_sch_claim')
    A('s_sub_u32 s50, s52, s50'); A('s_cmp_gt_u32 s50, 4'); A('s_cbranch_scc1 L_sch_long')
    A('s_sleep 2'); A('s_branch L_sch_wait')
    g.label('L_sch_long')
    A('s_sleep 32'); A('s_branch L_sch_wait')
    g.label('L_sch_claim')
    A(f's_cmp_ge_u32 s52, {MAXROWS - 2}'); A('s_cbranch_scc1 L_sch_done')
    claim_issue()
    A('s_lshl_b32 s55, s52, 2'); A('v_mov_b32 v21, s55')
    A('s_waitcnt vmcnt(0)')
    claim_result('s53', 'L_sch_put', 'L_sch_claim', 'L_sch_done')
    g.label('L_sch_put')
    A('s_lshl_b32 s55, s53, 15'); A('s_add_u32 s55, s55, s59'); A('v_mov_b32 v20, s55')
    A(f'ds_write_b32 v21, v20 offset:{L_Q}')
    A('v_add_u32 v21, 4, v21'); A('s_add_u32 s52, s52, 1'); A('s_add_u32 s53, s53, 1')
    A('s_sub_u32 s54, s54, 1'); A('s_cmp_lg_u32 s54, 0'); A('s_cbranch_scc1 L_sch_put')
    A('s_branch L_sch_wait')
    g.label('L_sch_done')
    A('s_lshl_b32 s55, s52, 2'); A('v_mov_b32 v21, s55'); A('v_mov_b32 v20, -2')
    A(f'ds_write_b32 v21, v20 offset:{L_Q}')
    g.label('L_nosched')
    A('s_lshl_b32 s50, s4, 9'); A(f's_add_u32 s50, s50, {WS_ML}')
    A('v_and_b32 v11, 31, v0'); A('v_lshlrev_b32 v11, 4, v11'); A('v_add_u32 v11, s50, v11')
    A('s_lshl_b32 s50, s6, 14'); A(f's_add_u32 s50, s50, {L_SC}'); A('v_add_u32 v10, s50, v6')
    A(f's_mov_b32 s51, {hex(LOG2E)}')
    A(f's_mov_b32 s70, {SPIN_MAX*16}')
    g.label('L_kd_spin')
    A(f'ds_read_b32 v13, v12 offset:{L_KD}')
    A('s_waitcnt lgkmcnt(0)')
    A('v_readfirstlane_b32 s52, v13')
    A('s_sub_u32 s70, s70, 1'); A('s_cmp_eq_u32 s70, 0'); A('s_cbranch_scc1 L_kd_done')
    A('s_cmp_lg_u32 s52, 0'); A('s_cbranch_scc1 L_kd_done')
    A('s_sleep 8'); A('s_branch L_kd_spin')
    g.label('L_kd_done')
    g.stamp(6)
    NP = MAXROWS // 8
    for i in range(NP): A(f'ds_read_b128 v[{E+4*i}:{E+4*i+3}], v10 offset:{1024*i}')
    poll(g, lambda: A('global_load_dwordx4 v[28:31], v11, s[42:43] sc1'), chk_tags(g, [29, 31], TAG), sleep=mlsl)
    g.stamp(8)
    M = 22; IL = 23
    A('v_mov_b32 v22, v28')
    row_allreduce(g, [22], 'max')
    A('v_mov_b32 v23, v22'); g.nop(2); A('v_permlane16_swap_b32 v22, v23'); A('v_max_f32 v22, v22, v23')
    A('v_sub_f32 v20, v28, v22'); A('v_mul_f32 v20, s51, v20'); A('v_exp_f32 v20, v20'); g.nop(1)
    A('v_mul_f32 v20, v20, v30')
    row_allreduce(g, [20])
    A('v_mov_b32 v23, v20'); g.nop(2); A('v_permlane16_swap_b32 v20, v23'); A('v_add_f32 v20, v20, v23')
    A('v_mov_b32 v16, 1.0')
    divide(g, 23, 16, 20, 21, 24)
    A('s_waitcnt lgkmcnt(0)')
    for pc in range(NSB // 8):
        to_p(g, list(range(E + 4*pc, E + 4*pc + 4)), M, IL, 's51')
        A(f'ds_write_b128 v10, v[{E+4*pc}:{E+4*pc+3}] offset:{1024*pc}')
    if NSB % 8:
        pc = NSB // 8
        for i in range(4): A(f'v_mov_b32 v{32+i}, v{E+4*pc+i}')
        to_p(g, [32, 33, 34, 35], M, IL, 's51')
        A(f's_mov_b64 exec, {hex((1 << (8*(NSB % 8))) - 1)}' if NSB % 8 <= 4 and (1 << (8*(NSB % 8))) - 1 < (1 << 32) else f's_mov_b32 exec_hi, {hex((1 << (8*(NSB % 8) - 32)) - 1)}')
        A(f'ds_write_b128 v10, v[32:35] offset:{1024*pc}')
        A('s_mov_b64 exec, -1')
    A('s_waitcnt lgkmcnt(0)')
    g.stamp(9)
    if 'xb2' not in exp: A('s_barrier')
    A('v_lshrrev_b32 v11, 3, v0'); A('v_lshlrev_b32 v11, 2, v11')
    for pc in range(NSB // 8, NP): A(f'ds_read_b32 v{24 + pc - NSB//8}, v11 offset:{L_Q + 32*pc}')
    A('s_lshl_b32 s53, s4, 17'); A(f's_add_u32 s53, s53, {WS_SCG}')
    A('s_lshl_b32 s54, s6, 6'); A('s_add_u32 s54, s54, s53')
    A('v_and_b32 v12, 6, v0'); A('v_lshlrev_b32 v12, 3, v12'); A('v_add_u32 v12, s54, v12')
    A('s_mov_b32 s62, 0x55555555'); A('s_mov_b32 s63, 0x55555555')
    A('s_waitcnt lgkmcnt(0)')
    for pc in range(NSB // 8, NP):
        i0 = E + 4*pc; qv = 24 + pc - NSB//8
        A(f's_cmp_le_u32 s52, {8*pc}'); A('s_cbranch_scc1 L_exp_done')
        A(f'v_lshrrev_b32 v16, 16, v{i0}'); A(f'v_or_b32 v16, v16, v{i0+1}')
        A(f'v_lshrrev_b32 v17, 16, v{i0+2}'); A(f'v_or_b32 v17, v17, v{i0+3}')
        A(f'v_subrev_u32 v13, s59, v{qv}'); A('v_lshrrev_b32 v13, 7, v13'); A('v_add_u32 v13, v13, v12')
        A('v_mov_b32_dpp v18, v16 quad_perm:[1,1,3,3] row_mask:0xf bank_mask:0xf')
        A('v_mov_b32_dpp v19, v17 quad_perm:[1,1,3,3] row_mask:0xf bank_mask:0xf')
        A(f'v_cmp_gt_u32 vcc, -2, v{qv}')
        if pc == NSB // 8 and NSB % 8:
            msk = ((1 << 64) - 1) ^ ((1 << (8*(NSB % 8))) - 1)
            A(f's_mov_b32 s60, {hex(msk & 0xffffffff)}'); A(f's_mov_b32 s61, {hex(msk >> 32)}'); A('s_and_b64 vcc, vcc, s[60:61]')
        A('s_and_b64 exec, vcc, s[62:63]')
        lbx = g.newlabel('L_expz'); A(f's_cbranch_execz {lbx}')
        if 'xexp' not in exp: A('global_store_dwordx4 v13, v[16:19], s[42:43] sc1')
        g.label(lbx)
        A('s_mov_b64 exec, -1')
        to_p(g, list(range(i0, i0 + 4)), M, IL, 's51')
        A(f'ds_write_b128 v10, v[{i0}:{i0+3}] offset:{1024*pc}')
        g.nop(1)
    g.label('L_exp_done')
    A('s_waitcnt vmcnt(0)')
    last_arriver(g, 2, 'L_noxf')
    A('s_lshl_b32 s50, s2, 4'); A(f's_add_u32 s50, s50, {WS_XF}'); A('v_mov_b32 v13, s50')
    for i in range(4): A(f'v_mov_b32 v{16+i}, v{TAG}')
    A('s_mov_b64 exec, 1')
    A('global_store_dwordx4 v13, v[16:19], s[42:43] sc1')
    A('s_mov_b64 exec, -1')
    g.label('L_noxf')
    A('s_cmp_lg_u32 s3, 4'); A('s_cbranch_scc1 L_noschedv')
    A('s_lshl_b32 s50, s4, 7'); A(f's_add_u32 s50, s50, {WS_XF}'); A('v_and_b32 v13, 7, v0'); A('v_lshlrev_b32 v13, 4, v13'); A('v_add_u32 v13, s50, v13')
    A('s_sleep 100')
    poll(g, lambda: A('global_load_dword v16, v13, s[42:43] sc1'), chk_tags(g, [16], TAG), sleep=64)
    A('v_mov_b32 v12, 0'); A(f's_mov_b32 s70, {SPIN_MAX*16}')
    g.label('L_xw_spin')
    A(f'ds_read_b32 v13, v12 offset:{L_CNT + 8}')
    A('s_waitcnt lgkmcnt(0)')
    A('v_readfirstlane_b32 s50, v13')
    A('s_sub_u32 s70, s70, 1'); A('s_cmp_eq_u32 s70, 0'); A('s_cbranch_scc1 L_xw_done')
    A('s_cmp_ge_u32 s50, 4'); A('s_cbranch_scc1 L_xw_done')
    A('s_sleep 8'); A('s_branch L_xw_spin')
    g.label('L_xw_done')
    claim_setup(128)
    A(f's_mov_b32 s52, {NSB}'); A('s_mov_b32 s56, -1'); A('s_mov_b32 s62, 0')
    A('v_mov_b32 v17, 0')
    A('v_add_u32 v24, s53, v6')
    A('v_bfe_u32 v25, v0, 2, 2'); A('v_lshlrev_b32 v25, 14, v25'); A('v_lshrrev_b32 v26, 4, v0'); A('v_lshl_add_u32 v25, v26, 7, v25')
    A('v_lshl_add_u32 v25, v2, 5, v25'); A(f'v_add_u32 v25, {L_SC}, v25')
    A(f's_mov_b32 s70, {SPIN_MAX*16}')
    g.label('L_sv_top')
    A(f'ds_read_b128 v[32:35], v17 offset:{L_PROGV}')
    A('s_waitcnt lgkmcnt(0)')
    A('v_max3_u32 v32, v32, v33, v34'); A('v_max_u32 v32, v32, v35'); g.nop(1)
    A('v_readfirstlane_b32 s64, v32')
    A('s_sub_u32 s70, s70, 1'); A('s_cmp_eq_u32 s70, 0'); A('s_cbranch_scc1 L_sv_done')
    A('s_cmp_eq_u32 s67, 0'); A(f's_cselect_b32 s65, {lown}, {leadv}'); A('s_add_u32 s64, s64, s65')
    A('s_mov_b32 s65, 0')
    A('s_cmp_lg_u32 s62, 0'); A('s_cbranch_scc1 L_sv_noclaim')
    A('s_cmp_lt_u32 s64, s52'); A('s_cbranch_scc1 L_sv_noclaim')
    A(f's_cmp_ge_u32 s52, {MAXROWS - 2}'); A('s_cbranch_scc1 L_sv_full')
    A('s_mov_b32 s65, 1')
    claim_issue()
    A('s_branch L_sv_pend')
    g.label('L_sv_full')
    A('s_mov_b32 s62, 1')
    g.label('L_sv_noclaim')
    A('s_cmp_lg_u32 s56, -1'); A('s_cbranch_scc1 L_sv_pend')
    A('s_cmp_lg_u32 s62, 0'); A('s_cbranch_scc1 L_sv_done')
    A('s_sub_u32 s64, s52, s64'); A('s_cmp_gt_u32 s64, 4'); A('s_cbranch_scc1 L_sv_long')
    A('s_sleep 2'); A('s_branch L_sv_top')
    g.label('L_sv_long')
    A('s_sleep 32'); A('s_branch L_sv_top')
    g.label('L_sv_pend')
    A('s_cmp_eq_u32 s56, -1'); A('s_cbranch_scc1 L_sv_nofetch')
    A('s_lshl_b32 s60, s56, 8'); A('v_add_u32 v26, s60, v24')
    A('s_cmp_eq_u32 s89, 2'); A('s_cselect_b32 s60, -1, 0xffff'); A('s_mov_b32 s61, 0'); A('s_mov_b64 exec, s[60:61]')
    A('global_load_dwordx4 v[28:31], v26, s[42:43] sc1')
    A('s_lshl_b32 s60, s55, 7'); A('v_add_u32 v26, s60, v25')
    A('s_waitcnt vmcnt(0)')
    unpack(g, list(range(32, 40)), 28)
    to_p(g, list(range(32, 40)), M, IL, 's51')
    A('ds_write_b128 v26, v[32:35]'); A('ds_write_b128 v26, v[36:39] offset:16')
    A('v_lshrrev_b32 v26, 4, v0'); A('v_add_u32 v27, s56, v26'); A('v_lshlrev_b32 v27, 15, v27'); A('v_add_u32 v27, s59, v27')
    A('v_add_u32 v26, s55, v26'); A('v_lshlrev_b32 v26, 2, v26')
    A(f'ds_write_b32 v26, v27 offset:{L_QV}')
    A('s_mov_b64 exec, -1')
    A('s_mov_b32 s56, -1')
    g.label('L_sv_nofetch')
    A('s_cmp_eq_u32 s65, 0'); A('s_cbranch_scc1 L_sv_top')
    A('s_waitcnt vmcnt(0)')
    claim_result('s63', 'L_sv_got', 'L_sv_top', 'L_sv_done')
    g.label('L_sv_got')
    A('s_mov_b32 s56, s63'); A('s_mov_b32 s55, s52'); A('s_add_u32 s52, s52, s54'); A('s_mov_b32 s89, s54')
    A('v_and_b32 v26, 1, v0'); A('v_add_u32 v27, s56, v26'); A('v_lshlrev_b32 v27, 15, v27'); A('v_add_u32 v27, s59, v27')
    A('v_add_u32 v26, s55, v26'); A('v_lshlrev_b32 v26, 2, v26')
    A(f'ds_read_b32 v28, v26 offset:{L_Q}')
    A('s_lshl_b32 s60, 1, s54'); A('s_sub_u32 s60, s60, 1'); A('s_mov_b32 s61, 0')
    A('s_waitcnt lgkmcnt(0)')
    A('s_mov_b64 exec, s[60:61]')
    A('v_cmp_ne_u32 vcc, v28, v27')
    A('s_cbranch_vccnz L_sv_other')
    A(f'ds_write_b32 v26, v27 offset:{L_QV}')
    A('s_mov_b32 s56, -1')
    g.label('L_sv_other')
    A('s_mov_b64 exec, -1')
    A('s_branch L_sv_top')
    g.label('L_sv_done')
    A('s_lshl_b32 s55, s52, 2'); A('v_mov_b32 v26, s55'); A('v_mov_b32 v27, -2')
    A(f'ds_write_b32 v26, v27 offset:{L_QV}')
    A('v_mov_b32 v27, s52'); A(f'ds_write_b32 v17, v27 offset:{L_ND}')
    g.label('L_noschedv')
    def near_end(pref, lead_):
        A('v_mov_b32 v17, 0')
        A(f's_mov_b32 s70, {SPIN_MAX*16}')
        g.label(f'{pref}_wait')
        A(f'ds_read_b128 v[32:35], v17 offset:{L_PROGV}'); A(f'ds_read_b32 v36, v17 offset:{L_ND}')
        A('s_waitcnt lgkmcnt(0)')
        A('v_max3_u32 v32, v32, v33, v34'); A('v_max_u32 v32, v32, v35')
        A('v_readfirstlane_b32 s51, v36'); A('v_readfirstlane_b32 s50, v32')
        A('s_sub_u32 s70, s70, 1'); A('s_cmp_eq_u32 s70, 0'); A(f's_cbranch_scc1 {pref}_go')
        A('s_cmp_eq_u32 s51, 0'); A(f's_cbranch_scc1 {pref}_long')
        A(f's_add_u32 s50, s50, {lead_}'); A('s_cmp_ge_u32 s50, s51'); A(f's_cbranch_scc1 {pref}_go')
        A('s_sleep 2'); A(f's_branch {pref}_wait')
        g.label(f'{pref}_long')
        A('s_sleep 24'); A(f's_branch {pref}_wait')
        g.label(f'{pref}_go')
    if wl:
        near_end('L_wo', wl)
        srd(g, 8, 24, 4096*512*2)
        A('v_lshrrev_b32 v10, 3, v0'); A('v_lshlrev_b32 v10, 2, v10')
        A('s_lshl_b32 s50, s4, 7'); A('s_lshl_b32 s51, s6, 5'); A('s_add_u32 s50, s50, s51')
        A('v_add_u32 v10, s50, v10'); A('v_lshlrev_b32 v10, 10, v10')
        A('v_and_b32 v11, 7, v0'); A('v_lshl_add_u32 v10, v11, 4, v10')
        A('s_lshl_b32 s50, s5, 7')
        for j in range(0 if 'xwo' in exp else 4):
            A(f'buffer_load_dwordx4 v[{WO+4*j}:{WO+4*j+3}], v10, s[8:11], s50 offen offset:{1024*j} nt')
    if tw:
        A('s_cmp_lg_u32 s3, 5'); A('s_cbranch_scc1 L_notw')
        near_end('L_tw', tw)
        A('v_lshlrev_b32 v16, 16, v0')
        for k, (base, nb) in enumerate(((28, 512*1792*2), (30, 512*1792*2), (32, 1792*512*2))):
            srd(g, 8 + 4*(k % 2), base, nb)
            A(f'buffer_load_dword v{18+k}, v16, s[{8 + 4*(k%2)}:{11 + 4*(k%2)}], 0 offen nt')
        g.label('L_notw')
    A('s_cmp_lg_u32 s3, 7'); A('s_cbranch_scc1 L_noticket')
    A('v_mov_b32 v18, 1')
    near_end('L_tk', tlead)
    A('s_mov_b64 exec, 1')
    A('global_atomic_add v19, v17, v18, s[40:41] sc0 sc1')
    A('s_waitcnt vmcnt(0)')
    A(f'ds_write_b32 v17, v19 offset:{L_ROLE}')
    A('s_mov_b64 exec, -1')
    A('v_readfirstlane_b32 s57, v19')
    A('s_waitcnt lgkmcnt(0)')
    g.label('L_noticket')
    GA = list(range(192, 200)); SB = list(range(200, 208)); CB = list(range(208, 216)); XF = list(range(216, 224)); GBR = 224
    unpack(g, XF, X8)
    A('s_lshl_b32 s50, s4, 12'); A('s_add_u32 s50, s50, s7'); A(f's_add_u32 s50, s50, {WS_OP}')
    A('v_lshrrev_b32 v10, 3, v0'); A('v_lshlrev_b32 v13, 4, v10'); A('v_lshlrev_b32 v10, 9, v10'); A('v_and_b32 v11, 7, v0'); A('v_lshl_add_u32 v10, v11, 4, v10')
    A('v_add_u32 v10, s50, v10')
    A('v_add_u32 v15, s7, v48')
    A('v_add_u32 v9, s7, v13')
    A('v_lshrrev_b32 v14, 4, v0'); A('v_lshlrev_b32 v14, 3, v14'); A('v_lshl_add_u32 v14, v11, 5, v14')
    A('s_lshl_b32 s52, s6, 8'); A('v_add_u32 v14, s52, v14')
    A('v_and_b32 v8, 15, v0'); A('v_lshlrev_b32 v8, 4, v8'); A('v_lshrrev_b32 v7, 4, v0'); A('v_lshl_add_u32 v8, v7, 16, v8')
    A('s_lshl_b32 s51, s2, 8'); A(f's_add_u32 s51, s51, {WS_AP}'); A('v_add_u32 v8, s51, v8'); A('v_add_u32 v7, 0x40000, v8')
    A('v_and_b32 v5, 15, v0'); A('v_lshlrev_b32 v5, 4, v5')
    ACC = list(range(24, 32))
    for i in range(8): A(f'v_mov_b32 v{ACC[i]}, 0')
    A('s_barrier')
    if 'notail' in exp: A('s_branch L_end')
    g.stamp(10)
    A('v_mov_b32 v12, 0'); A(f'ds_read_b32 v50, v12 offset:{L_ROLE}')
    A('s_cmp_lg_u32 s3, 7'); A('s_cbranch_scc1 L_tk_end')
    A(f's_cmp_ge_u32 s57, {NMLP}'); A('s_cbranch_scc1 L_tk_end')
    A('v_lshlrev_b32 v228, 5, v0'); A(f'v_add_u32 v228, {WS_MOD + 4096}, v228'); A('v_add_u32 v229, 4096, v228')
    A('v_and_b32 v230, 15, v0'); A('v_lshlrev_b32 v231, 3, v230'); A('s_and_b32 s50, s57, 15'); A('s_lshl_b32 s50, s50, 7')
    A(f's_add_u32 s50, s50, {WS_MOD + 1280*8}'); A('v_add_u32 v231, s50, v231')
    A(f'v_add_u32 v51, {WS_XF}, v6')
    def lds_():
        A('global_load_dwordx4 v[144:147], v228, s[42:43] sc1'); A('global_load_dwordx4 v[148:151], v228, s[42:43] offset:16 sc1')
        A('global_load_dwordx4 v[152:155], v228, s[42:43] offset:2048 sc1'); A('global_load_dwordx4 v[156:159], v228, s[42:43] offset:2064 sc1')
        A('global_load_dwordx4 v[160:163], v229, s[42:43] sc1'); A('global_load_dwordx4 v[164:167], v229, s[42:43] offset:16 sc1')
        A('global_load_dwordx2 v[172:173], v231, s[42:43] sc1')
        for i in range(4): A(f'global_load_dword v{168+i}, v51, s[42:43] offset:{1024*i} sc1')
    poll(g, lds_, chk_tags(g, [173, 168, 169, 170, 171] + list(range(145, 168, 2)), TAG), sleep=8)
    for k in range(3):
        b = 144 + 8*k
        A(f'v_mov_b32 v{b+1}, v{b+2}'); A(f'v_mov_b32 v{b+2}, v{b+4}'); A(f'v_mov_b32 v{b+3}, v{b+6}')
        A(f'ds_write_b128 v6, v[{b}:{b+3}] offset:{L_MV + 1024*k}')
    A('v_lshlrev_b32 v230, 2, v230')
    A(f'ds_write_b32 v230, v172 offset:{L_MV + 3072}')
    A('v_mov_b32 v51, 1'); A('s_mov_b64 exec, 1'); A(f'ds_add_u32 v12, v51 offset:{L_CNT + 16}'); A('s_mov_b64 exec, -1')
    g.label('L_tk_end')
    poll(g, lambda: A('global_load_dwordx4 v[16:19], v10, s[42:43] sc1'), chk_sent(g, [16, 17, 18, 19], 20), sleep=opsl)
    g.stamp(11)
    reduce4_hi(g, [16, 17, 18, 19])
    rnd(g, 16, 16)
    A(f'ds_write_b32 v15, v16 offset:{L_OV}')
    A(f'ds_read_b128 v[16:19], v9 offset:{L_OV}')
    A('s_waitcnt lgkmcnt(0)')
    for j in range(4): A(f'v_lshrrev_b32 v{20+j}, 16, v{16+j}')
    for j in range(4): tile_mac(g, ACC, WO + 4*j, f'v{16+j}', f'v{20+j}')
    g.nop(1)
    swap_reduce8(g, ACC)
    row_allreduce(g, ACC[:2], rors=(8,))
    A(f'ds_write_b64 v14, v[{ACC[0]}:{ACC[1]}] offset:{L_AW}')
    last_arriver(g, 3, 'L_h_noap')
    A('s_mov_b64 exec, 0xffff')
    for w in range(4): A(f'ds_read_b128 v[{16+4*w}:{19+4*w}], v5 offset:{L_AW + 256*w}')
    A('s_waitcnt lgkmcnt(0)')
    sum4x4(g, 16)
    A('global_store_dwordx4 v8, v[16:19], s[42:43] sc1')
    A('s_mov_b64 exec, -1')
    g.stamp(12)
    g.label('L_h_noap')
    if 'xstage' in exp: A('s_branch L_end')
    A('v_readfirstlane_b32 s57, v50'); g.nop(1)
    A(f's_cmp_ge_u32 s57, {NMLP}'); A('s_cbranch_scc1 L_end')
    A('s_movk_i32 s50, 528'); A('v_mul_lo_u32 v10, v0, s50'); A('s_lshl_b32 s50, s6, 4'); A(f's_add_u32 s50, s50, {L_ST}'); A('v_add_u32 v10, s50, v10')
    A(f'v_add_u32 v11, {ST_SZ}, v10')
    A('s_lshl_b32 s50, s6, 13'); A(f's_add_u32 s50, s50, {L_DS}'); A('v_add_u32 v14, s50, v6')
    A('v_mov_b32 v12, 0')
    stage_wait('L_hst')
    for j in range(8):
        A(f'ds_read_b128 v[{WG+4*j}:{WG+4*j+3}], v10 offset:{64*j}'); A(f'ds_read_b128 v[{WU+4*j}:{WU+4*j+3}], v11 offset:{64*j}')
        A(f'ds_read_b128 v[{WD+4*j}:{WD+4*j+3}], v14 offset:{1024*j}')
        if j % 4 == 3: A('s_waitcnt lgkmcnt(0)')
    for k in range(3): A(f'ds_read_b128 v[{16+4*k}:{19+4*k}], v6 offset:{L_MV + 1024*k}')
    A('v_lshrrev_b32 v13, 3, v48'); A('v_lshlrev_b32 v13, 2, v13')
    A(f'ds_read_b32 v28, v13 offset:{L_MV + 3072}')
    A('s_waitcnt lgkmcnt(0)')
    unpack(g, GA, 16); unpack(g, SB, 20); unpack(g, CB, 24)
    for i in range(8): A(f'v_add_f32 v{CB[i]}, 1.0, v{CB[i]}')
    for i in range(8): rnd(g, CB[i], CB[i])
    A('v_and_b32 v13, 16, v0'); A('v_cmp_eq_u32 vcc, 0, v13')
    A('v_lshlrev_b32 v13, 16, v28'); A('v_and_b32 v14, 0xffff0000, v28')
    A(f'v_cndmask_b32 v{GBR}, v14, v13, vcc')
    g.role = 'X'; g.stamp(9); g.role = 'H'
    g.label('L_gather_ap')
    A('s_and_b32 s50, s3, 1'); A('s_lshl_b32 s50, s50, 10'); A('s_lshr_b32 s51, s3, 1'); A('s_lshl_b32 s52, s51, 14')
    A('s_add_u32 s52, s52, s50'); A(f's_add_u32 s52, s52, {WS_AP + 4096}')
    A('v_lshlrev_b32 v10, 4, v0'); A('v_add_u32 v11, s52, v10'); A('v_add_u32 v12, 8192, v11')
    A('s_lshl_b32 s51, s51, 11'); A('s_add_u32 s51, s51, s50'); A('v_add_u32 v13, s51, v10')
    multi_poll(g, 'L_ap', 8, lambda i: f'global_load_dwordx4 v[{16+4*i}:{19+4*i}], v{11 + i//4}, s[42:43] offset:{(i%4)*2048 - 4096} sc1', 16, 14,
               [(16*16, apsl), (8*16, apsl // 3), (apth*16, apsl // 8)])
    g.stamp(13)
    for st in (16, 8, 4):
        for i in range(0, st, 2): A(f'v_pk_add_f32 v[{16+i}:{17+i}], v[{16+i}:{17+i}], v[{16+i+st}:{17+i+st}]')
    A(f'ds_write_b128 v13, v[16:19] offset:{L_AS}')
    A('v_lshlrev_b32 v10, 5, v0')
    A('s_waitcnt lgkmcnt(0)')
    A('s_barrier')
    A('s_cmp_lt_u32 s3, 4'); A('s_cbranch_scc1 L_end')
    g.role = 'M'; g.stamp(1); g.role = 'H'
    for p in range(4):
        A(f'ds_read_b128 v[{16+8*p}:{19+8*p}], v10 offset:{L_AS + 2048*p}'); A(f'ds_read_b128 v[{20+8*p}:{23+8*p}], v10 offset:{L_AS + 2048*p + 16}')
    AG = list(range(232, 240)); AU = list(range(240, 248))
    for i in range(8): A(f'v_mov_b32 v{AG[i]}, 0'); A(f'v_mov_b32 v{AU[i]}, 0')
    A('s_waitcnt lgkmcnt(4)')
    for i in range(0, 8, 2): A(f'v_pk_add_f32 v[{16+i}:{17+i}], v[{16+i}:{17+i}], v[{24+i}:{25+i}]')
    A('s_waitcnt lgkmcnt(0)')
    for i in range(0, 8, 2): A(f'v_pk_add_f32 v[{32+i}:{33+i}], v[{32+i}:{33+i}], v[{40+i}:{41+i}]')
    for i in range(0, 8, 2): A(f'v_pk_add_f32 v[{16+i}:{17+i}], v[{16+i}:{17+i}], v[{32+i}:{33+i}]')
    X1 = list(range(16, 24))
    for i in range(8): rnd(g, X1[i], X1[i])
    for i in range(0, 8, 2): A(f'v_pk_mul_f32 v[{16+i}:{17+i}], v[{16+i}:{17+i}], v[{GA[i]}:{GA[i+1]}]')
    for i in range(8): rnd(g, X1[i], X1[i])
    for i in range(0, 8, 2): A(f'v_pk_add_f32 v[{16+i}:{17+i}], v[{16+i}:{17+i}], v[{XF[i]}:{XF[i+1]}]')
    for i in range(8): rnd(g, X1[i], X1[i])
    A(f'ds_write_b128 v10, v[16:19] offset:{L_XF}'); A(f'ds_write_b128 v10, v[20:23] offset:{L_XF + 16}')
    g.role = 'M'; g.stamp(2); g.role = 'H'
    ln_stats(g, X1, MEAN, SD, list(range(32, 40)))
    A(f'v_rcp_f32 v{RSD}, v{SD}'); g.nop(1)
    g.role = 'M'; g.stamp(3); g.role = 'H'
    modulate_n(g, [(24+i, X1[i], CB[i], SB[i], 32+i, 248+i) for i in range(8)], MEAN, SD, RSD)
    for j in range(8): A(f'v_lshrrev_b32 v{32+j}, 16, v{24+j}')
    g.role = 'M'; g.stamp(4); g.role = 'H'
    for j in range(8):
        tile_mac(g, AG, WG + 4*j, f'v{24+j}', f'v{32+j}')
        tile_mac(g, AU, WU + 4*j, f'v{24+j}', f'v{32+j}')
    AD = list(range(24, 32))
    A('v_lshlrev_b32 v10, 5, v0'); A('s_lshl_b32 s50, s6, 11'); A('v_add_u32 v10, s50, v10')
    g.role = 'M'; g.stamp(5); g.role = 'H'
    swap_reduce8(g, AG, AU)
    row_allreduce(g, AG[:2] + AU[:2])
    for r in AG[:2] + AU[:2]: rnd(g, r, r)
    A(f'v_mov_b32 v16, {hex(f2u(0.044715))}')
    for i in range(2): A(f'v_mul_f32 v{18+i}, v{AG[i]}, v{AG[i]}')
    for i in range(2): A(f'v_mul_f32 v{18+i}, v{18+i}, v{AG[i]}')
    for i in range(2): A(f'v_fma_f32 v{18+i}, v{18+i}, v16, v{AG[i]}')
    for i in range(2): A(f'v_mul_f32 v{18+i}, {hex(f2u(-2*0.7978845608028654*1.4426950408889634))}, v{18+i}')
    sigmoid_mul_n(g, [(20+i, AG[i], 18+i, 32+i, 34+i, 36+i) for i in range(2)])
    for i in range(2): rnd(g, 20+i, 20+i)
    for i in range(2): A(f'v_mul_f32 v{20+i}, v{20+i}, v{AU[i]}')
    for i in range(2): rnd(g, 20+i, 20+i)
    for i in range(8): A(f'v_mov_b32 v{AD[i]}, 0')
    g.role = 'M'; g.stamp(6); g.role = 'H'
    for j in range(8): A(f'v_readlane_b32 s{72+j}, v{20 + j%2}, {16*(j//2 % 2) + 32*(j//4)}')
    A('s_lshl_b32 s50, s6, 9'); A('v_add_u32 v11, s50, v6')
    for j in range(8): A(f's_lshr_b32 s{80+j}, s{72+j}, 16')
    for j in range(8): tile_mac(g, AD, WD + 4*j, f's{72+j}', f's{80+j}')
    A('s_lshl_b32 s51, s57, 11'); A(f's_add_u32 s51, s51, {WS_DP}'); A('v_add_u32 v12, s51, v11')
    g.role = 'M'; g.stamp(7); g.role = 'H'
    g.nop(1)
    A(f'ds_write_b128 v10, v[{AD[0]}:{AD[3]}] offset:{L_DW}'); A(f'ds_write_b128 v10, v[{AD[4]}:{AD[7]}] offset:{L_DW + 16}')
    A('s_waitcnt lgkmcnt(0)')
    A('s_barrier')
    g.role = 'M'; g.stamp(8); g.role = 'H'
    A('s_mov_b64 exec, 0xffffffff')
    for w in range(4): A(f'ds_read_b128 v[{16+4*w}:{19+4*w}], v11 offset:{L_DW + 2048*w}')
    A('s_waitcnt lgkmcnt(0)')
    sum4x4(g, 16)
    A('global_store_dwordx4 v12, v[16:19], s[42:43] sc1')
    A('s_mov_b64 exec, -1')
    g.stamp(14)
    A(f's_cmp_ge_u32 s57, {NFIN}'); A('s_cbranch_scc1 L_end')
    A('s_cmp_lg_u32 s3, 4'); A('s_cbranch_scc1 L_end')
    A('v_lshrrev_b32 v10, 3, v0'); A('v_lshlrev_b32 v10, 11, v10'); A('v_and_b32 v11, 7, v0'); A('v_lshl_add_u32 v10, v11, 4, v10')
    A('s_lshl_b32 s50, s57, 7'); A(f's_add_u32 s51, s50, {WS_DP}'); A('v_add_u32 v52, s51, v10')
    for i in range(1, 7): A(f'v_add_u32 v{52+i}, {16384*i}, v52')
    A('v_add_u32 v13, s50, v48')
    A(f'ds_read_b32 v15, v13 offset:{L_XF}')
    A('v_lshrrev_b32 v12, 1, v13')
    multi_poll(g, 'L_dp', 7, lambda i: f'global_load_dwordx4 v[{16+4*i}:{19+4*i}], v{52+i}, s[42:43] sc1', 16, 51, [])
    for i in (0, 2):
        A(f'v_pk_add_f32 v[{16+i}:{17+i}], v[{16+i}:{17+i}], v[{20+i}:{21+i}]'); A(f'v_pk_add_f32 v[{24+i}:{25+i}], v[{24+i}:{25+i}], v[{28+i}:{29+i}]')
        A(f'v_pk_add_f32 v[{32+i}:{33+i}], v[{32+i}:{33+i}], v[{36+i}:{37+i}]')
    for i in (0, 2):
        A(f'v_pk_add_f32 v[{16+i}:{17+i}], v[{16+i}:{17+i}], v[{24+i}:{25+i}]'); A(f'v_pk_add_f32 v[{32+i}:{33+i}], v[{32+i}:{33+i}], v[{40+i}:{41+i}]')
    for i in (0, 2): A(f'v_pk_add_f32 v[{16+i}:{17+i}], v[{16+i}:{17+i}], v[{32+i}:{33+i}]')
    g.nop(2)
    reduce4_hi(g, [16, 17, 18, 19])
    A('s_waitcnt lgkmcnt(0)')
    rnd(g, 16, 16); A(f'v_mul_f32 v16, v{GBR}, v16'); rnd(g, 16, 16); A('v_add_f32 v16, v15, v16')
    A('v_cvt_pk_bf16_f32 v16, v16, v16')
    A('s_mov_b32 exec_lo, 0x00ff00ff'); A('s_mov_b32 exec_hi, 0x00ff00ff')
    A('global_store_short v12, v16, s[38:39]')
    A('s_cmp_lg_u32 s57, 0'); A('s_cbranch_scc1 L_fin_noepoch')
    A('s_mov_b64 exec, 1'); A('v_mov_b32 v13, 0')
    A(f'global_store_dword v13, v{TAG}, s[42:43] sc1')
    g.label('L_fin_noepoch')
    A('s_mov_b64 exec, -1')
    g.stamp(15)
    g.label('L_end'); A('s_endpgm')
    for s in ['.section .rodata,"a"', '.p2align 6', f'.amdhsa_kernel {NAME}_kernel', '  .amdhsa_next_free_vgpr 256',
              '  .amdhsa_next_free_sgpr 102', '  .amdhsa_accum_offset 256', '  .amdhsa_group_segment_fixed_size 0',
              '  .amdhsa_kernarg_size 112', '  .amdhsa_user_sgpr_count 2', '  .amdhsa_user_sgpr_kernarg_segment_ptr 1',
              '  .amdhsa_system_sgpr_workgroup_id_x 1', '.end_amdhsa_kernel']: g.L.append(s)
    return '\n'.join(g.L) + '\n'

if __name__ == '__main__':
    import argparse
    ap = argparse.ArgumentParser()
    ap.add_argument('out'); ap.add_argument('--ts', action='store_true')
    ap.add_argument('--nsb', type=int, default=60); ap.add_argument('--exp', default='')
    ap.add_argument('--depth', type=int, default=6); ap.add_argument('--lead', type=int, default=3); ap.add_argument('--leadv', type=int, default=5)
    ap.add_argument('--header', default='')
    for k, d in (('opsl', 1), ('apth', 4), ('apsl', 8), ('psl', 2), ('sing', 24), ('mlsl', 8), ('tlead', 1), ('pace', 5), ('wl', 0), ('tw', 0), ('dm', 6), ('single', 2), ('nt2', 58), ('dm2', 8), ('lown', 5)): ap.add_argument('--' + k, type=int, default=d)
    a = ap.parse_args()
    hdr = ''
    if a.header:
        hdr = ''.join(l for l in open(a.header) if l.startswith(';') and '@launch' not in l)
    open(a.out, 'w').write(build(ts=a.ts, nsb=a.nsb, exp=a.exp, depth=a.depth, lead=a.lead, leadv=a.leadv, header=hdr, opsl=a.opsl, apth=a.apth, apsl=a.apsl, psl=a.psl, sing=a.sing, mlsl=a.mlsl, tlead=a.tlead, pace=a.pace, wl=a.wl, tw=a.tw, dm=a.dm, single=a.single, nt2=a.nt2, dm2=a.dm2, lown=a.lown))
```

```python
import sys, struct
NAME = 'adaLN_cond__mha_block_cached__glu_gated_geglu__decode'
def f2u(x): return struct.unpack('<I', struct.pack('<f', x))[0]

WS_MOD   = 0x1000
WS_ML    = 0x4000
WS_CNT   = 0x8000
WS_XF    = 0xA000
WS_OP    = 0x10000
WS_AP    = 0x30000
WS_DP    = 0x40000
WS_QX    = 0x60000
WS_TS    = 0xC0000
WS_SCG   = 0x200000
L_CNT  = 0x0000
L_KD   = 0x0040
L_PROG = 0x0060
L_PROGV = 0x0070
L_ND   = 0x0080
L_ROLE = 0x0084
L_TAG  = 0x0100
L_MODP = 0x0200
L_HV   = 0x0400
L_QP   = 0x0C00
L_OB   = 0x1400
L_OV   = 0x1C00
L_AW   = 0x1E00
L_MV   = 0x2200
L_Q    = 0x2F00
L_QV   = 0x3100
L_SC   = 0x3400
L_AS   = L_SC + 0x0000
L_DW   = L_SC + 0x2000
L_XF   = L_SC + 0x4000
L_DS   = L_SC + 0x8000
L_ST   = L_SC + 0x10000
ST_SZ  = 512*64 + 64*16
LDS_BYTES = L_ST + 2*ST_SZ
MAXROWS = 96
Q_DONE = 0xfffffffe
NMLP = 56
NFIN = 16
SPIN_MAX = 1 << 17
LOG2E = f2u(1.4426950408889634)
NS = 48


DOC = """
One persistent launch, workgroup b = (head b>>3, split b&7), one workgroup per CU.
Waves 0-3 stream the head's K rows and then its V rows (nt loads into a register ring, v_dot2c);
waves 4-7 do the small GEMVs, the softmax normalisation, the block scheduling and the MLP.
Softmax is exact two-pass: bf16-rounded scores stay in LDS, per-wave (max, sum) are exchanged between the
8 workgroups of a head, p = bf16(exp(s - max) / sum) is applied in the V pass.  All intermediate roundings
follow the bf16 reference.  The last blocks of every split can be claimed by its siblings (work counters).
Hand-offs between workgroups use sc1 stores/loads and are validated by a per-launch tag (derived from a word
the previous launch left in d_ws) or by slots that their owner cleared earlier in the same launch; every
wait is bounded.  Generated by a script written for this kernel.
"""

class G:
    def __init__(self, ts=False, tsmask=None):
        self.L = []; self.ts = ts; self.lbl = 0; self.tsmask = tsmask; self.role = 'S'; self.ldf = ' sc1'; self.stf = ' sc1'; self.w0only = False
    def A(self, s):
        if s.endswith(' sc1') and 'atomic' not in s:
            if 'load' in s: s = s[:-4] + self.ldf
            else: s = s[:-4] + self.stf
        self.L.append('  ' + s)
        if '_store_dwordx4' in s or '_store_dwordx3' in s: self.L.append('  s_nop 1')
    def label(self, s): self.L.append(s + ':')
    def newlabel(self, p='L'):
        self.lbl += 1; return f'{p}_{self.lbl}'
    def nop(self, n): self.A(f's_nop {n-1}')
    def stamp(self, slot, sreg=None):
        if not self.ts: return
        if self.tsmask is not None and (self.role, slot) not in self.tsmask: return
        if self.tsmask is None and self.role in 'MX': return
        A = self.A
        if self.w0only:
            A('s_cmp_lg_u32 s3, 0'); lb = self.newlabel('L_ns'); A(f's_cbranch_scc1 {lb}')
        if sreg is None:
            A('s_memrealtime s[96:97]'); A('s_waitcnt lgkmcnt(0)')
            A('v_mov_b32 v60, s96'); A('v_mov_b32 v61, s97')
        else:
            A(f'v_mov_b32 v60, {sreg}'); A('v_mov_b32 v61, 0')
        A('v_mov_b32 v62, s95')
        A('s_mov_b64 s[98:99], exec'); A('s_mov_b64 exec, 1')
        A(f'global_store_dwordx2 v62, v[60:61], s[42:43] offset:{slot*8}')
        A('s_mov_b64 exec, s[98:99]')
        if self.w0only: self.label(lb)

def rnd(g, d, s): g.A(f'v_cvt_pk_bf16_f32 v{d}, 0, v{s}')

def swap_reduce8(g, *sets):
    A = g.A
    g.nop(2)
    for r in sets:
        for i in range(4): A(f'v_permlane32_swap_b32 v{r[i]}, v{r[i+4]}')
    for r in sets:
        for i in range(4): A(f'v_add_f32 v{r[i]}, v{r[i]}, v{r[i+4]}')
    if len(sets) == 1: g.nop(1)
    for r in sets:
        for i in range(2): A(f'v_permlane16_swap_b32 v{r[i]}, v{r[i+2]}')
    for r in sets:
        for i in range(2): A(f'v_add_f32 v{r[i]}, v{r[i]}, v{r[i+2]}')

def row_allreduce(g, regs, op='add', rors=(8, 4, 2, 1)):
    for ro in rors:
        if len(regs) < 3: g.nop(3 - len(regs))
        for r in regs: g.A(f'v_{op}_f32_dpp v{r}, v{r}, v{r} row_ror:{ro} row_mask:0xf bank_mask:0xf')

def wave_allreduce(g, r, t, op='add'):
    A = g.A
    row_allreduce(g, [r], op)
    A(f'v_mov_b32 v{t}, v{r}'); g.nop(2)
    A(f'v_permlane16_swap_b32 v{r}, v{t}'); A(f'v_{op}_f32 v{r}, v{r}, v{t}')
    A(f'v_mov_b32 v{t}, v{r}'); g.nop(2)
    A(f'v_permlane32_swap_b32 v{r}, v{t}'); A(f'v_{op}_f32 v{r}, v{r}, v{t}')

def reduce4_hi(g, r):
    A = g.A
    A(f'v_permlane32_swap_b32 v{r[0]}, v{r[2]}'); A(f'v_permlane32_swap_b32 v{r[1]}, v{r[3]}')
    A(f'v_add_f32 v{r[0]}, v{r[0]}, v{r[2]}'); A(f'v_add_f32 v{r[1]}, v{r[1]}, v{r[3]}'); g.nop(2)
    A(f'v_permlane16_swap_b32 v{r[0]}, v{r[1]}'); A(f'v_add_f32 v{r[0]}, v{r[0]}, v{r[1]}'); g.nop(2)
    A(f'v_add_f32_dpp v{r[0]}, v{r[0]}, v{r[0]} row_ror:8 row_mask:0xf bank_mask:0xf')

def tile_mac(g, acc, data, pP, pL):
    for i in range(4):
        g.A(f'v_dot2c_f32_bf16 v{acc[2*i]}, {pL}, v{data+i}')
        g.A(f'v_dot2c_f32_bf16 v{acc[2*i+1]}, {pP}, v{data+i}')

def divide(g, q, a, b, t0, t1):
    A = g.A
    A(f'v_rcp_f32 v{t0}, v{b}'); g.nop(1)
    A(f'v_mul_f32 v{q}, v{a}, v{t0}')
    A(f'v_fma_f32 v{t1}, -v{q}, v{b}, v{a}')
    A(f'v_fma_f32 v{q}, v{t1}, v{t0}, v{q}')

def sigmoid_mul_n(g, items):
    A = g.A
    for d, x, arg, t0, t1, t2 in items: A(f'v_min_f32 v{t2}, 0x42fc0000, v{arg}')
    for d, x, arg, t0, t1, t2 in items: A(f'v_exp_f32 v{t2}, v{t2}')
    if len(items) == 1: g.nop(1)
    for d, x, arg, t0, t1, t2 in items: A(f'v_add_f32 v{t2}, 1.0, v{t2}')
    for d, x, arg, t0, t1, t2 in items: A(f'v_rcp_f32 v{t0}, v{t2}')
    if len(items) == 1: g.nop(1)
    for d, x, arg, t0, t1, t2 in items: A(f'v_mul_f32 v{d}, v{x}, v{t0}')
    for d, x, arg, t0, t1, t2 in items: A(f'v_fma_f32 v{t1}, -v{d}, v{t2}, v{x}')
    for d, x, arg, t0, t1, t2 in items: A(f'v_fma_f32 v{d}, v{t1}, v{t0}, v{d}')

def ln_stats(g, xs, mean_bf, sd, t):
    A = g.A
    A(f'v_pk_add_f32 v[{t[0]}:{t[1]}], v[{xs[0]}:{xs[1]}], v[{xs[2]}:{xs[3]}]')
    A(f'v_pk_add_f32 v[{t[2]}:{t[3]}], v[{xs[4]}:{xs[5]}], v[{xs[6]}:{xs[7]}]')
    A(f'v_pk_add_f32 v[{t[0]}:{t[1]}], v[{t[0]}:{t[1]}], v[{t[2]}:{t[3]}]')
    A(f'v_add_f32 v{t[0]}, v{t[0]}, v{t[1]}')
    wave_allreduce(g, t[0], t[1])
    A(f'v_mul_f32 v{t[0]}, 0x3b000000, v{t[0]}')
    rnd(g, mean_bf, t[0])
    for i in range(4): A(f'v_sub_f32 v{t[2+i]}, v{xs[i]}, v{t[0]}')
    A(f'v_mul_f32 v{t[6]}, v{t[2]}, v{t[2]}'); A(f'v_mul_f32 v{t[7]}, v{t[3]}, v{t[3]}')
    A(f'v_fmac_f32 v{t[6]}, v{t[4]}, v{t[4]}'); A(f'v_fmac_f32 v{t[7]}, v{t[5]}, v{t[5]}')
    for i in range(4): A(f'v_sub_f32 v{t[2+i]}, v{xs[4+i]}, v{t[0]}')
    A(f'v_fmac_f32 v{t[6]}, v{t[2]}, v{t[2]}'); A(f'v_fmac_f32 v{t[7]}, v{t[3]}, v{t[3]}')
    A(f'v_fmac_f32 v{t[6]}, v{t[4]}, v{t[4]}'); A(f'v_fmac_f32 v{t[7]}, v{t[5]}, v{t[5]}')
    A(f'v_add_f32 v{t[2]}, v{t[6]}, v{t[7]}')
    wave_allreduce(g, t[2], t[1])
    A(f'v_mul_f32 v{t[2]}, 0x3b000000, v{t[2]}')
    rnd(g, t[2], t[2])
    A(f'v_add_f32 v{t[2]}, {hex(f2u(1e-5))}, v{t[2]}')
    rnd(g, t[2], t[2])
    A(f'v_sqrt_f32 v{t[0]}, v{t[2]}'); g.nop(1)
    A(f'v_rcp_f32 v{t[1]}, v{t[0]}')
    A(f'v_fma_f32 v{t[3]}, -v{t[0]}, v{t[0]}, v{t[2]}')
    A(f'v_mul_f32 v{t[1]}, 0.5, v{t[1]}')
    A(f'v_fma_f32 v{t[0]}, v{t[3]}, v{t[1]}, v{t[0]}')
    rnd(g, sd, t[0])

def modulate_n(g, items, mean_bf, sd, rcp_sd):
    A = g.A
    for d, x, c, s, t0, t1 in items: A(f'v_sub_f32 v{t0}, v{x}, v{mean_bf}')
    for d, x, c, s, t0, t1 in items: rnd(g, t0, t0)
    for d, x, c, s, t0, t1 in items: A(f'v_mul_f32 v{d}, v{t0}, v{rcp_sd}')
    for d, x, c, s, t0, t1 in items: A(f'v_fma_f32 v{t1}, -v{d}, v{sd}, v{t0}')
    for d, x, c, s, t0, t1 in items: A(f'v_fma_f32 v{d}, v{t1}, v{rcp_sd}, v{d}')
    for d, x, c, s, t0, t1 in items: rnd(g, d, d)
    for d, x, c, s, t0, t1 in items: A(f'v_mul_f32 v{d}, v{d}, v{c}')
    for d, x, c, s, t0, t1 in items: rnd(g, d, d)
    for d, x, c, s, t0, t1 in items: A(f'v_add_f32 v{d}, v{d}, v{s}')
    for d, x, c, s, t0, t1 in items: rnd(g, d, d)

def unpack(g, dst, src, n=4):
    for i in range(n):
        g.A(f'v_lshlrev_b32 v{dst[2*i]}, 16, v{src+i}')
        g.A(f'v_and_b32 v{dst[2*i+1]}, 0xffff0000, v{src+i}')

def to_p(g, regs, M, IL, slog):
    A = g.A
    for r in regs: A(f'v_sub_f32 v{r}, v{r}, v{M}')
    for r in regs: A(f'v_mul_f32 v{r}, {slog}, v{r}')
    for r in regs: A(f'v_exp_f32 v{r}, v{r}')
    for r in regs: A(f'v_mul_f32 v{r}, v{r}, v{IL}')
    for r in regs: rnd(g, r, r)

def srd(g, d, base, nbytes):
    g.A(f's_mov_b32 s{d}, s{base}'); g.A(f's_mov_b32 s{d+1}, s{base+1}')
    g.A(f's_mov_b32 s{d+2}, {hex(nbytes)}'); g.A(f's_mov_b32 s{d+3}, 0x20000')

def poll(g, loads, check, sleep=1):
    A = g.A
    l = g.newlabel('L_poll'); done = g.newlabel('L_poll_done')
    A('s_mov_b64 s[68:69], exec'); A(f's_mov_b32 s70, {SPIN_MAX}')
    g.label(l)
    loads()
    A('s_waitcnt vmcnt(0)')
    check()
    A(f's_cbranch_vccz {done}')
    A('s_mov_b64 exec, vcc')
    A('s_sub_u32 s70, s70, 1'); A('s_cmp_eq_u32 s70, 0'); A(f's_cbranch_scc1 {done}')
    if sleep: A(f's_sleep {sleep}')
    A(f's_branch {l}')
    g.label(done)
    A('s_mov_b64 exec, s[68:69]')

def multi_poll(g, pref, n, load, base, t, ladder):
    A = g.A
    for i in range(n): A(f's_mov_b64 s[{72+2*i}:{73+2*i}], -1')
    A(f's_mov_b32 s70, {SPIN_MAX}')
    g.label(f'{pref}_poll')
    for i in range(n):
        lb = g.newlabel(f'{pref}_skip')
        A(f's_mov_b64 exec, s[{72+2*i}:{73+2*i}]'); A(f's_cbranch_execz {lb}')
        A(load(i))
        g.label(lb)
    A('s_mov_b32 s71, 0')
    A('s_waitcnt vmcnt(0)')
    for i in range(n):
        lb = g.newlabel(f'{pref}_skip')
        r = base + 4*i
        A(f's_mov_b64 exec, s[{72+2*i}:{73+2*i}]'); A(f's_cbranch_execz {lb}')
        A(f'v_max3_u32 v{t}, v{r}, v{r+1}, v{r+2}'); A(f'v_max_u32 v{t}, v{t}, v{r+3}')
        A(f'v_cmp_eq_u32 vcc, -1, v{t}')
        A(f's_mov_b64 s[{72+2*i}:{73+2*i}], vcc'); A('s_bcnt1_i32_b64 s50, vcc'); A('s_add_u32 s71, s71, s50')
        g.label(lb)
    A('s_cmp_eq_u32 s71, 0'); A(f's_cbranch_scc1 {pref}_done')
    A('s_sub_u32 s70, s70, 1'); A('s_cmp_eq_u32 s70, 0'); A(f's_cbranch_scc1 {pref}_done')
    for th, sl in reversed(ladder):
        A(f's_cmp_le_u32 s71, {th}'); A(f's_cbranch_scc1 {pref}_poll')
        if sl: A(f's_sleep {sl}')
    A(f's_branch {pref}_poll')
    g.label(f'{pref}_done')
    A('s_mov_b64 exec, -1')

def chk_tags(g, regs, tag):
    def f():
        g.A(f'v_cmp_ne_u32 vcc, v{regs[0]}, v{tag}')
        for r in regs[1:]:
            g.A(f'v_cmp_ne_u32 s[60:61], v{r}, v{tag}'); g.A('s_or_b64 vcc, vcc, s[60:61]')
    return f
def chk_sent(g, regs, t):
    def f():
        g.A(f'v_max3_u32 v{t}, v{regs[0]}, v{regs[1]}, v{regs[2]}')
        rest = regs[3:]
        while len(rest) >= 2:
            g.A(f'v_max3_u32 v{t}, v{t}, v{rest[0]}, v{rest[1]}'); rest = rest[2:]
        if rest: g.A(f'v_max_u32 v{t}, v{t}, v{rest[0]}')
        g.A(f'v_cmp_eq_u32 vcc, -1, v{t}')
    return f

def last_arriver(g, idx, skip):
    A = g.A
    A('v_mov_b32 v11, 1'); A('v_mov_b32 v12, 0')
    A('s_mov_b64 exec, 1')
    A(f'ds_add_rtn_u32 v13, v12, v11 offset:{L_CNT + 4*idx}')
    A('s_mov_b64 exec, -1')
    A('s_waitcnt lgkmcnt(0)')
    A('v_readfirstlane_b32 s50, v13')
    g.nop(1)
    A('s_cmp_lg_u32 s50, 3'); A(f's_cbranch_scc1 {skip}')

def sum4x4(g, r, sanitize=True):
    A = g.A
    for i in (0, 2):
        A(f'v_pk_add_f32 v[{r+i}:{r+i+1}], v[{r+i}:{r+i+1}], v[{r+4+i}:{r+5+i}]')
        A(f'v_pk_add_f32 v[{r+8+i}:{r+9+i}], v[{r+8+i}:{r+9+i}], v[{r+12+i}:{r+13+i}]')
    for i in (0, 2): A(f'v_pk_add_f32 v[{r+i}:{r+i+1}], v[{r+i}:{r+i+1}], v[{r+8+i}:{r+9+i}]')
    if sanitize:
        for i in range(4): A(f'v_min_u32 v{r+i}, -2, v{r+i}')

def build(ts=False, nsb=60, exp='', depth=6, lead=3, leadv=5, header='', opsl=1, apth=4, apsl=8, psl=2, sing=24, mlsl=8, tlead=1, pace=5, wl=0, tw=0, dm=6, single=2, nt2=58, dm2=8, lown=5, dmh=0, dk=0):
    tsmask = None
    if 'tailts' in exp: tsmask = {('S', 0), ('S', 6), ('S', 7), ('S', 9), ('S', 13), ('X', 9)} | {('H', i) for i in (10, 11, 12, 13, 14, 15)}
    if 'prog' in exp: tsmask = {('S', 0), ('S', 3), ('S', 5), ('S', 6)}
    if 'spin' in exp: tsmask = {('S', 0), ('S', 11), ('S', 12), ('S', 14), ('S', 15)}
    if 'mlpts' in exp: tsmask = {('S', 0), ('S', 6)} | {('H', i) for i in (13, 14, 15)} | {('M', i) for i in range(1, 10)}
    g = G(ts, tsmask); A = g.A
    g.w0only = 'prog' in exp
    if 'ld01' in exp: g.ldf = ' sc0 sc1'
    if 'st01' in exp: g.stf = ' sc0 sc1'
    if 'ldnt' in exp: g.ldf = ' sc1 nt'
    if 'stnt' in exp: g.stf = ' sc1 nt'
    NSB = nsb; NCL = 64 - NSB; D = depth
    g.L.append(header + f'; @launch grid=(256,1,1) block=(512,1,1) lds={LDS_BYTES}')
    for l in DOC.strip().split('\n'): g.L.append('; ' + l)
    g.L.append('.amdgcn_target "amdgcn-amd-amdhsa--gfx950"')
    g.L.append('.text'); g.L.append(f'.globl {NAME}_kernel'); g.L.append('.p2align 8')
    g.L.append(f'.type {NAME}_kernel,@function'); g.label(f'{NAME}_kernel')
    A('s_cmp_ge_u32 s2, 256'); A('s_cbranch_scc1 L_end')
    A('s_load_dwordx16 s[16:31], s[0:1], 0')
    A('s_load_dwordx8 s[32:39], s[0:1], 64')
    A('s_load_dwordx4 s[40:43], s[0:1], 96')
    A('v_lshrrev_b32 v1, 6, v0'); A('v_and_b32 v0, 63, v0')
    A('v_readfirstlane_b32 s3, v1')
    A('s_lshr_b32 s4, s2, 3'); A('s_and_b32 s5, s2, 7')
    A('s_lshr_b32 s50, s4, 1'); A('s_mul_i32 s51, s50, 3'); A('s_sub_u32 s52, s5, s51'); A('s_and_b32 s52, s52, 7')
    A('s_and_b32 s53, s4, 1')
    A('s_add_u32 s58, s51, s52'); A('s_lshl_b32 s58, s58, 1'); A('s_add_u32 s58, s58, s53'); A('s_cmp_lt_u32 s52, 3'); A('s_cselect_b32 s58, s58, 255')
    A('s_and_b32 s6, s3, 3')
    if ts:
        A('s_lshl_b32 s95, s2, 3'); A('s_add_u32 s95, s95, s3'); A('s_lshl_b32 s95, s95, 7'); A(f's_add_u32 s95, s95, {WS_TS}')
    A('s_cmp_ge_u32 s3, 4'); A('s_cbranch_scc1 L_helper')

    VOFF = 1; VL = 2; VL2 = 3; Q = 4
    AA = list(range(8, 16)); BB = list(range(16, 24)); T = list(range(24, 32)); PA = list(range(32, 40)); PB = list(range(40, 48))
    PL = 48; OM = 54; OL = 55; VQA = 56; VQ = 57; VPA = 58; VN = 59
    NB = NS // 8 - 1; NX = 8*NB
    def slot(i): return 64 + 4*i
    def pslot(t): return 8 + t if t < NX else t - NX
    A('s_lshl_b32 s44, s2, 21')
    A('s_lshl_b32 s53, s6, 10'); A('s_add_u32 s44, s44, s53'); A('s_mov_b32 s45, s44')
    A(f'v_lshlrev_b32 v{VOFF}, 4, v0')
    A('s_waitcnt lgkmcnt(0)')
    srd(g, 8, 18, 1 << 29); srd(g, 12, 20, 1 << 29)
    g.stamp(0)
    def ld(sl, sr):
        A(f'buffer_load_dwordx4 v[{slot(sl)}:{slot(sl)+3}], v{VOFF}, s[{sr}:{sr+3}], s44 offen nt')
        A('s_add_u32 s44, s44, 4096')
    def prefetch(sr, first, D):
        for t in range(first, NS):
            A(f's_waitcnt vmcnt({D-1})'); ld(pslot(t), sr)
    for t in range(D): ld(pslot(t), 8)
    A('s_barrier')
    A(f'v_lshrrev_b32 v{VL2}, 4, v0'); A(f'v_lshlrev_b32 v{VL2}, 5, v{VL2}')
    A('s_lshl_b32 s46, s6, 14'); A(f's_add_u32 s46, s46, {L_SC}'); A(f'v_add_u32 v{VL2}, s46, v{VL2}')
    A(f'v_bfe_u32 v{VL}, v0, 1, 3'); A(f'v_lshl_add_u32 v{VL}, v{VL}, 2, v{VL2}')
    A('s_mov_b32 s48, 0xcccccccc'); A('s_mov_b32 s49, 0xcccccccc')
    A(f's_mov_b32 s47, {hex(f2u(128 ** -0.5))}'); A(f's_mov_b32 s52, {hex(LOG2E)}')
    A(f'v_mov_b32 v{OM}, 0xff7fffff'); A(f'v_mov_b32 v{OL}, 0')
    A(f'v_mov_b32 v{VPA}, s6'); A(f'v_lshlrev_b32 v{VPA}, 2, v{VPA}')
    A(f'v_and_b32 v50, 15, v0'); A(f'v_lshlrev_b32 v50, 5, v50')
    A(f'v_mov_b32 v{VQA}, {L_Q + 4*(NB+2)}'); A(f'v_mov_b32 v{VN}, {NB+2}')
    A(f's_mov_b32 s70, {SPIN_MAX*64}')
    prefetch(8, D, D)
    g.stamp(1)
    if 'xb1' not in exp: A('s_barrier')
    g.stamp(2)
    A(f'ds_read_b128 v[8:11], v50 offset:{L_HV}'); A(f'ds_read_b128 v[12:15], v50 offset:{L_HV + 16}')
    A('s_waitcnt lgkmcnt(0)')
    for i in range(4): A(f'v_cvt_pk_bf16_f32 v{Q+i}, v{8+2*i}, v{9+2*i}')
    def kdot(a, sl):
        A(f'v_mov_b32 v{a}, 0')
        for i in range(4): A(f'v_dot2c_f32_bf16 v{a}, v{slot(sl)+i}, v{Q+i}')
    def kreduce(a, off=None):
        g.nop(3)
        for j in range(4):
            A(f'v_add_f32_dpp v{T[j]}, v{a[j]}, v{a[j]} row_ror:8 row_mask:0xf bank_mask:0x3')
            A(f'v_add_f32_dpp v{T[j]}, v{a[j+4]}, v{a[j+4]} row_ror:8 row_mask:0xf bank_mask:0xc')
        for j in range(2):
            A(f'v_add_f32_dpp v{T[4+j]}, v{T[j]}, v{T[j]} row_half_mirror row_mask:0xf bank_mask:0x5')
            A(f'v_add_f32_dpp v{T[4+j]}, v{T[j+2]}, v{T[j+2]} row_half_mirror row_mask:0xf bank_mask:0xa')
        g.nop(1)
        A(f'v_add_f32_dpp v{T[6]}, v{T[4]}, v{T[4]} quad_perm:[2,3,0,1] row_mask:0xf bank_mask:0xf')
        A(f'v_add_f32_dpp v{T[7]}, v{T[5]}, v{T[5]} quad_perm:[2,3,0,1] row_mask:0xf bank_mask:0xf')
        A(f'v_cndmask_b32 v{T[6]}, v{T[6]}, v{T[7]}, s[48:49]')
        g.nop(2)
        A(f'v_add_f32_dpp v{T[6]}, v{T[6]}, v{T[6]} quad_perm:[1,0,3,2] row_mask:0xf bank_mask:0xf')
        rnd(g, T[6], T[6]); A(f'v_mul_f32 v{T[6]}, s47, v{T[6]}'); rnd(g, T[6], T[6])
        A(f'ds_write_b32 v{VL}, v{T[6]}' + ('' if off is None else f' offset:{off}'))
        A(f'v_max_f32 v{T[0]}, v{OM}, v{T[6]}')
        A(f'v_sub_f32 v{T[1]}, v{OM}, v{T[0]}'); A(f'v_sub_f32 v{T[2]}, v{T[6]}, v{T[0]}')
        A(f'v_mul_f32 v{T[1]}, s52, v{T[1]}'); A(f'v_mul_f32 v{T[2]}, s52, v{T[2]}')
        A(f'v_exp_f32 v{T[1]}, v{T[1]}'); A(f'v_exp_f32 v{T[2]}, v{T[2]}')
        A(f'v_mov_b32 v{OM}, v{T[0]}')
        if off is None: A(f'v_add_u32 v{VL}, 128, v{VL}')
        else: g.nop(1)
        A(f'v_fma_f32 v{OL}, v{OL}, v{T[1]}, v{T[2]}')
    def qread(): A(f'ds_read_b32 v{VQ}, v{VQA}')
    def qtop(pref, prog):
        g.label(f'{pref}_top')
        A('s_waitcnt lgkmcnt(0)')
        A(f'v_readfirstlane_b32 s50, v{VQ}')
        g.nop(1)
        A(f's_cmp_ge_u32 s50, {hex(Q_DONE)}'); A(f's_cbranch_scc1 {pref}_slow')
        A('s_add_u32 s44, s50, s53')
        if ts and ('kprog' in exp and prog == L_PROG or 'vprog' in exp and prog == L_PROGV):
            A(f'v_readfirstlane_b32 s71, v{VN}'); g.nop(2)
            lb = g.newlabel('L_st')
            A('s_and_b32 s72, s71, 7'); A('s_cmp_lg_u32 s72, 0'); A(f's_cbranch_scc1 {lb}')
            A('s_cmp_lg_u32 s3, 0'); A(f's_cbranch_scc1 {lb}')
            A('s_memrealtime s[96:97]'); A('s_waitcnt lgkmcnt(0)')
            A('v_mov_b32 v60, s96'); A('v_mov_b32 v61, s97'); A('s_add_u32 s72, s95, s71'); A('s_add_u32 s72, s72, 128'); A('v_mov_b32 v62, s72')
            A('s_mov_b64 exec, 1'); A('global_store_dwordx2 v62, v[60:61], s[42:43]'); A('s_mov_b64 exec, -1')
            g.label(lb)
        A(f'v_add_u32 v{VQA}, 4, v{VQA}')
        A(f'ds_write_b32 v{VPA}, v{VN} offset:{prog}'); A(f'v_add_u32 v{VN}, 1, v{VN}')
    def qslow(pref):
        g.label(f'{pref}_slow')
        A(f's_cmp_eq_u32 s50, {hex(Q_DONE)}'); A(f's_cbranch_scc1 {pref}_last')
        A('s_sub_u32 s70, s70, 1'); A('s_cmp_eq_u32 s70, 0'); A(f's_cbranch_scc1 {pref}_last')
        A('s_sleep 1'); qread(); A(f's_branch {pref}_top')
        g.label(f'{pref}_last')
    for j in range(8):
        A(f's_waitcnt vmcnt({dm-1})')
        kdot(AA[j], j); ld(j, 8)
        for e in range(NB*j, NB*(j+1)):
            kdot(BB[e % 8], 8 + e)
            if e % 8 == 7: kreduce(BB, off=(e // 8)*128)
    qread(); A(f'v_add_u32 v{VL}, {NB*128}, v{VL}'); kreduce(AA)
    g.stamp(8)
    qtop('L_k', L_PROG)
    for j in range(8):
        A(f's_waitcnt vmcnt({(dk or dm)-1-(dmh*(j%2))})')
        kdot(AA[j], j); ld(j, 8)
        if j == 6: qread()
    kreduce(AA)
    A('s_branch L_k_top')
    qslow('L_k')
    A('s_mov_b32 s44, s45')
    for j in range(8):
        A(f's_waitcnt vmcnt({dm-1})')
        kdot(AA[j], j); ld(pslot(j), 12)
    kreduce(AA)
    A(f'v_mov_b32 v{T[0]}, v{OM}')
    wave_allreduce(g, T[0], T[1], 'max')
    A(f'v_sub_f32 v{T[2]}, v{OM}, v{T[0]}'); A(f'v_mul_f32 v{T[2]}, s52, v{T[2]}'); A(f'v_exp_f32 v{T[2]}, v{T[2]}')
    A(f'ds_read_b32 v{T[3]}, v{VPA} offset:{L_TAG}')
    A('s_lshl_b32 s50, s2, 6'); A('s_lshl_b32 s56, s6, 4'); A('s_add_u32 s50, s50, s56')
    A(f'v_mul_f32 v{T[2]}, v{T[2]}, v{OL}')
    wave_allreduce(g, T[2], T[1])
    A(f'v_mul_f32 v{T[2]}, 0.5, v{T[2]}')
    A(f's_add_u32 s50, s50, {WS_ML}'); A(f'v_mov_b32 v{T[4]}, s50')
    A('s_waitcnt lgkmcnt(0)')
    A(f'v_mov_b32 v{T[1]}, v{T[3]}')
    A(f'ds_write_b32 v{VPA}, v{VN} offset:{L_KD}')
    A('s_mov_b64 exec, 1')
    A(f'global_store_dwordx4 v{T[4]}, v[{T[0]}:{T[3]}], s[42:43] sc1')
    A('s_mov_b64 exec, -1')
    g.stamp(3)
    if 'spin' in exp:
        g.stamp(11, 's70'); A(f'v_readfirstlane_b32 s71, v{VN}'); g.nop(4); g.stamp(14, 's71')
    prefetch(12, 8, dm)
    ACC = AA
    for i in range(8): A(f'v_mov_b32 v{ACC[i]}, 0')
    A(f'v_mov_b32 v{VQA}, {L_QV + 4*(NB+2)}'); A(f'v_mov_b32 v{VN}, {NB+2}')
    g.stamp(4)
    if 'xb2' not in exp: A('s_barrier')
    g.stamp(5)
    def pread(P, off):
        A(f'ds_read_b128 v[{P[0]}:{P[3]}], v{VL2} offset:{off}'); A(f'ds_read_b128 v[{P[4]}:{P[7]}], v{VL2} offset:{off+16}')
    def vmac(sl, p):
        A(f'v_lshrrev_b32 v{PL}, 16, v{p}')
        tile_mac(g, ACC, slot(sl), f'v{p}', f'v{PL}')
    pread(PA, NB*128); pread(PB, 0)
    PC = BB
    for j in range(8):
        A(f's_waitcnt vmcnt({dm-1}) lgkmcnt(0)' if j == 0 else f's_waitcnt vmcnt({dm-1})')
        vmac(j, PA[j]); ld(j, 12)
        for e in range(NB*j, NB*(j+1)):
            cur, nxt = (PB, PC) if (e // 8) % 2 == 0 else (PC, PB)
            if e % 8 == 0:
                A('s_waitcnt lgkmcnt(0)')
                if e // 8 + 1 < NB: pread(nxt, (e // 8 + 1)*128)
            vmac(8 + e, cur[e % 8])
    A(f'v_add_u32 v{VL2}, {(NB+1)*128}, v{VL2}')
    qread(); pread(PA, 0)
    g.stamp(10)
    def vbody(d):
        for j in range(8):
            A(f's_waitcnt vmcnt({d-1-(dmh*(j%2) if d == dm else 0)})')
            vmac(j, PA[j]); ld(j, 12)
            if j == 6: qread()
        A(f'v_add_u32 v{VL2}, 128, v{VL2}')
        pread(PA, 0)
    A(f's_mov_b32 s71, {NB+2}')
    qtop('L_v', L_PROGV)
    if nt2:
        A('s_add_u32 s71, s71, 1'); A(f's_cmp_gt_u32 s71, {nt2}'); A('s_cbranch_scc1 L_w_body')
    vbody(dm)
    A('s_branch L_v_top')
    if nt2:
        qtop('L_w', L_PROGV)
        g.label('L_w_body')
        vbody(dm2)
        A('s_branch L_w_top')
        g.label('L_w_slow')
        A(f's_cmp_eq_u32 s50, {hex(Q_DONE)}'); A('s_cbranch_scc1 L_v_last')
        A('s_sub_u32 s70, s70, 1'); A('s_cmp_eq_u32 s70, 0'); A('s_cbranch_scc1 L_v_last')
        A('s_sleep 1'); qread(); A('s_branch L_w_top')
    qslow('L_v')
    A('v_lshrrev_b32 v51, 4, v0'); A('v_lshl_add_u32 v50, v51, 3, v50')
    A('s_lshl_b32 s46, s6, 9'); A('v_add_u32 v50, s46, v50')
    A('s_lshl_b32 s46, s2, 9'); A(f's_add_u32 s46, s46, {WS_OP}'); A(f'v_add_u32 v51, s46, v{VOFF}')
    for j in range(8):
        A(f's_waitcnt vmcnt({7-j})')
        vmac(j, PA[j])
    g.stamp(6)
    if 'spin' in exp:
        g.stamp(12, 's70'); A(f'v_readfirstlane_b32 s71, v{VN}'); g.nop(4); g.stamp(15, 's71')
    g.nop(1)
    swap_reduce8(g, ACC)
    A(f'ds_write_b64 v50, v[{ACC[0]}:{ACC[1]}] offset:{L_OB}')
    A('s_waitcnt lgkmcnt(0)')
    A('s_barrier')
    if 'notail' in exp: A('s_branch L_end')
    A('v_mov_b32 v52, 0'); A(f'ds_read_b32 v53, v52 offset:{L_ROLE}')
    A('s_cmp_lg_u32 s3, 0'); A('s_cbranch_scc1 L_s_after_pub')
    A('s_mov_b64 exec, 0xffffffff')
    for w in range(4): A(f'ds_read_b128 v[{8+4*w}:{11+4*w}], v{VOFF} offset:{L_OB + 512*w}')
    A('s_waitcnt lgkmcnt(0)')
    sum4x4(g, 8)
    A('global_store_dwordx4 v51, v[8:11], s[42:43] sc1')
    A('s_mov_b64 exec, -1')
    g.stamp(7)
    g.label('L_s_after_pub')
    if 'xstage' in exp: A('s_branch L_end')
    A('s_waitcnt lgkmcnt(0)'); A('v_readfirstlane_b32 s57, v53'); g.nop(1)
    A(f's_cmp_ge_u32 s57, {NMLP}'); A('s_cbranch_scc1 L_end')
    SW = 64
    srd(g, 8, 28, 512*1792*2); srd(g, 12, 30, 512*1792*2); srd(g, 64, 32, 1792*512*2)
    A('v_lshrrev_b32 v52, 2, v0'); A('s_lshl_b32 s50, s6, 7'); A('v_add_u32 v52, s50, v52')
    A('v_and_b32 v53, 3, v0'); A('v_lshlrev_b32 v53, 4, v53')
    A('s_movk_i32 s50, 3584'); A('v_mad_u32_u24 v54, v52, s50, v53')
    A('v_lshrrev_b32 v55, 3, v52'); A('v_lshl_add_u32 v53, v55, 4, v53'); A('v_lshl_add_u32 v52, v52, 6, v53'); A(f'v_add_u32 v52, {L_ST}, v52')
    A(f'v_add_u32 v53, {ST_SZ}, v52')
    A('s_lshl_b32 s50, s6, 13'); A(f's_add_u32 s50, s50, {L_DS}'); A(f'v_add_u32 v55, s50, v{VOFF}')
    A('v_mov_b32 v11, 1'); A('v_mov_b32 v12, 0')
    A('s_lshl_b32 s50, s57, 6')
    A('s_lshl_b32 s51, s57, 5'); A('s_lshl_b32 s52, s6, 3'); A('s_add_u32 s51, s51, s52'); A('s_lshl_b32 s51, s51, 10')
    ops = []
    for j in range(8):
        ops.append((f'buffer_load_dwordx4 v[{SW+8*j}:{SW+8*j+3}], v54, s[8:11], s50 offen nt', f'ds_write_b128 v52, v[{SW+8*j}:{SW+8*j+3}] offset:{1056*j}', None))
        ops.append((f'buffer_load_dwordx4 v[{SW+8*j+4}:{SW+8*j+7}], v54, s[12:15], s50 offen nt', f'ds_write_b128 v53, v[{SW+8*j+4}:{SW+8*j+7}] offset:{1056*j}', f's_add_u32 s50, s50, {3584*16}'))
    for j in range(8):
        ops.append((f'buffer_load_dwordx4 v[{SW+64+4*j}:{SW+67+4*j}], v{VOFF}, s[64:67], s51 offen offset:{1024*(j%4)} nt', f'ds_write_b128 v55, v[{SW+64+4*j}:{SW+67+4*j}] offset:{1024*j}', 's_add_u32 s51, s51, 4096' if j == 3 else None))
    n = len(ops); PD = min(pace, n)
    for i in range(n + PD):
        if i >= PD:
            A(f's_waitcnt vmcnt({min(PD - 1, n - 1 - (i - PD))})'); A(ops[i - PD][1])
            if (i - PD) % 8 == 7: A('s_waitcnt lgkmcnt(0)')
        if i < n:
            A(ops[i][0])
            if ops[i][2]: A(ops[i][2])
    A('s_mov_b64 exec, 1')
    A(f'ds_add_u32 v12, v11 offset:{L_CNT + 16}')
    A('s_mov_b64 exec, -1')
    def stage_wait(pref):
        A(f's_mov_b32 s70, {SPIN_MAX*16}')
        g.label(f'{pref}_spin')
        A(f'ds_read_b32 v13, v12 offset:{L_CNT + 16}')
        A('s_waitcnt lgkmcnt(0)')
        A('v_readfirstlane_b32 s50, v13')
        A('s_sub_u32 s70, s70, 1'); A('s_cmp_eq_u32 s70, 0'); A(f's_cbranch_scc1 {pref}_done')
        A('s_cmp_ge_u32 s50, 5'); A(f's_cbranch_scc1 {pref}_done')
        A('s_sleep 1'); A(f's_branch {pref}_spin')
        g.label(f'{pref}_done')
    g.stamp(9)
    stage_wait('L_sst')
    A('s_branch L_gather_ap')

    g.label('L_helper'); g.role = 'H'
    WQ = 64; WM = 192; CC = 52; X8 = 56; X4 = 46; TAG = 49; MEAN = 40; SD = 41; RSD = 42
    A('v_lshrrev_b32 v1, 2, v0'); A('v_and_b32 v2, 3, v0')
    A('s_lshl_b32 s7, s6, 7')
    A('v_add_u32 v3, s7, v1')
    A('v_lshlrev_b32 v4, 2, v0'); A('s_lshl_b32 s50, s6, 8'); A('v_add_u32 v4, s50, v4')
    A('s_movk_i32 s50, 6144'); A('v_mul_lo_u32 v5, v3, s50'); A('v_lshl_add_u32 v5, v2, 4, v5')
    A('v_lshlrev_b32 v6, 4, v0')
    A('s_lshl_b32 s50, s5, 6'); A('s_lshl_b32 s51, s6, 4'); A('s_add_u32 s50, s50, s51')
    A('v_lshrrev_b32 v7, 4, v0'); A('v_lshl_add_u32 v7, v7, 2, s50')
    A('v_lshlrev_b32 v10, 1, v7')
    A('v_lshlrev_b32 v9, 13, v7'); A('v_and_b32 v11, 15, v0'); A('v_lshl_add_u32 v9, v11, 4, v9')
    A('v_mov_b32 v8, 0')
    A('s_waitcnt lgkmcnt(0)')
    g.stamp(0)
    A(f'global_load_dword v{TAG}, v8, s[42:43]')
    A('s_cmp_ge_u32 s58, 96'); A('s_cbranch_scc1 L_h_noprod1')
    srd(g, 8, 36, 512*3072*2)
    A(f'global_load_dword v{CC}, v4, s[34:35]')
    A('s_lshl_b32 s50, s58, 6')
    for j in range(0 if 'xwm' in exp else 8):
        A(f'buffer_load_dwordx4 v[{WM+4*j}:{WM+4*j+3}], v5, s[8:11], s50 offen' + (' nt' if 'wdef' not in exp else ''))
        if j < 7: A(f's_add_u32 s50, s50, {6144*16}')
    g.label('L_h_noprod1')
    A('s_lshl_b32 s50, s5, 3'); A('s_add_u32 s50, s50, s3'); A('s_cmp_lg_u32 s50, 4'); A('s_cbranch_scc1 L_h_nocinit')
    A('v_bfe_u32 v11, v0, 3, 1'); A('v_lshlrev_b32 v11, 7, v11'); A('v_and_b32 v12, 7, v0'); A('v_lshl_add_u32 v11, v12, 2, v11')
    A(f's_lshl_b32 s50, s4, 8'); A(f's_add_u32 s50, s50, {WS_CNT}'); A('v_add_u32 v11, s50, v11')
    A('s_mov_b64 exec, 0xffff')
    A('global_store_dword v11, v8, s[42:43] sc1')
    A('s_mov_b64 exec, -1')
    g.label('L_h_nocinit')
    A(f'global_load_dwordx4 v[{X8}:{X8+3}], v6, s[16:17]')
    A(f'global_load_dwordx2 v[{X4}:{X4+1}], v10, s[16:17]')
    srd(g, 12, 22, 512*4096*2)
    A('s_lshl_b32 s50, s4, 8')
    for j in range(0 if 'xwq' in exp else 4):
        A(f'buffer_load_dwordx4 v[{WQ+4*j}:{WQ+4*j+3}], v9, s[12:15], s50 offen nt')
        if j < 3: A('s_add_u32 s50, s50, 8192')
    A('s_cmp_lg_u32 s3, 4'); A('s_cbranch_scc1 L_h_nozero')
    A('v_lshlrev_b32 v10, 2, v0')
    A(f'ds_write_b32 v10, v8 offset:{L_CNT}')
    A('s_lshl_b32 s50, s2, 21')
    A('v_lshlrev_b32 v11, 15, v0'); A('v_add_u32 v11, s50, v11'); A('v_mov_b32 v12, -1')
    A(f'v_cmp_gt_u32 vcc, {NSB}, v0'); g.nop(2); A('v_cndmask_b32 v11, v12, v11, vcc')
    for q in (L_Q, L_QV):
        A(f'ds_write_b32 v10, v11 offset:{q}'); A(f'ds_write_b32 v10, v12 offset:{q + 256}')
    A('s_waitcnt lgkmcnt(0)')
    g.label('L_h_nozero')
    A('s_barrier')
    A('s_cmp_ge_u32 s58, 96'); A('s_cbranch_scc1 L_h_w1')
    A('s_waitcnt vmcnt(14)'); A('s_branch L_h_w2')
    g.label('L_h_w1')
    A('s_waitcnt vmcnt(4)')
    g.label('L_h_w2')
    A('s_mov_b32 s50, 0x9e3779b1')
    A(f'v_mul_lo_u32 v{TAG}, v{TAG}, s50'); A(f'v_add_u32 v{TAG}, 0x7f4a7c15, v{TAG}')
    A('v_mov_b32 v10, s6'); A('v_lshlrev_b32 v10, 2, v10'); A(f'ds_write_b32 v10, v{TAG} offset:{L_TAG}')
    g.stamp(1)
    A('s_cmp_ge_u32 s58, 96'); A('s_cbranch_scc1 L_h_noprod2')
    CV = list(range(16, 24)); ACC = list(range(24, 32))
    unpack(g, [32, 33], CC, 1)
    for i in range(2): A(f'v_mul_f32 v{80+i}, {hex(f2u(-1.4426950408889634))}, v{32+i}')
    sigmoid_mul_n(g, [(88+i, 32+i, 80+i, 96+i, 104+i, 112+i) for i in range(2)])
    for i in range(2): rnd(g, 88+i, 88+i)
    A('v_and_b32 v10, 7, v0'); A('v_lshlrev_b32 v10, 6, v10'); A('v_lshrrev_b32 v11, 3, v0'); A('v_lshl_add_u32 v10, v11, 2, v10')
    A('s_lshl_b32 s50, s6, 9'); A('v_add_u32 v10, s50, v10')
    A(f'ds_write_b32 v10, v88 offset:{L_QP}'); A(f'ds_write_b32 v10, v89 offset:{L_QP + 32}')
    A('v_lshl_add_u32 v10, v1, 5, s50')
    A(f'ds_read_b128 v[16:19], v10 offset:{L_QP}'); A(f'ds_read_b128 v[20:23], v10 offset:{L_QP + 16}')
    A('s_waitcnt vmcnt(0) lgkmcnt(0)' if 'xwq' in exp else 's_waitcnt vmcnt(6) lgkmcnt(0)')
    for i in range(8): A(f'v_mov_b32 v{ACC[i]}, 0'); A(f'v_lshrrev_b32 v{80+i}, 16, v{CV[i]}')
    for j in range(8): tile_mac(g, ACC, WM + 4*j, f'v{CV[j]}', f'v{80+j}')
    A('v_lshrrev_b32 v10, 4, v0'); A('v_lshlrev_b32 v10, 3, v10'); A('v_lshl_add_u32 v10, v2, 5, v10')
    A('v_add_u32 v10, s7, v10')
    swap_reduce8(g, ACC)
    row_allreduce(g, ACC[:2], rors=(8, 4))
    A(f'ds_write_b64 v10, v[{ACC[0]}:{ACC[1]}] offset:{L_MODP}')
    last_arriver(g, 0, 'L_h_noprod2')
    A('v_and_b32 v11, 7, v0'); A('v_lshlrev_b32 v11, 4, v11')
    for w in range(4): A(f'ds_read_b128 v[{16+4*w}:{19+4*w}], v11 offset:{L_MODP + 128*w}')
    A('s_lshl_b32 s50, s58, 7'); A(f's_add_u32 s50, s50, {WS_MOD}'); A('v_add_u32 v10, s50, v11')
    A('s_mov_b64 exec, 0xff')
    A('s_waitcnt lgkmcnt(0)')
    sum4x4(g, 16, False)
    A('v_cvt_pk_bf16_f32 v16, v16, v17'); A('v_cvt_pk_bf16_f32 v18, v18, v19'); A(f'v_mov_b32 v17, v{TAG}'); A(f'v_mov_b32 v19, v{TAG}')
    A('global_store_dwordx4 v10, v[16:19], s[42:43] sc1')
    A('s_mov_b64 exec, -1')
    g.stamp(2)
    g.label('L_h_noprod2')
    A('s_waitcnt vmcnt(4)')
    XS = list(range(16, 24))
    unpack(g, XS, X8)
    ln_stats(g, XS, MEAN, SD, list(range(32, 40)))
    A(f'v_rcp_f32 v{RSD}, v{SD}')
    A(f's_mov_b32 s50, {WS_MOD}')
    A('v_lshlrev_b32 v10, 2, v7'); A('v_add_u32 v10, s50, v10')
    unpack(g, [16, 17, 18, 19], X4, 2)
    def lds_():
        A('global_load_dwordx4 v[24:27], v10, s[42:43] sc1'); A('global_load_dwordx4 v[28:31], v10, s[42:43] offset:2048 sc1')
    poll(g, lds_, chk_tags(g, [25, 27, 29, 31], TAG), sleep=psl)
    g.stamp(3)
    for k, src in enumerate((24, 26)):
        A(f'v_lshlrev_b32 v{20+2*k}, 16, v{src}'); A(f'v_and_b32 v{21+2*k}, 0xffff0000, v{src}')
    for k, src in enumerate((28, 30)):
        A(f'v_lshlrev_b32 v{32+2*k}, 16, v{src}'); A(f'v_and_b32 v{33+2*k}, 0xffff0000, v{src}')
    for i in range(4): A(f'v_add_f32 v{32+i}, 1.0, v{32+i}')
    for i in range(4): rnd(g, 32+i, 32+i)
    modulate_n(g, [(36+i, 16+i, 32+i, 20+i, 80+i, 84+i) for i in range(4)], MEAN, SD, RSD)
    ACC = list(range(24, 32))
    for i in range(8): A(f'v_mov_b32 v{ACC[i]}, 0')
    for j in range(4): A(f'v_lshrrev_b32 v{80+j}, 16, v{36+j}')
    for j in range(4): tile_mac(g, ACC, WQ + 4*j, f'v{36+j}', f'v{80+j}')
    A('v_and_b32 v10, 15, v0'); A('v_lshlrev_b32 v10, 5, v10'); A('v_lshrrev_b32 v11, 4, v0'); A('v_lshl_add_u32 v10, v11, 3, v10')
    A('s_lshl_b32 s50, s6, 9'); A('v_add_u32 v10, s50, v10')
    swap_reduce8(g, ACC)
    A(f'ds_write_b64 v10, v[{ACC[0]}:{ACC[1]}] offset:{L_QP}')
    A('v_lshlrev_b32 v10, 3, v0')
    last_arriver(g, 1, 'L_h_noqpub')
    for w in range(4): A(f'ds_read_b64 v[{16+2*w}:{17+2*w}], v10 offset:{L_QP + 512*w}')
    A('s_lshl_b32 s50, s2, 10'); A(f's_add_u32 s50, s50, {WS_QX}'); A('v_add_u32 v10, s50, v6')
    A('s_waitcnt lgkmcnt(0)')
    A('v_pk_add_f32 v[16:17], v[16:17], v[18:19]'); A('v_pk_add_f32 v[20:21], v[20:21], v[22:23]'); A('v_pk_add_f32 v[16:17], v[16:17], v[20:21]')
    A(f'v_mov_b32 v19, v{TAG}'); A('v_mov_b32 v18, v17'); A(f'v_mov_b32 v17, v{TAG}')
    A('global_store_dwordx4 v10, v[16:19], s[42:43] sc1')
    g.label('L_h_noqpub')
    A('s_lshl_b32 s50, s4, 13'); A('s_lshl_b32 s51, s6, 8'); A('s_add_u32 s50, s50, s51'); A(f's_add_u32 s50, s50, {WS_QX}')
    A('v_lshrrev_b32 v10, 3, v0'); A('v_lshlrev_b32 v10, 10, v10'); A('v_and_b32 v11, 7, v0'); A('v_lshl_add_u32 v10, v11, 5, v10')
    A('v_add_u32 v10, s50, v10')
    A('v_lshlrev_b32 v48, 4, v11'); A('v_bfe_u32 v13, v0, 5, 1'); A('v_lshl_add_u32 v48, v13, 3, v48')
    A('v_bfe_u32 v13, v0, 4, 1'); A('v_lshl_add_u32 v48, v13, 2, v48'); A('v_add_u32 v12, s7, v48')
    def lds_():
        A('global_load_dwordx4 v[24:27], v10, s[42:43] sc1'); A('global_load_dwordx4 v[28:31], v10, s[42:43] offset:16 sc1')
    poll(g, lds_, chk_tags(g, [25, 27, 29, 31], TAG), sleep=psl)
    reduce4_hi(g, [24, 26, 28, 30])
    A(f'ds_write_b32 v12, v24 offset:{L_HV}')
    A('s_waitcnt lgkmcnt(0)')
    g.stamp(4)
    if 'xb1' not in exp: A('s_barrier')
    if 'xclr' in exp: A('s_branch L_h_noclear')
    A('s_cmp_lg_u32 s3, 7'); A('s_cbranch_scc1 L_h_noclear')
    for i in range(4): A(f'v_mov_b32 v{16+i}, -1')
    A('s_lshl_b32 s51, s2, 9'); A(f's_add_u32 s51, s51, {WS_OP}'); A('v_add_u32 v10, s51, v6')
    A('v_and_b32 v11, 15, v0'); A('v_lshlrev_b32 v11, 4, v11'); A('v_lshrrev_b32 v12, 4, v0'); A('v_lshl_add_u32 v11, v12, 16, v11')
    A('s_lshl_b32 s51, s2, 8'); A(f's_add_u32 s51, s51, {WS_AP}'); A('v_add_u32 v11, s51, v11'); A('v_add_u32 v12, 0x40000, v11')
    A('s_mov_b64 exec, 0xffffffff')
    A('global_store_dwordx4 v10, v[16:19], s[42:43] sc1')
    A('s_mov_b64 exec, 0xffff')
    A('global_store_dwordx4 v11, v[16:19], s[42:43] sc1')
    A('s_mov_b64 exec, -1')
    A(f's_cmp_ge_u32 s2, {NMLP}'); A('s_cbranch_scc1 L_h_noclear')
    A('s_lshl_b32 s51, s2, 11'); A(f's_add_u32 s51, s51, {WS_DP}'); A('v_add_u32 v10, s51, v6')
    A('global_store_dwordx4 v10, v[16:19], s[42:43] sc1')
    A('global_store_dwordx4 v10, v[16:19], s[42:43] offset:1024 sc1')
    g.label('L_h_noclear')
    WO = 64; WG = 80; WU = 112; WD = 144; E = 192
    if not wl:
        srd(g, 8, 24, 4096*512*2)
        A('v_lshrrev_b32 v10, 3, v0'); A('v_lshlrev_b32 v10, 2, v10')
        A('s_lshl_b32 s50, s4, 7'); A('s_lshl_b32 s51, s6, 5'); A('s_add_u32 s50, s50, s51')
        A('v_add_u32 v10, s50, v10'); A('v_lshlrev_b32 v10, 10, v10')
        A('v_and_b32 v11, 7, v0'); A('v_lshl_add_u32 v10, v11, 4, v10')
        A('s_lshl_b32 s50, s5, 7')
        for j in range(0 if 'xwo' in exp else 4):
            A(f'buffer_load_dwordx4 v[{WO+4*j}:{WO+4*j+3}], v10, s[8:11], s50 offen offset:{1024*j} nt')
    A('s_waitcnt vmcnt(0) lgkmcnt(0)')
    g.stamp(5)
    A('v_mov_b32 v12, s6'); A('v_lshlrev_b32 v12, 2, v12')
    A('s_lshl_b32 s59, s4, 24')
    A('v_mov_b32 v17, 0')
    def read_prog(off, dst):
        A(f'ds_read_b128 v[20:23], v17 offset:{off}')
        A('s_waitcnt lgkmcnt(0)')
        A('v_max3_u32 v20, v20, v21, v22'); A('v_max_u32 v20, v20, v23'); g.nop(1)
        A(f'v_readfirstlane_b32 {dst}, v20')
    A('s_cmp_lg_u32 s3, 4'); A('s_cbranch_scc1 L_nosched')
    def claim_setup(off):
        A(f's_lshl_b32 s50, s4, 8'); A(f's_add_u32 s50, s50, {WS_CNT + off}'); A('v_lshl_add_u32 v16, v0, 2, s50')
        A('s_mov_b32 s66, s5'); A('s_mov_b32 s67, 0'); A(f's_mov_b32 s88, {2 if NCL > single else 1}'); A('s_mov_b32 s90, 0')
    def claim_issue():
        l1 = g.newlabel('L_ci'); l2 = g.newlabel('L_ci')
        A('s_cmp_lg_u32 s90, 0'); A(f's_cbranch_scc1 {l1}')
        A('v_mov_b32 v18, s88')
        A('s_lshl_b32 s60, 1, s66'); A('s_mov_b32 s61, 0'); A('s_mov_b64 exec, s[60:61]')
        A('global_atomic_add v19, v16, v18, s[42:43] sc0 sc1')
        A(f's_branch {l2}')
        g.label(l1)
        A('s_mov_b64 exec, 0xff')
        A('global_load_dword v15, v16, s[42:43] sc1')
        g.label(l2)
        A('s_mov_b64 exec, -1')
    def claim_result(dst, ok, retry, done):
        A('s_cmp_lg_u32 s90, 0'); A(f's_cbranch_scc1 {ok}_snap')
        A(f'v_readlane_b32 {dst}, v19, s66')
        A('s_lshl_b32 s61, 1, s66')
        A(f's_cmp_lt_u32 {dst}, {NCL}'); A(f's_cbranch_scc0 {ok}_miss')
        A(f's_sub_u32 s54, {NCL}, {dst}'); A('s_min_u32 s54, s54, s88')
        A(f's_add_u32 s60, {dst}, s54'); A(f's_cmp_lt_u32 s60, {max(NCL - single, 0)}'); A('s_cselect_b32 s88, s88, 1')
        A('s_cmp_lg_u32 s66, s5'); A('s_cselect_b32 s90, 1, 0')
        A(f's_cmp_ge_u32 s60, {NCL}'); A('s_cselect_b32 s90, 1, s90'); A('s_cselect_b32 s61, s61, 0'); A('s_or_b32 s67, s67, s61')
        A('s_lshl_b32 s60, s66, 6'); A(f's_add_u32 {dst}, {dst}, s60'); A(f's_add_u32 {dst}, {dst}, {NSB}')
        A(f's_branch {ok}')
        g.label(f'{ok}_miss')
        A('s_or_b32 s67, s67, s61'); A('s_mov_b32 s88, 1'); A('s_mov_b32 s90, 1')
        A(f's_branch {retry}')
        g.label(f'{ok}_snap')
        A(f'v_cmp_gt_u32 vcc, {NCL}, v15')
        A('s_mov_b32 s90, 0'); A('s_mov_b32 s88, 1')
        A('s_andn2_b32 s60, vcc_lo, s67'); A('s_and_b32 s60, s60, 0xff'); A(f's_cbranch_scc0 {done}')
        A('s_lshl_b32 s61, s60, 8'); A('s_or_b32 s60, s60, s61'); A('s_lshr_b32 s60, s60, s5'); A('s_ff1_i32_b32 s60, s60')
        A('s_add_u32 s66, s60, s5'); A('s_and_b32 s66, s66, 7')
        A(f's_branch {retry}')
    claim_setup(0)
    A(f's_mov_b32 s52, {NSB}')
    A(f's_mov_b32 s70, {SPIN_MAX*16}')
    g.label('L_sch_wait')
    read_prog(L_PROG, 's50')
    A('s_sub_u32 s70, s70, 1'); A('s_cmp_eq_u32 s70, 0'); A('s_cbranch_scc1 L_sch_done')
    A('s_cmp_eq_u32 s67, 0'); A(f's_cselect_b32 s55, {lown}, {lead}'); A('s_add_u32 s50, s50, s55')
    A('s_cmp_ge_u32 s50, s52'); A('s_cbranch_scc1 L_sch_claim')
    A('s_sub_u32 s50, s52, s50'); A('s_cmp_gt_u32 s50, 4'); A('s_cbranch_scc1 L_sch_long')
    A('s_sleep 2'); A('s_branch L_sch_wait')
    g.label('L_sch_long')
    A('s_sleep 32'); A('s_branch L_sch_wait')
    g.label('L_sch_claim')
    A(f's_cmp_ge_u32 s52, {MAXROWS - 2}'); A('s_cbranch_scc1 L_sch_done')
    claim_issue()
    A('s_lshl_b32 s55, s52, 2'); A('v_mov_b32 v21, s55')
    A('s_waitcnt vmcnt(0)')
    claim_result('s53', 'L_sch_put', 'L_sch_claim', 'L_sch_done')
    g.label('L_sch_put')
    A('s_lshl_b32 s55, s53, 15'); A('s_add_u32 s55, s55, s59'); A('v_mov_b32 v20, s55')
    A(f'ds_write_b32 v21, v20 offset:{L_Q}')
    A('v_add_u32 v21, 4, v21'); A('s_add_u32 s52, s52, 1'); A('s_add_u32 s53, s53, 1')
    A('s_sub_u32 s54, s54, 1'); A('s_cmp_lg_u32 s54, 0'); A('s_cbranch_scc1 L_sch_put')
    A('s_branch L_sch_wait')
    g.label('L_sch_done')
    A('s_lshl_b32 s55, s52, 2'); A('v_mov_b32 v21, s55'); A('v_mov_b32 v20, -2')
    A(f'ds_write_b32 v21, v20 offset:{L_Q}')
    g.label('L_nosched')
    A('s_lshl_b32 s50, s4, 9'); A(f's_add_u32 s50, s50, {WS_ML}')
    A('v_and_b32 v11, 31, v0'); A('v_lshlrev_b32 v11, 4, v11'); A('v_add_u32 v11, s50, v11')
    A('s_lshl_b32 s50, s6, 14'); A(f's_add_u32 s50, s50, {L_SC}'); A('v_add_u32 v10, s50, v6')
    A(f's_mov_b32 s51, {hex(LOG2E)}')
    A(f's_mov_b32 s70, {SPIN_MAX*16}')
    g.label('L_kd_spin')
    A(f'ds_read_b32 v13, v12 offset:{L_KD}')
    A('s_waitcnt lgkmcnt(0)')
    A('v_readfirstlane_b32 s52, v13')
    A('s_sub_u32 s70, s70, 1'); A('s_cmp_eq_u32 s70, 0'); A('s_cbranch_scc1 L_kd_done')
    A('s_cmp_lg_u32 s52, 0'); A('s_cbranch_scc1 L_kd_done')
    A('s_sleep 8'); A('s_branch L_kd_spin')
    g.label('L_kd_done')
    g.stamp(6)
    NP = MAXROWS // 8
    for i in range(NP): A(f'ds_read_b128 v[{E+4*i}:{E+4*i+3}], v10 offset:{1024*i}')
    poll(g, lambda: A('global_load_dwordx4 v[28:31], v11, s[42:43] sc1'), chk_tags(g, [29, 31], TAG), sleep=mlsl)
    g.stamp(8)
    M = 22; IL = 23
    A('v_mov_b32 v22, v28')
    row_allreduce(g, [22], 'max')
    A('v_mov_b32 v23, v22'); g.nop(2); A('v_permlane16_swap_b32 v22, v23'); A('v_max_f32 v22, v22, v23')
    A('v_sub_f32 v20, v28, v22'); A('v_mul_f32 v20, s51, v20'); A('v_exp_f32 v20, v20'); g.nop(1)
    A('v_mul_f32 v20, v20, v30')
    row_allreduce(g, [20])
    A('v_mov_b32 v23, v20'); g.nop(2); A('v_permlane16_swap_b32 v20, v23'); A('v_add_f32 v20, v20, v23')
    A('v_mov_b32 v16, 1.0')
    divide(g, 23, 16, 20, 21, 24)
    A('s_waitcnt lgkmcnt(0)')
    for pc in range(NSB // 8):
        to_p(g, list(range(E + 4*pc, E + 4*pc + 4)), M, IL, 's51')
        A(f'ds_write_b128 v10, v[{E+4*pc}:{E+4*pc+3}] offset:{1024*pc}')
    if NSB % 8:
        pc = NSB // 8
        for i in range(4): A(f'v_mov_b32 v{32+i}, v{E+4*pc+i}')
        to_p(g, [32, 33, 34, 35], M, IL, 's51')
        A(f's_mov_b64 exec, {hex((1 << (8*(NSB % 8))) - 1)}' if NSB % 8 <= 4 and (1 << (8*(NSB % 8))) - 1 < (1 << 32) else f's_mov_b32 exec_hi, {hex((1 << (8*(NSB % 8) - 32)) - 1)}')
        A(f'ds_write_b128 v10, v[32:35] offset:{1024*pc}')
        A('s_mov_b64 exec, -1')
    A('s_waitcnt lgkmcnt(0)')
    g.stamp(9)
    if 'xb2' not in exp: A('s_barrier')
    A('v_lshrrev_b32 v11, 3, v0'); A('v_lshlrev_b32 v11, 2, v11')
    for pc in range(NSB // 8, NP): A(f'ds_read_b32 v{24 + pc - NSB//8}, v11 offset:{L_Q + 32*pc}')
    A('s_lshl_b32 s53, s4, 17'); A(f's_add_u32 s53, s53, {WS_SCG}')
    A('s_lshl_b32 s54, s6, 6'); A('s_add_u32 s54, s54, s53')
    A('v_and_b32 v12, 6, v0'); A('v_lshlrev_b32 v12, 3, v12'); A('v_add_u32 v12, s54, v12')
    A('s_mov_b32 s62, 0x55555555'); A('s_mov_b32 s63, 0x55555555')
    A('s_waitcnt lgkmcnt(0)')
    for pc in range(NSB // 8, NP):
        i0 = E + 4*pc; qv = 24 + pc - NSB//8
        A(f's_cmp_le_u32 s52, {8*pc}'); A('s_cbranch_scc1 L_exp_done')
        A(f'v_lshrrev_b32 v16, 16, v{i0}'); A(f'v_or_b32 v16, v16, v{i0+1}')
        A(f'v_lshrrev_b32 v17, 16, v{i0+2}'); A(f'v_or_b32 v17, v17, v{i0+3}')
        A(f'v_subrev_u32 v13, s59, v{qv}'); A('v_lshrrev_b32 v13, 7, v13'); A('v_add_u32 v13, v13, v12')
        A('v_mov_b32_dpp v18, v16 quad_perm:[1,1,3,3] row_mask:0xf bank_mask:0xf')
        A('v_mov_b32_dpp v19, v17 quad_perm:[1,1,3,3] row_mask:0xf bank_mask:0xf')
        A(f'v_cmp_gt_u32 vcc, -2, v{qv}')
        if pc == NSB // 8 and NSB % 8:
            msk = ((1 << 64) - 1) ^ ((1 << (8*(NSB % 8))) - 1)
            A(f's_mov_b32 s60, {hex(msk & 0xffffffff)}'); A(f's_mov_b32 s61, {hex(msk >> 32)}'); A('s_and_b64 vcc, vcc, s[60:61]')
        A('s_and_b64 exec, vcc, s[62:63]')
        lbx = g.newlabel('L_expz'); A(f's_cbranch_execz {lbx}')
        if 'xexp' not in exp: A('global_store_dwordx4 v13, v[16:19], s[42:43] sc1')
        g.label(lbx)
        A('s_mov_b64 exec, -1')
        to_p(g, list(range(i0, i0 + 4)), M, IL, 's51')
        A(f'ds_write_b128 v10, v[{i0}:{i0+3}] offset:{1024*pc}')
        g.nop(1)
    g.label('L_exp_done')
    A('s_waitcnt vmcnt(0)')
    last_arriver(g, 2, 'L_noxf')
    A('s_lshl_b32 s50, s2, 4'); A(f's_add_u32 s50, s50, {WS_XF}'); A('v_mov_b32 v13, s50')
    for i in range(4): A(f'v_mov_b32 v{16+i}, v{TAG}')
    A('s_mov_b64 exec, 1')
    A('global_store_dwordx4 v13, v[16:19], s[42:43] sc1')
    A('s_mov_b64 exec, -1')
    g.label('L_noxf')
    A('s_cmp_lg_u32 s3, 4'); A('s_cbranch_scc1 L_noschedv')
    A('s_lshl_b32 s50, s4, 7'); A(f's_add_u32 s50, s50, {WS_XF}'); A('v_and_b32 v13, 7, v0'); A('v_lshlrev_b32 v13, 4, v13'); A('v_add_u32 v13, s50, v13')
    A('s_sleep 100')
    poll(g, lambda: A('global_load_dword v16, v13, s[42:43] sc1'), chk_tags(g, [16], TAG), sleep=64)
    A('v_mov_b32 v12, 0'); A(f's_mov_b32 s70, {SPIN_MAX*16}')
    g.label('L_xw_spin')
    A(f'ds_read_b32 v13, v12 offset:{L_CNT + 8}')
    A('s_waitcnt lgkmcnt(0)')
    A('v_readfirstlane_b32 s50, v13')
    A('s_sub_u32 s70, s70, 1'); A('s_cmp_eq_u32 s70, 0'); A('s_cbranch_scc1 L_xw_done')
    A('s_cmp_ge_u32 s50, 4'); A('s_cbranch_scc1 L_xw_done')
    A('s_sleep 8'); A('s_branch L_xw_spin')
    g.label('L_xw_done')
    claim_setup(128)
    A(f's_mov_b32 s52, {NSB}'); A('s_mov_b32 s56, -1'); A('s_mov_b32 s62, 0')
    A('v_mov_b32 v17, 0')
    A('v_add_u32 v24, s53, v6')
    A('v_bfe_u32 v25, v0, 2, 2'); A('v_lshlrev_b32 v25, 14, v25'); A('v_lshrrev_b32 v26, 4, v0'); A('v_lshl_add_u32 v25, v26, 7, v25')
    A('v_lshl_add_u32 v25, v2, 5, v25'); A(f'v_add_u32 v25, {L_SC}, v25')
    A(f's_mov_b32 s70, {SPIN_MAX*16}')
    g.label('L_sv_top')
    A(f'ds_read_b128 v[32:35], v17 offset:{L_PROGV}')
    A('s_waitcnt lgkmcnt(0)')
    A('v_max3_u32 v32, v32, v33, v34'); A('v_max_u32 v32, v32, v35'); g.nop(1)
    A('v_readfirstlane_b32 s64, v32')
    A('s_sub_u32 s70, s70, 1'); A('s_cmp_eq_u32 s70, 0'); A('s_cbranch_scc1 L_sv_done')
    A('s_cmp_eq_u32 s67, 0'); A(f's_cselect_b32 s65, {lown}, {leadv}'); A('s_add_u32 s64, s64, s65')
    A('s_mov_b32 s65, 0')
    A('s_cmp_lg_u32 s62, 0'); A('s_cbranch_scc1 L_sv_noclaim')
    A('s_cmp_lt_u32 s64, s52'); A('s_cbranch_scc1 L_sv_noclaim')
    A(f's_cmp_ge_u32 s52, {MAXROWS - 2}'); A('s_cbranch_scc1 L_sv_full')
    A('s_mov_b32 s65, 1')
    claim_issue()
    A('s_branch L_sv_pend')
    g.label('L_sv_full')
    A('s_mov_b32 s62, 1')
    g.label('L_sv_noclaim')
    A('s_cmp_lg_u32 s56, -1'); A('s_cbranch_scc1 L_sv_pend')
    A('s_cmp_lg_u32 s62, 0'); A('s_cbranch_scc1 L_sv_done')
    A('s_sub_u32 s64, s52, s64'); A('s_cmp_gt_u32 s64, 4'); A('s_cbranch_scc1 L_sv_long')
    A('s_sleep 2'); A('s_branch L_sv_top')
    g.label('L_sv_long')
    A('s_sleep 32'); A('s_branch L_sv_top')
    g.label('L_sv_pend')
    A('s_cmp_eq_u32 s56, -1'); A('s_cbranch_scc1 L_sv_nofetch')
    A('s_lshl_b32 s60, s56, 8'); A('v_add_u32 v26, s60, v24')
    A('s_cmp_eq_u32 s89, 2'); A('s_cselect_b32 s60, -1, 0xffff'); A('s_mov_b32 s61, 0'); A('s_mov_b64 exec, s[60:61]')
    A('global_load_dwordx4 v[28:31], v26, s[42:43] sc1')
    A('s_lshl_b32 s60, s55, 7'); A('v_add_u32 v26, s60, v25')
    A('s_waitcnt vmcnt(0)')
    unpack(g, list(range(32, 40)), 28)
    to_p(g, list(range(32, 40)), M, IL, 's51')
    A('ds_write_b128 v26, v[32:35]'); A('ds_write_b128 v26, v[36:39] offset:16')
    A('v_lshrrev_b32 v26, 4, v0'); A('v_add_u32 v27, s56, v26'); A('v_lshlrev_b32 v27, 15, v27'); A('v_add_u32 v27, s59, v27')
    A('v_add_u32 v26, s55, v26'); A('v_lshlrev_b32 v26, 2, v26')
    A(f'ds_write_b32 v26, v27 offset:{L_QV}')
    A('s_mov_b64 exec, -1')
    A('s_mov_b32 s56, -1')
    g.label('L_sv_nofetch')
    A('s_cmp_eq_u32 s65, 0'); A('s_cbranch_scc1 L_sv_top')
    A('s_waitcnt vmcnt(0)')
    claim_result('s63', 'L_sv_got', 'L_sv_top', 'L_sv_done')
    g.label('L_sv_got')
    A('s_mov_b32 s56, s63'); A('s_mov_b32 s55, s52'); A('s_add_u32 s52, s52, s54'); A('s_mov_b32 s89, s54')
    A('v_and_b32 v26, 1, v0'); A('v_add_u32 v27, s56, v26'); A('v_lshlrev_b32 v27, 15, v27'); A('v_add_u32 v27, s59, v27')
    A('v_add_u32 v26, s55, v26'); A('v_lshlrev_b32 v26, 2, v26')
    A(f'ds_read_b32 v28, v26 offset:{L_Q}')
    A('s_lshl_b32 s60, 1, s54'); A('s_sub_u32 s60, s60, 1'); A('s_mov_b32 s61, 0')
    A('s_waitcnt lgkmcnt(0)')
    A('s_mov_b64 exec, s[60:61]')
    A('v_cmp_ne_u32 vcc, v28, v27')
    A('s_cbranch_vccnz L_sv_other')
    A(f'ds_write_b32 v26, v27 offset:{L_QV}')
    A('s_mov_b32 s56, -1')
    g.label('L_sv_other')
    A('s_mov_b64 exec, -1')
    A('s_branch L_sv_top')
    g.label('L_sv_done')
    A('s_lshl_b32 s55, s52, 2'); A('v_mov_b32 v26, s55'); A('v_mov_b32 v27, -2')
    A(f'ds_write_b32 v26, v27 offset:{L_QV}')
    A('v_mov_b32 v27, s52'); A(f'ds_write_b32 v17, v27 offset:{L_ND}')
    g.label('L_noschedv')
    def near_end(pref, lead_):
        A('v_mov_b32 v17, 0')
        A(f's_mov_b32 s70, {SPIN_MAX*16}')
        g.label(f'{pref}_wait')
        A(f'ds_read_b128 v[32:35], v17 offset:{L_PROGV}'); A(f'ds_read_b32 v36, v17 offset:{L_ND}')
        A('s_waitcnt lgkmcnt(0)')
        A('v_max3_u32 v32, v32, v33, v34'); A('v_max_u32 v32, v32, v35')
        A('v_readfirstlane_b32 s51, v36'); A('v_readfirstlane_b32 s50, v32')
        A('s_sub_u32 s70, s70, 1'); A('s_cmp_eq_u32 s70, 0'); A(f's_cbranch_scc1 {pref}_go')
        A('s_cmp_eq_u32 s51, 0'); A(f's_cbranch_scc1 {pref}_long')
        A(f's_add_u32 s50, s50, {lead_}'); A('s_cmp_ge_u32 s50, s51'); A(f's_cbranch_scc1 {pref}_go')
        A('s_sleep 2'); A(f's_branch {pref}_wait')
        g.label(f'{pref}_long')
        A('s_sleep 24'); A(f's_branch {pref}_wait')
        g.label(f'{pref}_go')
    if wl:
        near_end('L_wo', wl)
        srd(g, 8, 24, 4096*512*2)
        A('v_lshrrev_b32 v10, 3, v0'); A('v_lshlrev_b32 v10, 2, v10')
        A('s_lshl_b32 s50, s4, 7'); A('s_lshl_b32 s51, s6, 5'); A('s_add_u32 s50, s50, s51')
        A('v_add_u32 v10, s50, v10'); A('v_lshlrev_b32 v10, 10, v10')
        A('v_and_b32 v11, 7, v0'); A('v_lshl_add_u32 v10, v11, 4, v10')
        A('s_lshl_b32 s50, s5, 7')
        for j in range(0 if 'xwo' in exp else 4):
            A(f'buffer_load_dwordx4 v[{WO+4*j}:{WO+4*j+3}], v10, s[8:11], s50 offen offset:{1024*j} nt')
    if tw:
        A('s_cmp_lg_u32 s3, 5'); A('s_cbranch_scc1 L_notw')
        near_end('L_tw', tw)
        A('v_lshlrev_b32 v16, 16, v0')
        for k, (base, nb) in enumerate(((28, 512*1792*2), (30, 512*1792*2), (32, 1792*512*2))):
            srd(g, 8 + 4*(k % 2), base, nb)
            A(f'buffer_load_dword v{18+k}, v16, s[{8 + 4*(k%2)}:{11 + 4*(k%2)}], 0 offen nt')
        g.label('L_notw')
    A('s_cmp_lg_u32 s3, 7'); A('s_cbranch_scc1 L_noticket')
    A('v_mov_b32 v18, 1')
    near_end('L_tk', tlead)
    A('s_mov_b64 exec, 1')
    A('global_atomic_add v19, v17, v18, s[40:41] sc0 sc1')
    A('s_waitcnt vmcnt(0)')
    A(f'ds_write_b32 v17, v19 offset:{L_ROLE}')
    A('s_mov_b64 exec, -1')
    A('v_readfirstlane_b32 s57, v19')
    A('s_waitcnt lgkmcnt(0)')
    g.label('L_noticket')
    GA = list(range(192, 200)); SB = list(range(200, 208)); CB = list(range(208, 216)); XF = list(range(216, 224)); GBR = 224
    unpack(g, XF, X8)
    A('s_lshl_b32 s50, s4, 12'); A('s_add_u32 s50, s50, s7'); A(f's_add_u32 s50, s50, {WS_OP}')
    A('v_lshrrev_b32 v10, 3, v0'); A('v_lshlrev_b32 v13, 4, v10'); A('v_lshlrev_b32 v10, 9, v10'); A('v_and_b32 v11, 7, v0'); A('v_lshl_add_u32 v10, v11, 4, v10')
    A('v_add_u32 v10, s50, v10')
    A('v_add_u32 v15, s7, v48')
    A('v_add_u32 v9, s7, v13')
    A('v_lshrrev_b32 v14, 4, v0'); A('v_lshlrev_b32 v14, 3, v14'); A('v_lshl_add_u32 v14, v11, 5, v14')
    A('s_lshl_b32 s52, s6, 8'); A('v_add_u32 v14, s52, v14')
    A('v_and_b32 v8, 15, v0'); A('v_lshlrev_b32 v8, 4, v8'); A('v_lshrrev_b32 v7, 4, v0'); A('v_lshl_add_u32 v8, v7, 16, v8')
    A('s_lshl_b32 s51, s2, 8'); A(f's_add_u32 s51, s51, {WS_AP}'); A('v_add_u32 v8, s51, v8'); A('v_add_u32 v7, 0x40000, v8')
    A('v_and_b32 v5, 15, v0'); A('v_lshlrev_b32 v5, 4, v5')
    ACC = list(range(24, 32))
    for i in range(8): A(f'v_mov_b32 v{ACC[i]}, 0')
    A('s_barrier')
    if 'notail' in exp: A('s_branch L_end')
    g.stamp(10)
    A('v_mov_b32 v12, 0'); A(f'ds_read_b32 v50, v12 offset:{L_ROLE}')
    A('s_cmp_lg_u32 s3, 7'); A('s_cbranch_scc1 L_tk_end')
    A(f's_cmp_ge_u32 s57, {NMLP}'); A('s_cbranch_scc1 L_tk_end')
    A('v_lshlrev_b32 v228, 5, v0'); A(f'v_add_u32 v228, {WS_MOD + 4096}, v228'); A('v_add_u32 v229, 4096, v228')
    A('v_and_b32 v230, 15, v0'); A('v_lshlrev_b32 v231, 3, v230'); A('s_and_b32 s50, s57, 15'); A('s_lshl_b32 s50, s50, 7')
    A(f's_add_u32 s50, s50, {WS_MOD + 1280*8}'); A('v_add_u32 v231, s50, v231')
    A(f'v_add_u32 v51, {WS_XF}, v6')
    def lds_():
        A('global_load_dwordx4 v[144:147], v228, s[42:43] sc1'); A('global_load_dwordx4 v[148:151], v228, s[42:43] offset:16 sc1')
        A('global_load_dwordx4 v[152:155], v228, s[42:43] offset:2048 sc1'); A('global_load_dwordx4 v[156:159], v228, s[42:43] offset:2064 sc1')
        A('global_load_dwordx4 v[160:163], v229, s[42:43] sc1'); A('global_load_dwordx4 v[164:167], v229, s[42:43] offset:16 sc1')
        A('global_load_dwordx2 v[172:173], v231, s[42:43] sc1')
        for i in range(4): A(f'global_load_dword v{168+i}, v51, s[42:43] offset:{1024*i} sc1')
    poll(g, lds_, chk_tags(g, [173, 168, 169, 170, 171] + list(range(145, 168, 2)), TAG), sleep=8)
    for k in range(3):
        b = 144 + 8*k
        A(f'v_mov_b32 v{b+1}, v{b+2}'); A(f'v_mov_b32 v{b+2}, v{b+4}'); A(f'v_mov_b32 v{b+3}, v{b+6}')
        A(f'ds_write_b128 v6, v[{b}:{b+3}] offset:{L_MV + 1024*k}')
    A('v_lshlrev_b32 v230, 2, v230')
    A(f'ds_write_b32 v230, v172 offset:{L_MV + 3072}')
    A('v_mov_b32 v51, 1'); A('s_mov_b64 exec, 1'); A(f'ds_add_u32 v12, v51 offset:{L_CNT + 16}'); A('s_mov_b64 exec, -1')
    g.label('L_tk_end')
    poll(g, lambda: A('global_load_dwordx4 v[16:19], v10, s[42:43] sc1'), chk_sent(g, [16, 17, 18, 19], 20), sleep=opsl)
    g.stamp(11)
    reduce4_hi(g, [16, 17, 18, 19])
    rnd(g, 16, 16)
    A(f'ds_write_b32 v15, v16 offset:{L_OV}')
    A(f'ds_read_b128 v[16:19], v9 offset:{L_OV}')
    A('s_waitcnt lgkmcnt(0)')
    for j in range(4): A(f'v_lshrrev_b32 v{20+j}, 16, v{16+j}')
    for j in range(4): tile_mac(g, ACC, WO + 4*j, f'v{16+j}', f'v{20+j}')
    g.nop(1)
    swap_reduce8(g, ACC)
    row_allreduce(g, ACC[:2], rors=(8,))
    A(f'ds_write_b64 v14, v[{ACC[0]}:{ACC[1]}] offset:{L_AW}')
    last_arriver(g, 3, 'L_h_noap')
    A('s_mov_b64 exec, 0xffff')
    for w in range(4): A(f'ds_read_b128 v[{16+4*w}:{19+4*w}], v5 offset:{L_AW + 256*w}')
    A('s_waitcnt lgkmcnt(0)')
    sum4x4(g, 16)
    A('global_store_dwordx4 v8, v[16:19], s[42:43] sc1')
    A('s_mov_b64 exec, -1')
    g.stamp(12)
    g.label('L_h_noap')
    if 'xstage' in exp: A('s_branch L_end')
    A('v_readfirstlane_b32 s57, v50'); g.nop(1)
    A(f's_cmp_ge_u32 s57, {NMLP}'); A('s_cbranch_scc1 L_end')
    A('s_movk_i32 s50, 528'); A('v_mul_lo_u32 v10, v0, s50'); A('s_lshl_b32 s50, s6, 4'); A(f's_add_u32 s50, s50, {L_ST}'); A('v_add_u32 v10, s50, v10')
    A(f'v_add_u32 v11, {ST_SZ}, v10')
    A('s_lshl_b32 s50, s6, 13'); A(f's_add_u32 s50, s50, {L_DS}'); A('v_add_u32 v14, s50, v6')
    A('v_mov_b32 v12, 0')
    stage_wait('L_hst')
    for j in range(8):
        A(f'ds_read_b128 v[{WG+4*j}:{WG+4*j+3}], v10 offset:{64*j}'); A(f'ds_read_b128 v[{WU+4*j}:{WU+4*j+3}], v11 offset:{64*j}')
        A(f'ds_read_b128 v[{WD+4*j}:{WD+4*j+3}], v14 offset:{1024*j}')
        if j % 4 == 3: A('s_waitcnt lgkmcnt(0)')
    for k in range(3): A(f'ds_read_b128 v[{16+4*k}:{19+4*k}], v6 offset:{L_MV + 1024*k}')
    A('v_lshrrev_b32 v13, 3, v48'); A('v_lshlrev_b32 v13, 2, v13')
    A(f'ds_read_b32 v28, v13 offset:{L_MV + 3072}')
    A('s_waitcnt lgkmcnt(0)')
    unpack(g, GA, 16); unpack(g, SB, 20); unpack(g, CB, 24)
    for i in range(8): A(f'v_add_f32 v{CB[i]}, 1.0, v{CB[i]}')
    for i in range(8): rnd(g, CB[i], CB[i])
    A('v_and_b32 v13, 16, v0'); A('v_cmp_eq_u32 vcc, 0, v13')
    A('v_lshlrev_b32 v13, 16, v28'); A('v_and_b32 v14, 0xffff0000, v28')
    A(f'v_cndmask_b32 v{GBR}, v14, v13, vcc')
    g.role = 'X'; g.stamp(9); g.role = 'H'
    g.label('L_gather_ap')
    A('s_and_b32 s50, s3, 1'); A('s_lshl_b32 s50, s50, 10'); A('s_lshr_b32 s51, s3, 1'); A('s_lshl_b32 s52, s51, 14')
    A('s_add_u32 s52, s52, s50'); A(f's_add_u32 s52, s52, {WS_AP + 4096}')
    A('v_lshlrev_b32 v10, 4, v0'); A('v_add_u32 v11, s52, v10'); A('v_add_u32 v12, 8192, v11')
    A('s_lshl_b32 s51, s51, 11'); A('s_add_u32 s51, s51, s50'); A('v_add_u32 v13, s51, v10')
    multi_poll(g, 'L_ap', 8, lambda i: f'global_load_dwordx4 v[{16+4*i}:{19+4*i}], v{11 + i//4}, s[42:43] offset:{(i%4)*2048 - 4096} sc1', 16, 14,
               [(16*16, apsl), (8*16, apsl // 3), (apth*16, apsl // 8)])
    g.stamp(13)
    for st in (16, 8, 4):
        for i in range(0, st, 2): A(f'v_pk_add_f32 v[{16+i}:{17+i}], v[{16+i}:{17+i}], v[{16+i+st}:{17+i+st}]')
    A(f'ds_write_b128 v13, v[16:19] offset:{L_AS}')
    A('v_lshlrev_b32 v10, 5, v0')
    A('s_waitcnt lgkmcnt(0)')
    A('s_barrier')
    A('s_cmp_lt_u32 s3, 4'); A('s_cbranch_scc1 L_end')
    g.role = 'M'; g.stamp(1); g.role = 'H'
    for p in range(4):
        A(f'ds_read_b128 v[{16+8*p}:{19+8*p}], v10 offset:{L_AS + 2048*p}'); A(f'ds_read_b128 v[{20+8*p}:{23+8*p}], v10 offset:{L_AS + 2048*p + 16}')
    AG = list(range(232, 240)); AU = list(range(240, 248))
    for i in range(8): A(f'v_mov_b32 v{AG[i]}, 0'); A(f'v_mov_b32 v{AU[i]}, 0')
    A('s_waitcnt lgkmcnt(4)')
    for i in range(0, 8, 2): A(f'v_pk_add_f32 v[{16+i}:{17+i}], v[{16+i}:{17+i}], v[{24+i}:{25+i}]')
    A('s_waitcnt lgkmcnt(0)')
    for i in range(0, 8, 2): A(f'v_pk_add_f32 v[{32+i}:{33+i}], v[{32+i}:{33+i}], v[{40+i}:{41+i}]')
    for i in range(0, 8, 2): A(f'v_pk_add_f32 v[{16+i}:{17+i}], v[{16+i}:{17+i}], v[{32+i}:{33+i}]')
    X1 = list(range(16, 24))
    for i in range(8): rnd(g, X1[i], X1[i])
    for i in range(0, 8, 2): A(f'v_pk_mul_f32 v[{16+i}:{17+i}], v[{16+i}:{17+i}], v[{GA[i]}:{GA[i+1]}]')
    for i in range(8): rnd(g, X1[i], X1[i])
    for i in range(0, 8, 2): A(f'v_pk_add_f32 v[{16+i}:{17+i}], v[{16+i}:{17+i}], v[{XF[i]}:{XF[i+1]}]')
    for i in range(8): rnd(g, X1[i], X1[i])
    A(f'ds_write_b128 v10, v[16:19] offset:{L_XF}'); A(f'ds_write_b128 v10, v[20:23] offset:{L_XF + 16}')
    g.role = 'M'; g.stamp(2); g.role = 'H'
    ln_stats(g, X1, MEAN, SD, list(range(32, 40)))
    A(f'v_rcp_f32 v{RSD}, v{SD}'); g.nop(1)
    g.role = 'M'; g.stamp(3); g.role = 'H'
    modulate_n(g, [(24+i, X1[i], CB[i], SB[i], 32+i, 248+i) for i in range(8)], MEAN, SD, RSD)
    for j in range(8): A(f'v_lshrrev_b32 v{32+j}, 16, v{24+j}')
    g.role = 'M'; g.stamp(4); g.role = 'H'
    for j in range(8):
        tile_mac(g, AG, WG + 4*j, f'v{24+j}', f'v{32+j}')
        tile_mac(g, AU, WU + 4*j, f'v{24+j}', f'v{32+j}')
    AD = list(range(24, 32))
    A('v_lshlrev_b32 v10, 5, v0'); A('s_lshl_b32 s50, s6, 11'); A('v_add_u32 v10, s50, v10')
    g.role = 'M'; g.stamp(5); g.role = 'H'
    swap_reduce8(g, AG, AU)
    row_allreduce(g, AG[:2] + AU[:2])
    for r in AG[:2] + AU[:2]: rnd(g, r, r)
    A(f'v_mov_b32 v16, {hex(f2u(0.044715))}')
    for i in range(2): A(f'v_mul_f32 v{18+i}, v{AG[i]}, v{AG[i]}')
    for i in range(2): A(f'v_mul_f32 v{18+i}, v{18+i}, v{AG[i]}')
    for i in range(2): A(f'v_fma_f32 v{18+i}, v{18+i}, v16, v{AG[i]}')
    for i in range(2): A(f'v_mul_f32 v{18+i}, {hex(f2u(-2*0.7978845608028654*1.4426950408889634))}, v{18+i}')
    sigmoid_mul_n(g, [(20+i, AG[i], 18+i, 32+i, 34+i, 36+i) for i in range(2)])
    for i in range(2): rnd(g, 20+i, 20+i)
    for i in range(2): A(f'v_mul_f32 v{20+i}, v{20+i}, v{AU[i]}')
    for i in range(2): rnd(g, 20+i, 20+i)
    for i in range(8): A(f'v_mov_b32 v{AD[i]}, 0')
    g.role = 'M'; g.stamp(6); g.role = 'H'
    for j in range(8): A(f'v_readlane_b32 s{72+j}, v{20 + j%2}, {16*(j//2 % 2) + 32*(j//4)}')
    A('s_lshl_b32 s50, s6, 9'); A('v_add_u32 v11, s50, v6')
    for j in range(8): A(f's_lshr_b32 s{80+j}, s{72+j}, 16')
    for j in range(8): tile_mac(g, AD, WD + 4*j, f's{72+j}', f's{80+j}')
    A('s_lshl_b32 s51, s57, 11'); A(f's_add_u32 s51, s51, {WS_DP}'); A('v_add_u32 v12, s51, v11')
    g.role = 'M'; g.stamp(7); g.role = 'H'
    g.nop(1)
    A(f'ds_write_b128 v10, v[{AD[0]}:{AD[3]}] offset:{L_DW}'); A(f'ds_write_b128 v10, v[{AD[4]}:{AD[7]}] offset:{L_DW + 16}')
    A('s_waitcnt lgkmcnt(0)')
    A('s_barrier')
    g.role = 'M'; g.stamp(8); g.role = 'H'
    A('s_mov_b64 exec, 0xffffffff')
    for w in range(4): A(f'ds_read_b128 v[{16+4*w}:{19+4*w}], v11 offset:{L_DW + 2048*w}')
    A('s_waitcnt lgkmcnt(0)')
    sum4x4(g, 16)
    A('global_store_dwordx4 v12, v[16:19], s[42:43] sc1')
    A('s_mov_b64 exec, -1')
    g.stamp(14)
    A(f's_cmp_ge_u32 s57, {NFIN}'); A('s_cbranch_scc1 L_end')
    A('s_cmp_lg_u32 s3, 4'); A('s_cbranch_scc1 L_end')
    A('v_lshrrev_b32 v10, 3, v0'); A('v_lshlrev_b32 v10, 11, v10'); A('v_and_b32 v11, 7, v0'); A('v_lshl_add_u32 v10, v11, 4, v10')
    A('s_lshl_b32 s50, s57, 7'); A(f's_add_u32 s51, s50, {WS_DP}'); A('v_add_u32 v52, s51, v10')
    for i in range(1, 7): A(f'v_add_u32 v{52+i}, {16384*i}, v52')
    A('v_add_u32 v13, s50, v48')
    A(f'ds_read_b32 v15, v13 offset:{L_XF}')
    A('v_lshrrev_b32 v12, 1, v13')
    multi_poll(g, 'L_dp', 7, lambda i: f'global_load_dwordx4 v[{16+4*i}:{19+4*i}], v{52+i}, s[42:43] sc1', 16, 51, [])
    for i in (0, 2):
        A(f'v_pk_add_f32 v[{16+i}:{17+i}], v[{16+i}:{17+i}], v[{20+i}:{21+i}]'); A(f'v_pk_add_f32 v[{24+i}:{25+i}], v[{24+i}:{25+i}], v[{28+i}:{29+i}]')
        A(f'v_pk_add_f32 v[{32+i}:{33+i}], v[{32+i}:{33+i}], v[{36+i}:{37+i}]')
    for i in (0, 2):
        A(f'v_pk_add_f32 v[{16+i}:{17+i}], v[{16+i}:{17+i}], v[{24+i}:{25+i}]'); A(f'v_pk_add_f32 v[{32+i}:{33+i}], v[{32+i}:{33+i}], v[{40+i}:{41+i}]')
    for i in (0, 2): A(f'v_pk_add_f32 v[{16+i}:{17+i}], v[{16+i}:{17+i}], v[{32+i}:{33+i}]')
    g.nop(2)
    reduce4_hi(g, [16, 17, 18, 19])
    A('s_waitcnt lgkmcnt(0)')
    rnd(g, 16, 16); A(f'v_mul_f32 v16, v{GBR}, v16'); rnd(g, 16, 16); A('v_add_f32 v16, v15, v16')
    A('v_cvt_pk_bf16_f32 v16, v16, v16')
    A('s_mov_b32 exec_lo, 0x00ff00ff'); A('s_mov_b32 exec_hi, 0x00ff00ff')
    A('global_store_short v12, v16, s[38:39]')
    A('s_cmp_lg_u32 s57, 0'); A('s_cbranch_scc1 L_fin_noepoch')
    A('s_mov_b64 exec, 1'); A('v_mov_b32 v13, 0')
    A(f'global_store_dword v13, v{TAG}, s[42:43] sc1')
    g.label('L_fin_noepoch')
    A('s_mov_b64 exec, -1')
    g.stamp(15)
    g.label('L_end'); A('s_endpgm')
    for s in ['.section .rodata,"a"', '.p2align 6', f'.amdhsa_kernel {NAME}_kernel', '  .amdhsa_next_free_vgpr 256',
              '  .amdhsa_next_free_sgpr 102', '  .amdhsa_accum_offset 256', '  .amdhsa_group_segment_fixed_size 0',
              '  .amdhsa_kernarg_size 112', '  .amdhsa_user_sgpr_count 2', '  .amdhsa_user_sgpr_kernarg_segment_ptr 1',
              '  .amdhsa_system_sgpr_workgroup_id_x 1', '.end_amdhsa_kernel']: g.L.append(s)
    return '\n'.join(g.L) + '\n'

if __name__ == '__main__':
    import argparse
    ap = argparse.ArgumentParser()
    ap.add_argument('out'); ap.add_argument('--ts', action='store_true')
    ap.add_argument('--nsb', type=int, default=60); ap.add_argument('--exp', default='')
    ap.add_argument('--depth', type=int, default=6); ap.add_argument('--lead', type=int, default=3); ap.add_argument('--leadv', type=int, default=5)
    ap.add_argument('--header', default='')
    for k, d in (('opsl', 1), ('apth', 4), ('apsl', 8), ('psl', 2), ('sing', 24), ('mlsl', 8), ('tlead', 1), ('pace', 5), ('wl', 0), ('tw', 0), ('dm', 6), ('single', 2), ('nt2', 58), ('dm2', 8), ('lown', 5), ('dmh', 0), ('dk', 0)): ap.add_argument('--' + k, type=int, default=d)
    a = ap.parse_args()
    hdr = ''
    if a.header:
        hdr = ''.join(l for l in open(a.header) if l.startswith(';') and '@launch' not in l)
    open(a.out, 'w').write(build(ts=a.ts, nsb=a.nsb, exp=a.exp, depth=a.depth, lead=a.lead, leadv=a.leadv, header=hdr, opsl=a.opsl, apth=a.apth, apsl=a.apsl, psl=a.psl, sing=a.sing, mlsl=a.mlsl, tlead=a.tlead, pace=a.pace, wl=a.wl, tw=a.tw, dm=a.dm, single=a.single, nt2=a.nt2, dm2=a.dm2, lown=a.lown, dmh=a.dmh, dk=a.dk))
```

```python
import sys, struct
NAME = 'adaLN_cond__mha_block_cached__glu_gated_geglu__decode'
def f2u(x): return struct.unpack('<I', struct.pack('<f', x))[0]

WS_MOD   = 0x1000
WS_ML    = 0x4000
WS_CNT   = 0x8000
WS_XF    = 0xA000
WS_OP    = 0x10000
WS_AP    = 0x30000
WS_DP    = 0x40000
WS_QX    = 0x60000
WS_TS    = 0xC0000
WS_SCG   = 0x200000
L_CNT  = 0x0000
L_KD   = 0x0040
L_PROG = 0x0060
L_PROGV = 0x0070
L_ND   = 0x0080
L_ROLE = 0x0084
L_TAG  = 0x0100
L_MODP = 0x0200
L_HV   = 0x0400
L_QP   = 0x0C00
L_OB   = 0x1400
L_OV   = 0x1C00
L_AW   = 0x1E00
L_MV   = 0x2200
L_Q    = 0x2F00
L_QV   = 0x3100
L_SC   = 0x3400
L_AS   = L_SC + 0x0000
L_DW   = L_SC + 0x2000
L_XF   = L_SC + 0x4000
L_DS   = L_SC + 0x8000
L_ST   = L_SC + 0x10000
ST_SZ  = 512*64 + 64*16
LDS_BYTES = L_ST + 2*ST_SZ
MAXROWS = 96
Q_DONE = 0xfffffffe
NMLP = 56
NFIN = 16
SPIN_MAX = 1 << 17
LOG2E = f2u(1.4426950408889634)
NS = 48


DOC = """
One persistent launch, workgroup b = (head b>>3, split b&7), one workgroup per CU.
Waves 0-3 stream the head's K rows and then its V rows (nt loads into a register ring, v_dot2c);
waves 4-7 do the small GEMVs, the softmax normalisation, the block scheduling and the MLP.
Softmax is exact two-pass: bf16-rounded scores stay in LDS, per-wave (max, sum) are exchanged between the
8 workgroups of a head, p = bf16(exp(s - max) / sum) is applied in the V pass.  All intermediate roundings
follow the bf16 reference.  The last blocks of every split can be claimed by its siblings (work counters).
Hand-offs between workgroups use sc1 stores/loads and are validated by a per-launch tag (derived from a word
the previous launch left in d_ws) or by slots that their owner cleared earlier in the same launch; every
wait is bounded.  Generated by a script written for this kernel.
"""

class G:
    def __init__(self, ts=False, tsmask=None):
        self.L = []; self.ts = ts; self.lbl = 0; self.tsmask = tsmask; self.role = 'S'; self.ldf = ' sc1'; self.stf = ' sc1'; self.w0only = False
    def A(self, s):
        if s.endswith(' sc1') and 'atomic' not in s:
            if 'load' in s: s = s[:-4] + self.ldf
            else: s = s[:-4] + self.stf
        self.L.append('  ' + s)
        if '_store_dwordx4' in s or '_store_dwordx3' in s: self.L.append('  s_nop 1')
    def label(self, s): self.L.append(s + ':')
    def newlabel(self, p='L'):
        self.lbl += 1; return f'{p}_{self.lbl}'
    def nop(self, n): self.A(f's_nop {n-1}')
    def stamp(self, slot, sreg=None):
        if not self.ts: return
        if self.tsmask is not None and (self.role, slot) not in self.tsmask: return
        if self.tsmask is None and self.role in 'MX': return
        A = self.A
        if self.w0only:
            A('s_cmp_lg_u32 s3, 0'); lb = self.newlabel('L_ns'); A(f's_cbranch_scc1 {lb}')
        if sreg is None:
            A('s_memrealtime s[96:97]'); A('s_waitcnt lgkmcnt(0)')
            A('v_mov_b32 v60, s96'); A('v_mov_b32 v61, s97')
        else:
            A(f'v_mov_b32 v60, {sreg}'); A('v_mov_b32 v61, 0')
        A('v_mov_b32 v62, s95')
        A('s_mov_b64 s[98:99], exec'); A('s_mov_b64 exec, 1')
        A(f'global_store_dwordx2 v62, v[60:61], s[42:43] offset:{slot*8}')
        A('s_mov_b64 exec, s[98:99]')
        if self.w0only: self.label(lb)

def rnd(g, d, s): g.A(f'v_cvt_pk_bf16_f32 v{d}, 0, v{s}')

def swap_reduce8(g, *sets):
    A = g.A
    g.nop(2)
    for r in sets:
        for i in range(4): A(f'v_permlane32_swap_b32 v{r[i]}, v{r[i+4]}')
    for r in sets:
        for i in range(4): A(f'v_add_f32 v{r[i]}, v{r[i]}, v{r[i+4]}')
    if len(sets) == 1: g.nop(1)
    for r in sets:
        for i in range(2): A(f'v_permlane16_swap_b32 v{r[i]}, v{r[i+2]}')
    for r in sets:
        for i in range(2): A(f'v_add_f32 v{r[i]}, v{r[i]}, v{r[i+2]}')

def row_allreduce(g, regs, op='add', rors=(8, 4, 2, 1)):
    for ro in rors:
        if len(regs) < 3: g.nop(3 - len(regs))
        for r in regs: g.A(f'v_{op}_f32_dpp v{r}, v{r}, v{r} row_ror:{ro} row_mask:0xf bank_mask:0xf')

def wave_allreduce(g, r, t, op='add'):
    A = g.A
    row_allreduce(g, [r], op)
    A(f'v_mov_b32 v{t}, v{r}'); g.nop(2)
    A(f'v_permlane16_swap_b32 v{r}, v{t}'); A(f'v_{op}_f32 v{r}, v{r}, v{t}')
    A(f'v_mov_b32 v{t}, v{r}'); g.nop(2)
    A(f'v_permlane32_swap_b32 v{r}, v{t}'); A(f'v_{op}_f32 v{r}, v{r}, v{t}')

def reduce4_hi(g, r):
    A = g.A
    A(f'v_permlane32_swap_b32 v{r[0]}, v{r[2]}'); A(f'v_permlane32_swap_b32 v{r[1]}, v{r[3]}')
    A(f'v_add_f32 v{r[0]}, v{r[0]}, v{r[2]}'); A(f'v_add_f32 v{r[1]}, v{r[1]}, v{r[3]}'); g.nop(2)
    A(f'v_permlane16_swap_b32 v{r[0]}, v{r[1]}'); A(f'v_add_f32 v{r[0]}, v{r[0]}, v{r[1]}'); g.nop(2)
    A(f'v_add_f32_dpp v{r[0]}, v{r[0]}, v{r[0]} row_ror:8 row_mask:0xf bank_mask:0xf')

def tile_mac(g, acc, data, pP, pL):
    for i in range(4):
        g.A(f'v_dot2c_f32_bf16 v{acc[2*i]}, {pL}, v{data+i}')
        g.A(f'v_dot2c_f32_bf16 v{acc[2*i+1]}, {pP}, v{data+i}')

def divide(g, q, a, b, t0, t1):
    A = g.A
    A(f'v_rcp_f32 v{t0}, v{b}'); g.nop(1)
    A(f'v_mul_f32 v{q}, v{a}, v{t0}')
    A(f'v_fma_f32 v{t1}, -v{q}, v{b}, v{a}')
    A(f'v_fma_f32 v{q}, v{t1}, v{t0}, v{q}')

def sigmoid_mul_n(g, items):
    A = g.A
    for d, x, arg, t0, t1, t2 in items: A(f'v_min_f32 v{t2}, 0x42fc0000, v{arg}')
    for d, x, arg, t0, t1, t2 in items: A(f'v_exp_f32 v{t2}, v{t2}')
    if len(items) == 1: g.nop(1)
    for d, x, arg, t0, t1, t2 in items: A(f'v_add_f32 v{t2}, 1.0, v{t2}')
    for d, x, arg, t0, t1, t2 in items: A(f'v_rcp_f32 v{t0}, v{t2}')
    if len(items) == 1: g.nop(1)
    for d, x, arg, t0, t1, t2 in items: A(f'v_mul_f32 v{d}, v{x}, v{t0}')
    for d, x, arg, t0, t1, t2 in items: A(f'v_fma_f32 v{t1}, -v{d}, v{t2}, v{x}')
    for d, x, arg, t0, t1, t2 in items: A(f'v_fma_f32 v{d}, v{t1}, v{t0}, v{d}')

def ln_stats(g, xs, mean_bf, sd, t):
    A = g.A
    A(f'v_pk_add_f32 v[{t[0]}:{t[1]}], v[{xs[0]}:{xs[1]}], v[{xs[2]}:{xs[3]}]')
    A(f'v_pk_add_f32 v[{t[2]}:{t[3]}], v[{xs[4]}:{xs[5]}], v[{xs[6]}:{xs[7]}]')
    A(f'v_pk_add_f32 v[{t[0]}:{t[1]}], v[{t[0]}:{t[1]}], v[{t[2]}:{t[3]}]')
    A(f'v_add_f32 v{t[0]}, v{t[0]}, v{t[1]}')
    wave_allreduce(g, t[0], t[1])
    A(f'v_mul_f32 v{t[0]}, 0x3b000000, v{t[0]}')
    rnd(g, mean_bf, t[0])
    for i in range(4): A(f'v_sub_f32 v{t[2+i]}, v{xs[i]}, v{t[0]}')
    A(f'v_mul_f32 v{t[6]}, v{t[2]}, v{t[2]}'); A(f'v_mul_f32 v{t[7]}, v{t[3]}, v{t[3]}')
    A(f'v_fmac_f32 v{t[6]}, v{t[4]}, v{t[4]}'); A(f'v_fmac_f32 v{t[7]}, v{t[5]}, v{t[5]}')
    for i in range(4): A(f'v_sub_f32 v{t[2+i]}, v{xs[4+i]}, v{t[0]}')
    A(f'v_fmac_f32 v{t[6]}, v{t[2]}, v{t[2]}'); A(f'v_fmac_f32 v{t[7]}, v{t[3]}, v{t[3]}')
    A(f'v_fmac_f32 v{t[6]}, v{t[4]}, v{t[4]}'); A(f'v_fmac_f32 v{t[7]}, v{t[5]}, v{t[5]}')
    A(f'v_add_f32 v{t[2]}, v{t[6]}, v{t[7]}')
    wave_allreduce(g, t[2], t[1])
    A(f'v_mul_f32 v{t[2]}, 0x3b000000, v{t[2]}')
    rnd(g, t[2], t[2])
    A(f'v_add_f32 v{t[2]}, {hex(f2u(1e-5))}, v{t[2]}')
    rnd(g, t[2], t[2])
    A(f'v_sqrt_f32 v{t[0]}, v{t[2]}'); g.nop(1)
    A(f'v_rcp_f32 v{t[1]}, v{t[0]}')
    A(f'v_fma_f32 v{t[3]}, -v{t[0]}, v{t[0]}, v{t[2]}')
    A(f'v_mul_f32 v{t[1]}, 0.5, v{t[1]}')
    A(f'v_fma_f32 v{t[0]}, v{t[3]}, v{t[1]}, v{t[0]}')
    rnd(g, sd, t[0])

def modulate_n(g, items, mean_bf, sd, rcp_sd):
    A = g.A
    for d, x, c, s, t0, t1 in items: A(f'v_sub_f32 v{t0}, v{x}, v{mean_bf}')
    for d, x, c, s, t0, t1 in items: rnd(g, t0, t0)
    for d, x, c, s, t0, t1 in items: A(f'v_mul_f32 v{d}, v{t0}, v{rcp_sd}')
    for d, x, c, s, t0, t1 in items: A(f'v_fma_f32 v{t1}, -v{d}, v{sd}, v{t0}')
    for d, x, c, s, t0, t1 in items: A(f'v_fma_f32 v{d}, v{t1}, v{rcp_sd}, v{d}')
    for d, x, c, s, t0, t1 in items: rnd(g, d, d)
    for d, x, c, s, t0, t1 in items: A(f'v_mul_f32 v{d}, v{d}, v{c}')
    for d, x, c, s, t0, t1 in items: rnd(g, d, d)
    for d, x, c, s, t0, t1 in items: A(f'v_add_f32 v{d}, v{d}, v{s}')
    for d, x, c, s, t0, t1 in items: rnd(g, d, d)

def unpack(g, dst, src, n=4):
    for i in range(n):
        g.A(f'v_lshlrev_b32 v{dst[2*i]}, 16, v{src+i}')
        g.A(f'v_and_b32 v{dst[2*i+1]}, 0xffff0000, v{src+i}')

def to_p(g, regs, M, IL, slog):
    A = g.A
    for r in regs: A(f'v_sub_f32 v{r}, v{r}, v{M}')
    for r in regs: A(f'v_mul_f32 v{r}, {slog}, v{r}')
    for r in regs: A(f'v_exp_f32 v{r}, v{r}')
    for r in regs: A(f'v_mul_f32 v{r}, v{r}, v{IL}')
    for r in regs: rnd(g, r, r)

def srd(g, d, base, nbytes):
    g.A(f's_mov_b32 s{d}, s{base}'); g.A(f's_mov_b32 s{d+1}, s{base+1}')
    g.A(f's_mov_b32 s{d+2}, {hex(nbytes)}'); g.A(f's_mov_b32 s{d+3}, 0x20000')

def poll(g, loads, check, sleep=1):
    A = g.A
    l = g.newlabel('L_poll'); done = g.newlabel('L_poll_done')
    A('s_mov_b64 s[68:69], exec'); A(f's_mov_b32 s70, {SPIN_MAX}')
    g.label(l)
    loads()
    A('s_waitcnt vmcnt(0)')
    check()
    A(f's_cbranch_vccz {done}')
    A('s_mov_b64 exec, vcc')
    A('s_sub_u32 s70, s70, 1'); A('s_cmp_eq_u32 s70, 0'); A(f's_cbranch_scc1 {done}')
    if sleep: A(f's_sleep {sleep}')
    A(f's_branch {l}')
    g.label(done)
    A('s_mov_b64 exec, s[68:69]')

def multi_poll(g, pref, n, load, base, t, ladder):
    A = g.A
    for i in range(n): A(f's_mov_b64 s[{72+2*i}:{73+2*i}], -1')
    A(f's_mov_b32 s70, {SPIN_MAX}')
    g.label(f'{pref}_poll')
    for i in range(n):
        lb = g.newlabel(f'{pref}_skip')
        A(f's_mov_b64 exec, s[{72+2*i}:{73+2*i}]'); A(f's_cbranch_execz {lb}')
        A(load(i))
        g.label(lb)
    A('s_mov_b32 s71, 0')
    A('s_waitcnt vmcnt(0)')
    for i in range(n):
        lb = g.newlabel(f'{pref}_skip')
        r = base + 4*i
        A(f's_mov_b64 exec, s[{72+2*i}:{73+2*i}]'); A(f's_cbranch_execz {lb}')
        A(f'v_max3_u32 v{t}, v{r}, v{r+1}, v{r+2}'); A(f'v_max_u32 v{t}, v{t}, v{r+3}')
        A(f'v_cmp_eq_u32 vcc, -1, v{t}')
        A(f's_mov_b64 s[{72+2*i}:{73+2*i}], vcc'); A('s_bcnt1_i32_b64 s50, vcc'); A('s_add_u32 s71, s71, s50')
        g.label(lb)
    A('s_cmp_eq_u32 s71, 0'); A(f's_cbranch_scc1 {pref}_done')
    A('s_sub_u32 s70, s70, 1'); A('s_cmp_eq_u32 s70, 0'); A(f's_cbranch_scc1 {pref}_done')
    for th, sl in reversed(ladder):
        A(f's_cmp_le_u32 s71, {th}'); A(f's_cbranch_scc1 {pref}_poll')
        if sl: A(f's_sleep {sl}')
    A(f's_branch {pref}_poll')
    g.label(f'{pref}_done')
    A('s_mov_b64 exec, -1')

def chk_tags(g, regs, tag):
    def f():
        g.A(f'v_cmp_ne_u32 vcc, v{regs[0]}, v{tag}')
        for r in regs[1:]:
            g.A(f'v_cmp_ne_u32 s[60:61], v{r}, v{tag}'); g.A('s_or_b64 vcc, vcc, s[60:61]')
    return f
def chk_sent(g, regs, t):
    def f():
        g.A(f'v_max3_u32 v{t}, v{regs[0]}, v{regs[1]}, v{regs[2]}')
        rest = regs[3:]
        while len(rest) >= 2:
            g.A(f'v_max3_u32 v{t}, v{t}, v{rest[0]}, v{rest[1]}'); rest = rest[2:]
        if rest: g.A(f'v_max_u32 v{t}, v{t}, v{rest[0]}')
        g.A(f'v_cmp_eq_u32 vcc, -1, v{t}')
    return f

def last_arriver(g, idx, skip):
    A = g.A
    A('v_mov_b32 v11, 1'); A('v_mov_b32 v12, 0')
    A('s_mov_b64 exec, 1')
    A(f'ds_add_rtn_u32 v13, v12, v11 offset:{L_CNT + 4*idx}')
    A('s_mov_b64 exec, -1')
    A('s_waitcnt lgkmcnt(0)')
    A('v_readfirstlane_b32 s50, v13')
    g.nop(1)
    A('s_cmp_lg_u32 s50, 3'); A(f's_cbranch_scc1 {skip}')

def sum4x4(g, r, sanitize=True):
    A = g.A
    for i in (0, 2):
        A(f'v_pk_add_f32 v[{r+i}:{r+i+1}], v[{r+i}:{r+i+1}], v[{r+4+i}:{r+5+i}]')
        A(f'v_pk_add_f32 v[{r+8+i}:{r+9+i}], v[{r+8+i}:{r+9+i}], v[{r+12+i}:{r+13+i}]')
    for i in (0, 2): A(f'v_pk_add_f32 v[{r+i}:{r+i+1}], v[{r+i}:{r+i+1}], v[{r+8+i}:{r+9+i}]')
    if sanitize:
        for i in range(4): A(f'v_min_u32 v{r+i}, -2, v{r+i}')

def build(ts=False, nsb=60, exp='', depth=6, lead=3, leadv=5, header='', opsl=1, apth=4, apsl=8, psl=2, sing=24, mlsl=8, tlead=1, pace=5, wl=0, tw=0, dm=6, single=2, nt2=58, dm2=8, lown=5, dmh=0, dk=0, nsbk=0):
    tsmask = None
    if 'tailts' in exp: tsmask = {('S', 0), ('S', 6), ('S', 7), ('S', 9), ('S', 13), ('X', 9)} | {('H', i) for i in (10, 11, 12, 13, 14, 15)}
    if 'prog' in exp: tsmask = {('S', 0), ('S', 3), ('S', 5), ('S', 6)}
    if 'spin' in exp: tsmask = {('S', 0), ('S', 11), ('S', 12), ('S', 14), ('S', 15)}
    if 'mlpts' in exp: tsmask = {('S', 0), ('S', 6)} | {('H', i) for i in (13, 14, 15)} | {('M', i) for i in range(1, 10)}
    g = G(ts, tsmask); A = g.A
    g.w0only = 'prog' in exp
    if 'ld01' in exp: g.ldf = ' sc0 sc1'
    if 'st01' in exp: g.stf = ' sc0 sc1'
    if 'ldnt' in exp: g.ldf = ' sc1 nt'
    if 'stnt' in exp: g.stf = ' sc1 nt'
    NSB = nsb; NSBK = max(nsbk, nsb); NCL = 64 - NSB; D = depth
    g.L.append(header + f'; @launch grid=(256,1,1) block=(512,1,1) lds={LDS_BYTES}')
    for l in DOC.strip().split('\n'): g.L.append('; ' + l)
    g.L.append('.amdgcn_target "amdgcn-amd-amdhsa--gfx950"')
    g.L.append('.text'); g.L.append(f'.globl {NAME}_kernel'); g.L.append('.p2align 8')
    g.L.append(f'.type {NAME}_kernel,@function'); g.label(f'{NAME}_kernel')
    A('s_cmp_ge_u32 s2, 256'); A('s_cbranch_scc1 L_end')
    A('s_load_dwordx16 s[16:31], s[0:1], 0')
    A('s_load_dwordx8 s[32:39], s[0:1], 64')
    A('s_load_dwordx4 s[40:43], s[0:1], 96')
    A('v_lshrrev_b32 v1, 6, v0'); A('v_and_b32 v0, 63, v0')
    A('v_readfirstlane_b32 s3, v1')
    A('s_lshr_b32 s4, s2, 3'); A('s_and_b32 s5, s2, 7')
    A('s_lshr_b32 s50, s4, 1'); A('s_mul_i32 s51, s50, 3'); A('s_sub_u32 s52, s5, s51'); A('s_and_b32 s52, s52, 7')
    A('s_and_b32 s53, s4, 1')
    A('s_add_u32 s58, s51, s52'); A('s_lshl_b32 s58, s58, 1'); A('s_add_u32 s58, s58, s53'); A('s_cmp_lt_u32 s52, 3'); A('s_cselect_b32 s58, s58, 255')
    A('s_and_b32 s6, s3, 3')
    if ts:
        A('s_lshl_b32 s95, s2, 3'); A('s_add_u32 s95, s95, s3'); A('s_lshl_b32 s95, s95, 7'); A(f's_add_u32 s95, s95, {WS_TS}')
    A('s_cmp_ge_u32 s3, 4'); A('s_cbranch_scc1 L_helper')

    VOFF = 1; VL = 2; VL2 = 3; Q = 4
    AA = list(range(8, 16)); BB = list(range(16, 24)); T = list(range(24, 32)); PA = list(range(32, 40)); PB = list(range(40, 48))
    PL = 48; OM = 54; OL = 55; VQA = 56; VQ = 57; VPA = 58; VN = 59
    NB = NS // 8 - 1; NX = 8*NB
    def slot(i): return 64 + 4*i
    def pslot(t): return 8 + t if t < NX else t - NX
    A('s_lshl_b32 s44, s2, 21')
    A('s_lshl_b32 s53, s6, 10'); A('s_add_u32 s44, s44, s53'); A('s_mov_b32 s45, s44')
    A(f'v_lshlrev_b32 v{VOFF}, 4, v0')
    A('s_waitcnt lgkmcnt(0)')
    srd(g, 8, 18, 1 << 29); srd(g, 12, 20, 1 << 29)
    g.stamp(0)
    def ld(sl, sr):
        A(f'buffer_load_dwordx4 v[{slot(sl)}:{slot(sl)+3}], v{VOFF}, s[{sr}:{sr+3}], s44 offen nt')
        A('s_add_u32 s44, s44, 4096')
    def prefetch(sr, first, D):
        for t in range(first, NS):
            A(f's_waitcnt vmcnt({D-1})'); ld(pslot(t), sr)
    for t in range(D): ld(pslot(t), 8)
    A('s_barrier')
    A(f'v_lshrrev_b32 v{VL2}, 4, v0'); A(f'v_lshlrev_b32 v{VL2}, 5, v{VL2}')
    A('s_lshl_b32 s46, s6, 14'); A(f's_add_u32 s46, s46, {L_SC}'); A(f'v_add_u32 v{VL2}, s46, v{VL2}')
    A(f'v_bfe_u32 v{VL}, v0, 1, 3'); A(f'v_lshl_add_u32 v{VL}, v{VL}, 2, v{VL2}')
    A('s_mov_b32 s48, 0xcccccccc'); A('s_mov_b32 s49, 0xcccccccc')
    A(f's_mov_b32 s47, {hex(f2u(128 ** -0.5))}'); A(f's_mov_b32 s52, {hex(LOG2E)}')
    A(f'v_mov_b32 v{OM}, 0xff7fffff'); A(f'v_mov_b32 v{OL}, 0')
    A(f'v_mov_b32 v{VPA}, s6'); A(f'v_lshlrev_b32 v{VPA}, 2, v{VPA}')
    A(f'v_and_b32 v50, 15, v0'); A(f'v_lshlrev_b32 v50, 5, v50')
    A(f'v_mov_b32 v{VQA}, {L_Q + 4*(NB+2)}'); A(f'v_mov_b32 v{VN}, {NB+2}')
    A(f's_mov_b32 s70, {SPIN_MAX*64}')
    prefetch(8, D, D)
    g.stamp(1)
    if 'xb1' not in exp: A('s_barrier')
    g.stamp(2)
    A(f'ds_read_b128 v[8:11], v50 offset:{L_HV}'); A(f'ds_read_b128 v[12:15], v50 offset:{L_HV + 16}')
    A('s_waitcnt lgkmcnt(0)')
    for i in range(4): A(f'v_cvt_pk_bf16_f32 v{Q+i}, v{8+2*i}, v{9+2*i}')
    def kdot(a, sl):
        A(f'v_mov_b32 v{a}, 0')
        for i in range(4): A(f'v_dot2c_f32_bf16 v{a}, v{slot(sl)+i}, v{Q+i}')
    def kreduce(a, off=None):
        g.nop(3)
        for j in range(4):
            A(f'v_add_f32_dpp v{T[j]}, v{a[j]}, v{a[j]} row_ror:8 row_mask:0xf bank_mask:0x3')
            A(f'v_add_f32_dpp v{T[j]}, v{a[j+4]}, v{a[j+4]} row_ror:8 row_mask:0xf bank_mask:0xc')
        for j in range(2):
            A(f'v_add_f32_dpp v{T[4+j]}, v{T[j]}, v{T[j]} row_half_mirror row_mask:0xf bank_mask:0x5')
            A(f'v_add_f32_dpp v{T[4+j]}, v{T[j+2]}, v{T[j+2]} row_half_mirror row_mask:0xf bank_mask:0xa')
        g.nop(1)
        A(f'v_add_f32_dpp v{T[6]}, v{T[4]}, v{T[4]} quad_perm:[2,3,0,1] row_mask:0xf bank_mask:0xf')
        A(f'v_add_f32_dpp v{T[7]}, v{T[5]}, v{T[5]} quad_perm:[2,3,0,1] row_mask:0xf bank_mask:0xf')
        A(f'v_cndmask_b32 v{T[6]}, v{T[6]}, v{T[7]}, s[48:49]')
        g.nop(2)
        A(f'v_add_f32_dpp v{T[6]}, v{T[6]}, v{T[6]} quad_perm:[1,0,3,2] row_mask:0xf bank_mask:0xf')
        rnd(g, T[6], T[6]); A(f'v_mul_f32 v{T[6]}, s47, v{T[6]}'); rnd(g, T[6], T[6])
        A(f'ds_write_b32 v{VL}, v{T[6]}' + ('' if off is None else f' offset:{off}'))
        A(f'v_max_f32 v{T[0]}, v{OM}, v{T[6]}')
        A(f'v_sub_f32 v{T[1]}, v{OM}, v{T[0]}'); A(f'v_sub_f32 v{T[2]}, v{T[6]}, v{T[0]}')
        A(f'v_mul_f32 v{T[1]}, s52, v{T[1]}'); A(f'v_mul_f32 v{T[2]}, s52, v{T[2]}')
        A(f'v_exp_f32 v{T[1]}, v{T[1]}'); A(f'v_exp_f32 v{T[2]}, v{T[2]}')
        A(f'v_mov_b32 v{OM}, v{T[0]}')
        if off is None: A(f'v_add_u32 v{VL}, 128, v{VL}')
        else: g.nop(1)
        A(f'v_fma_f32 v{OL}, v{OL}, v{T[1]}, v{T[2]}')
    def qread(): A(f'ds_read_b32 v{VQ}, v{VQA}')
    def qtop(pref, prog):
        g.label(f'{pref}_top')
        A('s_waitcnt lgkmcnt(0)')
        A(f'v_readfirstlane_b32 s50, v{VQ}')
        g.nop(1)
        A(f's_cmp_ge_u32 s50, {hex(Q_DONE)}'); A(f's_cbranch_scc1 {pref}_slow')
        A('s_add_u32 s44, s50, s53')
        if ts and ('kprog' in exp and prog == L_PROG or 'vprog' in exp and prog == L_PROGV):
            A(f'v_readfirstlane_b32 s71, v{VN}'); g.nop(2)
            lb = g.newlabel('L_st')
            A('s_and_b32 s72, s71, 7'); A('s_cmp_lg_u32 s72, 0'); A(f's_cbranch_scc1 {lb}')
            A('s_cmp_lg_u32 s3, 0'); A(f's_cbranch_scc1 {lb}')
            A('s_memrealtime s[96:97]'); A('s_waitcnt lgkmcnt(0)')
            A('v_mov_b32 v60, s96'); A('v_mov_b32 v61, s97'); A('s_add_u32 s72, s95, s71'); A('s_add_u32 s72, s72, 128'); A('v_mov_b32 v62, s72')
            A('s_mov_b64 exec, 1'); A('global_store_dwordx2 v62, v[60:61], s[42:43]'); A('s_mov_b64 exec, -1')
            g.label(lb)
        A(f'v_add_u32 v{VQA}, 4, v{VQA}')
        A(f'ds_write_b32 v{VPA}, v{VN} offset:{prog}'); A(f'v_add_u32 v{VN}, 1, v{VN}')
    def qslow(pref):
        g.label(f'{pref}_slow')
        A(f's_cmp_eq_u32 s50, {hex(Q_DONE)}'); A(f's_cbranch_scc1 {pref}_last')
        A('s_sub_u32 s70, s70, 1'); A('s_cmp_eq_u32 s70, 0'); A(f's_cbranch_scc1 {pref}_last')
        A('s_sleep 1'); qread(); A(f's_branch {pref}_top')
        g.label(f'{pref}_last')
    for j in range(8):
        A(f's_waitcnt vmcnt({dm-1})')
        kdot(AA[j], j); ld(j, 8)
        for e in range(NB*j, NB*(j+1)):
            kdot(BB[e % 8], 8 + e)
            if e % 8 == 7: kreduce(BB, off=(e // 8)*128)
    qread(); A(f'v_add_u32 v{VL}, {NB*128}, v{VL}'); kreduce(AA)
    g.stamp(8)
    qtop('L_k', L_PROG)
    for j in range(8):
        A(f's_waitcnt vmcnt({(dk or dm)-1-(dmh*(j%2))})')
        kdot(AA[j], j); ld(j, 8)
        if j == 6: qread()
    kreduce(AA)
    A('s_branch L_k_top')
    qslow('L_k')
    A('s_mov_b32 s44, s45')
    for j in range(8):
        A(f's_waitcnt vmcnt({dm-1})')
        kdot(AA[j], j); ld(pslot(j), 12)
    kreduce(AA)
    A(f'v_mov_b32 v{T[0]}, v{OM}')
    wave_allreduce(g, T[0], T[1], 'max')
    A(f'v_sub_f32 v{T[2]}, v{OM}, v{T[0]}'); A(f'v_mul_f32 v{T[2]}, s52, v{T[2]}'); A(f'v_exp_f32 v{T[2]}, v{T[2]}')
    A(f'ds_read_b32 v{T[3]}, v{VPA} offset:{L_TAG}')
    A('s_lshl_b32 s50, s2, 6'); A('s_lshl_b32 s56, s6, 4'); A('s_add_u32 s50, s50, s56')
    A(f'v_mul_f32 v{T[2]}, v{T[2]}, v{OL}')
    wave_allreduce(g, T[2], T[1])
    A(f'v_mul_f32 v{T[2]}, 0.5, v{T[2]}')
    A(f's_add_u32 s50, s50, {WS_ML}'); A(f'v_mov_b32 v{T[4]}, s50')
    A('s_waitcnt lgkmcnt(0)')
    A(f'v_mov_b32 v{T[1]}, v{T[3]}')
    A(f'ds_write_b32 v{VPA}, v{VN} offset:{L_KD}')
    A('s_mov_b64 exec, 1')
    A(f'global_store_dwordx4 v{T[4]}, v[{T[0]}:{T[3]}], s[42:43] sc1')
    A('s_mov_b64 exec, -1')
    g.stamp(3)
    if 'spin' in exp:
        g.stamp(11, 's70'); A(f'v_readfirstlane_b32 s71, v{VN}'); g.nop(4); g.stamp(14, 's71')
    prefetch(12, 8, dm)
    ACC = AA
    for i in range(8): A(f'v_mov_b32 v{ACC[i]}, 0')
    A(f'v_mov_b32 v{VQA}, {L_QV + 4*(NB+2)}'); A(f'v_mov_b32 v{VN}, {NB+2}')
    g.stamp(4)
    if 'xb2' not in exp: A('s_barrier')
    g.stamp(5)
    def pread(P, off):
        A(f'ds_read_b128 v[{P[0]}:{P[3]}], v{VL2} offset:{off}'); A(f'ds_read_b128 v[{P[4]}:{P[7]}], v{VL2} offset:{off+16}')
    def vmac(sl, p):
        A(f'v_lshrrev_b32 v{PL}, 16, v{p}')
        tile_mac(g, ACC, slot(sl), f'v{p}', f'v{PL}')
    pread(PA, NB*128); pread(PB, 0)
    PC = BB
    for j in range(8):
        A(f's_waitcnt vmcnt({dm-1}) lgkmcnt(0)' if j == 0 else f's_waitcnt vmcnt({dm-1})')
        vmac(j, PA[j]); ld(j, 12)
        for e in range(NB*j, NB*(j+1)):
            cur, nxt = (PB, PC) if (e // 8) % 2 == 0 else (PC, PB)
            if e % 8 == 0:
                A('s_waitcnt lgkmcnt(0)')
                if e // 8 + 1 < NB: pread(nxt, (e // 8 + 1)*128)
            vmac(8 + e, cur[e % 8])
    A(f'v_add_u32 v{VL2}, {(NB+1)*128}, v{VL2}')
    qread(); pread(PA, 0)
    g.stamp(10)
    def vbody(d):
        for j in range(8):
            A(f's_waitcnt vmcnt({d-1-(dmh*(j%2) if d == dm else 0)})')
            vmac(j, PA[j]); ld(j, 12)
            if j == 6: qread()
        A(f'v_add_u32 v{VL2}, 128, v{VL2}')
        pread(PA, 0)
    A(f's_mov_b32 s71, {NB+2}')
    qtop('L_v', L_PROGV)
    if nt2:
        A('s_add_u32 s71, s71, 1'); A(f's_cmp_gt_u32 s71, {nt2}'); A('s_cbranch_scc1 L_w_body')
    vbody(dm)
    A('s_branch L_v_top')
    if nt2:
        qtop('L_w', L_PROGV)
        g.label('L_w_body')
        vbody(dm2)
        A('s_branch L_w_top')
        g.label('L_w_slow')
        A(f's_cmp_eq_u32 s50, {hex(Q_DONE)}'); A('s_cbranch_scc1 L_v_last')
        A('s_sub_u32 s70, s70, 1'); A('s_cmp_eq_u32 s70, 0'); A('s_cbranch_scc1 L_v_last')
        A('s_sleep 1'); qread(); A('s_branch L_w_top')
    qslow('L_v')
    A('v_lshrrev_b32 v51, 4, v0'); A('v_lshl_add_u32 v50, v51, 3, v50')
    A('s_lshl_b32 s46, s6, 9'); A('v_add_u32 v50, s46, v50')
    A('s_lshl_b32 s46, s2, 9'); A(f's_add_u32 s46, s46, {WS_OP}'); A(f'v_add_u32 v51, s46, v{VOFF}')
    for j in range(8):
        A(f's_waitcnt vmcnt({7-j})')
        vmac(j, PA[j])
    g.stamp(6)
    if 'spin' in exp:
        g.stamp(12, 's70'); A(f'v_readfirstlane_b32 s71, v{VN}'); g.nop(4); g.stamp(15, 's71')
    g.nop(1)
    swap_reduce8(g, ACC)
    A(f'ds_write_b64 v50, v[{ACC[0]}:{ACC[1]}] offset:{L_OB}')
    A('s_waitcnt lgkmcnt(0)')
    A('s_barrier')
    if 'notail' in exp: A('s_branch L_end')
    A('v_mov_b32 v52, 0'); A(f'ds_read_b32 v53, v52 offset:{L_ROLE}')
    A('s_cmp_lg_u32 s3, 0'); A('s_cbranch_scc1 L_s_after_pub')
    A('s_mov_b64 exec, 0xffffffff')
    for w in range(4): A(f'ds_read_b128 v[{8+4*w}:{11+4*w}], v{VOFF} offset:{L_OB + 512*w}')
    A('s_waitcnt lgkmcnt(0)')
    sum4x4(g, 8)
    A('global_store_dwordx4 v51, v[8:11], s[42:43] sc1')
    A('s_mov_b64 exec, -1')
    g.stamp(7)
    g.label('L_s_after_pub')
    if 'xstage' in exp: A('s_branch L_end')
    A('s_waitcnt lgkmcnt(0)'); A('v_readfirstlane_b32 s57, v53'); g.nop(1)
    A(f's_cmp_ge_u32 s57, {NMLP}'); A('s_cbranch_scc1 L_end')
    SW = 64
    srd(g, 8, 28, 512*1792*2); srd(g, 12, 30, 512*1792*2); srd(g, 64, 32, 1792*512*2)
    A('v_lshrrev_b32 v52, 2, v0'); A('s_lshl_b32 s50, s6, 7'); A('v_add_u32 v52, s50, v52')
    A('v_and_b32 v53, 3, v0'); A('v_lshlrev_b32 v53, 4, v53')
    A('s_movk_i32 s50, 3584'); A('v_mad_u32_u24 v54, v52, s50, v53')
    A('v_lshrrev_b32 v55, 3, v52'); A('v_lshl_add_u32 v53, v55, 4, v53'); A('v_lshl_add_u32 v52, v52, 6, v53'); A(f'v_add_u32 v52, {L_ST}, v52')
    A(f'v_add_u32 v53, {ST_SZ}, v52')
    A('s_lshl_b32 s50, s6, 13'); A(f's_add_u32 s50, s50, {L_DS}'); A(f'v_add_u32 v55, s50, v{VOFF}')
    A('v_mov_b32 v11, 1'); A('v_mov_b32 v12, 0')
    A('s_lshl_b32 s50, s57, 6')
    A('s_lshl_b32 s51, s57, 5'); A('s_lshl_b32 s52, s6, 3'); A('s_add_u32 s51, s51, s52'); A('s_lshl_b32 s51, s51, 10')
    ops = []
    for j in range(8):
        ops.append((f'buffer_load_dwordx4 v[{SW+8*j}:{SW+8*j+3}], v54, s[8:11], s50 offen nt', f'ds_write_b128 v52, v[{SW+8*j}:{SW+8*j+3}] offset:{1056*j}', None))
        ops.append((f'buffer_load_dwordx4 v[{SW+8*j+4}:{SW+8*j+7}], v54, s[12:15], s50 offen nt', f'ds_write_b128 v53, v[{SW+8*j+4}:{SW+8*j+7}] offset:{1056*j}', f's_add_u32 s50, s50, {3584*16}'))
    for j in range(8):
        ops.append((f'buffer_load_dwordx4 v[{SW+64+4*j}:{SW+67+4*j}], v{VOFF}, s[64:67], s51 offen offset:{1024*(j%4)} nt', f'ds_write_b128 v55, v[{SW+64+4*j}:{SW+67+4*j}] offset:{1024*j}', 's_add_u32 s51, s51, 4096' if j == 3 else None))
    n = len(ops); PD = min(pace, n)
    for i in range(n + PD):
        if i >= PD:
            A(f's_waitcnt vmcnt({min(PD - 1, n - 1 - (i - PD))})'); A(ops[i - PD][1])
            if (i - PD) % 8 == 7: A('s_waitcnt lgkmcnt(0)')
        if i < n:
            A(ops[i][0])
            if ops[i][2]: A(ops[i][2])
    A('s_mov_b64 exec, 1')
    A(f'ds_add_u32 v12, v11 offset:{L_CNT + 16}')
    A('s_mov_b64 exec, -1')
    def stage_wait(pref):
        A(f's_mov_b32 s70, {SPIN_MAX*16}')
        g.label(f'{pref}_spin')
        A(f'ds_read_b32 v13, v12 offset:{L_CNT + 16}')
        A('s_waitcnt lgkmcnt(0)')
        A('v_readfirstlane_b32 s50, v13')
        A('s_sub_u32 s70, s70, 1'); A('s_cmp_eq_u32 s70, 0'); A(f's_cbranch_scc1 {pref}_done')
        A('s_cmp_ge_u32 s50, 5'); A(f's_cbranch_scc1 {pref}_done')
        A('s_sleep 1'); A(f's_branch {pref}_spin')
        g.label(f'{pref}_done')
    g.stamp(9)
    stage_wait('L_sst')
    A('s_branch L_gather_ap')

    g.label('L_helper'); g.role = 'H'
    WQ = 64; WM = 192; CC = 52; X8 = 56; X4 = 46; TAG = 49; MEAN = 40; SD = 41; RSD = 42
    A('v_lshrrev_b32 v1, 2, v0'); A('v_and_b32 v2, 3, v0')
    A('s_lshl_b32 s7, s6, 7')
    A('v_add_u32 v3, s7, v1')
    A('v_lshlrev_b32 v4, 2, v0'); A('s_lshl_b32 s50, s6, 8'); A('v_add_u32 v4, s50, v4')
    A('s_movk_i32 s50, 6144'); A('v_mul_lo_u32 v5, v3, s50'); A('v_lshl_add_u32 v5, v2, 4, v5')
    A('v_lshlrev_b32 v6, 4, v0')
    A('s_lshl_b32 s50, s5, 6'); A('s_lshl_b32 s51, s6, 4'); A('s_add_u32 s50, s50, s51')
    A('v_lshrrev_b32 v7, 4, v0'); A('v_lshl_add_u32 v7, v7, 2, s50')
    A('v_lshlrev_b32 v10, 1, v7')
    A('v_lshlrev_b32 v9, 13, v7'); A('v_and_b32 v11, 15, v0'); A('v_lshl_add_u32 v9, v11, 4, v9')
    A('v_mov_b32 v8, 0')
    A('s_waitcnt lgkmcnt(0)')
    g.stamp(0)
    A(f'global_load_dword v{TAG}, v8, s[42:43]')
    A('s_cmp_ge_u32 s58, 96'); A('s_cbranch_scc1 L_h_noprod1')
    srd(g, 8, 36, 512*3072*2)
    A(f'global_load_dword v{CC}, v4, s[34:35]')
    A('s_lshl_b32 s50, s58, 6')
    for j in range(0 if 'xwm' in exp else 8):
        A(f'buffer_load_dwordx4 v[{WM+4*j}:{WM+4*j+3}], v5, s[8:11], s50 offen' + (' nt' if 'wdef' not in exp else ''))
        if j < 7: A(f's_add_u32 s50, s50, {6144*16}')
    g.label('L_h_noprod1')
    A('s_lshl_b32 s50, s5, 3'); A('s_add_u32 s50, s50, s3'); A('s_cmp_lg_u32 s50, 4'); A('s_cbranch_scc1 L_h_nocinit')
    A('v_bfe_u32 v11, v0, 3, 1'); A('v_lshlrev_b32 v11, 7, v11'); A('v_and_b32 v12, 7, v0'); A('v_lshl_add_u32 v11, v12, 2, v11')
    A(f's_lshl_b32 s50, s4, 8'); A(f's_add_u32 s50, s50, {WS_CNT}'); A('v_add_u32 v11, s50, v11')
    A('s_mov_b64 exec, 0xffff')
    A('global_store_dword v11, v8, s[42:43] sc1')
    A('s_mov_b64 exec, -1')
    g.label('L_h_nocinit')
    A(f'global_load_dwordx4 v[{X8}:{X8+3}], v6, s[16:17]')
    A(f'global_load_dwordx2 v[{X4}:{X4+1}], v10, s[16:17]')
    srd(g, 12, 22, 512*4096*2)
    A('s_lshl_b32 s50, s4, 8')
    for j in range(0 if 'xwq' in exp else 4):
        A(f'buffer_load_dwordx4 v[{WQ+4*j}:{WQ+4*j+3}], v9, s[12:15], s50 offen nt')
        if j < 3: A('s_add_u32 s50, s50, 8192')
    A('s_cmp_lg_u32 s3, 4'); A('s_cbranch_scc1 L_h_nozero')
    A('v_lshlrev_b32 v10, 2, v0')
    A(f'ds_write_b32 v10, v8 offset:{L_CNT}')
    A('s_lshl_b32 s50, s2, 21')
    A('v_lshlrev_b32 v11, 15, v0'); A('v_add_u32 v11, s50, v11'); A('v_mov_b32 v12, -1')
    for q, nst in ((L_Q, NSBK), (L_QV, NSB)):
        A(f'v_cmp_gt_u32 vcc, {nst}, v0'); g.nop(2); A('v_cndmask_b32 v13, v12, v11, vcc')
        A(f'ds_write_b32 v10, v13 offset:{q}'); A(f'ds_write_b32 v10, v12 offset:{q + 256}')
    A('s_waitcnt lgkmcnt(0)')
    g.label('L_h_nozero')
    A('s_barrier')
    A('s_cmp_ge_u32 s58, 96'); A('s_cbranch_scc1 L_h_w1')
    A('s_waitcnt vmcnt(14)'); A('s_branch L_h_w2')
    g.label('L_h_w1')
    A('s_waitcnt vmcnt(4)')
    g.label('L_h_w2')
    A('s_mov_b32 s50, 0x9e3779b1')
    A(f'v_mul_lo_u32 v{TAG}, v{TAG}, s50'); A(f'v_add_u32 v{TAG}, 0x7f4a7c15, v{TAG}')
    A('v_mov_b32 v10, s6'); A('v_lshlrev_b32 v10, 2, v10'); A(f'ds_write_b32 v10, v{TAG} offset:{L_TAG}')
    g.stamp(1)
    A('s_cmp_ge_u32 s58, 96'); A('s_cbranch_scc1 L_h_noprod2')
    CV = list(range(16, 24)); ACC = list(range(24, 32))
    unpack(g, [32, 33], CC, 1)
    for i in range(2): A(f'v_mul_f32 v{80+i}, {hex(f2u(-1.4426950408889634))}, v{32+i}')
    sigmoid_mul_n(g, [(88+i, 32+i, 80+i, 96+i, 104+i, 112+i) for i in range(2)])
    for i in range(2): rnd(g, 88+i, 88+i)
    A('v_and_b32 v10, 7, v0'); A('v_lshlrev_b32 v10, 6, v10'); A('v_lshrrev_b32 v11, 3, v0'); A('v_lshl_add_u32 v10, v11, 2, v10')
    A('s_lshl_b32 s50, s6, 9'); A('v_add_u32 v10, s50, v10')
    A(f'ds_write_b32 v10, v88 offset:{L_QP}'); A(f'ds_write_b32 v10, v89 offset:{L_QP + 32}')
    A('v_lshl_add_u32 v10, v1, 5, s50')
    A(f'ds_read_b128 v[16:19], v10 offset:{L_QP}'); A(f'ds_read_b128 v[20:23], v10 offset:{L_QP + 16}')
    A('s_waitcnt vmcnt(0) lgkmcnt(0)' if 'xwq' in exp else 's_waitcnt vmcnt(6) lgkmcnt(0)')
    for i in range(8): A(f'v_mov_b32 v{ACC[i]}, 0'); A(f'v_lshrrev_b32 v{80+i}, 16, v{CV[i]}')
    for j in range(8): tile_mac(g, ACC, WM + 4*j, f'v{CV[j]}', f'v{80+j}')
    A('v_lshrrev_b32 v10, 4, v0'); A('v_lshlrev_b32 v10, 3, v10'); A('v_lshl_add_u32 v10, v2, 5, v10')
    A('v_add_u32 v10, s7, v10')
    swap_reduce8(g, ACC)
    row_allreduce(g, ACC[:2], rors=(8, 4))
    A(f'ds_write_b64 v10, v[{ACC[0]}:{ACC[1]}] offset:{L_MODP}')
    last_arriver(g, 0, 'L_h_noprod2')
    A('v_and_b32 v11, 7, v0'); A('v_lshlrev_b32 v11, 4, v11')
    for w in range(4): A(f'ds_read_b128 v[{16+4*w}:{19+4*w}], v11 offset:{L_MODP + 128*w}')
    A('s_lshl_b32 s50, s58, 7'); A(f's_add_u32 s50, s50, {WS_MOD}'); A('v_add_u32 v10, s50, v11')
    A('s_mov_b64 exec, 0xff')
    A('s_waitcnt lgkmcnt(0)')
    sum4x4(g, 16, False)
    A('v_cvt_pk_bf16_f32 v16, v16, v17'); A('v_cvt_pk_bf16_f32 v18, v18, v19'); A(f'v_mov_b32 v17, v{TAG}'); A(f'v_mov_b32 v19, v{TAG}')
    A('global_store_dwordx4 v10, v[16:19], s[42:43] sc1')
    A('s_mov_b64 exec, -1')
    g.stamp(2)
    g.label('L_h_noprod2')
    A('s_waitcnt vmcnt(4)')
    XS = list(range(16, 24))
    unpack(g, XS, X8)
    ln_stats(g, XS, MEAN, SD, list(range(32, 40)))
    A(f'v_rcp_f32 v{RSD}, v{SD}')
    A(f's_mov_b32 s50, {WS_MOD}')
    A('v_lshlrev_b32 v10, 2, v7'); A('v_add_u32 v10, s50, v10')
    unpack(g, [16, 17, 18, 19], X4, 2)
    def lds_():
        A('global_load_dwordx4 v[24:27], v10, s[42:43] sc1'); A('global_load_dwordx4 v[28:31], v10, s[42:43] offset:2048 sc1')
    poll(g, lds_, chk_tags(g, [25, 27, 29, 31], TAG), sleep=psl)
    g.stamp(3)
    for k, src in enumerate((24, 26)):
        A(f'v_lshlrev_b32 v{20+2*k}, 16, v{src}'); A(f'v_and_b32 v{21+2*k}, 0xffff0000, v{src}')
    for k, src in enumerate((28, 30)):
        A(f'v_lshlrev_b32 v{32+2*k}, 16, v{src}'); A(f'v_and_b32 v{33+2*k}, 0xffff0000, v{src}')
    for i in range(4): A(f'v_add_f32 v{32+i}, 1.0, v{32+i}')
    for i in range(4): rnd(g, 32+i, 32+i)
    modulate_n(g, [(36+i, 16+i, 32+i, 20+i, 80+i, 84+i) for i in range(4)], MEAN, SD, RSD)
    ACC = list(range(24, 32))
    for i in range(8): A(f'v_mov_b32 v{ACC[i]}, 0')
    for j in range(4): A(f'v_lshrrev_b32 v{80+j}, 16, v{36+j}')
    for j in range(4): tile_mac(g, ACC, WQ + 4*j, f'v{36+j}', f'v{80+j}')
    A('v_and_b32 v10, 15, v0'); A('v_lshlrev_b32 v10, 5, v10'); A('v_lshrrev_b32 v11, 4, v0'); A('v_lshl_add_u32 v10, v11, 3, v10')
    A('s_lshl_b32 s50, s6, 9'); A('v_add_u32 v10, s50, v10')
    swap_reduce8(g, ACC)
    A(f'ds_write_b64 v10, v[{ACC[0]}:{ACC[1]}] offset:{L_QP}')
    A('v_lshlrev_b32 v10, 3, v0')
    last_arriver(g, 1, 'L_h_noqpub')
    for w in range(4): A(f'ds_read_b64 v[{16+2*w}:{17+2*w}], v10 offset:{L_QP + 512*w}')
    A('s_lshl_b32 s50, s2, 10'); A(f's_add_u32 s50, s50, {WS_QX}'); A('v_add_u32 v10, s50, v6')
    A('s_waitcnt lgkmcnt(0)')
    A('v_pk_add_f32 v[16:17], v[16:17], v[18:19]'); A('v_pk_add_f32 v[20:21], v[20:21], v[22:23]'); A('v_pk_add_f32 v[16:17], v[16:17], v[20:21]')
    A(f'v_mov_b32 v19, v{TAG}'); A('v_mov_b32 v18, v17'); A(f'v_mov_b32 v17, v{TAG}')
    A('global_store_dwordx4 v10, v[16:19], s[42:43] sc1')
    g.label('L_h_noqpub')
    A('s_lshl_b32 s50, s4, 13'); A('s_lshl_b32 s51, s6, 8'); A('s_add_u32 s50, s50, s51'); A(f's_add_u32 s50, s50, {WS_QX}')
    A('v_lshrrev_b32 v10, 3, v0'); A('v_lshlrev_b32 v10, 10, v10'); A('v_and_b32 v11, 7, v0'); A('v_lshl_add_u32 v10, v11, 5, v10')
    A('v_add_u32 v10, s50, v10')
    A('v_lshlrev_b32 v48, 4, v11'); A('v_bfe_u32 v13, v0, 5, 1'); A('v_lshl_add_u32 v48, v13, 3, v48')
    A('v_bfe_u32 v13, v0, 4, 1'); A('v_lshl_add_u32 v48, v13, 2, v48'); A('v_add_u32 v12, s7, v48')
    def lds_():
        A('global_load_dwordx4 v[24:27], v10, s[42:43] sc1'); A('global_load_dwordx4 v[28:31], v10, s[42:43] offset:16 sc1')
    poll(g, lds_, chk_tags(g, [25, 27, 29, 31], TAG), sleep=psl)
    reduce4_hi(g, [24, 26, 28, 30])
    A(f'ds_write_b32 v12, v24 offset:{L_HV}')
    A('s_waitcnt lgkmcnt(0)')
    g.stamp(4)
    if 'xb1' not in exp: A('s_barrier')
    if 'xclr' in exp: A('s_branch L_h_noclear')
    A('s_cmp_lg_u32 s3, 7'); A('s_cbranch_scc1 L_h_noclear')
    for i in range(4): A(f'v_mov_b32 v{16+i}, -1')
    A('s_lshl_b32 s51, s2, 9'); A(f's_add_u32 s51, s51, {WS_OP}'); A('v_add_u32 v10, s51, v6')
    A('v_and_b32 v11, 15, v0'); A('v_lshlrev_b32 v11, 4, v11'); A('v_lshrrev_b32 v12, 4, v0'); A('v_lshl_add_u32 v11, v12, 16, v11')
    A('s_lshl_b32 s51, s2, 8'); A(f's_add_u32 s51, s51, {WS_AP}'); A('v_add_u32 v11, s51, v11'); A('v_add_u32 v12, 0x40000, v11')
    A('s_mov_b64 exec, 0xffffffff')
    A('global_store_dwordx4 v10, v[16:19], s[42:43] sc1')
    A('s_mov_b64 exec, 0xffff')
    A('global_store_dwordx4 v11, v[16:19], s[42:43] sc1')
    A('s_mov_b64 exec, -1')
    A(f's_cmp_ge_u32 s2, {NMLP}'); A('s_cbranch_scc1 L_h_noclear')
    A('s_lshl_b32 s51, s2, 11'); A(f's_add_u32 s51, s51, {WS_DP}'); A('v_add_u32 v10, s51, v6')
    A('global_store_dwordx4 v10, v[16:19], s[42:43] sc1')
    A('global_store_dwordx4 v10, v[16:19], s[42:43] offset:1024 sc1')
    g.label('L_h_noclear')
    WO = 64; WG = 80; WU = 112; WD = 144; E = 192
    if not wl:
        srd(g, 8, 24, 4096*512*2)
        A('v_lshrrev_b32 v10, 3, v0'); A('v_lshlrev_b32 v10, 2, v10')
        A('s_lshl_b32 s50, s4, 7'); A('s_lshl_b32 s51, s6, 5'); A('s_add_u32 s50, s50, s51')
        A('v_add_u32 v10, s50, v10'); A('v_lshlrev_b32 v10, 10, v10')
        A('v_and_b32 v11, 7, v0'); A('v_lshl_add_u32 v10, v11, 4, v10')
        A('s_lshl_b32 s50, s5, 7')
        for j in range(0 if 'xwo' in exp else 4):
            A(f'buffer_load_dwordx4 v[{WO+4*j}:{WO+4*j+3}], v10, s[8:11], s50 offen offset:{1024*j} nt')
    A('s_waitcnt vmcnt(0) lgkmcnt(0)')
    g.stamp(5)
    A('v_mov_b32 v12, s6'); A('v_lshlrev_b32 v12, 2, v12')
    A('s_lshl_b32 s59, s4, 24')
    A('v_mov_b32 v17, 0')
    def read_prog(off, dst):
        A(f'ds_read_b128 v[20:23], v17 offset:{off}')
        A('s_waitcnt lgkmcnt(0)')
        A('v_max3_u32 v20, v20, v21, v22'); A('v_max_u32 v20, v20, v23'); g.nop(1)
        A(f'v_readfirstlane_b32 {dst}, v20')
    A('s_cmp_lg_u32 s3, 4'); A('s_cbranch_scc1 L_nosched')
    def claim_setup(off, NCL):
        A(f's_lshl_b32 s50, s4, 8'); A(f's_add_u32 s50, s50, {WS_CNT + off}'); A('v_lshl_add_u32 v16, v0, 2, s50')
        A('s_mov_b32 s66, s5'); A('s_mov_b32 s67, 0'); A(f's_mov_b32 s88, {2 if NCL > single else 1}'); A('s_mov_b32 s90, 0')
    def claim_issue():
        l1 = g.newlabel('L_ci'); l2 = g.newlabel('L_ci')
        A('s_cmp_lg_u32 s90, 0'); A(f's_cbranch_scc1 {l1}')
        A('v_mov_b32 v18, s88')
        A('s_lshl_b32 s60, 1, s66'); A('s_mov_b32 s61, 0'); A('s_mov_b64 exec, s[60:61]')
        A('global_atomic_add v19, v16, v18, s[42:43] sc0 sc1')
        A(f's_branch {l2}')
        g.label(l1)
        A('s_mov_b64 exec, 0xff')
        A('global_load_dword v15, v16, s[42:43] sc1')
        g.label(l2)
        A('s_mov_b64 exec, -1')
    def claim_result(dst, ok, retry, done, NSB, NCL):
        A('s_cmp_lg_u32 s90, 0'); A(f's_cbranch_scc1 {ok}_snap')
        A(f'v_readlane_b32 {dst}, v19, s66')
        A('s_lshl_b32 s61, 1, s66')
        A(f's_cmp_lt_u32 {dst}, {NCL}'); A(f's_cbranch_scc0 {ok}_miss')
        A(f's_sub_u32 s54, {NCL}, {dst}'); A('s_min_u32 s54, s54, s88')
        A(f's_add_u32 s60, {dst}, s54'); A(f's_cmp_lt_u32 s60, {max(NCL - single, 0)}'); A('s_cselect_b32 s88, s88, 1')
        A('s_cmp_lg_u32 s66, s5'); A('s_cselect_b32 s90, 1, 0')
        A(f's_cmp_ge_u32 s60, {NCL}'); A('s_cselect_b32 s90, 1, s90'); A('s_cselect_b32 s61, s61, 0'); A('s_or_b32 s67, s67, s61')
        A('s_lshl_b32 s60, s66, 6'); A(f's_add_u32 {dst}, {dst}, s60'); A(f's_add_u32 {dst}, {dst}, {NSB}')
        A(f's_branch {ok}')
        g.label(f'{ok}_miss')
        A('s_or_b32 s67, s67, s61'); A('s_mov_b32 s88, 1'); A('s_mov_b32 s90, 1')
        A(f's_branch {retry}')
        g.label(f'{ok}_snap')
        A(f'v_cmp_gt_u32 vcc, {NCL}, v15')
        A('s_mov_b32 s90, 0'); A('s_mov_b32 s88, 1')
        A('s_andn2_b32 s60, vcc_lo, s67'); A('s_and_b32 s60, s60, 0xff'); A(f's_cbranch_scc0 {done}')
        A('s_lshl_b32 s61, s60, 8'); A('s_or_b32 s60, s60, s61'); A('s_lshr_b32 s60, s60, s5'); A('s_ff1_i32_b32 s60, s60')
        A('s_add_u32 s66, s60, s5'); A('s_and_b32 s66, s66, 7')
        A(f's_branch {retry}')
    claim_setup(0, 64 - NSBK)
    A(f's_mov_b32 s52, {NSBK}')
    A(f's_mov_b32 s70, {SPIN_MAX*16}')
    g.label('L_sch_wait')
    read_prog(L_PROG, 's50')
    A('s_sub_u32 s70, s70, 1'); A('s_cmp_eq_u32 s70, 0'); A('s_cbranch_scc1 L_sch_done')
    A('s_cmp_eq_u32 s67, 0'); A(f's_cselect_b32 s55, {lown}, {lead}'); A('s_add_u32 s50, s50, s55')
    A('s_cmp_ge_u32 s50, s52'); A('s_cbranch_scc1 L_sch_claim')
    A('s_sub_u32 s50, s52, s50'); A('s_cmp_gt_u32 s50, 4'); A('s_cbranch_scc1 L_sch_long')
    A('s_sleep 2'); A('s_branch L_sch_wait')
    g.label('L_sch_long')
    A('s_sleep 32'); A('s_branch L_sch_wait')
    g.label('L_sch_claim')
    A(f's_cmp_ge_u32 s52, {MAXROWS - 2}'); A('s_cbranch_scc1 L_sch_done')
    claim_issue()
    A('s_lshl_b32 s55, s52, 2'); A('v_mov_b32 v21, s55')
    A('s_waitcnt vmcnt(0)')
    claim_result('s53', 'L_sch_put', 'L_sch_claim', 'L_sch_done', NSBK, 64 - NSBK)
    g.label('L_sch_put')
    A('s_lshl_b32 s55, s53, 15'); A('s_add_u32 s55, s55, s59'); A('v_mov_b32 v20, s55')
    A(f'ds_write_b32 v21, v20 offset:{L_Q}')
    A('v_add_u32 v21, 4, v21'); A('s_add_u32 s52, s52, 1'); A('s_add_u32 s53, s53, 1')
    A('s_sub_u32 s54, s54, 1'); A('s_cmp_lg_u32 s54, 0'); A('s_cbranch_scc1 L_sch_put')
    A('s_branch L_sch_wait')
    g.label('L_sch_done')
    A('s_lshl_b32 s55, s52, 2'); A('v_mov_b32 v21, s55'); A('v_mov_b32 v20, -2')
    A(f'ds_write_b32 v21, v20 offset:{L_Q}')
    g.label('L_nosched')
    A('s_lshl_b32 s50, s4, 9'); A(f's_add_u32 s50, s50, {WS_ML}')
    A('v_and_b32 v11, 31, v0'); A('v_lshlrev_b32 v11, 4, v11'); A('v_add_u32 v11, s50, v11')
    A('s_lshl_b32 s50, s6, 14'); A(f's_add_u32 s50, s50, {L_SC}'); A('v_add_u32 v10, s50, v6')
    A(f's_mov_b32 s51, {hex(LOG2E)}')
    A(f's_mov_b32 s70, {SPIN_MAX*16}')
    g.label('L_kd_spin')
    A(f'ds_read_b32 v13, v12 offset:{L_KD}')
    A('s_waitcnt lgkmcnt(0)')
    A('v_readfirstlane_b32 s52, v13')
    A('s_sub_u32 s70, s70, 1'); A('s_cmp_eq_u32 s70, 0'); A('s_cbranch_scc1 L_kd_done')
    A('s_cmp_lg_u32 s52, 0'); A('s_cbranch_scc1 L_kd_done')
    A('s_sleep 8'); A('s_branch L_kd_spin')
    g.label('L_kd_done')
    g.stamp(6)
    NP = MAXROWS // 8
    for i in range(NP): A(f'ds_read_b128 v[{E+4*i}:{E+4*i+3}], v10 offset:{1024*i}')
    poll(g, lambda: A('global_load_dwordx4 v[28:31], v11, s[42:43] sc1'), chk_tags(g, [29, 31], TAG), sleep=mlsl)
    g.stamp(8)
    M = 22; IL = 23
    A('v_mov_b32 v22, v28')
    row_allreduce(g, [22], 'max')
    A('v_mov_b32 v23, v22'); g.nop(2); A('v_permlane16_swap_b32 v22, v23'); A('v_max_f32 v22, v22, v23')
    A('v_sub_f32 v20, v28, v22'); A('v_mul_f32 v20, s51, v20'); A('v_exp_f32 v20, v20'); g.nop(1)
    A('v_mul_f32 v20, v20, v30')
    row_allreduce(g, [20])
    A('v_mov_b32 v23, v20'); g.nop(2); A('v_permlane16_swap_b32 v20, v23'); A('v_add_f32 v20, v20, v23')
    A('v_mov_b32 v16, 1.0')
    divide(g, 23, 16, 20, 21, 24)
    A('s_waitcnt lgkmcnt(0)')
    for pc in range(NSB // 8):
        to_p(g, list(range(E + 4*pc, E + 4*pc + 4)), M, IL, 's51')
        A(f'ds_write_b128 v10, v[{E+4*pc}:{E+4*pc+3}] offset:{1024*pc}')
    if NSB % 8:
        pc = NSB // 8
        for i in range(4): A(f'v_mov_b32 v{32+i}, v{E+4*pc+i}')
        to_p(g, [32, 33, 34, 35], M, IL, 's51')
        A(f's_mov_b64 exec, {hex((1 << (8*(NSB % 8))) - 1)}' if NSB % 8 <= 4 and (1 << (8*(NSB % 8))) - 1 < (1 << 32) else f's_mov_b32 exec_hi, {hex((1 << (8*(NSB % 8) - 32)) - 1)}')
        A(f'ds_write_b128 v10, v[32:35] offset:{1024*pc}')
        A('s_mov_b64 exec, -1')
    A('s_waitcnt lgkmcnt(0)')
    g.stamp(9)
    if 'xb2' not in exp: A('s_barrier')
    A('v_lshrrev_b32 v11, 3, v0'); A('v_lshlrev_b32 v11, 2, v11')
    for pc in range(NSB // 8, NP): A(f'ds_read_b32 v{24 + pc - NSB//8}, v11 offset:{L_Q + 32*pc}')
    A('s_lshl_b32 s53, s4, 17'); A(f's_add_u32 s53, s53, {WS_SCG}')
    A('s_lshl_b32 s54, s6, 6'); A('s_add_u32 s54, s54, s53')
    A('v_and_b32 v12, 6, v0'); A('v_lshlrev_b32 v12, 3, v12'); A('v_add_u32 v12, s54, v12')
    A('s_mov_b32 s62, 0x55555555'); A('s_mov_b32 s63, 0x55555555')
    A('s_waitcnt lgkmcnt(0)')
    for pc in range(NSB // 8, NP):
        i0 = E + 4*pc; qv = 24 + pc - NSB//8
        A(f's_cmp_le_u32 s52, {8*pc}'); A('s_cbranch_scc1 L_exp_done')
        A(f'v_lshrrev_b32 v16, 16, v{i0}'); A(f'v_or_b32 v16, v16, v{i0+1}')
        A(f'v_lshrrev_b32 v17, 16, v{i0+2}'); A(f'v_or_b32 v17, v17, v{i0+3}')
        A(f'v_subrev_u32 v13, s59, v{qv}'); A('v_lshrrev_b32 v13, 7, v13'); A('v_add_u32 v13, v13, v12')
        A('v_mov_b32_dpp v18, v16 quad_perm:[1,1,3,3] row_mask:0xf bank_mask:0xf')
        A('v_mov_b32_dpp v19, v17 quad_perm:[1,1,3,3] row_mask:0xf bank_mask:0xf')
        A(f'v_cmp_gt_u32 vcc, -2, v{qv}')
        if pc == NSB // 8 and NSB % 8:
            msk = ((1 << 64) - 1) ^ ((1 << (8*(NSB % 8))) - 1)
            A(f's_mov_b32 s60, {hex(msk & 0xffffffff)}'); A(f's_mov_b32 s61, {hex(msk >> 32)}'); A('s_and_b64 vcc, vcc, s[60:61]')
        A('s_and_b64 exec, vcc, s[62:63]')
        lbx = g.newlabel('L_expz'); A(f's_cbranch_execz {lbx}')
        if 'xexp' not in exp: A('global_store_dwordx4 v13, v[16:19], s[42:43] sc1')
        g.label(lbx)
        A('s_mov_b64 exec, -1')
        to_p(g, list(range(i0, i0 + 4)), M, IL, 's51')
        A(f'ds_write_b128 v10, v[{i0}:{i0+3}] offset:{1024*pc}')
        g.nop(1)
    g.label('L_exp_done')
    A('s_waitcnt vmcnt(0)')
    last_arriver(g, 2, 'L_noxf')
    A('s_lshl_b32 s50, s2, 4'); A(f's_add_u32 s50, s50, {WS_XF}'); A('v_mov_b32 v13, s50')
    for i in range(4): A(f'v_mov_b32 v{16+i}, v{TAG}')
    A('s_mov_b64 exec, 1')
    A('global_store_dwordx4 v13, v[16:19], s[42:43] sc1')
    A('s_mov_b64 exec, -1')
    g.label('L_noxf')
    A('s_cmp_lg_u32 s3, 4'); A('s_cbranch_scc1 L_noschedv')
    A('s_lshl_b32 s50, s4, 7'); A(f's_add_u32 s50, s50, {WS_XF}'); A('v_and_b32 v13, 7, v0'); A('v_lshlrev_b32 v13, 4, v13'); A('v_add_u32 v13, s50, v13')
    poll(g, lambda: A('global_load_dword v16, v13, s[42:43] sc1'), chk_tags(g, [16], TAG), sleep=64)
    A('v_mov_b32 v12, 0'); A(f's_mov_b32 s70, {SPIN_MAX*16}')
    g.label('L_xw_spin')
    A(f'ds_read_b32 v13, v12 offset:{L_CNT + 8}')
    A('s_waitcnt lgkmcnt(0)')
    A('v_readfirstlane_b32 s50, v13')
    A('s_sub_u32 s70, s70, 1'); A('s_cmp_eq_u32 s70, 0'); A('s_cbranch_scc1 L_xw_done')
    A('s_cmp_ge_u32 s50, 4'); A('s_cbranch_scc1 L_xw_done')
    A('s_sleep 8'); A('s_branch L_xw_spin')
    g.label('L_xw_done')
    claim_setup(128, NCL)
    A(f's_mov_b32 s52, {NSB}'); A('s_mov_b32 s56, -1'); A('s_mov_b32 s62, 0')
    A('v_mov_b32 v17, 0')
    A('v_add_u32 v24, s53, v6')
    A('v_bfe_u32 v25, v0, 2, 2'); A('v_lshlrev_b32 v25, 14, v25'); A('v_lshrrev_b32 v26, 4, v0'); A('v_lshl_add_u32 v25, v26, 7, v25')
    A('v_lshl_add_u32 v25, v2, 5, v25'); A(f'v_add_u32 v25, {L_SC}, v25')
    A(f's_mov_b32 s70, {SPIN_MAX*16}')
    g.label('L_sv_top')
    A(f'ds_read_b128 v[32:35], v17 offset:{L_PROGV}')
    A('s_waitcnt lgkmcnt(0)')
    A('v_max3_u32 v32, v32, v33, v34'); A('v_max_u32 v32, v32, v35'); g.nop(1)
    A('v_readfirstlane_b32 s64, v32')
    A('s_sub_u32 s70, s70, 1'); A('s_cmp_eq_u32 s70, 0'); A('s_cbranch_scc1 L_sv_done')
    A('s_cmp_eq_u32 s67, 0'); A(f's_cselect_b32 s65, {lown}, {leadv}'); A('s_add_u32 s64, s64, s65')
    A('s_mov_b32 s65, 0')
    A('s_cmp_lg_u32 s62, 0'); A('s_cbranch_scc1 L_sv_noclaim')
    A('s_cmp_lt_u32 s64, s52'); A('s_cbranch_scc1 L_sv_noclaim')
    A(f's_cmp_ge_u32 s52, {MAXROWS - 2}'); A('s_cbranch_scc1 L_sv_full')
    A('s_mov_b32 s65, 1')
    claim_issue()
    A('s_branch L_sv_pend')
    g.label('L_sv_full')
    A('s_mov_b32 s62, 1')
    g.label('L_sv_noclaim')
    A('s_cmp_lg_u32 s56, -1'); A('s_cbranch_scc1 L_sv_pend')
    A('s_cmp_lg_u32 s62, 0'); A('s_cbranch_scc1 L_sv_done')
    A('s_sub_u32 s64, s52, s64'); A('s_cmp_gt_u32 s64, 4'); A('s_cbranch_scc1 L_sv_long')
    A('s_sleep 2'); A('s_branch L_sv_top')
    g.label('L_sv_long')
    A('s_sleep 32'); A('s_branch L_sv_top')
    g.label('L_sv_pend')
    A('s_cmp_eq_u32 s56, -1'); A('s_cbranch_scc1 L_sv_nofetch')
    A('s_lshl_b32 s60, s56, 8'); A('v_add_u32 v26, s60, v24')
    A('s_cmp_eq_u32 s89, 2'); A('s_cselect_b32 s60, -1, 0xffff'); A('s_mov_b32 s61, 0'); A('s_mov_b64 exec, s[60:61]')
    A('global_load_dwordx4 v[28:31], v26, s[42:43] sc1')
    A('s_lshl_b32 s60, s55, 7'); A('v_add_u32 v26, s60, v25')
    A('s_waitcnt vmcnt(0)')
    unpack(g, list(range(32, 40)), 28)
    to_p(g, list(range(32, 40)), M, IL, 's51')
    A('ds_write_b128 v26, v[32:35]'); A('ds_write_b128 v26, v[36:39] offset:16')
    A('v_lshrrev_b32 v26, 4, v0'); A('v_add_u32 v27, s56, v26'); A('v_lshlrev_b32 v27, 15, v27'); A('v_add_u32 v27, s59, v27')
    A('v_add_u32 v26, s55, v26'); A('v_lshlrev_b32 v26, 2, v26')
    A(f'ds_write_b32 v26, v27 offset:{L_QV}')
    A('s_mov_b64 exec, -1')
    A('s_mov_b32 s56, -1')
    g.label('L_sv_nofetch')
    A('s_cmp_eq_u32 s65, 0'); A('s_cbranch_scc1 L_sv_top')
    A('s_waitcnt vmcnt(0)')
    claim_result('s63', 'L_sv_got', 'L_sv_top', 'L_sv_done', NSB, NCL)
    g.label('L_sv_got')
    A('s_mov_b32 s56, s63'); A('s_mov_b32 s55, s52'); A('s_add_u32 s52, s52, s54'); A('s_mov_b32 s89, s54')
    A('v_and_b32 v26, 1, v0'); A('v_add_u32 v27, s56, v26'); A('v_lshlrev_b32 v27, 15, v27'); A('v_add_u32 v27, s59, v27')
    A('v_add_u32 v26, s55, v26'); A('v_lshlrev_b32 v26, 2, v26')
    A(f'ds_read_b32 v28, v26 offset:{L_Q}')
    A('s_lshl_b32 s60, 1, s54'); A('s_sub_u32 s60, s60, 1'); A('s_mov_b32 s61, 0')
    A('s_waitcnt lgkmcnt(0)')
    A('s_mov_b64 exec, s[60:61]')
    A('v_cmp_ne_u32 vcc, v28, v27')
    A('s_cbranch_vccnz L_sv_other')
    A(f'ds_write_b32 v26, v27 offset:{L_QV}')
    A('s_mov_b32 s56, -1')
    g.label('L_sv_other')
    A('s_mov_b64 exec, -1')
    A('s_branch L_sv_top')
    g.label('L_sv_done')
    A('s_lshl_b32 s55, s52, 2'); A('v_mov_b32 v26, s55'); A('v_mov_b32 v27, -2')
    A(f'ds_write_b32 v26, v27 offset:{L_QV}')
    A('v_mov_b32 v27, s52'); A(f'ds_write_b32 v17, v27 offset:{L_ND}')
    g.label('L_noschedv')
    def near_end(pref, lead_):
        A('v_mov_b32 v17, 0')
        A(f's_mov_b32 s70, {SPIN_MAX*16}')
        g.label(f'{pref}_wait')
        A(f'ds_read_b128 v[32:35], v17 offset:{L_PROGV}'); A(f'ds_read_b32 v36, v17 offset:{L_ND}')
        A('s_waitcnt lgkmcnt(0)')
        A('v_max3_u32 v32, v32, v33, v34'); A('v_max_u32 v32, v32, v35')
        A('v_readfirstlane_b32 s51, v36'); A('v_readfirstlane_b32 s50, v32')
        A('s_sub_u32 s70, s70, 1'); A('s_cmp_eq_u32 s70, 0'); A(f's_cbranch_scc1 {pref}_go')
        A('s_cmp_eq_u32 s51, 0'); A(f's_cbranch_scc1 {pref}_long')
        A(f's_add_u32 s50, s50, {lead_}'); A('s_cmp_ge_u32 s50, s51'); A(f's_cbranch_scc1 {pref}_go')
        A('s_sleep 2'); A(f's_branch {pref}_wait')
        g.label(f'{pref}_long')
        A('s_sleep 24'); A(f's_branch {pref}_wait')
        g.label(f'{pref}_go')
    if wl:
        near_end('L_wo', wl)
        srd(g, 8, 24, 4096*512*2)
        A('v_lshrrev_b32 v10, 3, v0'); A('v_lshlrev_b32 v10, 2, v10')
        A('s_lshl_b32 s50, s4, 7'); A('s_lshl_b32 s51, s6, 5'); A('s_add_u32 s50, s50, s51')
        A('v_add_u32 v10, s50, v10'); A('v_lshlrev_b32 v10, 10, v10')
        A('v_and_b32 v11, 7, v0'); A('v_lshl_add_u32 v10, v11, 4, v10')
        A('s_lshl_b32 s50, s5, 7')
        for j in range(0 if 'xwo' in exp else 4):
            A(f'buffer_load_dwordx4 v[{WO+4*j}:{WO+4*j+3}], v10, s[8:11], s50 offen offset:{1024*j} nt')
    if tw:
        A('s_cmp_lg_u32 s3, 5'); A('s_cbranch_scc1 L_notw')
        near_end('L_tw', tw)
        A('v_lshlrev_b32 v16, 16, v0')
        for k, (base, nb) in enumerate(((28, 512*1792*2), (30, 512*1792*2), (32, 1792*512*2))):
            srd(g, 8 + 4*(k % 2), base, nb)
            A(f'buffer_load_dword v{18+k}, v16, s[{8 + 4*(k%2)}:{11 + 4*(k%2)}], 0 offen nt')
        g.label('L_notw')
    A('s_cmp_lg_u32 s3, 7'); A('s_cbranch_scc1 L_noticket')
    A('v_mov_b32 v18, 1')
    near_end('L_tk', tlead)
    A('s_mov_b64 exec, 1')
    A('global_atomic_add v19, v17, v18, s[40:41] sc0 sc1')
    A('s_waitcnt vmcnt(0)')
    A(f'ds_write_b32 v17, v19 offset:{L_ROLE}')
    A('s_mov_b64 exec, -1')
    A('v_readfirstlane_b32 s57, v19')
    A('s_waitcnt lgkmcnt(0)')
    g.label('L_noticket')
    GA = list(range(192, 200)); SB = list(range(200, 208)); CB = list(range(208, 216)); XF = list(range(216, 224)); GBR = 224
    unpack(g, XF, X8)
    A('s_lshl_b32 s50, s4, 12'); A('s_add_u32 s50, s50, s7'); A(f's_add_u32 s50, s50, {WS_OP}')
    A('v_lshrrev_b32 v10, 3, v0'); A('v_lshlrev_b32 v13, 4, v10'); A('v_lshlrev_b32 v10, 9, v10'); A('v_and_b32 v11, 7, v0'); A('v_lshl_add_u32 v10, v11, 4, v10')
    A('v_add_u32 v10, s50, v10')
    A('v_add_u32 v15, s7, v48')
    A('v_add_u32 v9, s7, v13')
    A('v_lshrrev_b32 v14, 4, v0'); A('v_lshlrev_b32 v14, 3, v14'); A('v_lshl_add_u32 v14, v11, 5, v14')
    A('s_lshl_b32 s52, s6, 8'); A('v_add_u32 v14, s52, v14')
    A('v_and_b32 v8, 15, v0'); A('v_lshlrev_b32 v8, 4, v8'); A('v_lshrrev_b32 v7, 4, v0'); A('v_lshl_add_u32 v8, v7, 16, v8')
    A('s_lshl_b32 s51, s2, 8'); A(f's_add_u32 s51, s51, {WS_AP}'); A('v_add_u32 v8, s51, v8'); A('v_add_u32 v7, 0x40000, v8')
    A('v_and_b32 v5, 15, v0'); A('v_lshlrev_b32 v5, 4, v5')
    ACC = list(range(24, 32))
    for i in range(8): A(f'v_mov_b32 v{ACC[i]}, 0')
    A('s_barrier')
    if 'notail' in exp: A('s_branch L_end')
    g.stamp(10)
    A('v_mov_b32 v12, 0'); A(f'ds_read_b32 v50, v12 offset:{L_ROLE}')
    A('s_cmp_lg_u32 s3, 7'); A('s_cbranch_scc1 L_tk_end')
    A(f's_cmp_ge_u32 s57, {NMLP}'); A('s_cbranch_scc1 L_tk_end')
    A('v_lshlrev_b32 v228, 5, v0'); A(f'v_add_u32 v228, {WS_MOD + 4096}, v228'); A('v_add_u32 v229, 4096, v228')
    A('v_and_b32 v230, 15, v0'); A('v_lshlrev_b32 v231, 3, v230'); A('s_and_b32 s50, s57, 15'); A('s_lshl_b32 s50, s50, 7')
    A(f's_add_u32 s50, s50, {WS_MOD + 1280*8}'); A('v_add_u32 v231, s50, v231')
    A(f'v_add_u32 v51, {WS_XF}, v6')
    def lds_():
        A('global_load_dwordx4 v[144:147], v228, s[42:43] sc1'); A('global_load_dwordx4 v[148:151], v228, s[42:43] offset:16 sc1')
        A('global_load_dwordx4 v[152:155], v228, s[42:43] offset:2048 sc1'); A('global_load_dwordx4 v[156:159], v228, s[42:43] offset:2064 sc1')
        A('global_load_dwordx4 v[160:163], v229, s[42:43] sc1'); A('global_load_dwordx4 v[164:167], v229, s[42:43] offset:16 sc1')
        A('global_load_dwordx2 v[172:173], v231, s[42:43] sc1')
        for i in range(4): A(f'global_load_dword v{168+i}, v51, s[42:43] offset:{1024*i} sc1')
    poll(g, lds_, chk_tags(g, [173, 168, 169, 170, 171] + list(range(145, 168, 2)), TAG), sleep=8)
    for k in range(3):
        b = 144 + 8*k
        A(f'v_mov_b32 v{b+1}, v{b+2}'); A(f'v_mov_b32 v{b+2}, v{b+4}'); A(f'v_mov_b32 v{b+3}, v{b+6}')
        A(f'ds_write_b128 v6, v[{b}:{b+3}] offset:{L_MV + 1024*k}')
    A('v_lshlrev_b32 v230, 2, v230')
    A(f'ds_write_b32 v230, v172 offset:{L_MV + 3072}')
    A('v_mov_b32 v51, 1'); A('s_mov_b64 exec, 1'); A(f'ds_add_u32 v12, v51 offset:{L_CNT + 16}'); A('s_mov_b64 exec, -1')
    g.label('L_tk_end')
    poll(g, lambda: A('global_load_dwordx4 v[16:19], v10, s[42:43] sc1'), chk_sent(g, [16, 17, 18, 19], 20), sleep=opsl)
    g.stamp(11)
    reduce4_hi(g, [16, 17, 18, 19])
    rnd(g, 16, 16)
    A(f'ds_write_b32 v15, v16 offset:{L_OV}')
    A(f'ds_read_b128 v[16:19], v9 offset:{L_OV}')
    A('s_waitcnt lgkmcnt(0)')
    for j in range(4): A(f'v_lshrrev_b32 v{20+j}, 16, v{16+j}')
    for j in range(4): tile_mac(g, ACC, WO + 4*j, f'v{16+j}', f'v{20+j}')
    g.nop(1)
    swap_reduce8(g, ACC)
    row_allreduce(g, ACC[:2], rors=(8,))
    A(f'ds_write_b64 v14, v[{ACC[0]}:{ACC[1]}] offset:{L_AW}')
    last_arriver(g, 3, 'L_h_noap')
    A('s_mov_b64 exec, 0xffff')
    for w in range(4): A(f'ds_read_b128 v[{16+4*w}:{19+4*w}], v5 offset:{L_AW + 256*w}')
    A('s_waitcnt lgkmcnt(0)')
    sum4x4(g, 16)
    A('global_store_dwordx4 v8, v[16:19], s[42:43] sc1')
    A('s_mov_b64 exec, -1')
    g.stamp(12)
    g.label('L_h_noap')
    if 'xstage' in exp: A('s_branch L_end')
    A('v_readfirstlane_b32 s57, v50'); g.nop(1)
    A(f's_cmp_ge_u32 s57, {NMLP}'); A('s_cbranch_scc1 L_end')
    A('s_movk_i32 s50, 528'); A('v_mul_lo_u32 v10, v0, s50'); A('s_lshl_b32 s50, s6, 4'); A(f's_add_u32 s50, s50, {L_ST}'); A('v_add_u32 v10, s50, v10')
    A(f'v_add_u32 v11, {ST_SZ}, v10')
    A('s_lshl_b32 s50, s6, 13'); A(f's_add_u32 s50, s50, {L_DS}'); A('v_add_u32 v14, s50, v6')
    A('v_mov_b32 v12, 0')
    stage_wait('L_hst')
    for j in range(8):
        A(f'ds_read_b128 v[{WG+4*j}:{WG+4*j+3}], v10 offset:{64*j}'); A(f'ds_read_b128 v[{WU+4*j}:{WU+4*j+3}], v11 offset:{64*j}')
        A(f'ds_read_b128 v[{WD+4*j}:{WD+4*j+3}], v14 offset:{1024*j}')
        if j % 4 == 3: A('s_waitcnt lgkmcnt(0)')
    for k in range(3): A(f'ds_read_b128 v[{16+4*k}:{19+4*k}], v6 offset:{L_MV + 1024*k}')
    A('v_lshrrev_b32 v13, 3, v48'); A('v_lshlrev_b32 v13, 2, v13')
    A(f'ds_read_b32 v28, v13 offset:{L_MV + 3072}')
    A('s_waitcnt lgkmcnt(0)')
    unpack(g, GA, 16); unpack(g, SB, 20); unpack(g, CB, 24)
    for i in range(8): A(f'v_add_f32 v{CB[i]}, 1.0, v{CB[i]}')
    for i in range(8): rnd(g, CB[i], CB[i])
    A('v_and_b32 v13, 16, v0'); A('v_cmp_eq_u32 vcc, 0, v13')
    A('v_lshlrev_b32 v13, 16, v28'); A('v_and_b32 v14, 0xffff0000, v28')
    A(f'v_cndmask_b32 v{GBR}, v14, v13, vcc')
    g.role = 'X'; g.stamp(9); g.role = 'H'
    g.label('L_gather_ap')
    A('s_and_b32 s50, s3, 1'); A('s_lshl_b32 s50, s50, 10'); A('s_lshr_b32 s51, s3, 1'); A('s_lshl_b32 s52, s51, 14')
    A('s_add_u32 s52, s52, s50'); A(f's_add_u32 s52, s52, {WS_AP + 4096}')
    A('v_lshlrev_b32 v10, 4, v0'); A('v_add_u32 v11, s52, v10'); A('v_add_u32 v12, 8192, v11')
    A('s_lshl_b32 s51, s51, 11'); A('s_add_u32 s51, s51, s50'); A('v_add_u32 v13, s51, v10')
    multi_poll(g, 'L_ap', 8, lambda i: f'global_load_dwordx4 v[{16+4*i}:{19+4*i}], v{11 + i//4}, s[42:43] offset:{(i%4)*2048 - 4096} sc1', 16, 14,
               [(16*16, apsl), (8*16, apsl // 3), (apth*16, apsl // 8)])
    g.stamp(13)
    for st in (16, 8, 4):
        for i in range(0, st, 2): A(f'v_pk_add_f32 v[{16+i}:{17+i}], v[{16+i}:{17+i}], v[{16+i+st}:{17+i+st}]')
    A(f'ds_write_b128 v13, v[16:19] offset:{L_AS}')
    A('v_lshlrev_b32 v10, 5, v0')
    A('s_waitcnt lgkmcnt(0)')
    A('s_barrier')
    A('s_cmp_lt_u32 s3, 4'); A('s_cbranch_scc1 L_end')
    g.role = 'M'; g.stamp(1); g.role = 'H'
    for p in range(4):
        A(f'ds_read_b128 v[{16+8*p}:{19+8*p}], v10 offset:{L_AS + 2048*p}'); A(f'ds_read_b128 v[{20+8*p}:{23+8*p}], v10 offset:{L_AS + 2048*p + 16}')
    AG = list(range(232, 240)); AU = list(range(240, 248))
    for i in range(8): A(f'v_mov_b32 v{AG[i]}, 0'); A(f'v_mov_b32 v{AU[i]}, 0')
    A('s_waitcnt lgkmcnt(4)')
    for i in range(0, 8, 2): A(f'v_pk_add_f32 v[{16+i}:{17+i}], v[{16+i}:{17+i}], v[{24+i}:{25+i}]')
    A('s_waitcnt lgkmcnt(0)')
    for i in range(0, 8, 2): A(f'v_pk_add_f32 v[{32+i}:{33+i}], v[{32+i}:{33+i}], v[{40+i}:{41+i}]')
    for i in range(0, 8, 2): A(f'v_pk_add_f32 v[{16+i}:{17+i}], v[{16+i}:{17+i}], v[{32+i}:{33+i}]')
    X1 = list(range(16, 24))
    for i in range(8): rnd(g, X1[i], X1[i])
    for i in range(0, 8, 2): A(f'v_pk_mul_f32 v[{16+i}:{17+i}], v[{16+i}:{17+i}], v[{GA[i]}:{GA[i+1]}]')
    for i in range(8): rnd(g, X1[i], X1[i])
    for i in range(0, 8, 2): A(f'v_pk_add_f32 v[{16+i}:{17+i}], v[{16+i}:{17+i}], v[{XF[i]}:{XF[i+1]}]')
    for i in range(8): rnd(g, X1[i], X1[i])
    A(f'ds_write_b128 v10, v[16:19] offset:{L_XF}'); A(f'ds_write_b128 v10, v[20:23] offset:{L_XF + 16}')
    g.role = 'M'; g.stamp(2); g.role = 'H'
    ln_stats(g, X1, MEAN, SD, list(range(32, 40)))
    A(f'v_rcp_f32 v{RSD}, v{SD}'); g.nop(1)
    g.role = 'M'; g.stamp(3); g.role = 'H'
    modulate_n(g, [(24+i, X1[i], CB[i], SB[i], 32+i, 248+i) for i in range(8)], MEAN, SD, RSD)
    for j in range(8): A(f'v_lshrrev_b32 v{32+j}, 16, v{24+j}')
    g.role = 'M'; g.stamp(4); g.role = 'H'
    for j in range(8):
        tile_mac(g, AG, WG + 4*j, f'v{24+j}', f'v{32+j}')
        tile_mac(g, AU, WU + 4*j, f'v{24+j}', f'v{32+j}')
    AD = list(range(24, 32))
    A('v_lshlrev_b32 v10, 5, v0'); A('s_lshl_b32 s50, s6, 11'); A('v_add_u32 v10, s50, v10')
    g.role = 'M'; g.stamp(5); g.role = 'H'
    swap_reduce8(g, AG, AU)
    row_allreduce(g, AG[:2] + AU[:2])
    for r in AG[:2] + AU[:2]: rnd(g, r, r)
    A(f'v_mov_b32 v16, {hex(f2u(0.044715))}')
    for i in range(2): A(f'v_mul_f32 v{18+i}, v{AG[i]}, v{AG[i]}')
    for i in range(2): A(f'v_mul_f32 v{18+i}, v{18+i}, v{AG[i]}')
    for i in range(2): A(f'v_fma_f32 v{18+i}, v{18+i}, v16, v{AG[i]}')
    for i in range(2): A(f'v_mul_f32 v{18+i}, {hex(f2u(-2*0.7978845608028654*1.4426950408889634))}, v{18+i}')
    sigmoid_mul_n(g, [(20+i, AG[i], 18+i, 32+i, 34+i, 36+i) for i in range(2)])
    for i in range(2): rnd(g, 20+i, 20+i)
    for i in range(2): A(f'v_mul_f32 v{20+i}, v{20+i}, v{AU[i]}')
    for i in range(2): rnd(g, 20+i, 20+i)
    for i in range(8): A(f'v_mov_b32 v{AD[i]}, 0')
    g.role = 'M'; g.stamp(6); g.role = 'H'
    for j in range(8): A(f'v_readlane_b32 s{72+j}, v{20 + j%2}, {16*(j//2 % 2) + 32*(j//4)}')
    A('s_lshl_b32 s50, s6, 9'); A('v_add_u32 v11, s50, v6')
    for j in range(8): A(f's_lshr_b32 s{80+j}, s{72+j}, 16')
    for j in range(8): tile_mac(g, AD, WD + 4*j, f's{72+j}', f's{80+j}')
    A('s_lshl_b32 s51, s57, 11'); A(f's_add_u32 s51, s51, {WS_DP}'); A('v_add_u32 v12, s51, v11')
    g.role = 'M'; g.stamp(7); g.role = 'H'
    g.nop(1)
    A(f'ds_write_b128 v10, v[{AD[0]}:{AD[3]}] offset:{L_DW}'); A(f'ds_write_b128 v10, v[{AD[4]}:{AD[7]}] offset:{L_DW + 16}')
    A('s_waitcnt lgkmcnt(0)')
    A('s_barrier')
    g.role = 'M'; g.stamp(8); g.role = 'H'
    A('s_mov_b64 exec, 0xffffffff')
    for w in range(4): A(f'ds_read_b128 v[{16+4*w}:{19+4*w}], v11 offset:{L_DW + 2048*w}')
    A('s_waitcnt lgkmcnt(0)')
    sum4x4(g, 16)
    A('global_store_dwordx4 v12, v[16:19], s[42:43] sc1')
    A('s_mov_b64 exec, -1')
    g.stamp(14)
    A(f's_cmp_ge_u32 s57, {NFIN}'); A('s_cbranch_scc1 L_end')
    A('s_cmp_lg_u32 s3, 4'); A('s_cbranch_scc1 L_end')
    A('v_lshrrev_b32 v10, 3, v0'); A('v_lshlrev_b32 v10, 11, v10'); A('v_and_b32 v11, 7, v0'); A('v_lshl_add_u32 v10, v11, 4, v10')
    A('s_lshl_b32 s50, s57, 7'); A(f's_add_u32 s51, s50, {WS_DP}'); A('v_add_u32 v52, s51, v10')
    for i in range(1, 7): A(f'v_add_u32 v{52+i}, {16384*i}, v52')
    A('v_add_u32 v13, s50, v48')
    A(f'ds_read_b32 v15, v13 offset:{L_XF}')
    A('v_lshrrev_b32 v12, 1, v13')
    multi_poll(g, 'L_dp', 7, lambda i: f'global_load_dwordx4 v[{16+4*i}:{19+4*i}], v{52+i}, s[42:43] sc1', 16, 51, [])
    for i in (0, 2):
        A(f'v_pk_add_f32 v[{16+i}:{17+i}], v[{16+i}:{17+i}], v[{20+i}:{21+i}]'); A(f'v_pk_add_f32 v[{24+i}:{25+i}], v[{24+i}:{25+i}], v[{28+i}:{29+i}]')
        A(f'v_pk_add_f32 v[{32+i}:{33+i}], v[{32+i}:{33+i}], v[{36+i}:{37+i}]')
    for i in (0, 2):
        A(f'v_pk_add_f32 v[{16+i}:{17+i}], v[{16+i}:{17+i}], v[{24+i}:{25+i}]'); A(f'v_pk_add_f32 v[{32+i}:{33+i}], v[{32+i}:{33+i}], v[{40+i}:{41+i}]')
    for i in (0, 2): A(f'v_pk_add_f32 v[{16+i}:{17+i}], v[{16+i}:{17+i}], v[{32+i}:{33+i}]')
    g.nop(2)
    reduce4_hi(g, [16, 17, 18, 19])
    A('s_waitcnt lgkmcnt(0)')
    rnd(g, 16, 16); A(f'v_mul_f32 v16, v{GBR}, v16'); rnd(g, 16, 16); A('v_add_f32 v16, v15, v16')
    A('v_cvt_pk_bf16_f32 v16, v16, v16')
    A('s_mov_b32 exec_lo, 0x00ff00ff'); A('s_mov_b32 exec_hi, 0x00ff00ff')
    A('global_store_short v12, v16, s[38:39]')
    A('s_cmp_lg_u32 s57, 0'); A('s_cbranch_scc1 L_fin_noepoch')
    A('s_mov_b64 exec, 1'); A('v_mov_b32 v13, 0')
    A(f'global_store_dword v13, v{TAG}, s[42:43] sc1')
    g.label('L_fin_noepoch')
    A('s_mov_b64 exec, -1')
    g.stamp(15)
    g.label('L_end'); A('s_endpgm')
    for s in ['.section .rodata,"a"', '.p2align 6', f'.amdhsa_kernel {NAME}_kernel', '  .amdhsa_next_free_vgpr 256',
              '  .amdhsa_next_free_sgpr 102', '  .amdhsa_accum_offset 256', '  .amdhsa_group_segment_fixed_size 0',
              '  .amdhsa_kernarg_size 112', '  .amdhsa_user_sgpr_count 2', '  .amdhsa_user_sgpr_kernarg_segment_ptr 1',
              '  .amdhsa_system_sgpr_workgroup_id_x 1', '.end_amdhsa_kernel']: g.L.append(s)
    return '\n'.join(g.L) + '\n'

if __name__ == '__main__':
    import argparse
    ap = argparse.ArgumentParser()
    ap.add_argument('out'); ap.add_argument('--ts', action='store_true')
    ap.add_argument('--nsb', type=int, default=60); ap.add_argument('--exp', default='')
    ap.add_argument('--depth', type=int, default=6); ap.add_argument('--lead', type=int, default=3); ap.add_argument('--leadv', type=int, default=5)
    ap.add_argument('--header', default='')
    for k, d in (('opsl', 1), ('apth', 4), ('apsl', 8), ('psl', 2), ('sing', 24), ('mlsl', 8), ('tlead', 1), ('pace', 5), ('wl', 0), ('tw', 0), ('dm', 6), ('single', 2), ('nt2', 58), ('dm2', 8), ('lown', 5), ('dmh', 0), ('dk', 0), ('nsbk', 0)): ap.add_argument('--' + k, type=int, default=d)
    a = ap.parse_args()
    hdr = ''
    if a.header:
        hdr = ''.join(l for l in open(a.header) if l.startswith(';') and '@launch' not in l)
    open(a.out, 'w').write(build(ts=a.ts, nsb=a.nsb, exp=a.exp, depth=a.depth, lead=a.lead, leadv=a.leadv, header=hdr, opsl=a.opsl, apth=a.apth, apsl=a.apsl, psl=a.psl, sing=a.sing, mlsl=a.mlsl, tlead=a.tlead, pace=a.pace, wl=a.wl, tw=a.tw, dm=a.dm, single=a.single, nt2=a.nt2, dm2=a.dm2, lown=a.lown, dmh=a.dmh, dk=a.dk, nsbk=a.nsbk))
```
